```python
import torch

def _softmax(x, axis=-1):
    return torch.softmax(x, dim=axis)

def _gelu(x):
    return torch.nn.functional.gelu(x, approximate='tanh')

def _silu(x):
    return torch.nn.functional.silu(x)

def _sigmoid(x):
    return torch.sigmoid(x)

def _layernorm(x, axis=-1, eps=1e-05):
    m = x.mean(dim=axis, keepdim=True)
    v = x.var(dim=axis, keepdim=True, unbiased=False)
    return (x - m) / torch.sqrt(v + eps)

def _scatter_add(tgt, idx, src, axis=0):
    return tgt.clone().index_add_(axis, idx, src)

def _segment_sum(src, seg, n):
    out = torch.zeros((n,) + src.shape[1:], dtype=src.dtype)
    return out.index_add_(0, seg, src)

def _pad(x, pw):
    flat = tuple((v for pair in reversed(pw) for v in pair))
    return torch.nn.functional.pad(x, flat)
kernel_name = 'adaLN_cond__sliding_block_cached__geglu_ffn__decode'

def setup_inputs():

    _w = lambda a: (lambda t: t.to(torch.bfloat16) if t.is_floating_point() else t)(torch.as_tensor(a))

    def _A_setup():
        B, Sq, D = (1, 1, 640)
        Hq, Hkv, Sk, Dh = (32, 32, 32768, 192)
        assert Hq % Hkv == 0, (Hq, Hkv)
        return {'x': _w((lambda *s: torch.randn(*s, dtype=torch.bfloat16) * 0.1)(B, Sq, D)), 'k_cache': _w((lambda *s: torch.randn(*s, dtype=torch.bfloat16) * 0.8)(B, Hkv, Sk, Dh)), 'v_cache': _w((lambda *s: torch.randn(*s, dtype=torch.bfloat16) * 1.6)(B, Hkv, Sk, Dh)), 'wq': _w((lambda *s: torch.randn(*s, dtype=torch.bfloat16) * 0.8)(D, Hq * Dh) * D ** (-0.5)), 'wo': _w((lambda *s: torch.randn(*s, dtype=torch.bfloat16) * 1.6)(Hq * Dh, D) * (Hq * Dh) ** (-0.5))}
    _A_in = _A_setup()

    def _B_setup():
        B, S, D, F = (1, 1, 640, 1536)
        return {'x': _w((lambda *s: torch.randn(*s, dtype=torch.bfloat16) * 0.1)(B, S, D)), 'w_gate': _w((lambda *s: torch.randn(*s, dtype=torch.bfloat16) * 0.1)(D, F)), 'w_up': _w((lambda *s: torch.randn(*s, dtype=torch.bfloat16) * 0.1)(D, F)), 'w_down': _w((lambda *s: torch.randn(*s, dtype=torch.bfloat16) * 0.1)(F, D))}
    _B_in = _B_setup()
    return {'A_x': _A_in['x'], 'A_k_cache': _A_in['k_cache'], 'A_v_cache': _A_in['v_cache'], 'A_wq': _A_in['wq'], 'A_wo': _A_in['wo'], 'B_x': _B_in['x'], 'B_w_gate': _B_in['w_gate'], 'B_w_up': _B_in['w_up'], 'B_w_down': _B_in['w_down'], 'c': _w((lambda *s: torch.randn(*s, dtype=torch.bfloat16) * 0.8)(1, 640) * 8.0), 'w_mod': _w((lambda *s: torch.randn(*s, dtype=torch.bfloat16) * 0.8)(640, 6 * 640) * 640 ** (-0.5) * 8.0)}

def reference(A_x, A_k_cache, A_v_cache, A_wq, A_wo, B_x, B_w_gate, B_w_up, B_w_down, c, w_mod):

    def _A_ref(x, k_cache, v_cache, wq, wo):
        B, Sq, D = x.shape
        Hq, Dh = (32, 192)
        Hkv, Sk = (k_cache.shape[1], k_cache.shape[2])
        W = min(4096, max(256, Sk // 4))
        rep = Hq // Hkv
        q = (lambda x, *d: x.permute(*d))((x @ wq).reshape(B, Sq, Hq, Dh), 0, 2, 1, 3)
        k = (lambda x, n, axis: torch.repeat_interleave(x, n, dim=axis))(k_cache[:, :, Sk - W:, :], rep, axis=1)
        v = (lambda x, n, axis: torch.repeat_interleave(x, n, dim=axis))(v_cache[:, :, Sk - W:, :], rep, axis=1)
        scores = torch.einsum('bhqd,bhkd->bhqk', q, k) * Dh ** (-0.5)
        p = _softmax(scores, axis=-1)
        o = torch.einsum('bhqk,bhkd->bhqd', p, v)
        return (lambda x, *d: x.permute(*d))(o, 0, 2, 1, 3).reshape(B, Sq, Hq * Dh) @ wo

    def _B_ref(x, w_gate, w_up, w_down):
        return _gelu(x @ w_gate) * (x @ w_up) @ w_down
    x = A_x
    mod = (_silu(c) @ w_mod).reshape(c.shape[0], 6, 1, -1)
    sa, ca, ga, sb, cb, gb = (mod[:, 0].clone(), mod[:, 1].clone(), mod[:, 2].clone(), mod[:, 3].clone(), mod[:, 4].clone(), mod[:, 5].clone())
    h = _layernorm(x, axis=-1) * (1 + ca) + sa
    x = x + ga * _A_ref(h, A_k_cache, A_v_cache, A_wq, A_wo)
    h = _layernorm(x, axis=-1) * (1 + cb) + sb
    x = x + gb * _B_ref(h, B_w_gate, B_w_up, B_w_down)
    return x
```

```python
import re

TRANS = re.compile(r'v_(exp|log|rcp|rsq|sqrt|sin|cos)_f32')
def regs_of(tok):
    tok = tok.strip()
    tok = tok.lstrip('-')
    if tok.startswith('abs(') or tok.startswith('|'):
        tok = tok.replace('abs(', '').replace(')', '').replace('|', '')
    m = re.fullmatch(r'([vsa])(\d+)', tok)
    if m: return {m.group(1) + m.group(2)}
    m = re.fullmatch(r'([vsa])\[(\d+):(\d+)\]', tok)
    if m: return {m.group(1) + str(i) for i in range(int(m.group(2)), int(m.group(3)) + 1)}
    if tok in ('vcc', 'vcc_lo', 'vcc_hi'): return {'vcc'}
    if tok in ('exec', 'exec_lo', 'exec_hi'): return {'exec'}
    if tok == 'm0': return {'m0'}
    return set()

class Ins:
    def __init__(self, text):
        self.text = text
        t = text.split(';')[0].strip()
        self.label = None
        if t.endswith(':'):
            self.label = t[:-1]; self.mn = None; return
        parts = t.split(None, 1)
        self.mn = parts[0]
        rest = parts[1] if len(parts) > 1 else ''
        ops = []; depth = 0; cur = ''
        for ch in rest:
            if ch == '[': depth += 1
            if ch == ']': depth -= 1
            if ch == ',' and depth == 0:
                ops.append(cur.strip()); cur = ''
            else: cur += ch
        if cur.strip(): ops.append(cur.strip())
        mods = ''
        if ops:
            sp = ops[-1].split(None, 1)
            if len(sp) > 1 and not ops[-1].startswith('hwreg'):
                ops[-1] = sp[0]; mods = sp[1]
        self.ops = ops; self.mods = mods
        mn = self.mn
        self.valu = mn.startswith('v_')
        self.mfma = mn.startswith('v_mfma')
        self.dot = mn.startswith('v_dot')
        self.trans = bool(TRANS.match(mn))
        self.dpp = bool(re.search(r'quad_perm|row_|wave_', mods))
        self.perml = mn.startswith('v_permlane')
        self.lane_read = mn in ('v_readlane_b32', 'v_readfirstlane_b32')
        self.vmem = mn.startswith(('buffer_', 'global_', 'flat_'))
        self.ds = mn.startswith('ds_')
        self.salu = mn.startswith('s_')
        self.branch = mn.startswith(('s_branch', 's_cbranch', 's_call'))
        self.ldsdma = self.vmem and (' lds' in ' ' + mods or 'load_lds' in mn)
        R = [regs_of(o) for o in ops]
        W = set(); Rd = set()
        if self.valu:
            if self.perml:
                W = R[0] | R[1]; Rd = R[0] | R[1]
            elif mn.startswith('v_cmp'):
                W = set(R[0]); Rd = set().union(*R[1:])
            elif mn.startswith(('v_add_co', 'v_sub_co', 'v_addc_co', 'v_subb_co', 'v_div_scale')):
                W = R[0] | R[1]; Rd = set().union(*R[2:])
            else:
                W = set(R[0]); Rd = set().union(*R[1:]) if len(R) > 1 else set()
                if mn.startswith(('v_fmac', 'v_dot2c', 'v_writelane')) or (self.dpp):
                    Rd |= R[0]
            if mn.startswith('v_cndmask') and len(ops) == 3: Rd |= {'vcc'}
        elif self.vmem:
            store = 'store' in mn
            atomic = 'atomic' in mn
            if self.ldsdma:
                Rd = set().union(*R) | {'m0'}
            elif store or (atomic and 'sc0' not in mods):
                Rd = set().union(*R)
            else:
                W = set(R[0]); Rd = set().union(*R[1:])
            self.store_data = set()
            if store and ('x3' in mn or 'x4' in mn):
                self.store_data = R[0] if mn.startswith('buffer') else R[1]
        elif self.ds:
            if 'read' in mn or 'rtn' in mn or 'permute' in mn or 'swizzle' in mn:
                W = set(R[0]); Rd = set().union(*R[1:])
            else:
                Rd = set().union(*R)
        elif self.salu:
            if mn.startswith(('s_cmp', 's_bitcmp', 's_waitcnt', 's_nop', 's_sleep', 's_barrier', 's_setprio', 's_endpgm', 's_branch', 's_cbranch', 's_setpc')):
                Rd = set().union(*R) if R else set()
            else:
                W = set(R[0]) if R else set(); Rd = set().union(*R[1:]) if len(R) > 1 else set()
                if 'saveexec' in mn: W |= {'exec'}
        self.W = W; self.Rd = Rd
        if self.mfma:
            self.A = R[1]; self.B = R[2]; self.C = R[3]; self.D = R[0]
    def states(self):
        if self.label is not None or self.mn is None: return 0
        if self.mn.startswith('.'): return 0
        if self.mn == 's_nop': return int(self.ops[0], 0) + 1
        return 1

def isv(s): return {r for r in s if r[0] in 'va' and r not in ('vcc',)}
def iss(s): return {r for r in s if (r[0] == 's') or r == 'vcc'}

def need(p, c):
    n = 0
    if p.valu and not p.mfma:
        vw = isv(p.W); sw = iss(p.W)
        if c.valu:
            hit = vw & c.Rd
            if c.dpp and hit: n = max(n, 2)
            if c.lane_read and hit: n = max(n, 1)
            if c.perml and hit: n = max(n, 2)
            if c.mfma and hit: n = max(n, 3 if p.dot else 2)
            if p.trans and hit and not c.trans: n = max(n, 1)
            if sw & c.Rd:
                n = max(n, 2)
                if c.mn in ('v_readlane_b32', 'v_writelane_b32') and sw & regs_of(c.ops[2]): n = max(n, 4)
            if p.dot:
                if c.mn == p.mn:
                    ab = regs_of(c.ops[1]) | regs_of(c.ops[2])
                    if vw & ab: n = max(n, 3)
                elif vw & (c.Rd | c.W): n = max(n, 3)
            if 'exec' in p.W: n = max(n, 5)
        if (c.vmem or c.ds):
            if c.vmem and sw & c.Rd: n = max(n, 5)
            if p.dot and vw & (c.Rd | c.W): n = max(n, 3)
    if p.mfma:
        passes = 8 if '32x32' in p.mn else 4
        big = {4: 8, 8: 12}[passes]
        if c.mfma:
            if p.D & (c.A | c.B): n = max(n, big)
            if p.D & c.C and p.D != c.C: n = max(n, big - 2)
            if p.D & c.D and p.D != c.C and not (p.D & c.C): n = max(n, big)
        elif c.valu:
            if p.D & (c.Rd | c.W): n = max(n, big)
            if p.C & c.W: n = max(n, passes - 1)
        elif c.vmem or c.ds:
            if p.D & (c.Rd | c.W): n = max(n, big)
            if p.C & c.W: n = max(n, passes - 1)
    if p.salu and 'm0' in p.W and c.vmem and c.ldsdma: n = max(n, 1)
    if p.vmem and getattr(p, 'store_data', None):
        if p.store_data & c.W: n = max(n, 2 if c.valu else 1)
    return n

class Asm:
    def __init__(self):
        self.L = []
    def __call__(self, text):
        for line in text.split('\n'):
            line = line.strip()
            if line: self.L.append(line)
    def pad(self):
        ins = [Ins(t) if not t.startswith(('.', ';')) else None for t in self.L]
        items = list(zip(self.L, ins))
        changed = True; total = 0
        while changed:
            changed = False
            labels = {i.label: k for k, (t, i) in enumerate(items) if i is not None and i.label}
            preds = {k: [] for k in range(len(items))}
            prev = None
            calls = [k for k, (t, i) in enumerate(items) if i is not None and i.mn and i.mn.startswith('s_call')]
            rets = [k for k, (t, i) in enumerate(items) if i is not None and i.mn == 's_setpc_b64']
            for k, (t, i) in enumerate(items):
                if k > 0:
                    pi = items[k - 1][1]
                    if not (pi is not None and pi.mn in ('s_branch', 's_endpgm', 's_setpc_b64') ) and not (pi is not None and pi.mn and pi.mn.startswith('s_call')):
                        preds[k].append(k - 1)
                    if pi is not None and pi.mn and pi.mn.startswith('s_call'):
                        preds[k] += rets
                if i is not None and i.mn and i.branch:
                    tgt = i.ops[-1]
                    if tgt in labels: preds[labels[tgt]].append(k)
            for k, (t, c) in enumerate(items):
                if c is None or c.mn is None: continue
                worst = 0
                stack = [(p, 0) for p in preds[k]]
                seen = set()
                while stack:
                    q, dist = stack.pop()
                    if (q, dist) in seen or dist >= 12: continue
                    seen.add((q, dist))
                    pi = items[q][1]
                    st = 0
                    if pi is not None and pi.mn is not None:
                        nd = need(pi, c)
                        if nd - dist > worst: worst = nd - dist
                        st = pi.states()
                    for p in preds[q]: stack.append((p, dist + st))
                if worst > 0:
                    txt = f's_nop {worst - 1}'
                    items.insert(k, (txt, Ins(txt)))
                    total += 1
                    changed = True
                    break
        self.L = [t for t, i in items]
        return total
    def text(self):
        return '\n'.join(('  ' + l if not (l.endswith(':') or l.startswith('.')) else l) for l in self.L) + '\n'
```

```python
import sys, struct
from asmlib import Asm
NAME = 'adaLN_cond__sliding_block_cached__geglu_ffn__decode'
def f2u(x): return struct.unpack('<I', struct.pack('<f', x))[0]
def H(x): return '0x%08x' % f2u(x)
LOG2E = 1.4426950408889634

R_MF = 0
R_O = R_MF + 2560*4
R_P = R_O + 8*6144*2
R_X1 = R_P + 16*640*4
R_DN = R_X1 + 640*4
R_GU = R_DN + 96*640*4
R_ST = R_GU + 96*512
assert R_ST + 32*128 <= 256*1792
R_SIB = 256*1792
R_MODA = R_SIB + 256*768
R_MODB = R_MODA + 16*5120
R_FLAG = R_MODB + 8*20480
R_DONE = R_FLAG + 2048
R_E = R_DONE + 8*1280 + 2048
R_STAMP = 1 << 20
assert R_E + 128 <= R_STAMP
L_ML = 0; L_LN = 64; L_H = 128; L_H2 = 512
L_CSTAT = 1024; L_CO = 1028; L_TRIG = 1032; L_WRDY = 1036; L_CWO = 1040; L_CQ = 1044; L_OK = 1048
L_Q = 1280
L_ST = 1792
L_PACC = 3072
L_OS = 5120
L_W = 11264
LDS_BYTES = L_W + 61440

DPPF = 'row_mask:0xf bank_mask:0xf'

def gen(T=2, NVE=2, TRIG=24, TWA=40, PF=1, stamps=False, TIMEOUT=1 << 20, SLA=8, SLB=4):
    A = Asm()
    uid = [0]
    def lab(p):
        uid[0] += 1
        return f'L_{p}{uid[0]}'
    def stamp(i):
        if stamps: A(f's_memrealtime s[{70+2*i}:{71+2*i}]')
    def spin_tail(L, sleep):
        if sleep: A(f's_sleep {sleep}')
        A(f's_sub_u32 s58, s58, 1\ns_cbranch_scc0 {L}\ns_branch L_fin')
    def lds_wait_ge(off, val, vz, vt, sleep=1):
        L = lab('w'); D = lab('d')
        A(f'{L}:\nds_read_b32 {vt}, {vz} offset:{off}\ns_waitcnt lgkmcnt(0)\nv_readfirstlane_b32 s3, {vt}\ns_cmp_ge_u32 s3, {val}\ns_cbranch_scc1 {D}')
        spin_tail(L, sleep)
        A(f'{D}:')
    def maxtree(regs, dst):
        regs = list(regs)
        if len(regs) == 2:
            A(f'v_max_u32 {dst}, {regs[0]}, {regs[1]}'); return
        A(f'v_max3_u32 {dst}, {regs[0]}, {regs[1]}, {regs[2]}')
        rest = regs[3:]
        while len(rest) >= 2:
            A(f'v_max3_u32 {dst}, {dst}, {rest[0]}, {rest[1]}'); rest = rest[2:]
        if rest: A(f'v_max_u32 {dst}, {dst}, {rest[0]}')
    def poll_end(regs, tmp, L, sleep):
        D = lab('ok')
        if len(regs) > 1: maxtree(regs, tmp)
        else: tmp = regs[0]
        A(f'v_cmp_eq_u32 vcc, -1, {tmp}\ns_cbranch_vccz {D}')
        spin_tail(L, sleep)
        A(f'{D}:')
    def allred8(regs, op='v_add_f32'):
        for pat in ('quad_perm:[1,0,3,2]', 'quad_perm:[2,3,0,1]', 'row_half_mirror'):
            for r in regs: A(f'{op} {r}, {r}, {r} {pat} {DPPF}')
    def red_hi(regs, op='v_add_f32'):
        for r in regs: A(f'{op} {r}, {r}, {r} row_ror:8 {DPPF}')
        for r in regs: A(f'{op} {r}, {r}, {r} row_bcast:15 row_mask:0xa bank_mask:0xf')
        for r in regs: A(f'{op} {r}, {r}, {r} row_bcast:31 row_mask:0xc bank_mask:0xf')
    def round_list(regs, tmps):
        regs = list(regs)
        prs = [(regs[i], regs[i+1] if i+1 < len(regs) else None) for i in range(0, len(regs), 2)]
        for k0 in range(0, len(prs), len(tmps)):
            blk = prs[k0:k0+len(tmps)]
            for (a, b), t in zip(blk, tmps): A(f'v_cvt_pk_bf16_f32 {t}, {a}, {b if b else a}')
            for (a, b), t in zip(blk, tmps):
                A(f'v_lshlrev_b32 {a}, 16, {t}')
                if b: A(f'v_and_b32 {b}, 0xffff0000, {t}')
    def masks(dst4, vl, t0, t1):
        A(f'v_and_b32 {t0}, 1, {vl}\nv_lshlrev_b32 {t0}, 4, {t0}\nv_mov_b32 {t1}, 0xffff\nv_lshlrev_b32 {t0}, {t0}, {t1}\nv_bfe_u32 {t1}, {vl}, 1, 2')
        for t in range(4):
            A(f'v_cmp_eq_u32 vcc, {t}, {t1}\nv_cndmask_b32 {dst4[t]}, 0, {t0}, vcc')
    def v(i): return f'v{i}'
    def vr(i, n): return f'v[{i}:{i+n-1}]'
    def set_exec(lo, hi):
        if lo == 0xffffffff and hi == 0xffffffff: A('s_mov_b64 exec, -1')
        elif hi == 0 and lo <= 64: A(f's_mov_b64 exec, {lo}')
        else: A(f's_mov_b32 exec_lo, 0x{lo:x}\ns_mov_b32 exec_hi, 0x{hi:x}')
    def tags():
        A('s_mul_i32 s14, s14, 0x9e3779b1\ns_add_u32 s14, s14, 0x7f4a7c15\ns_mul_i32 s15, s15, 0x85ebca6b\ns_add_u32 s15, s15, 0xc2b2ae35')

    A('L_base:')
    stamp(0)
    A('''s_cmp_ge_u32 s2, 256
    s_cbranch_scc1 L_end
    s_load_dwordx16 s[16:31], s[0:1], 0
    s_load_dwordx8 s[32:39], s[0:1], 64
    s_load_dwordx4 s[40:43], s[0:1], 96
    v_readfirstlane_b32 s4, v0
    v_and_b32 v2, 63, v0
    s_and_b32 s5, s2, 7
    s_lshl_b32 s5, s5, 2
    s_bfe_u32 s3, s2, 0x20003
    s_add_u32 s5, s5, s3
    s_lshr_b32 s6, s2, 5
    s_lshr_b32 s4, s4, 6
    v_lshrrev_b32 v3, 3, v2
    v_and_b32 v1, 7, v2
    v_lshlrev_b32 v1, 4, v1
    s_mov_b32 s47, 0x20000
    s_mov_b32 s51, 0x20000''')
    A(f's_mov_b32 s58, {TIMEOUT}')
    A('s_lshl_b32 s59, s5, 3\ns_add_u32 s59, s59, s6')
    W0 = 8; X0 = 48; D0 = 60; F0 = 64
    A('s_cmp_lt_u32 s4, 4\ns_cbranch_scc0 L_strm')
    A('s_setprio 3\ns_sub_u32 s10, s2, 96\ns_cselect_b32 s3, 1, s4\ns_cmp_eq_u32 s3, 0\ns_cbranch_scc0 L_ctrl')
    A(f'''s_mul_i32 s12, s10, 3277
    s_lshr_b32 s12, s12, 16
    s_mul_i32 s7, s12, 20
    s_sub_u32 s13, s10, s7
    v_mul_u32_u24 v72, {10*7680}, v3
    v_add_u32 v72, v72, v1
    s_mul_i32 s3, s12, {80*7680}
    s_lshl_b32 s7, s13, 7
    s_add_u32 s3, s3, s7
    s_mov_b32 s46, {80*7680}
    s_movk_i32 s57, 7680
    v_mul_u32_u24 v74, 20, v3
    s_mul_i32 s7, s12, 160
    v_add_u32 v74, s7, v74
    s_getpc_b64 s[60:61]
    L_pc0:
    s_add_u32 s60, s60, L_c0A-L_pc0
    s_addc_u32 s61, s61, 0
    s_waitcnt lgkmcnt(0)
    s_add_u32 s44, s36, s3
    s_addc_u32 s45, s37, 0
    global_load_dwordx4 v[82:85], v74, s[34:35]
    global_load_dword v86, v74, s[34:35] offset:16''')
    A('L_load10:\ns_mov_b32 s56, 0')
    for s in range(10):
        A(f'buffer_load_dwordx4 {vr(W0+4*s,4)}, v72, s[44:47], s56 offen nt')
        if s < 9: A('s_add_u32 s56, s56, s57')
    A('s_setpc_b64 s[60:61]')
    A('L_strm:')

    KR = lambda g, t: 8 + (g*3 + t)*4
    VR = lambda g, t: (104 + (g*3 + t)*4) if g < NVE else KR(g - NVE, t)
    Q0 = 140; S0 = 152; T0 = 160
    A(f'''v_mul_u32_u24 v4, 384, v3
    s_mul_i32 s3, s5, 12582912
    s_mul_i32 s7, s6, 196608
    s_add_u32 s3, s3, s7
    s_mul_i32 s7, s4, 24576
    s_add_u32 s3, s3, s7
    s_add_u32 s3, s3, {28672*384 - 4*24576}
    v_add_u32 v3, v1, v4
    s_movk_i32 s46, 24576
    s_movk_i32 s50, 24576
    s_waitcnt lgkmcnt(0)
    s_add_u32 s44, s18, s3
    s_addc_u32 s45, s19, 0
    s_add_u32 s48, s20, s3
    s_addc_u32 s49, s21, 0''')
    out = []
    def issue(kind, g, t, throttle=True):
        r = KR(g, t) if kind == 'K' else VR(g, t)
        srd = 's[44:47]' if kind == 'K' else 's[48:51]'
        if g == 0: so = '0'
        else:
            so = 's56'
            if issue.cur != g: A(f's_movk_i32 s56, {g*3072}')
            issue.cur = g
        A(f'buffer_load_dwordx4 {vr(r,4)}, v3, {srd}, {so} offen offset:{t*128} nt')
        out.append((kind, g, t))
        if throttle and len(out) > T: A(f's_waitcnt vmcnt({T})')
    issue.cur = -1
    def landed(kind, g):
        idx = max(i for i, o in enumerate(out) if o[0] == kind and o[1] == g)
        A(f's_waitcnt vmcnt({len(out) - 1 - idx})')
    nv = [0]
    vseq = [(g, t) for g in range(8) for t in range(3)]
    def issueV(n, throttle=True):
        for _ in range(n):
            if nv[0] >= 24: return
            g, t = vseq[nv[0]]
            last = nv[0] == 23
            issue('V', g, t, throttle and not last)
            nv[0] += 1
            if nv[0] == TRIG:
                A(f'ds_write_b32 v0, v1 offset:{L_TRIG}')
    n = 0
    for g in range(8):
        for t in range(3):
            issue('K', g, t, throttle=(n + 1 != T+1))
            n += 1
            if n == T+1:
                for i in range(8): A(f'v_mov_b32 v{S0+i}, 0')
                masks(['v4', 'v5', 'v6', 'v7'], 'v2', 'v160', 'v161')
                A(f'v_mov_b32 v0, 0\ns_barrier\ns_waitcnt vmcnt({T})')
    assert TRIG > 3*NVE
    issueV(3*NVE)
    stamp(1)
    lds_wait_ge(L_CQ, 3, 'v0', 'v160', sleep=2)
    for t in range(3): A(f'ds_read_b128 {vr(Q0+4*t,4)}, v1 offset:{L_Q + 128*t}')
    stamp(2)
    landed('K', 7)
    A('s_waitcnt lgkmcnt(0)\nv_mov_b32 v1, 1')
    for g2 in range(0, 8, 2):
        for t in range(3):
            for d in range(4):
                for g in (g2, g2+1):
                    A(f'v_dot2c_f32_bf16 v{S0+g}, v{KR(g,t)+d}, v{Q0+4*t+d}')
        if g2 in (0, 2, 4): issueV(1, throttle=False)
    S = [v(S0+g) for g in range(8)]
    allred8(S)
    TM = [v(T0+i) for i in range(8)]
    round_list(S, TM[:4])
    for r in S: A(f'v_mul_f32 {r}, 0x3d93cd3a, {r}')
    round_list(S, TM[:4])
    A(f'v_max3_f32 v160, {S[0]}, {S[1]}, {S[2]}\nv_max3_f32 v161, {S[3]}, {S[4]}, {S[5]}\nv_max3_f32 v160, v160, {S[6]}, {S[7]}\nv_max_f32 v160, v160, v161')
    red_hi(['v160'], 'v_max_f32')
    A('v_readlane_b32 s8, v160, 63')
    E = [v(Q0+i) for i in range(8)]
    for g in range(8): A(f'v_subrev_f32 {E[g]}, s8, {S[g]}')
    for g in range(8): A(f'v_mul_f32 {E[g]}, {H(LOG2E)}, {E[g]}')
    for g in range(8): A(f'v_exp_f32 {E[g]}, {E[g]}')
    for a, b in ((0,1),(2,3),(4,5),(6,7),(0,2),(4,6)): A(f'v_add_f32 {E[a]}, {E[a]}, {E[b]}')
    A(f'v_add_f32 v161, {E[0]}, {E[4]}')
    A(f's_lshl_b32 s3, s4, 3\nv_mov_b32 v162, s3')
    red_hi(['v161'])
    A('s_lshl_b64 exec, 1, 63')
    A(f'ds_write_b64 v162, v[160:161] offset:{L_ST - 32}')
    A(f'ds_add_u32 v0, v1 offset:{L_CSTAT}')
    A('s_mov_b64 exec, -1')
    stamp(3)
    issueV(24)
    stamp(4)
    A(f'''v_and_b32 v164, 7, v2
    v_lshlrev_b32 v164, 5, v164
    v_and_b32 v165, 16, v2
    s_mul_i32 s3, s4, 768
    v_add3_u32 v3, v164, v165, s3
    v_lshrrev_b32 v164, 5, v2
    v_lshl_add_u32 v3, v164, 3, v3
    s_mul_i32 s3, s6, 12288
    s_mul_i32 s7, s5, 384
    s_add_u32 s3, s3, s7
    s_add_u32 s9, s3, {R_O}''')
    L = lab('ml')
    A(f'{L}:\nds_read_b64 v[160:161], v0 offset:{L_ML}\ns_waitcnt lgkmcnt(0)')
    poll_end(['v160', 'v161'], 'v162', L, 2)
    stamp(5)
    for r in S: A(f'v_sub_f32 {r}, {r}, v160')
    for r in S: A(f'v_mul_f32 {r}, {H(LOG2E)}, {r}')
    for r in S: A(f'v_exp_f32 {r}, {r}')
    for r in S: A(f'v_mul_f32 {r}, {r}, v161')
    for r in S: A(f'v_cvt_pk_bf16_f32 {r}, {r}, {r}')
    for g in range(8):
        F = T0 + 4*(g & 1)
        for t in range(4): A(f'v_and_b32 v{F+t}, {S[g]}, v{4+t}')
        if g == 7: A('v_lshlrev_b32 v4, 4, v2\nv_lshlrev_b32 v5, 3, v2\nv_add_u32 v5, s9, v5')
        if g >= 6:
            for t in range(3):
                idx = out.index(('V', g, t))
                A(f's_waitcnt vmcnt({len(out) - 1 - idx})')
                A(f'v_mfma_f32_16x16x32_bf16 {vr(Q0+4*t,4)}, {vr(F,4)}, {vr(VR(g,t),4)}, {vr(Q0+4*t,4)}')
        else:
            landed('V', g)
            for t in range(3):
                c = '0' if g == 0 else vr(Q0+4*t, 4)
                A(f'v_mfma_f32_16x16x32_bf16 {vr(Q0+4*t,4)}, {vr(F,4)}, {vr(VR(g,t),4)}, {c}')
    stamp(6)
    for t in range(3):
        d = Q0 + 4*t
        A(f'v_permlane32_swap_b32 v{d}, v{d+2}\nv_permlane32_swap_b32 v{d+1}, v{d+3}')
    for t in range(3):
        d = Q0 + 4*t
        A(f'v_add_f32 v{d}, v{d+2}, v{d} row_ror:8 {DPPF}\nv_add_f32 v{d+1}, v{d+3}, v{d+1} row_ror:8 {DPPF}')
    set_exec(0x00ff00ff, 0x00ff00ff)
    for t in range(3): A(f'ds_write_b64 v3, {vr(Q0+4*t,2)} offset:{L_OS - 4*768 + 256*t}')
    A(f's_mov_b64 exec, 1\nds_add_rtn_u32 v6, v0, v1 offset:{L_CO}')
    set_exec(0xffffffff, 0xffff)
    for w in range(8): A(f'ds_read_b128 {vr(8+4*w,4)}, v4 offset:{L_OS + 768*w}')
    A('s_waitcnt lgkmcnt(0)\nv_readfirstlane_b32 s3, v6')
    for a, b in ((0,1),(2,3),(4,5),(6,7),(0,2),(4,6),(0,4)):
        A(f'v_pk_add_f32 {vr(8+4*a,2)}, {vr(8+4*a,2)}, {vr(8+4*b,2)}\nv_pk_add_f32 {vr(10+4*a,2)}, {vr(10+4*a,2)}, {vr(10+4*b,2)}')
    A('v_cvt_pk_bf16_f32 v8, v8, v9\nv_cvt_pk_bf16_f32 v9, v10, v11\nv_min_u32 v8, -2, v8\nv_min_u32 v9, -2, v9')
    A('s_cmp_eq_u32 s3, 7\ns_cbranch_scc0 L_fin')
    A('global_store_dwordx2 v5, v[8:9], s[42:43] sc1')
    stamp(7)
    A('s_branch L_fin')

    A('L_ctrl:')
    A('v_mov_b32 v0, 0\nv_lshlrev_b32 v75, 4, v2')
    A('s_cmp_eq_u32 s4, 0\ns_cbranch_scc1 L_c0B')
    A(f'''v_mul_u32_u24 v72, {10*12288}, v3
    s_mul_i32 s3, s6, {80*12288}
    s_mul_i32 s7, s5, 384
    s_add_u32 s3, s3, s7
    s_lshl_b32 s7, s4, 7
    s_add_u32 s3, s3, s7
    s_sub_u32 s3, s3, 128
    v_add_u32 v72, v72, v1
    s_mov_b32 s46, {80*12288}
    s_movk_i32 s57, 12288
    v_mov_b32 v60, -1
    v_mov_b32 v61, -1
    v_mov_b32 v62, -1
    v_mov_b32 v63, -1
    s_waitcnt lgkmcnt(0)
    s_load_dwordx2 s[14:15], s[42:43], {R_E}
    s_add_u32 s44, s22, s3
    s_addc_u32 s45, s23, 0
    s_cmp_eq_u32 s4, 1
    s_cbranch_scc0 L_c23''')
    A(f'''s_mul_i32 s3, s2, 1792
    v_add_u32 v73, s3, v75
    s_mul_i32 s3, s59, 768
    s_add_u32 s3, s3, {R_SIB}
    v_add_u32 v74, s3, v75
    global_store_dwordx4 v73, v[60:63], s[42:43] sc1
    s_mov_b32 exec_hi, 0xffff
    global_store_dwordx4 v74, v[60:63], s[42:43] sc1
    global_store_dwordx4 v73, v[60:63], s[42:43] offset:1024 sc1
    s_mov_b64 exec, -1
    v_mul_u32_u24 v73, 20, v2
    s_mul_i32 s7, s6, 160
    v_min_u32 v74, 39, v2
    v_lshl_add_u32 v74, v74, 2, s7
    global_load_dwordx4 v[76:79], v73, s[16:17]
    global_load_dword v80, v73, s[16:17] offset:16
    global_load_dword v82, v74, s[16:17]
    s_barrier''')
    masks(['v4', 'v5', 'v6', 'v7'], 'v2', 'v64', 'v65')
    A(f's_lshl_b32 s3, s59, 3\ns_add_u32 s3, s3, {R_FLAG}\nv_mov_b32 v73, s3\ns_waitcnt lgkmcnt(0)')
    tags()
    A('v_mov_b32 v84, s14\nv_mov_b32 v85, s15\ns_waitcnt vmcnt(0)\ns_mov_b64 exec, 1\nglobal_store_dwordx2 v73, v[84:85], s[42:43] sc1\ns_mov_b64 exec, -1')
    stamp(1)
    A('s_call_b64 s[60:61], L_load10')
    XA = [v(88+i) for i in range(10)]
    for i in range(5):
        A(f'v_lshlrev_b32 {XA[2*i]}, 16, v{76+i}\nv_and_b32 {XA[2*i+1]}, 0xffff0000, v{76+i}')
    A('v_and_b32 v83, 0xffff0000, v82\nv_lshlrev_b32 v82, 16, v82')
    A(f'v_add_f32 v60, {XA[0]}, {XA[1]}')
    for i in range(2, 10): A(f'v_add_f32 v60, v60, {XA[i]}')
    allred8(['v60']); red_hi(['v60'])
    A(f'v_mul_f32 v60, {H(1/640)}, v60\nv_readlane_b32 s8, v60, 63')
    for i in range(10): A(f'v_subrev_f32 {XA[i]}, s8, {XA[i]}')
    A(f'v_mul_f32 v61, {XA[0]}, {XA[0]}')
    for i in range(1, 10): A(f'v_fmac_f32 v61, {XA[i]}, {XA[i]}')
    allred8(['v61']); red_hi(['v61'])
    A(f'v_mul_f32 v61, {H(1/640)}, v61')
    round_list(['v60', 'v61'], ['v62'])
    A(f'v_add_f32 v61, {H(1e-5)}, v61')
    round_list(['v61'], ['v62'])
    A('v_sqrt_f32 v61, v61')
    round_list(['v61'], ['v62'])
    A('v_rcp_f32 v61, v61\nv_readlane_b32 s8, v60, 63\nv_readlane_b32 s9, v61, 63')
    XN = ['v82', 'v83']
    for r in XN: A(f'v_subrev_f32 {r}, s8, {r}')
    round_list(XN, ['v62'])
    for r in XN: A(f'v_mul_f32 {r}, s9, {r}')
    round_list(XN, ['v62'])
    A(f'''s_mul_i32 s3, s6, 5120
    s_add_u32 s3, s3, {R_MODA}
    s_add_u32 s48, s42, s3
    s_addc_u32 s49, s43, 0
    s_mov_b32 s50, {9*5120}
    s_lshl_b32 s3, s5, 6
    s_add_u32 s3, s3, {R_FLAG}
    v_lshrrev_b32 v73, 1, v1
    v_add_u32 v73, s3, v73
    s_movk_i32 s12, 2560
    s_mov_b32 s13, {8*5120}
    s_mov_b32 s11, {8*5120+2560}
    v_lshlrev_b32 v74, 3, v2''')
    set_exec(0xffffffff, 0xff)
    A(f'''s_and_b32 s3, s2, 7
    s_mul_i32 s3, s3, 1280
    s_mul_i32 s7, s6, 5
    s_lshr_b32 s7, s7, 2
    s_lshl_b32 s7, s7, 6
    s_add_u32 s3, s3, s7
    s_add_u32 s3, s3, {R_DONE}
    s_add_u32 s52, s42, s3
    s_addc_u32 s53, s43, 0
    s_and_b32 s54, s14, 0xff
    s_mul_i32 s54, s54, 0x01010101
    s_mov_b32 s55, s54''')
    L = lab('hh'); D = lab('hhd')
    A(f'{L}:')
    for k, off in enumerate((0, 64, 640, 704)): A(f's_load_dwordx2 s[{62+2*k}:{63+2*k}], s[52:53], {off} glc')
    A('s_waitcnt lgkmcnt(0)')
    for k in range(4): A(f's_xor_b64 s[{62+2*k}:{63+2*k}], s[{62+2*k}:{63+2*k}], s[54:55]')
    A('s_or_b64 s[62:63], s[62:63], s[64:65]\ns_or_b64 s[66:67], s[66:67], s[68:69]\ns_or_b64 s[62:63], s[62:63], s[66:67]')
    A(f's_cbranch_scc0 {D}')
    spin_tail(L, 2)
    A(f'{D}:')
    stamp(2)
    G = 88
    L = lab('ha'); D = lab('had')
    A(f'{L}:')
    A('global_load_dwordx2 v[86:87], v73, s[42:43] sc1')
    for k in range(16):
        so = ['0', 's12', 's13', 's11'][k // 4]
        A(f'buffer_load_dwordx4 {vr(G+4*k,4)}, v75, s[48:51], {so} offen offset:{640*(k%4)} sc1')
    A('s_waitcnt vmcnt(0)')
    A('v_cmp_ne_u64 s[8:9], v[86:87], s[14:15]')
    for k in range(16):
        A(f'v_cmp_ne_u64 vcc, s[14:15], {vr(G+4*k+2,2)}\ns_or_b64 s[8:9], s[8:9], vcc')
    A(f's_cbranch_scc0 {D}')
    spin_tail(L, SLA)
    A(f'{D}:')
    stamp(3)
    for a, b in ((0,1),(2,3),(4,5),(6,7),(0,2),(4,6),(0,4)):
        for base in (0, 8):
            A(f'v_pk_add_f32 {vr(G+4*(base+a),2)}, {vr(G+4*(base+a),2)}, {vr(G+4*(base+b),2)}')
    SA = [v(G), v(G+1)]; CA = [v(G+32), v(G+33)]
    round_list(SA + CA, ['v62', 'v63'])
    for r in CA: A(f'v_add_f32 {r}, 1.0, {r}')
    round_list(CA, ['v62'])
    for a, b in zip(CA, XN): A(f'v_mul_f32 {a}, {a}, {b}')
    round_list(CA, ['v62'])
    for a, b in zip(CA, SA): A(f'v_add_f32 {a}, {a}, {b}')
    for r in CA: A(f'v_cvt_pk_bf16_f32 {r}, {r}, {r}')
    for r in CA: A(f'v_min_u32 {r}, -2, {r}')
    A(f'ds_write_b64 v74, {vr(G+32,2)} offset:{L_H}\ns_mov_b64 exec, -1\ns_branch L_cq')
    A('L_c23:')
    A('''s_getpc_b64 s[8:9]
    L_pc1:
    s_sub_u32 s8, s8, L_pc1-L_base
    s_subb_u32 s9, s9, 0
    s_lshr_b32 s3, s2, 2
    s_andn2_b32 s3, s3, 1
    s_and_b32 s7, s4, 1
    s_add_u32 s3, s3, s7
    s_and_b32 s3, s3, 15
    s_lshl_b32 s3, s3, 10
    v_add_u32 v76, s3, v75
    v_min_u32 v76, L_end-L_base-12, v76
    global_load_dwordx4 v[80:83], v76, s[8:9]
    s_barrier
    s_waitcnt vmcnt(0)
    s_call_b64 s[60:61], L_load10''')
    masks(['v4', 'v5', 'v6', 'v7'], 'v2', 'v64', 'v65')
    A('s_waitcnt lgkmcnt(0)')
    tags()
    A('L_cq:')
    A('v_mul_u32_u24 v73, 40, v3')
    L = lab('hx')
    A(f'{L}:\nds_read2_b64 {vr(X0,4)}, v73 offset0:{L_H//8} offset1:{L_H//8+1}\nds_read2_b64 {vr(X0+4,4)}, v73 offset0:{L_H//8+2} offset1:{L_H//8+3}\nds_read_b64 {vr(X0+8,2)}, v73 offset:{L_H+32}\ns_waitcnt lgkmcnt(0)')
    poll_end([v(X0+i) for i in range(10)], 'v60', L, 2)
    A(f'''s_mul_i32 s3, s59, 768
    s_lshl_b32 s7, s4, 8
    s_add_u32 s11, s3, s7
    s_add_u32 s11, s11, {R_SIB - 256}
    s_call_b64 s[60:61], L_mm10
    v_add_u32 v64, s11, v64
    global_store_dwordx2 v64, v[60:61], s[42:43] sc1
    s_mov_b64 exec, -1''')
    stamp(4)
    A(f'''v_lshrrev_b32 v76, 4, v2
    v_and_b32 v77, 15, v2
    v_mul_u32_u24 v73, 768, v76
    v_lshl_add_u32 v73, v77, 4, v73
    s_mul_i32 s3, s5, 6144
    s_add_u32 s3, s3, s7
    s_add_u32 s3, s3, {R_SIB - 256}
    v_add_u32 v73, s3, v73
    s_add_u32 s52, s42, s3
    s_addc_u32 s53, s43, 0
    v_lshlrev_b32 v74, 3, v77
    v_lshl_add_u32 v74, v76, 1, v74
    s_lshl_b32 s3, s4, 7
    v_add_u32 v74, s3, v74
    v_mov_b32 v79, 1''')
    L = lab('hb')
    A(f'{L}:')
    for k in range(8): A(f's_load_dword s{62+k}, s[52:53], {768*k + 128} glc')
    A('s_waitcnt lgkmcnt(0)')
    for k in range(1, 8): A(f's_max_u32 s62, s62, s{62+k}')
    D = lab('hbh')
    A(f's_cmp_eq_u32 s62, -1\ns_cbranch_scc0 {D}')
    spin_tail(L, 1)
    A(f'{D}:')
    stamp(12)
    A(f'global_load_dwordx4 v[80:83], v73, s[42:43] sc1\nglobal_load_dwordx4 v[84:87], v73, s[42:43] offset:3072 sc1\ns_waitcnt vmcnt(0)')
    poll_end([v(80+i) for i in range(8)], 'v60', L, SLB)
    A('v_pk_add_f32 v[80:81], v[80:81], v[84:85]\nv_pk_add_f32 v[82:83], v[82:83], v[86:87]')
    A('v_permlane32_swap_b32 v80, v82\nv_permlane32_swap_b32 v81, v83\nv_add_f32 v80, v80, v82\nv_add_f32 v81, v81, v83')
    A('v_permlane16_swap_b32 v80, v81\nv_add_f32 v80, v80, v81\nv_cvt_pk_bf16_f32 v80, v80, v80')
    A(f'ds_write_b16 v74, v80 offset:{L_Q - 128}\ns_mov_b64 exec, 1\nds_add_u32 v0, v79 offset:{L_CQ}\ns_mov_b64 exec, -1')
    stamp(5)
    A('s_cmp_eq_u32 s4, 2\ns_cbranch_scc1 L_c2\ns_cmp_eq_u32 s4, 3\ns_cbranch_scc0 L_tail')
    A('s_cmp_lt_u32 s2, 20\ns_cbranch_scc0 L_tail')
    A(f's_lshl_b32 s3, s2, 10\nv_add_u32 v72, s3, v75')
    for r in range(8): A(f'v_add_u32 v{76+r}, {R_MODB + r*20480}, v72')
    lds_wait_ge(L_OK, 1, 'v0', 'v60', sleep=4)
    L = lab('fz'); D = lab('fzd')
    A(f'{L}:')
    for r in range(8): A(f'global_load_dwordx4 {vr(88+4*r,4)}, v{76+r}, s[42:43] sc1')
    A('s_waitcnt vmcnt(0)')
    A('v_cmp_ne_u64 s[8:9], v[90:91], s[14:15]')
    for r in range(1, 8): A(f'v_cmp_ne_u64 vcc, s[14:15], {vr(90+4*r,2)}\ns_or_b64 s[8:9], s[8:9], vcc')
    A(f's_cbranch_scc0 {D}')
    spin_tail(L, 16)
    A(f'{D}:')
    for a, b in ((0,1),(2,3),(4,5),(6,7),(0,2),(4,6),(0,4)): A(f'v_pk_add_f32 {vr(88+4*a,2)}, {vr(88+4*a,2)}, {vr(88+4*b,2)}')
    round_list(['v88', 'v89'], ['v60'])
    A(f'v_lshrrev_b32 v72, 1, v72\nglobal_store_dwordx2 v72, v[88:89], s[42:43] offset:{R_MF} sc1')
    stamp(6)
    A('s_branch L_tail')
    A('L_c2:')
    A(f'v_add_u32 v72, {R_FLAG}, v75')
    L = lab('af'); D = lab('afd')
    A(f'{L}:\nglobal_load_dwordx4 v[80:83], v72, s[42:43] sc1\nglobal_load_dwordx4 v[84:87], v72, s[42:43] offset:1024 sc1\ns_waitcnt vmcnt(0)')
    A('v_cmp_ne_u64 s[8:9], v[80:81], s[14:15]')
    for k in range(1, 4): A(f'v_cmp_ne_u64 vcc, s[14:15], {vr(80+2*k,2)}\ns_or_b64 s[8:9], s[8:9], vcc')
    A(f's_cbranch_scc0 {D}')
    spin_tail(L, 8)
    A(f'{D}:\nds_write_b32 v0, v79 offset:{L_OK}')
    stamp(6)
    A(f's_lshl_b32 s3, s5, 7\ns_add_u32 s3, s3, {R_ST}\ns_add_u32 s52, s42, s3\ns_addc_u32 s53, s43, 0\ns_lshl_b32 s3, s6, 3\nv_mov_b32 v72, s3\nv_lshrrev_b32 v73, 1, v1')
    lds_wait_ge(L_CSTAT, 8, 'v0', 'v60', sleep=2)
    stamp(7)
    def comb8():
        A('v_mov_b32 v60, v76')
        allred8(['v60'], 'v_max_f32')
        A(f'v_sub_f32 v61, v76, v60\nv_mul_f32 v61, {H(LOG2E)}, v61\nv_exp_f32 v61, v61\nv_mul_f32 v61, v61, v77')
        allred8(['v61'])
    A(f'ds_read_b64 v[76:77], v73 offset:{L_ST}\ns_waitcnt lgkmcnt(0)')
    comb8()
    A('v_min_u32 v60, -2, v60\nv_min_u32 v61, -2, v61\ns_mov_b64 exec, 1\nglobal_store_dwordx2 v72, v[60:61], s[52:53] sc1\ns_mov_b64 exec, -1')
    L = lab('st'); D = lab('std')
    A(f'{L}:\ns_load_dwordx16 s[20:35], s[52:53], 0 glc\ns_waitcnt lgkmcnt(0)\ns_max_u32 s3, s20, s21')
    for k in range(2, 16): A(f's_max_u32 s3, s3, s{20+k}')
    A(f's_cmp_eq_u32 s3, -1\ns_cbranch_scc0 {D}')
    spin_tail(L, 1)
    A(f'{D}:')
    for k in range(8): A(f'v_writelane_b32 v76, s{20+2*k}, {k}\nv_writelane_b32 v77, s{21+2*k}, {k}')
    comb8()
    A('v_rcp_f32 v61, v61\nv_min_u32 v60, -2, v60\nv_min_u32 v61, -2, v61')
    A(f's_mov_b64 exec, 1\nds_write_b64 v0, v[60:61] offset:{L_ML}\ns_mov_b64 exec, -1')
    stamp(3)
    A('s_branch L_tail')

    A('L_mm10:\ns_waitcnt vmcnt(0)')
    for s in range(10):
        F = F0 + 4*(s & 1)
        for t in range(4): A(f'v_and_b32 v{F+t}, v{X0+s}, v{4+t}')
        c = '0' if s == 0 else vr(D0, 4)
        A(f'v_mfma_f32_16x16x32_bf16 {vr(D0,4)}, {vr(F,4)}, {vr(W0+4*s,4)}, {c}')
    A('''v_and_b32 v65, 16, v2
    v_lshrrev_b32 v66, 5, v2
    v_lshl_add_u32 v64, v1, 1, v65
    v_lshl_add_u32 v64, v66, 3, v64''')
    A(f'v_permlane32_swap_b32 v60, v62\nv_permlane32_swap_b32 v61, v63')
    A(f'v_add_f32 v60, v62, v60 row_ror:8 {DPPF}\nv_add_f32 v61, v63, v61 row_ror:8 {DPPF}')
    A('v_min_u32 v60, -2, v60\nv_min_u32 v61, -2, v61')
    set_exec(0x00ff00ff, 0x00ff00ff)
    A('s_setpc_b64 s[60:61]')

    def calc_t(dst):
        A(f's_and_b32 s3, s2, 7\ns_mul_i32 s3, s3, 3\ns_add_u32 s3, s3, s6\ns_lshl_b32 s3, s3, 2\ns_bfe_u32 s7, s2, 0x20003\ns_add_u32 {dst}, s3, s7')
    def lds_init():
        A('''v_mov_b32 v76, -1
        v_mov_b32 v77, -1
        v_mov_b32 v78, -1
        v_mov_b32 v79, -1
        v_lshlrev_b32 v80, 2, v2
        ds_write_b128 v75, v[76:79]
        ds_write_b32 v80, v0 offset:1024''')
    A('L_c0A:')
    A('v_mov_b32 v0, 0\nv_lshlrev_b32 v75, 4, v2')
    lds_init()
    A(f's_waitcnt lgkmcnt(0)\ns_barrier\ns_load_dwordx2 s[14:15], s[42:43], {R_E}')
    masks(['v4', 'v5', 'v6', 'v7'], 'v2', 'v60', 'v61')
    A('s_waitcnt vmcnt(10)')
    C = [v(88+i) for i in range(10)]; E = [v(100+i) for i in range(10)]
    for i in range(5): A(f'v_lshlrev_b32 {C[2*i]}, 16, v{82+i}\nv_and_b32 {C[2*i+1]}, 0xffff0000, v{82+i}')
    for i in range(10): A(f'v_mul_f32 {E[i]}, {H(-LOG2E)}, {C[i]}')
    for i in range(10): A(f'v_exp_f32 {E[i]}, {E[i]}')
    for i in range(10): A(f'v_add_f32 {E[i]}, 1.0, {E[i]}')
    for i in range(10): A(f'v_rcp_f32 {E[i]}, {E[i]}')
    for i in range(10): A(f'v_mul_f32 {E[i]}, {E[i]}, {C[i]}')
    for i in range(10): A(f'v_cvt_pk_bf16_f32 v{X0+i}, {E[i]}, {E[i]}')
    A('s_waitcnt lgkmcnt(0)')
    tags()
    stamp(1)
    A('s_call_b64 s[60:61], L_mm10')
    A(f'''s_lshl_b32 s3, s13, 6
    v_lshrrev_b32 v64, 2, v64
    v_add_u32 v64, s3, v64
    v_mul_u32_u24 v65, 52429, v64
    v_lshrrev_b32 v65, 22, v65
    v_mul_u32_u24 v65, 4480, v65
    s_mul_i32 s3, s12, 640
    s_add_u32 s3, s3, {R_MODA}
    v_lshl_add_u32 v64, v64, 3, s3
    v_add_u32 v64, v64, v65
    v_mov_b32 v62, s14
    v_mov_b32 v63, s15
    global_store_dwordx4 v64, v[60:63], s[42:43] sc1
    s_lshl_b32 s3, s13, 6
    s_add_u32 s3, s3, s12
    s_add_u32 s3, s3, {R_DONE}
    v_mul_u32_u24 v65, 1280, v2
    v_add_u32 v65, s3, v65
    s_mov_b64 exec, 0xff
    global_store_byte v65, v62, s[42:43] sc1
    s_mov_b64 exec, -1''')
    stamp(2)
    A(f's_mul_i32 s11, s12, 20480\ns_lshl_b32 s7, s13, 9\ns_add_u32 s11, s11, s7\ns_add_u32 s11, s11, {R_MODB}')
    for rp in range(2):
        A('s_add_u32 s44, s44, 2560\ns_addc_u32 s45, s45, 0\ns_call_b64 s[60:61], L_load10\ns_call_b64 s[60:61], L_mm10')
        A('v_lshl_add_u32 v64, v64, 1, s11\nv_mov_b32 v62, s14\nv_mov_b32 v63, s15\nglobal_store_dwordx4 v64, v[60:63], s[42:43] sc1\ns_mov_b64 exec, -1')
        if rp == 0: A('s_add_u32 s11, s11, 10240')
    stamp(4)
    A(f'''s_mul_i32 s3, s10, 6554
    s_lshr_b32 s3, s3, 16
    s_mul_i32 s7, s3, 10
    s_sub_u32 s7, s10, s7
    s_mul_i32 s3, s3, {384*1280}
    s_lshl_b32 s7, s7, 7
    s_add_u32 s3, s3, s7
    s_add_u32 s44, s24, s3
    s_addc_u32 s45, s25, 0
    s_mov_b32 s46, {384*1280}
    v_mul_u32_u24 v72, 1280, v3
    v_add_u32 v72, v72, v1''')
    lds_wait_ge(L_TRIG, 1, 'v0', 'v60', sleep=4)
    stamp(6)
    L = lab('dma')
    A(f's_mov_b32 s56, 0\ns_movk_i32 s3, {L_W}\n{L}:\ns_mov_b32 m0, s3\ns_add_u32 s3, s3, 1024\nbuffer_load_dwordx4 v72, s[44:47], s56 offen nt lds\ns_add_u32 s56, s56, 10240\ns_waitcnt vmcnt({TWA})\ns_cmp_lt_u32 s56, {384*1280}\ns_cbranch_scc1 {L}')
    A('s_branch L_dmadone')
    A('L_c0B:')
    lds_init()
    calc_t('s12')
    A(f'''v_mul_u32_u24 v72, 3072, v3
    v_add_u32 v72, v72, v1
    s_lshr_b32 s3, s12, 2
    s_lshl_b32 s3, s3, 7
    s_and_b32 s7, s12, 3
    s_mul_i32 s7, s7, {160*3072}
    s_add_u32 s3, s3, s7
    s_waitcnt lgkmcnt(0)
    s_barrier
    s_add_u32 s44, s28, s3
    s_addc_u32 s45, s29, 0
    s_mov_b32 s46, {160*3072}
    s_add_u32 s48, s30, s3
    s_addc_u32 s49, s31, 0
    s_mov_b32 s50, {160*3072}''')
    lds_wait_ge(L_TRIG, 1, 'v0', 'v60', sleep=4)
    stamp(6)
    L = lab('dmb')
    A(f'''s_mov_b32 s56, 0
    s_movk_i32 s3, {L_W}
    {L}:
    s_mov_b32 m0, s3
    s_add_u32 s7, s3, 20480
    buffer_load_dwordx4 v72, s[44:47], s56 offen nt lds
    s_mov_b32 m0, s7
    s_add_u32 s3, s3, 1024
    buffer_load_dwordx4 v72, s[48:51], s56 offen nt lds
    s_add_u32 s56, s56, {8*3072}
    s_waitcnt vmcnt({TWA})
    s_cmp_lt_u32 s56, {160*3072}
    s_cbranch_scc1 {L}
    s_mul_i32 s3, s12, 20480
    s_add_u32 s44, s32, s3
    s_addc_u32 s45, s33, 0
    s_movk_i32 s46, 20480''')
    L = lab('dmc')
    A(f's_mov_b32 s56, 0\ns_mov_b32 s3, {L_W+40960}\n{L}:\ns_mov_b32 m0, s3\ns_add_u32 s3, s3, 1024\nbuffer_load_dwordx4 v75, s[44:47], s56 offen nt lds\ns_add_u32 s56, s56, 1024\ns_waitcnt vmcnt({TWA})\ns_cmp_lt_u32 s56, 20480\ns_cbranch_scc1 {L}')
    A('L_dmadone:')
    A(f's_waitcnt vmcnt(0)\nv_mov_b32 v60, 1\nds_write_b32 v0, v60 offset:{L_WRDY}')
    stamp(7)

    A('L_tail:')
    A('v_lshrrev_b32 v4, 4, v2\nv_and_b32 v5, 15, v2\nv_lshrrev_b32 v6, 2, v5\nv_and_b32 v7, 3, v2\nv_lshlrev_b32 v7, 3, v7')
    lds_wait_ge(L_CSTAT, 8, 'v0', 'v90', sleep=8)
    lds_wait_ge(L_OK, 1, 'v0', 'v90', sleep=4)
    A('s_cmp_ge_u32 s2, 96\ns_cbranch_scc0 L_tailB')
    A(f'''s_mul_i32 s12, s10, 6554
    s_lshr_b32 s12, s12, 16
    s_mul_i32 s7, s12, 10
    s_sub_u32 s13, s10, s7''')
    A('s_cmp_lt_u32 s10, 80\ns_cselect_b32 s57, 1, 0\ns_cmp_eq_u32 s4, 1\ns_cselect_b32 s57, s57, 0')
    A(f'''v_and_b32 v100, 1, v2
    v_lshl_add_u32 v100, v100, 2, v4
    s_lshl_b32 s3, s10, 3
    v_add_u32 v100, s3, v100
    v_lshlrev_b32 v101, 2, v100
    v_lshlrev_b32 v100, 1, v100
    v_add_u32 v102, {R_MF + 3*2560}, v101
    v_add_u32 v101, {R_X1}, v101
    v_lshrrev_b32 v103, 1, v2
    v_mul_u32_u24 v103, 2560, v103
    v_and_b32 v104, 1, v2
    v_lshl_add_u32 v103, v104, 4, v103
    s_lshl_b32 s3, s10, 5
    s_add_u32 s3, s3, {R_DN}
    v_add_u32 v103, s3, v103
    v_add_u32 v104, {32*2560}, v103
    v_add_u32 v105, {64*2560}, v103
    s_cmp_eq_u32 s57, 0
    s_cbranch_scc1 L_nofin
    global_load_ushort v107, v100, s[38:39]''')
    L = lab('gb')
    A(f'{L}:\nglobal_load_dword v106, v102, s[42:43] sc1\ns_waitcnt vmcnt(0)')
    poll_end(['v106'], None, L, 16)
    A('L_nofin:')
    B0 = 8; AA = 56; DD = 68
    A(f'''v_lshl_add_u32 v84, v4, 3, v6
    s_mul_i32 s3, s4, 96
    v_add_u32 v84, s3, v84
    v_lshl_add_u32 v84, v84, 7, v7
    v_and_b32 v85, 7, v2
    v_mul_u32_u24 v85, 12288, v85
    v_lshl_add_u32 v85, v4, 4, v85
    s_mul_i32 s3, s12, 768
    s_mul_i32 s7, s4, 192
    s_add_u32 s3, s3, s7
    s_add_u32 s3, s3, {R_O}
    v_add_u32 v85, s3, v85
    v_lshrrev_b32 v86, 5, v2
    v_lshl_add_u32 v86, v86, 4, v5
    v_lshlrev_b32 v86, 5, v86
    v_and_b32 v87, 1, v4
    v_lshl_add_u32 v86, v87, 2, v86
    s_lshl_b32 s3, s4, 3
    v_add_u32 v86, s3, v86
    v_lshlrev_b32 v87, 5, v2
    s_mul_i32 s3, s12, 2560
    s_lshl_b32 s7, s13, 8
    s_add_u32 s3, s3, s7
    s_add_u32 s3, s3, {R_P}
    v_lshl_add_u32 v88, v2, 2, s3
    v_mov_b32 v89, 1''')
    for i in range(12): A(f'v_mov_b32 v{AA+i}, 0')
    lds_wait_ge(L_WRDY, 1, 'v0', 'v90', sleep=4)
    for s in range(3):
        for ct in range(4):
            for hf in range(2):
                A(f'ds_read_b64_tr_b16 {vr(B0+(s*4+ct)*4+2*hf,2)}, v84 offset:{L_W + (32*s+4*hf)*128 + 32*ct}')
        A('s_waitcnt lgkmcnt(0)')
    stamp(8)
    lds_wait_ge(L_CO, 8, 'v0', 'v90', sleep=1)
    stamp(9)
    L = lab('wo')
    A(f'{L}:')
    set_exec(0x00ff00ff, 0x00ff00ff)
    for s in range(3): A(f'global_load_dwordx4 {vr(AA+4*s,4)}, v85, s[42:43] offset:{64*s} sc1')
    A('s_mov_b64 exec, -1')
    for s in range(3):
        A(f's_waitcnt vmcnt({2-s})')
        for ct in range(4):
            c = '0' if s == 0 else vr(DD+4*ct, 4)
            A(f'v_mfma_f32_16x16x32_bf16 {vr(DD+4*ct,4)}, {vr(AA+4*s,4)}, {vr(B0+(s*4+ct)*4,4)}, {c}')
    poll_end([v(AA+i) for i in range(12)], 'v90', L, 0)
    stamp(10)
    for ct in range(4): A(f'v_pk_add_f32 {vr(DD+4*ct,2)}, {vr(DD+4*ct,2)}, {vr(DD+4*ct+2,2)}')
    for ct in range(4): A(f'v_add_f32 v{DD+4*ct}, v{DD+4*ct}, v{DD+4*ct+1}')
    A(f'v_permlane32_swap_b32 v{DD}, v{DD+4}\nv_permlane32_swap_b32 v{DD+8}, v{DD+12}')
    A(f'ds_write_b32 v86, v{DD} offset:{L_PACC}\nds_write_b32 v86, v{DD+8} offset:{L_PACC + 1024}')
    A(f's_mov_b64 exec, 1\nds_add_rtn_u32 v90, v0, v89 offset:{L_CWO}\ns_mov_b64 exec, -1\nds_read_b128 v[92:95], v87 offset:{L_PACC}\nds_read_b128 v[96:99], v87 offset:{L_PACC+16}')
    A('s_waitcnt lgkmcnt(0)\nv_readfirstlane_b32 s3, v90')
    A('v_pk_add_f32 v[92:93], v[92:93], v[94:95]\nv_pk_add_f32 v[96:97], v[96:97], v[98:99]\nv_pk_add_f32 v[92:93], v[92:93], v[96:97]\nv_add_f32 v92, v92, v93\nv_min_u32 v92, -2, v92')
    A('s_cmp_eq_u32 s3, 3\ns_cbranch_scc0 L_wonost\nglobal_store_dword v88, v92, s[42:43] sc1\nL_wonost:')
    stamp(11)
    A('s_cmp_eq_u32 s57, 0\ns_cbranch_scc1 L_fin')
    L = lab('fi')
    A(f'''{L}:
    global_load_dwordx4 v[8:11], v103, s[42:43] sc1
    global_load_dwordx4 v[12:15], v104, s[42:43] sc1
    global_load_dwordx4 v[16:19], v105, s[42:43] sc1
    global_load_dword v20, v101, s[42:43] sc1
    s_waitcnt vmcnt(0)''')
    poll_end([v(8+i) for i in range(13)], 'v90', L, 0)
    stamp(12)
    A('v_pk_add_f32 v[8:9], v[8:9], v[12:13]\nv_pk_add_f32 v[10:11], v[10:11], v[14:15]\nv_pk_add_f32 v[8:9], v[8:9], v[16:17]\nv_pk_add_f32 v[10:11], v[10:11], v[18:19]')
    A('v_permlane32_swap_b32 v8, v10\nv_permlane32_swap_b32 v9, v11\nv_add_f32 v8, v8, v10\nv_add_f32 v9, v9, v11')
    A('v_permlane16_swap_b32 v8, v9\nv_add_f32 v8, v8, v9')
    for k in (2, 4, 8): A(f'v_add_f32 v8, v8, v8 row_ror:{k} {DPPF}')
    round_list(['v8'], ['v9'])
    A('v_mul_f32 v8, v8, v106')
    round_list(['v8'], ['v9'])
    A('v_add_f32 v8, v8, v20\nv_cvt_pk_bf16_f32 v8, v8, v8')
    set_exec(0x00030003, 0x00030003)
    A('global_store_short v100, v8, s[38:39]')
    stamp(13)
    A(f's_cmp_eq_u32 s10, 0\ns_cbranch_scc0 L_fin\ns_mov_b64 exec, 1\nv_mov_b32 v10, {R_E}\nv_mov_b32 v12, s14\nv_mov_b32 v13, s15\nglobal_store_dwordx2 v10, v[12:13], s[42:43] sc1')
    A('s_branch L_fin')

    A('L_tailB:')
    calc_t('s12')
    G0 = 8; U0 = 28; WD = 48
    GA = 68; SB = 72; CB = 76; XX = 80
    P0 = 100
    A(f'''s_mul_i32 s13, s4, 640
    v_add_u32 v84, s13, v75
    v_lshrrev_b32 v85, 1, v84
    v_add_u32 v86, {R_MF}, v84
    v_add_u32 v87, {R_MF + 5120}, v84''')
    set_exec(0xffffffff, 0xff)
    A('global_load_dwordx2 v[82:83], v85, s[16:17]')
    L = lab('mf')
    A(f'''{L}:
    global_load_dwordx4 {vr(GA,4)}, v86, s[42:43] sc1
    global_load_dwordx4 {vr(SB,4)}, v86, s[42:43] offset:2560 sc1
    global_load_dwordx4 {vr(CB,4)}, v87, s[42:43] sc1
    s_waitcnt vmcnt(0)''')
    poll_end([v(GA+i) for i in range(12)], 'v90', L, 16)
    A('v_lshlrev_b32 v80, 16, v82\nv_and_b32 v81, 0xffff0000, v82\nv_lshlrev_b32 v82, 16, v83\nv_and_b32 v83, 0xffff0000, v83')
    for i in range(4): A(f'v_add_f32 v{CB+i}, 1.0, v{CB+i}')
    round_list([v(CB+i) for i in range(4)], ['v90', 'v91'])
    A('s_mov_b64 exec, -1')
    A(f'''s_add_u32 s44, s42, {R_P}
    s_addc_u32 s45, s43, 0
    s_mov_b32 s46, {16*2560}
    v_add_u32 v86, {R_X1}, v84
    v_lshlrev_b32 v85, 3, v2''')
    A(f'''v_lshl_add_u32 v87, v4, 3, v6
    v_lshl_add_u32 v87, v87, 7, v7
    s_lshl_b32 s3, s4, 5
    v_add_u32 v87, s3, v87
    v_and_b32 v88, 1, v4
    v_lshl_add_u32 v88, v88, 3, v6
    v_mul_u32_u24 v88, 1280, v88
    v_lshrrev_b32 v89, 1, v4
    v_lshl_add_u32 v89, v89, 5, v7
    s_mul_i32 s3, s4, 320
    v_add3_u32 v88, v88, v89, s3''')
    lds_wait_ge(L_WRDY, 1, 'v0', 'v90', sleep=4)
    for s in range(5):
        for hf in range(2):
            A(f'ds_read_b64_tr_b16 {vr(G0+4*s+2*hf,2)}, v87 offset:{L_W + (32*s+4*hf)*128}')
            A(f'ds_read_b64_tr_b16 {vr(U0+4*s+2*hf,2)}, v87 offset:{L_W + 20480 + (32*s+4*hf)*128}')
            A(f'ds_read_b64_tr_b16 {vr(WD+4*s+2*hf,2)}, v88 offset:{L_W + 40960 + 4*hf*1280 + 64*s}')
        if s in (1, 3, 4): A('s_waitcnt lgkmcnt(0)')
    A(f'''v_lshlrev_b32 v87, 4, v4
    s_and_b32 s57, s12, 3
    s_andn2_b32 s3, s12, 3
    s_add_u32 s3, s3, s4
    s_lshl_b32 s3, s3, 2
    s_add_u32 s3, s3, s57
    s_lshl_b32 s3, s3, 7
    s_add_u32 s3, s3, {R_GU}
    v_lshl_add_u32 v88, v5, 3, s3
    v_and_b32 v89, 1, v4
    v_lshlrev_b32 v89, 6, v89
    v_and_b32 v90, 7, v2
    v_lshl_add_u32 v89, v90, 3, v89
    s_lshl_b32 s3, s12, 9
    s_add_u32 s3, s3, {R_GU}
    v_add_u32 v89, s3, v89
    v_lshlrev_b32 v92, 6, v5
    v_lshl_add_u32 v92, v4, 4, v92
    s_mul_i32 s3, s12, 2560
    s_add_u32 s3, s3, s13
    s_add_u32 s3, s3, {R_DN}
    v_add_u32 v92, s3, v92
    s_lshl_b32 s3, s4, 4
    v_mov_b32 v93, s3
    v_lshrrev_b32 v90, 1, v4
    v_and_b32 v91, 1, v2
    v_cmp_eq_u32 s[62:63], v90, v91
    v_lshrrev_b32 v90, 1, v5''')
    MS = ['s[52:53]', 's[64:65]', 's[66:67]', 's[68:69]', 's[54:55]']
    for m in range(5):
        A(f'v_cmp_eq_u32 vcc, {m}, v90\ns_and_b64 {MS[m]}, vcc, s[62:63]')
    A('v_mov_b32 v94, 0\nv_mov_b32 v95, 0')
    stamp(8)
    lds_wait_ge(L_CO, 8, 'v0', 'v90', sleep=1)
    stamp(9)
    set_exec(0xffffffff, 0xff)
    L = lab('pp'); D = lab('ppd')
    A(f'{L}:')
    cur = 0
    for g in range(16):
        so, io = (g*2560) // 4096 * 4096, (g*2560) % 4096
        if so != cur: A(f's_mov_b32 s56, {so}'); cur = so
        A(f'buffer_load_dwordx4 {vr(P0+4*g,4)}, v84, s[44:47], {"s56" if so else "0"} offen offset:{io} sc1')
    A('s_waitcnt vmcnt(14)')
    A(f'v_pk_add_f32 v[96:97], {vr(P0,2)}, {vr(P0+4,2)}\nv_pk_add_f32 v[98:99], {vr(P0+2,2)}, {vr(P0+6,2)}')
    for g in range(2, 16):
        if g % 2 == 0: A(f's_waitcnt vmcnt({14-g})')
        A(f'v_pk_add_f32 v[96:97], v[96:97], {vr(P0+4*g,2)}\nv_pk_add_f32 v[98:99], v[98:99], {vr(P0+4*g+2,2)}')
    A(f'v_cmp_u_f32 vcc, v96, v97\nv_cmp_u_f32 s[8:9], v98, v99\ns_or_b64 vcc, vcc, s[8:9]\ns_cbranch_vccz {D}')
    poll_end([v(P0+i) for i in range(64)], 'v90', L, 0)
    A(f'{D}:')
    stamp(10)
    X1 = [v(96+i) for i in range(4)]
    round_list(X1, ['v90', 'v91'])
    for i in range(4): A(f'v_mul_f32 {X1[i]}, {X1[i]}, v{GA+i}')
    round_list(X1, ['v90', 'v91'])
    for i in range(4): A(f'v_add_f32 {X1[i]}, {X1[i]}, v{XX+i}')
    round_list(X1, ['v90', 'v91'])
    A('v_readfirstlane_b32 s8, v96')
    A('s_cmp_eq_u32 s12, 0\ns_cbranch_scc0 L_nox1\nglobal_store_dwordx4 v86, v[96:99], s[42:43] sc1\nL_nox1:')
    for i in range(4): A(f'v_subrev_f32 v{100+i}, s8, {X1[i]}')
    A('v_add_f32 v94, v100, v101\nv_mul_f32 v95, v100, v100\nv_add_f32 v104, v102, v103\nv_fmac_f32 v95, v101, v101\nv_add_f32 v94, v94, v104\nv_fmac_f32 v95, v102, v102\nv_fmac_f32 v95, v103, v103')
    A('s_mov_b64 exec, -1')
    allred8(['v94', 'v95']); red_hi(['v94', 'v95'])
    A(f'v_mul_f32 v104, {H(1/160)}, v94\nv_fma_f32 v105, -v104, v94, v95\nv_add_f32 v104, s8, v104')
    A('v_min_u32 v105, -2, v105\nv_min_u32 v104, -2, v104')
    A(f's_lshl_b64 exec, 1, 63\nds_write_b64 v93, v[104:105] offset:{L_LN}')
    A('s_cmp_eq_u32 s4, s57\ns_cbranch_scc0 L_h2wait')
    set_exec(0xffffffff, 0xff)
    L = lab('ln')
    A(f'{L}:\nds_read2_b64 v[104:107], v0 offset0:{L_LN//8} offset1:{L_LN//8+2}\nds_read2_b64 v[108:111], v0 offset0:{L_LN//8+4} offset1:{L_LN//8+6}\ns_waitcnt lgkmcnt(0)')
    A('v_add_f32 v112, v104, v106\nv_add_f32 v113, v108, v110')
    poll_end([v(104+i) for i in range(8)], 'v90', L, 0)
    A('''v_add_f32 v112, v112, v113
    v_add_f32 v105, v105, v107
    v_mul_f32 v112, 0.25, v112
    v_add_f32 v109, v109, v111
    v_sub_f32 v104, v104, v112
    v_sub_f32 v106, v106, v112
    v_sub_f32 v108, v108, v112
    v_sub_f32 v110, v110, v112
    v_add_f32 v105, v105, v109
    v_mul_f32 v113, v104, v104
    v_mul_f32 v114, v108, v108
    v_fmac_f32 v113, v106, v106
    v_fmac_f32 v114, v110, v110'''.replace('0.25', H(0.25)))
    A(f'v_mul_f32 v105, {H(1/640)}, v105\nv_add_f32 v113, v113, v114\nv_fmac_f32 v105, {H(0.25)}, v113')
    A('v_cvt_pk_bf16_f32 v90, v112, v105\nv_lshlrev_b32 v112, 16, v90\nv_and_b32 v105, 0xffff0000, v90')
    A(f'v_add_f32 v105, {H(1e-5)}, v105')
    for i in range(4): A(f'v_sub_f32 {X1[i]}, {X1[i]}, v112')
    A('v_cvt_pk_bf16_f32 v105, v105, v105\nv_cvt_pk_bf16_f32 v90, v96, v97\nv_cvt_pk_bf16_f32 v91, v98, v99\nv_lshlrev_b32 v105, 16, v105\nv_sqrt_f32 v105, v105')
    A('v_lshlrev_b32 v96, 16, v90\nv_and_b32 v97, 0xffff0000, v90')
    A('v_cvt_pk_bf16_f32 v105, v105, v105\nv_lshlrev_b32 v98, 16, v91\nv_lshlrev_b32 v105, 16, v105\nv_rcp_f32 v105, v105\nv_and_b32 v99, 0xffff0000, v91')
    for i in range(4): A(f'v_mul_f32 {X1[i]}, {X1[i]}, v105')
    round_list(X1, ['v90', 'v91'])
    for i in range(4): A(f'v_mul_f32 {X1[i]}, {X1[i]}, v{CB+i}')
    round_list(X1, ['v90', 'v91'])
    for i in range(4): A(f'v_add_f32 {X1[i]}, {X1[i]}, v{SB+i}')
    A(f'v_cvt_pk_bf16_f32 v90, v96, v97\nv_cvt_pk_bf16_f32 v91, v98, v99\nv_min_u32 v90, -2, v90\nv_min_u32 v91, -2, v91\nds_write_b64 v85, v[90:91] offset:{L_H2}')
    A('L_h2wait:\ns_mov_b64 exec, -1')
    HA = 100
    L = lab('h2')
    A(f'{L}:')
    for s in range(5): A(f'ds_read_b128 {vr(HA+4*s,4)}, v87 offset:{L_H2 + 64*s}')
    A('s_waitcnt lgkmcnt(0)')
    D = lab('h2d')
    A(f'v_cmp_eq_u32 vcc, -1, v{HA+19}\ns_cbranch_vccz {D}')
    spin_tail(L, 0)
    A(f'{D}:')
    for s in range(5):
        A(f'v_mfma_f32_16x16x32_bf16 v[120:123], {vr(HA+4*s,4)}, {vr(G0+4*s,4)}, {"0" if s==0 else "v[120:123]"}')
        A(f'v_mfma_f32_16x16x32_bf16 v[124:127], {vr(HA+4*s,4)}, {vr(U0+4*s,4)}, {"0" if s==0 else "v[124:127]"}')
    poll_end([v(HA+i) for i in range(20)], 'v90', L, 0)
    A('s_mov_b64 exec, 0xffff\nv_min_u32 v120, -2, v120\nv_min_u32 v121, -2, v124')
    A('global_store_dwordx2 v88, v[120:121], s[42:43] sc1\ns_mov_b64 exec, -1')
    stamp(11)
    L = lab('gu')
    A(f'{L}:')
    for k in range(4): A(f'global_load_dwordx2 {vr(100+2*k,2)}, v89, s[42:43] offset:{128*k} sc1')
    A('s_waitcnt vmcnt(0)')
    A('v_pk_add_f32 v[108:109], v[100:101], v[102:103]\nv_pk_add_f32 v[110:111], v[104:105], v[106:107]')
    poll_end([v(100+i) for i in range(8)], 'v90', L, 0)
    stamp(13)
    A('v_add_f32 v108, v108, v110\nv_add_f32 v110, v109, v111')
    round_list(['v108', 'v110'], ['v90'])
    K0 = -2.0 * LOG2E * 0.7978845608028654
    A(f'''v_mul_f32 v109, v108, v108
    v_mov_b32 v111, {H(K0)}
    v_fmac_f32 v111, {H(K0*0.044715)}, v109
    v_mul_f32 v111, v111, v108
    v_exp_f32 v111, v111
    v_add_f32 v111, 1.0, v111
    v_rcp_f32 v111, v111
    v_mul_f32 v108, v108, v111''')
    round_list(['v108'], ['v90'])
    A('v_mul_f32 v108, v108, v110')
    A(f'v_mov_b32 v109, v108 quad_perm:[1,0,3,2] {DPPF}\nv_cvt_pk_bf16_f32 v108, v108, v109')
    for d in range(4): A(f'v_mov_b32 v{100+d}, v108 row_newbcast:{2*d} {DPPF}')
    for m in range(5):
        F = 112 + 4*(m & 1)
        for d in range(4): A(f'v_cndmask_b32 v{F+d}, 0, v{100+d}, {MS[m]}')
        A(f'v_mfma_f32_16x16x32_bf16 v[120:123], {vr(WD+4*m,4)}, {vr(F,4)}, {"0" if m==0 else "v[120:123]"}')
    set_exec(0x03ff03ff, 0x03ff03ff)
    for i in range(4): A(f'v_min_u32 v{120+i}, -2, v{120+i}')
    A('global_store_dwordx4 v92, v[120:123], s[42:43] sc1')
    stamp(12)

    A('L_fin:')
    if stamps:
        A('s_memrealtime s[98:99]\ns_waitcnt lgkmcnt(0)\ns_mov_b64 exec, 1')
        A(f's_mul_i32 s3, s2, 12\ns_add_u32 s3, s3, s4\ns_lshl_b32 s3, s3, 6\ns_add_u32 s3, s3, {R_STAMP}\nv_mov_b32 v0, s3')
        for i in range(15): A(f'v_mov_b32 v{8+i}, s{70+2*i}')
        A('v_mov_b32 v23, s58')
        for i in range(4): A(f'global_store_dwordx4 v0, {vr(8+4*i,4)}, s[42:43] offset:{16*i}')
    A('L_end:\ns_endpgm')
    npad = A.pad()
    hdr = open('cdna_kernels/' + NAME + '.s.ref').read().split('; Override launch')[0]
    pre = ''
    if stamps:
        pre = ''.join(f'  s_mov_b32 s{70+2*i}, 0\n' for i in range(15))
    txt = hdr + f'''; @launch grid=(256,1,1) block=(768,1,1) lds={LDS_BYTES}
.amdgcn_target "amdgcn-amd-amdhsa--gfx950"
.text
.globl {NAME}_kernel
.p2align 8
.type {NAME}_kernel,@function
{NAME}_kernel:
''' + pre + A.text() + f'''.section .rodata,"a"
.p2align 6
.amdhsa_kernel {NAME}_kernel
  .amdhsa_next_free_vgpr 168
  .amdhsa_next_free_sgpr 102
  .amdhsa_accum_offset 168
  .amdhsa_group_segment_fixed_size 0
  .amdhsa_kernarg_size 112
  .amdhsa_user_sgpr_count 2
  .amdhsa_user_sgpr_kernarg_segment_ptr 1
  .amdhsa_system_sgpr_workgroup_id_x 1
.end_amdhsa_kernel
'''
    return txt, npad

if __name__ == '__main__':
    kw = {}
    outp = sys.argv[1]
    for a in sys.argv[2:]:
        k, val = a.split('=')
        kw[k] = int(val)
    txt, npad = gen(**kw)
    open(outp, 'w').write(txt)
    print('nops inserted', npad)
```

```python
import sys, struct
from asmlib import Asm
NAME = 'adaLN_cond__sliding_block_cached__geglu_ffn__decode'
def f2u(x): return struct.unpack('<I', struct.pack('<f', x))[0]
def H(x): return '0x%08x' % f2u(x)
LOG2E = 1.4426950408889634

R_MF = 0
R_O = R_MF + 2560*4
R_P = R_O + 8*6144*2
R_X1 = R_P + 16*640*4
R_DN = R_X1 + 640*4
R_GU = R_DN + 96*640*4
R_ST = R_GU + 96*512
assert R_ST + 32*128 <= 256*1792
R_SIB = 256*1792
R_MODA = R_SIB + 256*768
R_MODB = R_MODA + 16*5120
R_FLAG = R_MODB + 8*20480
R_DONE = R_FLAG + 2048
R_E = R_DONE + 8*1280 + 2048
R_STAMP = 1 << 20
assert R_E + 128 <= R_STAMP
L_ML = 0; L_LN = 64; L_H = 128; L_H2 = 512
L_CSTAT = 1024; L_CO = 1028; L_TRIG = 1032; L_WRDY = 1036; L_CWO = 1040; L_CQ = 1044; L_OK = 1048
L_Q = 1280
L_ST = 1792
L_PACC = 3072
L_OS = 5120
L_W = 11264
LDS_BYTES = L_W + 61440

DPPF = 'row_mask:0xf bank_mask:0xf'

def gen(T=2, NVE=2, TRIG=24, TWA=40, PF=1, stamps=False, TIMEOUT=1 << 20, SLA=8, SLB=4):
    A = Asm()
    uid = [0]
    def lab(p):
        uid[0] += 1
        return f'L_{p}{uid[0]}'
    def stamp(i):
        if stamps: A(f's_memrealtime s[{70+2*i}:{71+2*i}]')
    def spin_tail(L, sleep):
        if sleep: A(f's_sleep {sleep}')
        A(f's_sub_u32 s58, s58, 1\ns_cbranch_scc0 {L}\ns_branch L_fin')
    def lds_wait_ge(off, val, vz, vt, sleep=1):
        L = lab('w'); D = lab('d')
        A(f'{L}:\nds_read_b32 {vt}, {vz} offset:{off}\ns_waitcnt lgkmcnt(0)\nv_readfirstlane_b32 s3, {vt}\ns_cmp_ge_u32 s3, {val}\ns_cbranch_scc1 {D}')
        spin_tail(L, sleep)
        A(f'{D}:')
    def maxtree(regs, dst):
        regs = list(regs)
        if len(regs) == 2:
            A(f'v_max_u32 {dst}, {regs[0]}, {regs[1]}'); return
        A(f'v_max3_u32 {dst}, {regs[0]}, {regs[1]}, {regs[2]}')
        rest = regs[3:]
        while len(rest) >= 2:
            A(f'v_max3_u32 {dst}, {dst}, {rest[0]}, {rest[1]}'); rest = rest[2:]
        if rest: A(f'v_max_u32 {dst}, {dst}, {rest[0]}')
    def poll_end(regs, tmp, L, sleep):
        D = lab('ok')
        if len(regs) > 1: maxtree(regs, tmp)
        else: tmp = regs[0]
        A(f'v_cmp_eq_u32 vcc, -1, {tmp}\ns_cbranch_vccz {D}')
        spin_tail(L, sleep)
        A(f'{D}:')
    def allred8(regs, op='v_add_f32'):
        for pat in ('quad_perm:[1,0,3,2]', 'quad_perm:[2,3,0,1]', 'row_half_mirror'):
            for r in regs: A(f'{op} {r}, {r}, {r} {pat} {DPPF}')
    def red_hi(regs, op='v_add_f32'):
        for r in regs: A(f'{op} {r}, {r}, {r} row_ror:8 {DPPF}')
        for r in regs: A(f'{op} {r}, {r}, {r} row_bcast:15 row_mask:0xa bank_mask:0xf')
        for r in regs: A(f'{op} {r}, {r}, {r} row_bcast:31 row_mask:0xc bank_mask:0xf')
    def round_list(regs, tmps):
        regs = list(regs)
        prs = [(regs[i], regs[i+1] if i+1 < len(regs) else None) for i in range(0, len(regs), 2)]
        for k0 in range(0, len(prs), len(tmps)):
            blk = prs[k0:k0+len(tmps)]
            for (a, b), t in zip(blk, tmps): A(f'v_cvt_pk_bf16_f32 {t}, {a}, {b if b else a}')
            for (a, b), t in zip(blk, tmps):
                A(f'v_lshlrev_b32 {a}, 16, {t}')
                if b: A(f'v_and_b32 {b}, 0xffff0000, {t}')
    def masks(dst4, vl, t0, t1):
        A(f'v_and_b32 {t0}, 1, {vl}\nv_lshlrev_b32 {t0}, 4, {t0}\nv_mov_b32 {t1}, 0xffff\nv_lshlrev_b32 {t0}, {t0}, {t1}\nv_bfe_u32 {t1}, {vl}, 1, 2')
        for t in range(4):
            A(f'v_cmp_eq_u32 vcc, {t}, {t1}\nv_cndmask_b32 {dst4[t]}, 0, {t0}, vcc')
    def v(i): return f'v{i}'
    def vr(i, n): return f'v[{i}:{i+n-1}]'
    def set_exec(lo, hi):
        if lo == 0xffffffff and hi == 0xffffffff: A('s_mov_b64 exec, -1')
        elif hi == 0 and lo <= 64: A(f's_mov_b64 exec, {lo}')
        else: A(f's_mov_b32 exec_lo, 0x{lo:x}\ns_mov_b32 exec_hi, 0x{hi:x}')
    def tags():
        A('s_mul_i32 s14, s14, 0x9e3779b1\ns_add_u32 s14, s14, 0x7f4a7c15\ns_mul_i32 s15, s15, 0x85ebca6b\ns_add_u32 s15, s15, 0xc2b2ae35')

    A('L_base:')
    stamp(0)
    A('''s_cmp_ge_u32 s2, 256
    s_cbranch_scc1 L_end
    s_load_dwordx16 s[16:31], s[0:1], 0
    s_load_dwordx8 s[32:39], s[0:1], 64
    s_load_dwordx4 s[40:43], s[0:1], 96
    v_readfirstlane_b32 s4, v0
    v_and_b32 v2, 63, v0
    s_and_b32 s5, s2, 7
    s_lshl_b32 s5, s5, 2
    s_bfe_u32 s3, s2, 0x20003
    s_add_u32 s5, s5, s3
    s_lshr_b32 s6, s2, 5
    s_lshr_b32 s4, s4, 6
    v_lshrrev_b32 v3, 3, v2
    v_and_b32 v1, 7, v2
    v_lshlrev_b32 v1, 4, v1
    s_mov_b32 s47, 0x20000
    s_mov_b32 s51, 0x20000''')
    A(f's_mov_b32 s58, {TIMEOUT}')
    A('s_lshl_b32 s59, s5, 3\ns_add_u32 s59, s59, s6')
    W0 = 8; X0 = 48; D0 = 60; F0 = 64
    A('s_cmp_lt_u32 s4, 4\ns_cbranch_scc0 L_strm')
    A('s_setprio 3\ns_sub_u32 s10, s2, 96\ns_cselect_b32 s3, 1, s4\ns_cmp_eq_u32 s3, 0\ns_cbranch_scc0 L_ctrl')
    A(f'''s_mul_i32 s12, s10, 3277
    s_lshr_b32 s12, s12, 16
    s_mul_i32 s7, s12, 20
    s_sub_u32 s13, s10, s7
    v_mul_u32_u24 v72, {10*7680}, v3
    v_add_u32 v72, v72, v1
    s_mul_i32 s3, s12, {80*7680}
    s_lshl_b32 s7, s13, 7
    s_add_u32 s3, s3, s7
    s_mov_b32 s46, {80*7680}
    s_movk_i32 s57, 7680
    v_mul_u32_u24 v74, 20, v3
    s_mul_i32 s7, s12, 160
    v_add_u32 v74, s7, v74
    s_getpc_b64 s[60:61]
    L_pc0:
    s_add_u32 s60, s60, L_c0A-L_pc0
    s_addc_u32 s61, s61, 0
    s_waitcnt lgkmcnt(0)
    s_add_u32 s44, s36, s3
    s_addc_u32 s45, s37, 0
    global_load_dwordx4 v[82:85], v74, s[34:35]
    global_load_dword v86, v74, s[34:35] offset:16''')
    A('L_load10:\ns_mov_b32 s56, 0')
    for s in range(10):
        A(f'buffer_load_dwordx4 {vr(W0+4*s,4)}, v72, s[44:47], s56 offen nt')
        if s < 9: A('s_add_u32 s56, s56, s57')
    A('s_setpc_b64 s[60:61]')
    A('L_strm:')

    KR = lambda g, t: 8 + (g*3 + t)*4
    VR = lambda g, t: (104 + (g*3 + t)*4) if g < NVE else KR(g - NVE, t)
    Q0 = 140; S0 = 152; T0 = 160
    A(f'''v_mul_u32_u24 v4, 384, v3
    s_mul_i32 s3, s5, 12582912
    s_mul_i32 s7, s6, 196608
    s_add_u32 s3, s3, s7
    s_mul_i32 s7, s4, 24576
    s_add_u32 s3, s3, s7
    s_add_u32 s3, s3, {28672*384 - 4*24576}
    v_add_u32 v3, v1, v4
    s_movk_i32 s46, 24576
    s_movk_i32 s50, 24576
    s_waitcnt lgkmcnt(0)
    s_add_u32 s44, s18, s3
    s_addc_u32 s45, s19, 0
    s_add_u32 s48, s20, s3
    s_addc_u32 s49, s21, 0''')
    out = []
    def issue(kind, g, t, throttle=True):
        r = KR(g, t) if kind == 'K' else VR(g, t)
        srd = 's[44:47]' if kind == 'K' else 's[48:51]'
        if g == 0: so = '0'
        else:
            so = 's56'
            if issue.cur != g: A(f's_movk_i32 s56, {g*3072}')
            issue.cur = g
        A(f'buffer_load_dwordx4 {vr(r,4)}, v3, {srd}, {so} offen offset:{t*128} nt')
        out.append((kind, g, t))
        if throttle and len(out) > T: A(f's_waitcnt vmcnt({T})')
    issue.cur = -1
    def landed(kind, g):
        idx = max(i for i, o in enumerate(out) if o[0] == kind and o[1] == g)
        A(f's_waitcnt vmcnt({len(out) - 1 - idx})')
    nv = [0]
    vseq = [(g, t) for g in range(8) for t in range(3)]
    def issueV(n, throttle=True):
        for _ in range(n):
            if nv[0] >= 24: return
            g, t = vseq[nv[0]]
            last = nv[0] == 23
            issue('V', g, t, throttle and not last)
            nv[0] += 1
            if nv[0] == TRIG:
                A(f'ds_write_b32 v0, v1 offset:{L_TRIG}')
    n = 0
    for g in range(8):
        for t in range(3):
            issue('K', g, t, throttle=(n + 1 != T+1))
            n += 1
            if n == T+1:
                for i in range(8): A(f'v_mov_b32 v{S0+i}, 0')
                masks(['v4', 'v5', 'v6', 'v7'], 'v2', 'v160', 'v161')
                A(f'v_mov_b32 v0, 0\ns_barrier\ns_waitcnt vmcnt({T})')
    assert TRIG > 3*NVE
    issueV(3*NVE)
    stamp(1)
    lds_wait_ge(L_CQ, 3, 'v0', 'v160', sleep=2)
    for t in range(3): A(f'ds_read_b128 {vr(Q0+4*t,4)}, v1 offset:{L_Q + 128*t}')
    stamp(2)
    landed('K', 7)
    A('s_waitcnt lgkmcnt(0)\nv_mov_b32 v1, 1')
    for g2 in range(0, 8, 2):
        for t in range(3):
            for d in range(4):
                for g in (g2, g2+1):
                    A(f'v_dot2c_f32_bf16 v{S0+g}, v{KR(g,t)+d}, v{Q0+4*t+d}')
        if g2 in (0, 2, 4): issueV(1, throttle=False)
    S = [v(S0+g) for g in range(8)]
    allred8(S)
    TM = [v(T0+i) for i in range(8)]
    round_list(S, TM[:4])
    for r in S: A(f'v_mul_f32 {r}, 0x3d93cd3a, {r}')
    round_list(S, TM[:4])
    A(f'v_max3_f32 v160, {S[0]}, {S[1]}, {S[2]}\nv_max3_f32 v161, {S[3]}, {S[4]}, {S[5]}\nv_max3_f32 v160, v160, {S[6]}, {S[7]}\nv_max_f32 v160, v160, v161')
    red_hi(['v160'], 'v_max_f32')
    A('v_readlane_b32 s8, v160, 63')
    E = [v(Q0+i) for i in range(8)]
    for g in range(8): A(f'v_subrev_f32 {E[g]}, s8, {S[g]}')
    for g in range(8): A(f'v_mul_f32 {E[g]}, {H(LOG2E)}, {E[g]}')
    for g in range(8): A(f'v_exp_f32 {E[g]}, {E[g]}')
    for a, b in ((0,1),(2,3),(4,5),(6,7),(0,2),(4,6)): A(f'v_add_f32 {E[a]}, {E[a]}, {E[b]}')
    A(f'v_add_f32 v161, {E[0]}, {E[4]}')
    A(f's_lshl_b32 s3, s4, 3\nv_mov_b32 v162, s3')
    red_hi(['v161'])
    A('s_lshl_b64 exec, 1, 63')
    A(f'ds_write_b64 v162, v[160:161] offset:{L_ST - 32}')
    A(f'ds_add_u32 v0, v1 offset:{L_CSTAT}')
    A('s_mov_b64 exec, -1')
    stamp(3)
    issueV(24)
    stamp(4)
    A(f'''v_and_b32 v164, 7, v2
    v_lshlrev_b32 v164, 5, v164
    v_and_b32 v165, 16, v2
    s_mul_i32 s3, s4, 768
    v_add3_u32 v3, v164, v165, s3
    v_lshrrev_b32 v164, 5, v2
    v_lshl_add_u32 v3, v164, 3, v3
    s_mul_i32 s3, s6, 12288
    s_mul_i32 s7, s5, 384
    s_add_u32 s3, s3, s7
    s_add_u32 s9, s3, {R_O}''')
    L = lab('ml')
    A(f'{L}:\nds_read_b64 v[160:161], v0 offset:{L_ML}\ns_waitcnt lgkmcnt(0)')
    poll_end(['v160', 'v161'], 'v162', L, 2)
    stamp(5)
    for r in S: A(f'v_sub_f32 {r}, {r}, v160')
    for r in S: A(f'v_mul_f32 {r}, {H(LOG2E)}, {r}')
    for r in S: A(f'v_exp_f32 {r}, {r}')
    for r in S: A(f'v_mul_f32 {r}, {r}, v161')
    for r in S: A(f'v_cvt_pk_bf16_f32 {r}, {r}, {r}')
    for g in range(8):
        F = T0 + 4*(g & 1)
        for t in range(4): A(f'v_and_b32 v{F+t}, {S[g]}, v{4+t}')
        if g == 7: A('v_lshlrev_b32 v4, 4, v2\nv_lshlrev_b32 v5, 3, v2\nv_add_u32 v5, s9, v5')
        if g >= 6:
            for t in range(3):
                idx = out.index(('V', g, t))
                A(f's_waitcnt vmcnt({len(out) - 1 - idx})')
                A(f'v_mfma_f32_16x16x32_bf16 {vr(Q0+4*t,4)}, {vr(F,4)}, {vr(VR(g,t),4)}, {vr(Q0+4*t,4)}')
        else:
            landed('V', g)
            for t in range(3):
                c = '0' if g == 0 else vr(Q0+4*t, 4)
                A(f'v_mfma_f32_16x16x32_bf16 {vr(Q0+4*t,4)}, {vr(F,4)}, {vr(VR(g,t),4)}, {c}')
    stamp(6)
    for t in range(3):
        d = Q0 + 4*t
        A(f'v_permlane32_swap_b32 v{d}, v{d+2}\nv_permlane32_swap_b32 v{d+1}, v{d+3}')
    for t in range(3):
        d = Q0 + 4*t
        A(f'v_add_f32 v{d}, v{d+2}, v{d} row_ror:8 {DPPF}\nv_add_f32 v{d+1}, v{d+3}, v{d+1} row_ror:8 {DPPF}')
    set_exec(0x00ff00ff, 0x00ff00ff)
    for t in range(3): A(f'ds_write_b64 v3, {vr(Q0+4*t,2)} offset:{L_OS - 4*768 + 256*t}')
    A(f's_mov_b64 exec, 1\nds_add_rtn_u32 v6, v0, v1 offset:{L_CO}')
    set_exec(0xffffffff, 0xffff)
    for w in range(8): A(f'ds_read_b128 {vr(8+4*w,4)}, v4 offset:{L_OS + 768*w}')
    A('s_waitcnt lgkmcnt(0)\nv_readfirstlane_b32 s3, v6')
    for a, b in ((0,1),(2,3),(4,5),(6,7),(0,2),(4,6),(0,4)):
        A(f'v_pk_add_f32 {vr(8+4*a,2)}, {vr(8+4*a,2)}, {vr(8+4*b,2)}\nv_pk_add_f32 {vr(10+4*a,2)}, {vr(10+4*a,2)}, {vr(10+4*b,2)}')
    A('v_cvt_pk_bf16_f32 v8, v8, v9\nv_cvt_pk_bf16_f32 v9, v10, v11\nv_min_u32 v8, -2, v8\nv_min_u32 v9, -2, v9')
    A('s_cmp_eq_u32 s3, 7\ns_cbranch_scc0 L_fin')
    A('global_store_dwordx2 v5, v[8:9], s[42:43] sc1')
    stamp(7)
    A('s_branch L_fin')

    A('L_ctrl:')
    A('v_mov_b32 v0, 0\nv_lshlrev_b32 v75, 4, v2')
    A('s_cmp_eq_u32 s4, 0\ns_cbranch_scc1 L_c0B')
    A(f'''v_mul_u32_u24 v72, {10*12288}, v3
    s_mul_i32 s3, s6, {80*12288}
    s_mul_i32 s7, s5, 384
    s_add_u32 s3, s3, s7
    s_lshl_b32 s7, s4, 7
    s_add_u32 s3, s3, s7
    s_sub_u32 s3, s3, 128
    v_add_u32 v72, v72, v1
    s_mov_b32 s46, {80*12288}
    s_movk_i32 s57, 12288
    v_mov_b32 v60, -1
    v_mov_b32 v61, -1
    v_mov_b32 v62, -1
    v_mov_b32 v63, -1
    s_waitcnt lgkmcnt(0)
    s_load_dwordx2 s[14:15], s[42:43], {R_E}
    s_add_u32 s44, s22, s3
    s_addc_u32 s45, s23, 0
    s_cmp_eq_u32 s4, 1
    s_cbranch_scc0 L_c23''')
    A(f'''s_mul_i32 s3, s2, 1792
    v_add_u32 v73, s3, v75
    s_mul_i32 s3, s59, 768
    s_add_u32 s3, s3, {R_SIB}
    v_add_u32 v74, s3, v75
    global_store_dwordx4 v73, v[60:63], s[42:43] sc1
    s_mov_b32 exec_hi, 0xffff
    global_store_dwordx4 v74, v[60:63], s[42:43] sc1
    global_store_dwordx4 v73, v[60:63], s[42:43] offset:1024 sc1
    s_mov_b64 exec, -1
    v_mul_u32_u24 v73, 20, v2
    s_mul_i32 s7, s6, 160
    v_min_u32 v74, 39, v2
    v_lshl_add_u32 v74, v74, 2, s7
    global_load_dwordx4 v[76:79], v73, s[16:17]
    global_load_dword v80, v73, s[16:17] offset:16
    global_load_dword v82, v74, s[16:17]
    s_barrier''')
    masks(['v4', 'v5', 'v6', 'v7'], 'v2', 'v64', 'v65')
    A(f's_lshl_b32 s3, s59, 3\ns_add_u32 s3, s3, {R_FLAG}\nv_mov_b32 v73, s3\ns_waitcnt lgkmcnt(0)')
    tags()
    A('v_mov_b32 v84, s14\nv_mov_b32 v85, s15\ns_waitcnt vmcnt(0)\ns_mov_b64 exec, 1\nglobal_store_dwordx2 v73, v[84:85], s[42:43] sc1\ns_mov_b64 exec, -1')
    stamp(1)
    A('s_call_b64 s[60:61], L_load10')
    XA = [v(88+i) for i in range(10)]
    for i in range(5):
        A(f'v_lshlrev_b32 {XA[2*i]}, 16, v{76+i}\nv_and_b32 {XA[2*i+1]}, 0xffff0000, v{76+i}')
    A('v_and_b32 v83, 0xffff0000, v82\nv_lshlrev_b32 v82, 16, v82')
    A(f'v_add_f32 v60, {XA[0]}, {XA[1]}')
    for i in range(2, 10): A(f'v_add_f32 v60, v60, {XA[i]}')
    allred8(['v60']); red_hi(['v60'])
    A(f'v_mul_f32 v60, {H(1/640)}, v60\nv_readlane_b32 s8, v60, 63')
    for i in range(10): A(f'v_subrev_f32 {XA[i]}, s8, {XA[i]}')
    A(f'v_mul_f32 v61, {XA[0]}, {XA[0]}')
    for i in range(1, 10): A(f'v_fmac_f32 v61, {XA[i]}, {XA[i]}')
    allred8(['v61']); red_hi(['v61'])
    A(f'v_mul_f32 v61, {H(1/640)}, v61')
    round_list(['v60', 'v61'], ['v62'])
    A(f'v_add_f32 v61, {H(1e-5)}, v61')
    round_list(['v61'], ['v62'])
    A('v_sqrt_f32 v61, v61')
    round_list(['v61'], ['v62'])
    A('v_rcp_f32 v61, v61\nv_readlane_b32 s8, v60, 63\nv_readlane_b32 s9, v61, 63')
    XN = ['v82', 'v83']
    for r in XN: A(f'v_subrev_f32 {r}, s8, {r}')
    round_list(XN, ['v62'])
    for r in XN: A(f'v_mul_f32 {r}, s9, {r}')
    round_list(XN, ['v62'])
    A(f'''s_mul_i32 s3, s6, 5120
    s_add_u32 s3, s3, {R_MODA}
    s_add_u32 s48, s42, s3
    s_addc_u32 s49, s43, 0
    s_mov_b32 s50, {9*5120}
    s_lshl_b32 s3, s5, 6
    s_add_u32 s3, s3, {R_FLAG}
    v_lshrrev_b32 v73, 1, v1
    v_add_u32 v73, s3, v73
    s_movk_i32 s12, 2560
    s_mov_b32 s13, {8*5120}
    s_mov_b32 s11, {8*5120+2560}
    v_lshlrev_b32 v74, 3, v2''')
    set_exec(0xffffffff, 0xff)
    A(f'''s_and_b32 s3, s2, 7
    s_mul_i32 s3, s3, 1280
    s_mul_i32 s7, s6, 5
    s_lshr_b32 s7, s7, 2
    s_lshl_b32 s7, s7, 6
    s_add_u32 s3, s3, s7
    s_add_u32 s3, s3, {R_DONE}
    s_add_u32 s52, s42, s3
    s_addc_u32 s53, s43, 0
    s_and_b32 s54, s14, 0xff
    s_mul_i32 s54, s54, 0x01010101
    s_mov_b32 s55, s54''')
    L = lab('hh'); D = lab('hhd')
    A(f'{L}:')
    for k, off in enumerate((0, 64, 640, 704)): A(f's_load_dwordx2 s[{62+2*k}:{63+2*k}], s[52:53], {off} glc')
    A('s_waitcnt lgkmcnt(0)')
    for k in range(4): A(f's_xor_b64 s[{62+2*k}:{63+2*k}], s[{62+2*k}:{63+2*k}], s[54:55]')
    A('s_or_b64 s[62:63], s[62:63], s[64:65]\ns_or_b64 s[66:67], s[66:67], s[68:69]\ns_or_b64 s[62:63], s[62:63], s[66:67]')
    A(f's_cbranch_scc0 {D}')
    spin_tail(L, 2)
    A(f'{D}:')
    stamp(2)
    G = 88
    L = lab('ha'); D = lab('had')
    A(f'{L}:')
    A('global_load_dwordx2 v[86:87], v73, s[42:43] sc1')
    for k in range(16):
        so = ['0', 's12', 's13', 's11'][k // 4]
        A(f'buffer_load_dwordx4 {vr(G+4*k,4)}, v75, s[48:51], {so} offen offset:{640*(k%4)} sc1')
    A('s_waitcnt vmcnt(0)')
    A('v_cmp_ne_u64 s[8:9], v[86:87], s[14:15]')
    for k in range(16):
        A(f'v_cmp_ne_u64 vcc, s[14:15], {vr(G+4*k+2,2)}\ns_or_b64 s[8:9], s[8:9], vcc')
    A(f's_cbranch_scc0 {D}')
    spin_tail(L, SLA)
    A(f'{D}:')
    stamp(3)
    for a, b in ((0,1),(2,3),(4,5),(6,7),(0,2),(4,6),(0,4)):
        for base in (0, 8):
            A(f'v_pk_add_f32 {vr(G+4*(base+a),2)}, {vr(G+4*(base+a),2)}, {vr(G+4*(base+b),2)}')
    SA = [v(G), v(G+1)]; CA = [v(G+32), v(G+33)]
    round_list(SA + CA, ['v62', 'v63'])
    for r in CA: A(f'v_add_f32 {r}, 1.0, {r}')
    round_list(CA, ['v62'])
    for a, b in zip(CA, XN): A(f'v_mul_f32 {a}, {a}, {b}')
    round_list(CA, ['v62'])
    for a, b in zip(CA, SA): A(f'v_add_f32 {a}, {a}, {b}')
    for r in CA: A(f'v_cvt_pk_bf16_f32 {r}, {r}, {r}')
    for r in CA: A(f'v_min_u32 {r}, -2, {r}')
    A(f'ds_write_b64 v74, {vr(G+32,2)} offset:{L_H}\ns_mov_b64 exec, -1\ns_branch L_cq')
    A('L_c23:')
    A('''s_getpc_b64 s[8:9]
    L_pc1:
    s_sub_u32 s8, s8, L_pc1-L_base
    s_subb_u32 s9, s9, 0
    s_lshr_b32 s3, s2, 2
    s_andn2_b32 s3, s3, 1
    s_and_b32 s7, s4, 1
    s_add_u32 s3, s3, s7
    s_and_b32 s3, s3, 15
    s_lshl_b32 s3, s3, 10
    v_add_u32 v76, s3, v75
    v_min_u32 v76, L_end-L_base-12, v76
    global_load_dwordx4 v[80:83], v76, s[8:9]
    s_barrier
    s_waitcnt vmcnt(0)
    s_call_b64 s[60:61], L_load10''')
    masks(['v4', 'v5', 'v6', 'v7'], 'v2', 'v64', 'v65')
    A('s_waitcnt lgkmcnt(0)')
    tags()
    A('L_cq:')
    A('v_mul_u32_u24 v73, 40, v3')
    L = lab('hx')
    A(f'{L}:\nds_read2_b64 {vr(X0,4)}, v73 offset0:{L_H//8} offset1:{L_H//8+1}\nds_read2_b64 {vr(X0+4,4)}, v73 offset0:{L_H//8+2} offset1:{L_H//8+3}\nds_read_b64 {vr(X0+8,2)}, v73 offset:{L_H+32}\ns_waitcnt lgkmcnt(0)')
    poll_end([v(X0+i) for i in range(10)], 'v60', L, 2)
    A(f'''s_mul_i32 s3, s59, 768
    s_lshl_b32 s7, s4, 8
    s_add_u32 s11, s3, s7
    s_add_u32 s11, s11, {R_SIB - 256}
    s_call_b64 s[60:61], L_mm10
    v_add_u32 v64, s11, v64
    global_store_dwordx2 v64, v[60:61], s[42:43] sc1
    s_mov_b64 exec, -1''')
    stamp(4)
    A(f'''v_lshrrev_b32 v76, 4, v2
    v_and_b32 v77, 15, v2
    v_mul_u32_u24 v73, 768, v76
    v_lshl_add_u32 v73, v77, 4, v73
    s_mul_i32 s3, s5, 6144
    s_add_u32 s3, s3, s7
    s_add_u32 s3, s3, {R_SIB - 256}
    v_add_u32 v73, s3, v73
    s_add_u32 s52, s42, s3
    s_addc_u32 s53, s43, 0
    v_lshlrev_b32 v74, 3, v77
    v_lshl_add_u32 v74, v76, 1, v74
    s_lshl_b32 s3, s4, 7
    v_add_u32 v74, s3, v74
    v_mov_b32 v79, 1''')
    L = lab('hb')
    A(f'{L}:')
    for k in range(8): A(f's_load_dword s{62+k}, s[52:53], {768*k + 128} glc')
    A('s_waitcnt lgkmcnt(0)')
    for k in range(1, 8): A(f's_max_u32 s62, s62, s{62+k}')
    D = lab('hbh')
    A(f's_cmp_eq_u32 s62, -1\ns_cbranch_scc0 {D}')
    spin_tail(L, 1)
    A(f'{D}:')
    stamp(12)
    A(f'global_load_dwordx4 v[80:83], v73, s[42:43] sc1\nglobal_load_dwordx4 v[84:87], v73, s[42:43] offset:3072 sc1\ns_waitcnt vmcnt(0)')
    poll_end([v(80+i) for i in range(8)], 'v60', L, SLB)
    A('v_pk_add_f32 v[80:81], v[80:81], v[84:85]\nv_pk_add_f32 v[82:83], v[82:83], v[86:87]')
    A('v_permlane32_swap_b32 v80, v82\nv_permlane32_swap_b32 v81, v83\nv_add_f32 v80, v80, v82\nv_add_f32 v81, v81, v83')
    A('v_permlane16_swap_b32 v80, v81\nv_add_f32 v80, v80, v81\nv_cvt_pk_bf16_f32 v80, v80, v80')
    A(f'ds_write_b16 v74, v80 offset:{L_Q - 128}\ns_mov_b64 exec, 1\nds_add_u32 v0, v79 offset:{L_CQ}\ns_mov_b64 exec, -1')
    stamp(5)
    A('s_cmp_eq_u32 s4, 2\ns_cbranch_scc1 L_c2\ns_cmp_eq_u32 s4, 3\ns_cbranch_scc0 L_tail')
    A('s_cmp_lt_u32 s2, 20\ns_cbranch_scc0 L_tail')
    A(f's_lshl_b32 s3, s2, 10\nv_add_u32 v72, s3, v75')
    for r in range(8): A(f'v_add_u32 v{76+r}, {R_MODB + r*20480}, v72')
    lds_wait_ge(L_OK, 1, 'v0', 'v60', sleep=4)
    L = lab('fz'); D = lab('fzd')
    A(f'{L}:')
    for r in range(8): A(f'global_load_dwordx4 {vr(88+4*r,4)}, v{76+r}, s[42:43] sc1')
    A('s_waitcnt vmcnt(0)')
    A('v_cmp_ne_u64 s[8:9], v[90:91], s[14:15]')
    for r in range(1, 8): A(f'v_cmp_ne_u64 vcc, s[14:15], {vr(90+4*r,2)}\ns_or_b64 s[8:9], s[8:9], vcc')
    A(f's_cbranch_scc0 {D}')
    spin_tail(L, 16)
    A(f'{D}:')
    for a, b in ((0,1),(2,3),(4,5),(6,7),(0,2),(4,6),(0,4)): A(f'v_pk_add_f32 {vr(88+4*a,2)}, {vr(88+4*a,2)}, {vr(88+4*b,2)}')
    round_list(['v88', 'v89'], ['v60'])
    A(f'v_lshrrev_b32 v72, 1, v72\nglobal_store_dwordx2 v72, v[88:89], s[42:43] offset:{R_MF} sc1')
    stamp(6)
    A('s_branch L_tail')
    A('L_c2:')
    A(f'v_add_u32 v72, {R_FLAG}, v75')
    L = lab('af'); D = lab('afd')
    A(f'{L}:\nglobal_load_dwordx4 v[80:83], v72, s[42:43] sc1\nglobal_load_dwordx4 v[84:87], v72, s[42:43] offset:1024 sc1\ns_waitcnt vmcnt(0)')
    A('v_cmp_ne_u64 s[8:9], v[80:81], s[14:15]')
    for k in range(1, 4): A(f'v_cmp_ne_u64 vcc, s[14:15], {vr(80+2*k,2)}\ns_or_b64 s[8:9], s[8:9], vcc')
    A(f's_cbranch_scc0 {D}')
    spin_tail(L, 8)
    A(f'{D}:\nds_write_b32 v0, v79 offset:{L_OK}')
    stamp(6)
    A(f's_lshl_b32 s3, s5, 7\ns_add_u32 s3, s3, {R_ST}\ns_add_u32 s52, s42, s3\ns_addc_u32 s53, s43, 0\ns_lshl_b32 s3, s6, 3\nv_mov_b32 v72, s3\nv_lshrrev_b32 v73, 1, v1')
    lds_wait_ge(L_CSTAT, 8, 'v0', 'v60', sleep=2)
    stamp(7)
    def comb8():
        A('v_mov_b32 v60, v76')
        allred8(['v60'], 'v_max_f32')
        A(f'v_sub_f32 v61, v76, v60\nv_mul_f32 v61, {H(LOG2E)}, v61\nv_exp_f32 v61, v61\nv_mul_f32 v61, v61, v77')
        allred8(['v61'])
    A(f'ds_read_b64 v[76:77], v73 offset:{L_ST}\ns_waitcnt lgkmcnt(0)')
    comb8()
    A('v_min_u32 v60, -2, v60\nv_min_u32 v61, -2, v61\ns_mov_b64 exec, 1\nglobal_store_dwordx2 v72, v[60:61], s[52:53] sc1\ns_mov_b64 exec, -1')
    L = lab('st'); D = lab('std')
    A(f'{L}:\ns_load_dwordx16 s[20:35], s[52:53], 0 glc\ns_waitcnt lgkmcnt(0)\ns_max_u32 s3, s20, s21')
    for k in range(2, 16): A(f's_max_u32 s3, s3, s{20+k}')
    A(f's_cmp_eq_u32 s3, -1\ns_cbranch_scc0 {D}')
    spin_tail(L, 1)
    A(f'{D}:')
    for k in range(8): A(f'v_writelane_b32 v76, s{20+2*k}, {k}\nv_writelane_b32 v77, s{21+2*k}, {k}')
    comb8()
    A('v_rcp_f32 v61, v61\nv_min_u32 v60, -2, v60\nv_min_u32 v61, -2, v61')
    A(f's_mov_b64 exec, 1\nds_write_b64 v0, v[60:61] offset:{L_ML}\ns_mov_b64 exec, -1')
    stamp(3)
    A('s_branch L_tail')

    A('L_mm10:\ns_waitcnt vmcnt(0)')
    for s in range(10):
        F = F0 + 4*(s & 1)
        for t in range(4): A(f'v_and_b32 v{F+t}, v{X0+s}, v{4+t}')
        c = '0' if s == 0 else vr(D0, 4)
        A(f'v_mfma_f32_16x16x32_bf16 {vr(D0,4)}, {vr(F,4)}, {vr(W0+4*s,4)}, {c}')
    A('''v_and_b32 v65, 16, v2
    v_lshrrev_b32 v66, 5, v2
    v_lshl_add_u32 v64, v1, 1, v65
    v_lshl_add_u32 v64, v66, 3, v64''')
    A(f'v_permlane32_swap_b32 v60, v62\nv_permlane32_swap_b32 v61, v63')
    A(f'v_add_f32 v60, v62, v60 row_ror:8 {DPPF}\nv_add_f32 v61, v63, v61 row_ror:8 {DPPF}')
    A('v_min_u32 v60, -2, v60\nv_min_u32 v61, -2, v61')
    set_exec(0x00ff00ff, 0x00ff00ff)
    A('s_setpc_b64 s[60:61]')

    def calc_t(dst):
        A(f's_and_b32 s3, s2, 7\ns_mul_i32 s3, s3, 3\ns_add_u32 s3, s3, s6\ns_lshl_b32 s3, s3, 2\ns_bfe_u32 s7, s2, 0x20003\ns_add_u32 {dst}, s3, s7')
    def lds_init():
        A('''v_mov_b32 v76, -1
        v_mov_b32 v77, -1
        v_mov_b32 v78, -1
        v_mov_b32 v79, -1
        v_lshlrev_b32 v80, 2, v2
        ds_write_b128 v75, v[76:79]
        ds_write_b32 v80, v0 offset:1024''')
    A('L_c0A:')
    A('v_mov_b32 v0, 0\nv_lshlrev_b32 v75, 4, v2')
    lds_init()
    A(f's_waitcnt lgkmcnt(0)\ns_barrier\ns_load_dwordx2 s[14:15], s[42:43], {R_E}')
    masks(['v4', 'v5', 'v6', 'v7'], 'v2', 'v60', 'v61')
    A('s_waitcnt vmcnt(10)')
    C = [v(88+i) for i in range(10)]; E = [v(100+i) for i in range(10)]
    for i in range(5): A(f'v_lshlrev_b32 {C[2*i]}, 16, v{82+i}\nv_and_b32 {C[2*i+1]}, 0xffff0000, v{82+i}')
    for i in range(10): A(f'v_mul_f32 {E[i]}, {H(-LOG2E)}, {C[i]}')
    for i in range(10): A(f'v_exp_f32 {E[i]}, {E[i]}')
    for i in range(10): A(f'v_add_f32 {E[i]}, 1.0, {E[i]}')
    for i in range(10): A(f'v_rcp_f32 {E[i]}, {E[i]}')
    for i in range(10): A(f'v_mul_f32 {E[i]}, {E[i]}, {C[i]}')
    for i in range(10): A(f'v_cvt_pk_bf16_f32 v{X0+i}, {E[i]}, {E[i]}')
    A('s_waitcnt lgkmcnt(0)')
    tags()
    stamp(1)
    A('s_call_b64 s[60:61], L_mm10')
    A(f'''s_lshl_b32 s3, s13, 6
    v_lshrrev_b32 v64, 2, v64
    v_add_u32 v64, s3, v64
    v_mul_u32_u24 v65, 52429, v64
    v_lshrrev_b32 v65, 22, v65
    v_mul_u32_u24 v65, 4480, v65
    s_mul_i32 s3, s12, 640
    s_add_u32 s3, s3, {R_MODA}
    v_lshl_add_u32 v64, v64, 3, s3
    v_add_u32 v64, v64, v65
    v_mov_b32 v62, s14
    v_mov_b32 v63, s15
    global_store_dwordx4 v64, v[60:63], s[42:43] sc1
    s_lshl_b32 s3, s13, 6
    s_add_u32 s3, s3, s12
    s_add_u32 s3, s3, {R_DONE}
    v_mul_u32_u24 v65, 1280, v2
    v_add_u32 v65, s3, v65
    s_mov_b64 exec, 0xff
    global_store_byte v65, v62, s[42:43] sc1
    s_mov_b64 exec, -1''')
    stamp(2)
    A(f's_mul_i32 s11, s12, 20480\ns_lshl_b32 s7, s13, 9\ns_add_u32 s11, s11, s7\ns_add_u32 s11, s11, {R_MODB}')
    for rp in range(2):
        A('s_add_u32 s44, s44, 2560\ns_addc_u32 s45, s45, 0\ns_call_b64 s[60:61], L_load10\ns_call_b64 s[60:61], L_mm10')
        A('v_lshl_add_u32 v64, v64, 1, s11\nv_mov_b32 v62, s14\nv_mov_b32 v63, s15\nglobal_store_dwordx4 v64, v[60:63], s[42:43] sc1\ns_mov_b64 exec, -1')
        if rp == 0: A('s_add_u32 s11, s11, 10240')
    stamp(4)
    A(f'''s_mul_i32 s3, s10, 6554
    s_lshr_b32 s3, s3, 16
    s_mul_i32 s7, s3, 10
    s_sub_u32 s7, s10, s7
    s_mul_i32 s3, s3, {384*1280}
    s_lshl_b32 s7, s7, 7
    s_add_u32 s3, s3, s7
    s_add_u32 s44, s24, s3
    s_addc_u32 s45, s25, 0
    s_mov_b32 s46, {384*1280}
    v_mul_u32_u24 v72, 1280, v3
    v_add_u32 v72, v72, v1''')
    lds_wait_ge(L_TRIG, 1, 'v0', 'v60', sleep=4)
    stamp(6)
    L = lab('dma')
    A(f's_mov_b32 s56, 0\ns_movk_i32 s3, {L_W}\n{L}:\ns_mov_b32 m0, s3\ns_add_u32 s3, s3, 1024\nbuffer_load_dwordx4 v72, s[44:47], s56 offen nt lds\ns_add_u32 s56, s56, 10240\ns_waitcnt vmcnt({TWA})\ns_cmp_lt_u32 s56, {384*1280}\ns_cbranch_scc1 {L}')
    A('s_branch L_dmadone')
    A('L_c0B:')
    lds_init()
    calc_t('s12')
    A(f'''v_mul_u32_u24 v72, 3072, v3
    v_add_u32 v72, v72, v1
    s_lshr_b32 s3, s12, 2
    s_lshl_b32 s3, s3, 7
    s_and_b32 s7, s12, 3
    s_mul_i32 s7, s7, {160*3072}
    s_add_u32 s3, s3, s7
    s_waitcnt lgkmcnt(0)
    s_barrier
    s_add_u32 s44, s28, s3
    s_addc_u32 s45, s29, 0
    s_mov_b32 s46, {160*3072}
    s_add_u32 s48, s30, s3
    s_addc_u32 s49, s31, 0
    s_mov_b32 s50, {160*3072}''')
    lds_wait_ge(L_TRIG, 1, 'v0', 'v60', sleep=4)
    stamp(6)
    L = lab('dmb')
    A(f'''s_mov_b32 s56, 0
    s_movk_i32 s3, {L_W}
    {L}:
    s_mov_b32 m0, s3
    s_add_u32 s7, s3, 20480
    buffer_load_dwordx4 v72, s[44:47], s56 offen nt lds
    s_mov_b32 m0, s7
    s_add_u32 s3, s3, 1024
    buffer_load_dwordx4 v72, s[48:51], s56 offen nt lds
    s_add_u32 s56, s56, {8*3072}
    s_waitcnt vmcnt({TWA})
    s_cmp_lt_u32 s56, {160*3072}
    s_cbranch_scc1 {L}
    s_mul_i32 s3, s12, 20480
    s_add_u32 s44, s32, s3
    s_addc_u32 s45, s33, 0
    s_movk_i32 s46, 20480''')
    L = lab('dmc')
    A(f's_mov_b32 s56, 0\ns_mov_b32 s3, {L_W+40960}\n{L}:\ns_mov_b32 m0, s3\ns_add_u32 s3, s3, 1024\nbuffer_load_dwordx4 v75, s[44:47], s56 offen nt lds\ns_add_u32 s56, s56, 1024\ns_waitcnt vmcnt({TWA})\ns_cmp_lt_u32 s56, 20480\ns_cbranch_scc1 {L}')
    A('L_dmadone:')
    A(f's_waitcnt vmcnt(0)\nv_mov_b32 v60, 1\nds_write_b32 v0, v60 offset:{L_WRDY}')
    stamp(7)

    A('L_tail:')
    A('v_lshrrev_b32 v4, 4, v2\nv_and_b32 v5, 15, v2\nv_lshrrev_b32 v6, 2, v5\nv_and_b32 v7, 3, v2\nv_lshlrev_b32 v7, 3, v7')
    lds_wait_ge(L_CSTAT, 8, 'v0', 'v90', sleep=8)
    lds_wait_ge(L_OK, 1, 'v0', 'v90', sleep=4)
    A('s_cmp_ge_u32 s2, 96\ns_cbranch_scc0 L_tailB')
    A(f'''s_mul_i32 s12, s10, 6554
    s_lshr_b32 s12, s12, 16
    s_mul_i32 s7, s12, 10
    s_sub_u32 s13, s10, s7''')
    A('s_cmp_lt_u32 s10, 80\ns_cselect_b32 s57, 1, 0\ns_cmp_eq_u32 s4, 1\ns_cselect_b32 s57, s57, 0')
    A(f'''v_and_b32 v100, 1, v2
    v_lshl_add_u32 v100, v100, 2, v4
    s_lshl_b32 s3, s10, 3
    v_add_u32 v100, s3, v100
    v_lshlrev_b32 v101, 2, v100
    v_lshlrev_b32 v100, 1, v100
    v_add_u32 v102, {R_MF + 3*2560}, v101
    v_add_u32 v101, {R_X1}, v101
    v_lshrrev_b32 v103, 1, v2
    v_mul_u32_u24 v103, 2560, v103
    v_and_b32 v104, 1, v2
    v_lshl_add_u32 v103, v104, 4, v103
    s_lshl_b32 s3, s10, 5
    s_add_u32 s3, s3, {R_DN}
    v_add_u32 v103, s3, v103
    v_add_u32 v104, {32*2560}, v103
    v_add_u32 v105, {64*2560}, v103
    s_cmp_eq_u32 s57, 0
    s_cbranch_scc1 L_nofin
    global_load_ushort v107, v100, s[38:39]''')
    L = lab('gb')
    A(f'{L}:\nglobal_load_dword v106, v102, s[42:43] sc1\ns_waitcnt vmcnt(0)')
    poll_end(['v106'], None, L, 16)
    A('L_nofin:')
    B0 = 8; AA = 56; DD = 68
    A(f'''v_lshl_add_u32 v84, v4, 3, v6
    s_mul_i32 s3, s4, 96
    v_add_u32 v84, s3, v84
    v_lshl_add_u32 v84, v84, 7, v7
    v_and_b32 v85, 7, v2
    v_mul_u32_u24 v85, 12288, v85
    v_lshl_add_u32 v85, v4, 4, v85
    s_mul_i32 s3, s12, 768
    s_mul_i32 s7, s4, 192
    s_add_u32 s3, s3, s7
    s_add_u32 s3, s3, {R_O}
    v_add_u32 v85, s3, v85
    v_lshrrev_b32 v86, 5, v2
    v_lshl_add_u32 v86, v86, 4, v5
    v_lshlrev_b32 v86, 5, v86
    v_and_b32 v87, 1, v4
    v_lshl_add_u32 v86, v87, 2, v86
    s_lshl_b32 s3, s4, 3
    v_add_u32 v86, s3, v86
    v_lshlrev_b32 v87, 5, v2
    s_mul_i32 s3, s12, 2560
    s_lshl_b32 s7, s13, 8
    s_add_u32 s3, s3, s7
    s_add_u32 s3, s3, {R_P}
    v_lshl_add_u32 v88, v2, 2, s3
    v_mov_b32 v89, 1''')
    for i in range(12): A(f'v_mov_b32 v{AA+i}, 0')
    lds_wait_ge(L_WRDY, 1, 'v0', 'v90', sleep=4)
    for s in range(3):
        for ct in range(4):
            for hf in range(2):
                A(f'ds_read_b64_tr_b16 {vr(B0+(s*4+ct)*4+2*hf,2)}, v84 offset:{L_W + (32*s+4*hf)*128 + 32*ct}')
        A('s_waitcnt lgkmcnt(0)')
    stamp(8)
    lds_wait_ge(L_CO, 8, 'v0', 'v90', sleep=1)
    stamp(9)
    L = lab('wo')
    A(f'{L}:')
    set_exec(0x00ff00ff, 0x00ff00ff)
    for s in range(3): A(f'global_load_dwordx4 {vr(AA+4*s,4)}, v85, s[42:43] offset:{64*s} sc1')
    A('s_mov_b64 exec, -1')
    for s in range(3):
        A(f's_waitcnt vmcnt({2-s})')
        for ct in range(4):
            c = '0' if s == 0 else vr(DD+4*ct, 4)
            A(f'v_mfma_f32_16x16x32_bf16 {vr(DD+4*ct,4)}, {vr(AA+4*s,4)}, {vr(B0+(s*4+ct)*4,4)}, {c}')
    poll_end([v(AA+i) for i in range(12)], 'v90', L, 0)
    stamp(10)
    for ct in range(4): A(f'v_pk_add_f32 {vr(DD+4*ct,2)}, {vr(DD+4*ct,2)}, {vr(DD+4*ct+2,2)}')
    for ct in range(4): A(f'v_add_f32 v{DD+4*ct}, v{DD+4*ct}, v{DD+4*ct+1}')
    A(f'v_permlane32_swap_b32 v{DD}, v{DD+4}\nv_permlane32_swap_b32 v{DD+8}, v{DD+12}')
    A(f'ds_write_b32 v86, v{DD} offset:{L_PACC}\nds_write_b32 v86, v{DD+8} offset:{L_PACC + 1024}')
    A(f's_mov_b64 exec, 1\nds_add_rtn_u32 v90, v0, v89 offset:{L_CWO}\ns_mov_b64 exec, -1\nds_read_b128 v[92:95], v87 offset:{L_PACC}\nds_read_b128 v[96:99], v87 offset:{L_PACC+16}')
    A('s_waitcnt lgkmcnt(0)\nv_readfirstlane_b32 s3, v90')
    A('v_pk_add_f32 v[92:93], v[92:93], v[94:95]\nv_pk_add_f32 v[96:97], v[96:97], v[98:99]\nv_pk_add_f32 v[92:93], v[92:93], v[96:97]\nv_add_f32 v92, v92, v93\nv_min_u32 v92, -2, v92')
    A('s_cmp_eq_u32 s3, 3\ns_cbranch_scc0 L_wonost\nglobal_store_dword v88, v92, s[42:43] sc1\nL_wonost:')
    stamp(11)
    A('s_cmp_eq_u32 s57, 0\ns_cbranch_scc1 L_fin')
    L = lab('fi')
    A(f'''{L}:
    global_load_dwordx4 v[8:11], v103, s[42:43] sc1
    global_load_dwordx4 v[12:15], v104, s[42:43] sc1
    global_load_dwordx4 v[16:19], v105, s[42:43] sc1
    global_load_dword v20, v101, s[42:43] sc1
    s_waitcnt vmcnt(0)''')
    poll_end([v(8+i) for i in range(13)], 'v90', L, 0)
    stamp(12)
    A('v_pk_add_f32 v[8:9], v[8:9], v[12:13]\nv_pk_add_f32 v[10:11], v[10:11], v[14:15]\nv_pk_add_f32 v[8:9], v[8:9], v[16:17]\nv_pk_add_f32 v[10:11], v[10:11], v[18:19]')
    A('v_permlane32_swap_b32 v8, v10\nv_permlane32_swap_b32 v9, v11\nv_add_f32 v8, v8, v10\nv_add_f32 v9, v9, v11')
    A('v_permlane16_swap_b32 v8, v9\nv_add_f32 v8, v8, v9')
    for k in (2, 4, 8): A(f'v_add_f32 v8, v8, v8 row_ror:{k} {DPPF}')
    round_list(['v8'], ['v9'])
    A('v_mul_f32 v8, v8, v106')
    round_list(['v8'], ['v9'])
    A('v_add_f32 v8, v8, v20\nv_cvt_pk_bf16_f32 v8, v8, v8')
    set_exec(0x00030003, 0x00030003)
    A('global_store_short v100, v8, s[38:39]')
    stamp(13)
    A(f's_cmp_eq_u32 s10, 0\ns_cbranch_scc0 L_fin\ns_mov_b64 exec, 1\nv_mov_b32 v10, {R_E}\nv_mov_b32 v12, s14\nv_mov_b32 v13, s15\nglobal_store_dwordx2 v10, v[12:13], s[42:43] sc1')
    A('s_branch L_fin')

    A('L_tailB:')
    calc_t('s12')
    G0 = 8; U0 = 28; WD = 48
    GA = 68; SB = 72; CB = 76; XX = 80
    P0 = 100
    A(f'''s_mul_i32 s13, s4, 640
    v_add_u32 v84, s13, v75
    v_lshrrev_b32 v85, 1, v84
    v_add_u32 v86, {R_MF}, v84
    v_add_u32 v87, {R_MF + 5120}, v84''')
    set_exec(0xffffffff, 0xff)
    A('global_load_dwordx2 v[82:83], v85, s[16:17]')
    L = lab('mf')
    A(f'''{L}:
    global_load_dwordx4 {vr(GA,4)}, v86, s[42:43] sc1
    global_load_dwordx4 {vr(SB,4)}, v86, s[42:43] offset:2560 sc1
    global_load_dwordx4 {vr(CB,4)}, v87, s[42:43] sc1
    s_waitcnt vmcnt(0)''')
    poll_end([v(GA+i) for i in range(12)], 'v90', L, 16)
    A('v_lshlrev_b32 v80, 16, v82\nv_and_b32 v81, 0xffff0000, v82\nv_lshlrev_b32 v82, 16, v83\nv_and_b32 v83, 0xffff0000, v83')
    for i in range(4): A(f'v_add_f32 v{CB+i}, 1.0, v{CB+i}')
    round_list([v(CB+i) for i in range(4)], ['v90', 'v91'])
    A('s_mov_b64 exec, -1')
    A(f'''s_add_u32 s44, s42, {R_P}
    s_addc_u32 s45, s43, 0
    s_mov_b32 s46, {16*2560}
    v_add_u32 v86, {R_X1}, v84
    v_lshlrev_b32 v85, 3, v2''')
    A(f'''v_lshl_add_u32 v87, v4, 3, v6
    v_lshl_add_u32 v87, v87, 7, v7
    s_lshl_b32 s3, s4, 5
    v_add_u32 v87, s3, v87
    v_and_b32 v88, 1, v4
    v_lshl_add_u32 v88, v88, 3, v6
    v_mul_u32_u24 v88, 1280, v88
    v_lshrrev_b32 v89, 1, v4
    v_lshl_add_u32 v89, v89, 5, v7
    s_mul_i32 s3, s4, 320
    v_add3_u32 v88, v88, v89, s3''')
    lds_wait_ge(L_WRDY, 1, 'v0', 'v90', sleep=4)
    for s in range(5):
        for hf in range(2):
            A(f'ds_read_b64_tr_b16 {vr(G0+4*s+2*hf,2)}, v87 offset:{L_W + (32*s+4*hf)*128}')
            A(f'ds_read_b64_tr_b16 {vr(U0+4*s+2*hf,2)}, v87 offset:{L_W + 20480 + (32*s+4*hf)*128}')
            A(f'ds_read_b64_tr_b16 {vr(WD+4*s+2*hf,2)}, v88 offset:{L_W + 40960 + 4*hf*1280 + 64*s}')
        if s in (1, 3, 4): A('s_waitcnt lgkmcnt(0)')
    A(f'''v_lshlrev_b32 v87, 4, v4
    s_and_b32 s57, s12, 3
    s_andn2_b32 s3, s12, 3
    s_add_u32 s3, s3, s4
    s_lshl_b32 s3, s3, 2
    s_add_u32 s3, s3, s57
    s_lshl_b32 s3, s3, 7
    s_add_u32 s3, s3, {R_GU}
    v_lshl_add_u32 v88, v5, 3, s3
    v_and_b32 v89, 1, v4
    v_lshlrev_b32 v89, 6, v89
    v_and_b32 v90, 7, v2
    v_lshl_add_u32 v89, v90, 3, v89
    s_lshl_b32 s3, s12, 9
    s_add_u32 s3, s3, {R_GU}
    v_add_u32 v89, s3, v89
    v_lshlrev_b32 v92, 6, v5
    v_lshl_add_u32 v92, v4, 4, v92
    s_mul_i32 s3, s12, 2560
    s_add_u32 s3, s3, s13
    s_add_u32 s3, s3, {R_DN}
    v_add_u32 v92, s3, v92
    s_lshl_b32 s3, s4, 4
    v_mov_b32 v93, s3
    v_lshrrev_b32 v90, 1, v4
    v_and_b32 v91, 1, v2
    v_cmp_eq_u32 s[62:63], v90, v91
    v_lshrrev_b32 v90, 1, v5''')
    MS = ['s[52:53]', 's[64:65]', 's[66:67]', 's[68:69]', 's[54:55]']
    for m in range(5):
        A(f'v_cmp_eq_u32 vcc, {m}, v90\ns_and_b64 {MS[m]}, vcc, s[62:63]')
    A('v_mov_b32 v94, 0\nv_mov_b32 v95, 0')
    stamp(8)
    lds_wait_ge(L_CO, 8, 'v0', 'v90', sleep=1)
    stamp(9)
    set_exec(0xffffffff, 0xff)
    L = lab('pp'); D = lab('ppd')
    A(f'{L}:')
    cur = 0
    for g in range(16):
        so, io = (g*2560) // 4096 * 4096, (g*2560) % 4096
        if so != cur: A(f's_mov_b32 s56, {so}'); cur = so
        A(f'buffer_load_dwordx4 {vr(P0+4*g,4)}, v84, s[44:47], {"s56" if so else "0"} offen offset:{io} sc1')
    A('s_waitcnt vmcnt(14)')
    A(f'v_pk_add_f32 v[96:97], {vr(P0,2)}, {vr(P0+4,2)}\nv_pk_add_f32 v[98:99], {vr(P0+2,2)}, {vr(P0+6,2)}')
    for g in range(2, 16):
        if g % 2 == 0: A(f's_waitcnt vmcnt({14-g})')
        A(f'v_pk_add_f32 v[96:97], v[96:97], {vr(P0+4*g,2)}\nv_pk_add_f32 v[98:99], v[98:99], {vr(P0+4*g+2,2)}')
    A(f'v_cmp_u_f32 vcc, v96, v97\nv_cmp_u_f32 s[8:9], v98, v99\ns_or_b64 vcc, vcc, s[8:9]\ns_cbranch_vccz {D}')
    poll_end([v(P0+i) for i in range(64)], 'v90', L, 0)
    A(f'{D}:')
    stamp(10)
    X1 = [v(96+i) for i in range(4)]
    round_list(X1, ['v90', 'v91'])
    for i in range(4): A(f'v_mul_f32 {X1[i]}, {X1[i]}, v{GA+i}')
    round_list(X1, ['v90', 'v91'])
    for i in range(4): A(f'v_add_f32 {X1[i]}, {X1[i]}, v{XX+i}')
    round_list(X1, ['v90', 'v91'])
    A('v_readfirstlane_b32 s8, v96')
    A('s_cmp_eq_u32 s12, 0\ns_cbranch_scc0 L_nox1\nglobal_store_dwordx4 v86, v[96:99], s[42:43] sc1\nL_nox1:')
    for i in range(4): A(f'v_subrev_f32 v{100+i}, s8, {X1[i]}')
    A('v_add_f32 v94, v100, v101\nv_mul_f32 v95, v100, v100\nv_add_f32 v104, v102, v103\nv_fmac_f32 v95, v101, v101\nv_add_f32 v94, v94, v104\nv_fmac_f32 v95, v102, v102\nv_fmac_f32 v95, v103, v103')
    A('s_mov_b64 exec, -1')
    allred8(['v94', 'v95']); red_hi(['v94', 'v95'])
    A(f'v_mul_f32 v104, {H(1/160)}, v94\nv_fma_f32 v105, -v104, v94, v95\nv_add_f32 v104, s8, v104')
    A('v_min_u32 v105, -2, v105\nv_min_u32 v104, -2, v104')
    A(f's_lshl_b64 exec, 1, 63\nds_write_b64 v93, v[104:105] offset:{L_LN}')
    A('s_cmp_eq_u32 s4, s57\ns_cbranch_scc0 L_h2wait')
    set_exec(0xffffffff, 0xff)
    L = lab('ln')
    A(f'{L}:\nds_read2_b64 v[104:107], v0 offset0:{L_LN//8} offset1:{L_LN//8+2}\nds_read2_b64 v[108:111], v0 offset0:{L_LN//8+4} offset1:{L_LN//8+6}\ns_waitcnt lgkmcnt(0)')
    A('v_add_f32 v112, v104, v106\nv_add_f32 v113, v108, v110')
    poll_end([v(104+i) for i in range(8)], 'v90', L, 0)
    A('''v_add_f32 v112, v112, v113
    v_add_f32 v105, v105, v107
    v_mul_f32 v112, 0.25, v112
    v_add_f32 v109, v109, v111
    v_sub_f32 v104, v104, v112
    v_sub_f32 v106, v106, v112
    v_sub_f32 v108, v108, v112
    v_sub_f32 v110, v110, v112
    v_add_f32 v105, v105, v109
    v_mul_f32 v113, v104, v104
    v_mul_f32 v114, v108, v108
    v_fmac_f32 v113, v106, v106
    v_fmac_f32 v114, v110, v110'''.replace('0.25', H(0.25)))
    A(f'v_mul_f32 v105, {H(1/640)}, v105\nv_add_f32 v113, v113, v114\nv_fmac_f32 v105, {H(0.25)}, v113')
    A('v_cvt_pk_bf16_f32 v90, v112, v105\nv_lshlrev_b32 v112, 16, v90\nv_and_b32 v105, 0xffff0000, v90')
    A(f'v_add_f32 v105, {H(1e-5)}, v105')
    for i in range(4): A(f'v_sub_f32 {X1[i]}, {X1[i]}, v112')
    A('v_cvt_pk_bf16_f32 v105, v105, v105\nv_cvt_pk_bf16_f32 v90, v96, v97\nv_cvt_pk_bf16_f32 v91, v98, v99\nv_lshlrev_b32 v105, 16, v105\nv_sqrt_f32 v105, v105')
    A('v_lshlrev_b32 v96, 16, v90\nv_and_b32 v97, 0xffff0000, v90')
    A('v_cvt_pk_bf16_f32 v105, v105, v105\nv_lshlrev_b32 v98, 16, v91\nv_lshlrev_b32 v105, 16, v105\nv_rcp_f32 v105, v105\nv_and_b32 v99, 0xffff0000, v91')
    for i in range(4): A(f'v_mul_f32 {X1[i]}, {X1[i]}, v105')
    round_list(X1, ['v90', 'v91'])
    for i in range(4): A(f'v_mul_f32 {X1[i]}, {X1[i]}, v{CB+i}')
    round_list(X1, ['v90', 'v91'])
    for i in range(4): A(f'v_add_f32 {X1[i]}, {X1[i]}, v{SB+i}')
    A(f'v_cvt_pk_bf16_f32 v90, v96, v97\nv_cvt_pk_bf16_f32 v91, v98, v99\nv_min_u32 v90, -2, v90\nv_min_u32 v91, -2, v91\nds_write_b64 v85, v[90:91] offset:{L_H2}')
    A('L_h2wait:\ns_mov_b64 exec, -1')
    HA = 100
    L = lab('h2')
    A(f'{L}:')
    for s in range(5): A(f'ds_read_b128 {vr(HA+4*s,4)}, v87 offset:{L_H2 + 64*s}')
    A('s_waitcnt lgkmcnt(0)')
    D = lab('h2d')
    A(f'v_cmp_eq_u32 vcc, -1, v{HA+19}\ns_cbranch_vccz {D}')
    spin_tail(L, 0)
    A(f'{D}:')
    for s in range(5):
        A(f'v_mfma_f32_16x16x32_bf16 v[120:123], {vr(HA+4*s,4)}, {vr(G0+4*s,4)}, {"0" if s==0 else "v[120:123]"}')
        A(f'v_mfma_f32_16x16x32_bf16 v[124:127], {vr(HA+4*s,4)}, {vr(U0+4*s,4)}, {"0" if s==0 else "v[124:127]"}')
    poll_end([v(HA+i) for i in range(20)], 'v90', L, 0)
    A('s_mov_b64 exec, 0xffff\nv_min_u32 v120, -2, v120\nv_min_u32 v121, -2, v124')
    A('global_store_dwordx2 v88, v[120:121], s[42:43] sc1\ns_mov_b64 exec, -1')
    stamp(11)
    L = lab('gu')
    A(f'{L}:')
    for k in range(4): A(f'global_load_dwordx2 {vr(100+2*k,2)}, v89, s[42:43] offset:{128*k} sc1')
    A('s_waitcnt vmcnt(0)')
    A('v_pk_add_f32 v[108:109], v[100:101], v[102:103]\nv_pk_add_f32 v[110:111], v[104:105], v[106:107]')
    poll_end([v(100+i) for i in range(8)], 'v90', L, 0)
    stamp(13)
    A('v_add_f32 v108, v108, v110\nv_add_f32 v110, v109, v111')
    round_list(['v108', 'v110'], ['v90'])
    K0 = -2.0 * LOG2E * 0.7978845608028654
    A(f'''v_mul_f32 v109, v108, v108
    v_mov_b32 v111, {H(K0)}
    v_fmac_f32 v111, {H(K0*0.044715)}, v109
    v_mul_f32 v111, v111, v108
    v_exp_f32 v111, v111
    v_add_f32 v111, 1.0, v111
    v_rcp_f32 v111, v111
    v_mul_f32 v108, v108, v111''')
    round_list(['v108'], ['v90'])
    A('v_mul_f32 v108, v108, v110')
    A(f'v_mov_b32 v109, v108 quad_perm:[1,0,3,2] {DPPF}\nv_cvt_pk_bf16_f32 v108, v108, v109')
    for d in range(4): A(f'v_mov_b32 v{100+d}, v108 row_newbcast:{2*d} {DPPF}')
    for m in range(5):
        F = 112 + 4*(m & 1)
        for d in range(4): A(f'v_cndmask_b32 v{F+d}, 0, v{100+d}, {MS[m]}')
        A(f'v_mfma_f32_16x16x32_bf16 v[120:123], {vr(WD+4*m,4)}, {vr(F,4)}, {"0" if m==0 else "v[120:123]"}')
    set_exec(0x03ff03ff, 0x03ff03ff)
    for i in range(4): A(f'v_min_u32 v{120+i}, -2, v{120+i}')
    A('global_store_dwordx4 v92, v[120:123], s[42:43] sc1')
    stamp(12)

    A('L_fin:')
    if stamps:
        A('s_memrealtime s[98:99]\ns_waitcnt lgkmcnt(0)\ns_mov_b64 exec, 1')
        A(f's_mul_i32 s3, s2, 12\ns_add_u32 s3, s3, s4\ns_lshl_b32 s3, s3, 6\ns_add_u32 s3, s3, {R_STAMP}\nv_mov_b32 v0, s3')
        for i in range(15): A(f'v_mov_b32 v{8+i}, s{70+2*i}')
        A('v_mov_b32 v23, s58')
        for i in range(4): A(f'global_store_dwordx4 v0, {vr(8+4*i,4)}, s[42:43] offset:{16*i}')
        if stamps == 2:
            A('s_cmp_eq_u32 s2, 96\ns_cbranch_scc0 L_end\ns_cmp_eq_u32 s4, 1\ns_cbranch_scc0 L_end\ns_nop 4')
            for i in range(1, 15): A(f'v_subrev_u32 v{8+i}, s70, v{8+i}')
            A('v_mov_b32 v0, 0')
            for i in range(4): A(f'global_store_dwordx4 v0, {vr(8+4*i,4)}, s[40:41] offset:{16*i}')
    A('L_end:\ns_endpgm')
    npad = A.pad()
    hdr = open('cdna_kernels/' + NAME + '.s.ref').read().split('; Override launch')[0]
    pre = ''
    if stamps:
        pre = ''.join(f'  s_mov_b32 s{70+2*i}, 0\n' for i in range(15))
    txt = hdr + f'''; @launch grid=(256,1,1) block=(768,1,1) lds={LDS_BYTES}
.amdgcn_target "amdgcn-amd-amdhsa--gfx950"
.text
.globl {NAME}_kernel
.p2align 8
.type {NAME}_kernel,@function
{NAME}_kernel:
''' + pre + A.text() + f'''.section .rodata,"a"
.p2align 6
.amdhsa_kernel {NAME}_kernel
  .amdhsa_next_free_vgpr 168
  .amdhsa_next_free_sgpr 102
  .amdhsa_accum_offset 168
  .amdhsa_group_segment_fixed_size 0
  .amdhsa_kernarg_size 112
  .amdhsa_user_sgpr_count 2
  .amdhsa_user_sgpr_kernarg_segment_ptr 1
  .amdhsa_system_sgpr_workgroup_id_x 1
.end_amdhsa_kernel
'''
    return txt, npad

if __name__ == '__main__':
    kw = {}
    outp = sys.argv[1]
    for a in sys.argv[2:]:
        k, val = a.split('=')
        kw[k] = int(val)
    txt, npad = gen(**kw)
    open(outp, 'w').write(txt)
    print('nops inserted', npad)
```

```python
import sys, struct
from asmlib import Asm
NAME = 'adaLN_cond__sliding_block_cached__geglu_ffn__decode'
def f2u(x): return struct.unpack('<I', struct.pack('<f', x))[0]
def H(x): return '0x%08x' % f2u(x)
LOG2E = 1.4426950408889634

R_E = 0
R_DONE = 1024
R_TK = R_DONE + 8*1280
R_ST = R_TK + 32*128
R_MOD = R_ST + 32*128
R_SIB = R_MOD + 8*15360
R_O = R_SIB + 256*768
R_P = R_O + 256*896
R_X1 = R_P + 16*2560
R_DN = R_X1 + 2560
R_GU = R_DN + 96*2560
GU2 = 0x180000 - R_GU
assert R_GU + 96*2560 <= 0x140000
R_STAMP = 0x140000
L_ML = 0; L_H = 128; L_ST2 = 512
L_CSTAT = 1024; L_CO = 1028; L_TRIG = 1032; L_WRDY = 1036; L_CWO = 1040; L_CQ = 1044; L_OK = 1048; L_CA = 1052; L_TRIGB = 1056
L_Q = 1280
L_ST = 1792
L_A = 3072; LAP = 336
L_PACC = 3072
L_OS = 5120
L_TB = 1664
L_F = 1920
L_W = 11264
LDS_BYTES = L_W + 61440

DPPF = 'row_mask:0xf bank_mask:0xf'

def gen(T=3, SG=5, TD=3, TKW=6, XB=40, XA=0, PRIO=1, TN=8, PFF='', GATE=4, FSL=4, FREE=0, CAP=2, DUAL=1, G1=0, G2=0, G4=0, DR=24, FS=0, TLB=0, WDEF=3, OEARLY=4, DPRIO=0, TRIGM=60, TWA=9, ACK=1, PT=1, stamps=False, TIMEOUT=1 << 20, SLA=8, SLB=4):
    A = Asm()
    uid = [0]
    def lab(p):
        uid[0] += 1
        return f'L_{p}{uid[0]}'
    def stamp(i):
        if stamps: A(f's_memrealtime s[{70+2*i}:{71+2*i}]')
    def spin_tail(L, sleep):
        if sleep: A(f's_sleep {sleep}')
        A(f's_sub_u32 s58, s58, 1\ns_cbranch_scc0 {L}\ns_branch L_fin')
    def lds_wait_ge(off, val, vz, vt, sleep=1):
        L = lab('w'); D = lab('d')
        A(f'{L}:\nds_read_b32 {vt}, {vz} offset:{off}\ns_waitcnt lgkmcnt(0)\nv_readfirstlane_b32 s3, {vt}\ns_cmp_ge_u32 s3, {val}\ns_cbranch_scc1 {D}')
        spin_tail(L, sleep)
        A(f'{D}:')
    def maxtree(regs, dst):
        regs = list(regs)
        if len(regs) == 2:
            A(f'v_max_u32 {dst}, {regs[0]}, {regs[1]}'); return
        A(f'v_max3_u32 {dst}, {regs[0]}, {regs[1]}, {regs[2]}')
        rest = regs[3:]
        while len(rest) >= 2:
            A(f'v_max3_u32 {dst}, {dst}, {rest[0]}, {rest[1]}'); rest = rest[2:]
        if rest: A(f'v_max_u32 {dst}, {dst}, {rest[0]}')
    def poll_end(regs, tmp, L, sleep):
        D = lab('ok')
        if len(regs) > 1: maxtree(regs, tmp)
        else: tmp = regs[0]
        A(f'v_cmp_eq_u32 vcc, -1, {tmp}\ns_cbranch_vccz {D}')
        spin_tail(L, sleep)
        A(f'{D}:')
    def allred8(regs, op='v_add_f32'):
        for pat in ('quad_perm:[1,0,3,2]', 'quad_perm:[2,3,0,1]', 'row_half_mirror'):
            for r in regs: A(f'{op} {r}, {r}, {r} {pat} {DPPF}')
    def red_hi(regs, op='v_add_f32'):
        for r in regs: A(f'{op} {r}, {r}, {r} row_ror:8 {DPPF}')
        for r in regs: A(f'{op} {r}, {r}, {r} row_bcast:15 row_mask:0xa bank_mask:0xf')
        for r in regs: A(f'{op} {r}, {r}, {r} row_bcast:31 row_mask:0xc bank_mask:0xf')
    def round_list(regs, tmps):
        regs = list(regs)
        prs = [(regs[i], regs[i+1] if i+1 < len(regs) else None) for i in range(0, len(regs), 2)]
        for k0 in range(0, len(prs), len(tmps)):
            blk = prs[k0:k0+len(tmps)]
            for (a, b), t in zip(blk, tmps): A(f'v_cvt_pk_bf16_f32 {t}, {a}, {b if b else a}')
            for (a, b), t in zip(blk, tmps):
                A(f'v_lshlrev_b32 {a}, 16, {t}')
                if b: A(f'v_and_b32 {b}, 0xffff0000, {t}')
    def masks(dst4, vl, t0, t1):
        A(f'v_and_b32 {t0}, 1, {vl}\nv_lshlrev_b32 {t0}, 4, {t0}\nv_mov_b32 {t1}, 0xffff\nv_lshlrev_b32 {t0}, {t0}, {t1}\nv_bfe_u32 {t1}, {vl}, 1, 2')
        for t in range(4):
            A(f'v_cmp_eq_u32 vcc, {t}, {t1}\nv_cndmask_b32 {dst4[t]}, 0, {t0}, vcc')
    def v(i): return f'v{i}'
    def vr(i, n): return f'v[{i}:{i+n-1}]'
    def set_exec(lo, hi):
        if lo == 0xffffffff and hi == 0xffffffff: A('s_mov_b64 exec, -1')
        elif hi == 0 and lo <= 64: A(f's_mov_b64 exec, {lo}')
        else: A(f's_mov_b32 exec_lo, 0x{lo:x}\ns_mov_b32 exec_hi, 0x{hi:x}')
    def tags():
        A('s_mul_i32 s14, s14, 0x9e3779b1\ns_add_u32 s14, s14, 0x7f4a7c15\ns_mul_i32 s15, s15, 0x85ebca6b\ns_add_u32 s15, s15, 0xc2b2ae35')
        A('s_and_b32 s3, s14, 15\ns_sub_u32 s36, 0, s3\ns_subb_u32 s37, 0, s3')
    def untag(base, n, dst=None):
        if dst is None: dst = base
        for i in range(0, n, 2): A(f'v_lshl_add_u64 {vr(dst+i,2)}, {vr(base+i,2)}, 0, s[36:37]')
    def ortree(regs, dst):
        regs = list(regs)
        if len(regs) == 2:
            A(f'v_or_b32 {dst}, {regs[0]}, {regs[1]}'); return
        A(f'v_or3_b32 {dst}, {regs[0]}, {regs[1]}, {regs[2]}')
        rest = regs[3:]
        while len(rest) >= 2:
            A(f'v_or3_b32 {dst}, {dst}, {rest[0]}, {rest[1]}'); rest = rest[2:]
        if rest: A(f'v_or_b32 {dst}, {dst}, {rest[0]}')
    def tag_end(tmp, L, sleep):
        D = lab('ok')
        A(f'v_and_b32 {tmp}, 15, {tmp}\nv_cmp_ne_u32 vcc, 0, {tmp}\ns_cbranch_vccz {D}')
        spin_tail(L, sleep)
        A(f'{D}:')

    A('L_base:')
    stamp(0)
    A('''s_cmp_ge_u32 s2, 256
    s_cbranch_scc1 L_end
    s_load_dwordx16 s[16:31], s[0:1], 0
    s_load_dwordx8 s[32:39], s[0:1], 64
    s_load_dwordx4 s[40:43], s[0:1], 96
    v_readfirstlane_b32 s4, v0
    v_and_b32 v2, 63, v0
    s_lshr_b32 s5, s2, 3
    s_and_b32 s6, s2, 7
    s_lshl2_add_u32 s5, s6, s5
    s_and_b32 s5, s5, 31
    s_lshr_b32 s4, s4, 6
    v_lshrrev_b32 v3, 3, v2
    v_and_b32 v1, 7, v2
    v_lshlrev_b32 v1, 4, v1
    s_mov_b32 s47, 0x20000
    s_mov_b32 s51, 0x20000''')
    A(f's_mov_b32 s58, {TIMEOUT}')
    A('s_lshl3_add_u32 s59, s5, s6')
    W0 = 8; X0 = 48; D0 = 60; F0 = 64
    A('s_cmp_lt_u32 s4, 4\ns_cbranch_scc0 L_strm')
    A('s_setprio 3\ns_sub_u32 s10, s2, 96\ns_cselect_b32 s3, 1, s4\ns_cmp_eq_u32 s3, 0\ns_cbranch_scc0 L_ctrl')
    A(f'''s_mul_i32 s12, s10, 3277
    s_lshr_b32 s12, s12, 16
    s_mul_i32 s7, s12, 20
    s_sub_u32 s13, s10, s7
    v_mul_u32_u24 v72, {10*7680}, v3
    v_add_u32 v72, v72, v1
    s_mul_i32 s3, s12, {80*7680}
    s_lshl_b32 s7, s13, 7
    s_add_u32 s3, s3, s7
    s_mov_b32 s46, {80*7680}
    s_movk_i32 s57, 7680
    v_mul_u32_u24 v74, 20, v3
    s_mul_i32 s7, s12, 160
    v_add_u32 v74, s7, v74
    s_getpc_b64 s[60:61]
    L_pc0:
    s_add_u32 s60, s60, L_c0A-L_pc0
    s_addc_u32 s61, s61, 0
    s_waitcnt lgkmcnt(0)
    s_add_u32 s44, s36, s3
    s_addc_u32 s45, s37, 0
    global_load_dwordx4 v[82:85], v74, s[34:35]
    global_load_dword v86, v74, s[34:35] offset:16''')
    A('L_load10:\ns_mov_b32 s56, 0')
    for s in range(10):
        A(f'buffer_load_dwordx4 {vr(W0+4*s,4)}, v72, s[44:47], s56 offen nt')
        if s < 9: A('s_add_u32 s56, s56, s57')
    A('s_setpc_b64 s[60:61]')
    A('L_strm:')

    NPOOL = 512 - 64*SG
    SL = lambda i, t: 8 + (i*3 + t)*4
    G0_ = 128; Q0 = 140; D0_ = 152; F = 164
    S = [v(G0_+g) for g in range(SG)]
    VL = 'v134'; X0_ = 'v135'; X1_ = 'v136'; X2_ = 'v137'; X3_ = 'v138'; X4_ = 'v139'
    if PRIO: A('s_setprio 1')
    A(f'''v_mul_u32_u24 v4, 384, v3
    s_mul_i32 s3, s5, 12582912
    s_add_u32 s3, s3, {28672*384}
    s_lshl3_add_u32 s7, s6, s4
    s_mul_i32 s57, s7, {SG*3072}
    s_sub_u32 s57, s57, {4*SG*3072}
    s_mov_b32 s56, s57
    v_add_u32 v3, v1, v4
    s_mov_b32 s46, 1572864
    s_mov_b32 s50, 1572864
    s_waitcnt lgkmcnt(0)
    s_add_u32 s44, s18, s3
    s_addc_u32 s45, s19, 0
    s_add_u32 s48, s20, s3
    s_addc_u32 s49, s21, 0''')
    def ld(reg, srd, so, t, throttle=True):
        A(f'buffer_load_dwordx4 {vr(reg,4)}, v3, {srd}, {so} offen offset:{t*128} nt')
        if throttle: A(f's_waitcnt vmcnt({T})')
    KS = 's[44:47]'; VS = 's[48:51]'
    n = 0
    for g in range(SG):
        for t in range(3):
            n += 1
            ld(SL(g, t), KS, 's56', t, throttle=(n > T+1))
            if n == T+1:
                for r in S: A(f'v_mov_b32 {r}, 0')
                masks(['v4', 'v5', 'v6', 'v7'], 'v2', X0_, X1_)
                A(f's_lshl_b32 s3, s5, 7\ns_add_u32 s3, s3, {R_TK}\ns_add_u32 s52, s42, s3\ns_addc_u32 s53, s43, 0')
                A(f's_cmp_lt_u32 s2, 96\ns_movk_i32 s10, {XA}\ns_cselect_b32 s10, {XB}, s10\ns_sub_u32 s10, {NPOOL}, s10')
                A(f'v_mov_b32 v0, 0\ns_barrier\ns_waitcnt vmcnt({T})')
        if g < SG-1: A('s_add_u32 s56, s56, 3072')
    for g in range(SG):
        for t in range(3): ld(SL(SG+g, t), VS, 's57', t, throttle=not (g == SG-1 and t == 2))
        if g < SG-1: A('s_add_u32 s57, s57, 3072')
    stamp(1)
    if PRIO: A('s_setprio 0')
    lds_wait_ge(L_CQ, 3, 'v0', X0_, sleep=2)
    A(f'ds_read_b96 v[136:138], v0 offset:{L_TB}')
    tick = 's_mov_b32 s12, 1\ns_atomic_add s12, s[52:53], 0 glc'
    for t in range(3): A(f'ds_read_b128 {vr(Q0+4*t,4)}, v1 offset:{L_Q + 128*t}')
    stamp(2)
    A(f's_waitcnt vmcnt({3*SG}) lgkmcnt(0)\nv_mov_b32 v1, 1\nv_readfirstlane_b32 s55, v136\nv_readfirstlane_b32 s14, v137\nv_readfirstlane_b32 s15, v138')
    A(tick)
    for t in range(3):
        for d in range(4):
            for g in range(SG):
                A(f'v_dot2c_f32_bf16 {S[g]}, v{SL(g,t)+d}, v{Q0+4*t+d}')
    allred8(S)
    round_list(S, [X0_, X1_, X2_])
    for r in S: A(f'v_mul_f32 {r}, 0x3d93cd3a, {r}')
    round_list(S, [X0_, X1_, X2_])
    A(f'v_max3_f32 {X0_}, {S[0]}, {S[1]}, {S[2]}')
    for g in range(3, SG): A(f'v_max_f32 {X0_}, {X0_}, {S[g]}')
    red_hi([X0_], 'v_max_f32')
    A(f'v_readlane_b32 s8, {X0_}, 63')
    def take(X, last):
        A(f's_waitcnt lgkmcnt(0)\ns_sub_u32 s11, s12, s55\ns_cmp_lt_u32 s11, {NPOOL}\ns_cbranch_scc0 {last}')
        A(f's_mul_i32 s54, s11, 3072\ns_add_u32 s54, s54, {64*SG*3072}')
        if TD < 3: A(f's_waitcnt vmcnt({TD})')
        for t in range(3): ld(SL(X, t), KS, 's54', t, throttle=False)
        for t in range(3): ld(SL(X+1, t), VS, 's54', t, throttle=False)
        A(f's_waitcnt vmcnt(6)')
    def nexttick():
        Lk = lab('nt')
        A(f's_add_u32 s12, s55, {NPOOL}\ns_cmp_lt_u32 s11, s10\ns_cbranch_scc0 {Lk}\n{tick}\n{Lk}:')
    for r in S: A(f'v_subrev_f32 {r}, s8, {r}')
    for r in S: A(f'v_mul_f32 {r}, {H(LOG2E)}, {r}')
    for r in S: A(f'v_exp_f32 {r}, {r}')
    A(f'v_add_f32 {VL}, {S[0]}, {S[1]}')
    for g in range(2, SG): A(f'v_add_f32 {VL}, {VL}, {S[g]}')
    for r in S: A(f'v_cvt_pk_bf16_f32 {r}, {r}, {r}')
    stamp(3)
    A(f'''v_and_b32 v61, 7, v2
    v_lshlrev_b32 v60, 3, v61
    v_lshlrev_b32 v62, 5, v61
    v_and_b32 v63, 16, v2
    s_mul_i32 s3, s4, 768
    v_add3_u32 v56, v62, v63, s3
    v_lshrrev_b32 v62, 5, v2
    v_lshl_add_u32 v56, v62, 3, v56
    s_mul_i32 s3, s59, 896
    s_add_u32 s3, s3, {R_O}
    v_lshl_add_u32 v57, v2, 4, s3
    s_and_b32 s9, s14, 0xffff
    v_mov_b32 v62, 0xffff
    v_lshlrev_b32 v58, 4, v2
    v_lshlrev_b32 v61, 2, v61
    s_lshl_b32 s3, s4, 3
    v_mov_b32 v59, s3
    s_waitcnt vmcnt(3)''')
    def mf(slot, first=False, waits=False):
        for t in range(3):
            if waits: A(f's_waitcnt vmcnt({2-t})')
            c = '0' if first else vr(D0_+4*t, 4)
            A(f'v_mfma_f32_16x16x32_bf16 {vr(D0_+4*t,4)}, {vr(F,4)}, {vr(SL(slot,t),4)}, {c}')
    for g in range(SG):
        for t in range(4): A(f'v_and_b32 v{F+t}, {S[g]}, v{4+t}')
        if g < SG-1: mf(SG+g, first=(g == 0))
    take(0, 'L_lastS')
    mf(2*SG-1)
    A('s_branch L_loopA')
    A('L_loop:')
    for X, Y, nm, pv in ((0, 2, 'A', 'B'), (2, 0, 'B', 'A')):
        take(X, f'L_last{pv}')
        mf(Y+1)
        A(f'L_loop{nm}:')
        if TKW >= 3:
            if TKW < 6: A(f's_waitcnt vmcnt({TKW})')
            nexttick()
        A(f'v_mov_b32 {X0_}, 0\nv_mov_b32 {X1_}, 0\ns_waitcnt vmcnt(3)')
        for t in range(3):
            for d in range(0, 4, 2):
                A(f'v_dot2c_f32_bf16 {X0_}, v{SL(X,t)+d}, v{Q0+4*t+d}\nv_dot2c_f32_bf16 {X1_}, v{SL(X,t)+d+1}, v{Q0+4*t+d+1}')
        A(f'v_add_f32 {X0_}, {X0_}, {X1_}')
        allred8([X0_])
        A(f'''v_cvt_pk_bf16_f32 {X0_}, {X0_}, {X0_}
        v_and_b32 {X0_}, 0xffff0000, {X0_}
        v_mul_f32 {X0_}, 0x3d93cd3a, {X0_}
        v_cvt_pk_bf16_f32 {X0_}, {X0_}, {X0_}
        v_and_b32 {X0_}, 0xffff0000, {X0_}
        v_cmp_lt_f32 vcc, s8, {X0_}
        s_cbranch_vccz L_nm{nm}
        s_call_b64 s[60:61], L_newmax
        L_nm{nm}:
        v_subrev_f32 {X0_}, s8, {X0_}
        v_mul_f32 {X0_}, {H(LOG2E)}, {X0_}
        v_exp_f32 {X0_}, {X0_}
        v_add_f32 {VL}, {VL}, {X0_}
        v_cvt_pk_bf16_f32 {X0_}, {X0_}, {X0_}''')
        for t in range(4): A(f'v_and_b32 v{F+t}, {X0_}, v{4+t}')
        if TKW < 3:
            A(f's_waitcnt vmcnt({TKW})')
            nexttick()
    A('s_branch L_loop')
    A('L_newmax:')
    A(f'v_mov_b32 {X1_}, {X0_}')
    red_hi([X1_], 'v_max_f32')
    A(f'v_mov_b32 {X2_}, s8\nv_readlane_b32 s8, {X1_}, 63\nv_subrev_f32 {X2_}, s8, {X2_}\nv_mul_f32 {X2_}, {H(LOG2E)}, {X2_}\nv_exp_f32 {X2_}, {X2_}')
    A(f'v_mul_f32 {VL}, {VL}, {X2_}')
    for i in range(12): A(f'v_mul_f32 v{D0_+i}, v{D0_+i}, {X2_}')
    A('s_setpc_b64 s[60:61]')
    A('L_post:')
    stamp(4)
    A(f'v_mov_b32 v133, s8')
    red_hi([VL])
    A(f'''s_lshl_b64 exec, 1, 63
    ds_write2_b32 v59, v133, {VL} offset0:{(L_ST2 - 32)//4} offset1:{(L_ST2 - 32)//4 + 1}
    ds_add_rtn_u32 v143, v0, v1 offset:{L_CSTAT}
    s_mov_b64 exec, -1
    ds_read_b64 v[144:145], v60 offset:{L_ST2}
    s_waitcnt lgkmcnt(0)
    v_readlane_b32 s3, v143, 63
    v_mov_b32 v146, v144
    s_cmp_eq_u32 s3, 7
    s_cbranch_scc0 L_postx''')
    allred8(['v146'], 'v_max_f32')
    A(f'v_sub_f32 v144, v144, v146\nv_mul_f32 v144, {H(LOG2E)}, v144\nv_exp_f32 v144, v144\nv_mul_f32 v147, v144, v145')
    allred8(['v147'])
    A(f's_mov_b64 exec, 0xff\nds_write_b32 v61, v144 offset:{L_F}\nds_write_b64 v0, v[146:147] offset:{L_F+32}\ns_mov_b64 exec, -1')
    A('L_postx:')
    stamp(5)
    A('s_setpc_b64 s[60:61]')
    for nm, slot in (('S', 2*SG-1), ('A', 1), ('B', 3)):
        A(f'L_last{nm}:\ns_call_b64 s[60:61], L_post')
        mf(slot, waits=True)
        if nm != 'B': A('s_branch L_epi')
    A('L_epi:')
    stamp(6)
    for t in range(3):
        d = D0_ + 4*t
        A(f'v_permlane32_swap_b32 v{d}, v{d+2}\nv_permlane32_swap_b32 v{d+1}, v{d+3}')
    for t in range(3):
        d = D0_ + 4*t
        A(f'v_add_f32 v{d}, v{d+2}, v{d} row_ror:8 {DPPF}\nv_add_f32 v{d+1}, v{d+3}, v{d+1} row_ror:8 {DPPF}')
    set_exec(0x00ff00ff, 0x00ff00ff)
    for t in range(3): A(f'ds_write_b64 v56, {vr(D0_+4*t,2)} offset:{L_OS - 4*768 + 256*t}')
    A(f's_mov_b64 exec, 1\nds_add_rtn_u32 v6, v0, v1 offset:{L_CO}')
    set_exec(0xffffffff, 0x1ffff)
    A(f'ds_read_b128 v[100:103], v0 offset:{L_F}\nds_read_b128 v[104:107], v0 offset:{L_F+16}\nds_read_b64 v[108:109], v0 offset:{L_F+32}\nv_mov_b32 v110, s14\nv_mov_b32 v111, s15')
    for w in range(8): A(f'ds_read_b128 {vr(64+4*w,4)}, v58 offset:{L_OS + 768*w}')
    A('s_mov_b32 exec_hi, 0xffff\ns_waitcnt lgkmcnt(0)\nv_readfirstlane_b32 s3, v6')
    def fsel(w): return f'{vr(100+(w&~1),2)}', (w & 1)
    for w in (0, 4):
        fr, hi = fsel(w)
        for h2 in (0, 2): A(f'v_pk_mul_f32 {vr(64+4*w+h2,2)}, {vr(64+4*w+h2,2)}, {fr} op_sel:[0,{hi}] op_sel_hi:[1,{hi}]')
    for k in (1, 2, 3):
        for base in (0, 4):
            fr, hi = fsel(base+k)
            for h2 in (0, 2): A(f'v_pk_fma_f32 {vr(64+4*base+h2,2)}, {vr(64+4*(base+k)+h2,2)}, {fr}, {vr(64+4*base+h2,2)} op_sel:[0,{hi},0] op_sel_hi:[1,{hi},1]')
    A('v_pk_add_f32 v[64:65], v[64:65], v[80:81]\nv_pk_add_f32 v[66:67], v[66:67], v[82:83]')
    A('v_cvt_pk_bf16_f32 v64, v64, v65\nv_cvt_pk_bf16_f32 v66, v66, v67\nv_lshl_or_b32 v108, v64, 16, s9\nv_bfi_b32 v109, v62, s9, v64\nv_lshl_or_b32 v110, v66, 16, s9\nv_bfi_b32 v111, v62, s9, v66')
    A('s_cmp_eq_u32 s3, 7\ns_cbranch_scc0 L_fin\ns_mov_b32 exec_hi, 0x1ffff')
    A(f'global_store_dwordx4 v57, v[108:111], s[42:43] sc1\ns_mov_b64 exec, 1\nds_add_u32 v0, v1 offset:{L_CO}')
    stamp(7)
    A('s_branch L_fin')

    A('L_ctrl:')
    A('v_mov_b32 v0, 0\nv_lshlrev_b32 v75, 4, v2')
    A('s_cmp_eq_u32 s4, 0\ns_cbranch_scc1 L_c0B')
    A(f'''v_mul_u32_u24 v72, {10*12288}, v3
    s_mul_i32 s3, s6, {80*12288}
    s_mul_i32 s7, s5, 384
    s_add_u32 s3, s3, s7
    s_lshl_b32 s7, s4, 7
    s_add_u32 s3, s3, s7
    s_sub_u32 s3, s3, 128
    v_add_u32 v72, v72, v1
    s_mov_b32 s46, {80*12288}
    s_movk_i32 s57, 12288
    s_waitcnt lgkmcnt(0)
    s_load_dwordx2 s[14:15], s[42:43], {R_E}
    s_add_u32 s44, s22, s3
    s_addc_u32 s45, s23, 0
    s_cmp_eq_u32 s4, 1
    s_cbranch_scc0 L_c23''')
    A(f'''v_mul_u32_u24 v73, 20, v2
    v_and_b32 v84, 31, v2
    v_min_u32 v84, 19, v84
    v_lshrrev_b32 v85, 5, v2
    v_lshlrev_b32 v74, 3, v84
    v_lshl_add_u32 v74, v85, 2, v74
    s_mul_i32 s7, s6, 160
    v_add_u32 v86, s7, v74
    global_load_dwordx4 v[76:79], v73, s[16:17]
    global_load_dword v80, v73, s[16:17] offset:16
    global_load_dword v82, v86, s[16:17]
    s_lshl_b32 s3, s5, 7
    s_add_u32 s3, s3, {R_TK}
    s_load_dword s9, s[42:43], s3 glc
    s_barrier''')
    masks(['v4', 'v5', 'v6', 'v7'], 'v2', 'v64', 'v65')
    A('s_waitcnt lgkmcnt(0)')
    tags()
    A(f'v_mov_b32 v64, s9\nv_mov_b32 v65, s14\nv_mov_b32 v66, s15\nds_write_b96 v0, v[64:66] offset:{L_TB}')
    A('s_waitcnt vmcnt(0)')
    stamp(1)
    A('s_call_b64 s[60:61], L_load10')
    XA = [v(88+i) for i in range(10)]
    for i in range(5):
        A(f'v_lshlrev_b32 {XA[2*i]}, 16, v{76+i}\nv_and_b32 {XA[2*i+1]}, 0xffff0000, v{76+i}')
    A('v_and_b32 v83, 0xffff0000, v82\nv_lshlrev_b32 v82, 16, v82')
    A(f'v_add_f32 v60, {XA[0]}, {XA[1]}')
    for i in range(2, 10): A(f'v_add_f32 v60, v60, {XA[i]}')
    allred8(['v60']); red_hi(['v60'])
    A(f'v_mul_f32 v60, {H(1/640)}, v60\nv_readlane_b32 s8, v60, 63')
    for i in range(10): A(f'v_subrev_f32 {XA[i]}, s8, {XA[i]}')
    A(f'v_mul_f32 v61, {XA[0]}, {XA[0]}')
    for i in range(1, 10): A(f'v_fmac_f32 v61, {XA[i]}, {XA[i]}')
    allred8(['v61']); red_hi(['v61'])
    A(f'v_mul_f32 v61, {H(1/640)}, v61')
    round_list(['v60', 'v61'], ['v62'])
    A(f'v_add_f32 v61, {H(1e-5)}, v61')
    round_list(['v61'], ['v62'])
    A('v_sqrt_f32 v61, v61')
    round_list(['v61'], ['v62'])
    A('v_rcp_f32 v61, v61\nv_readlane_b32 s8, v60, 63\nv_readlane_b32 s9, v61, 63')
    XN = ['v82', 'v83']
    for r in XN: A(f'v_subrev_f32 {r}, s8, {r}')
    round_list(XN, ['v62'])
    for r in XN: A(f'v_mul_f32 {r}, s9, {r}')
    round_list(XN, ['v62'])
    A(f'''s_mul_i32 s3, s6, 320
    s_add_u32 s3, s3, {R_MOD}
    s_add_u32 s48, s42, s3
    s_addc_u32 s49, s43, 0
    s_mov_b32 s50, {8*15360}
    s_movk_i32 s12, {2*15360}
    s_mov_b32 s13, {4*15360}
    s_mov_b32 s11, {6*15360}
    v_mul_u32_u24 v73, 15360, v85
    v_lshl_add_u32 v73, v84, 4, v73
    v_lshlrev_b32 v74, 1, v74''')
    set_exec(0xfffff, 0xfffff)
    A(f'''s_bfe_u32 s3, s2, 0x30003
    s_mul_i32 s3, s3, 1280
    s_mul_i32 s7, s6, 5
    s_lshr_b32 s7, s7, 2
    s_lshl_b32 s7, s7, 6
    s_add_u32 s3, s3, s7
    s_add_u32 s3, s3, {R_DONE}
    s_add_u32 s52, s42, s3
    s_addc_u32 s53, s43, 0
    s_and_b32 s54, s14, 0xff
    s_mul_i32 s54, s54, 0x01010101
    s_mov_b32 s55, s54''')
    L = lab('hh'); D = lab('hhd')
    A(f'{L}:')
    for k, off in enumerate((0, 64, 640, 704)): A(f's_load_dwordx2 s[{62+2*k}:{63+2*k}], s[52:53], {off} glc')
    A('s_waitcnt lgkmcnt(0)')
    for k in range(4): A(f's_xor_b64 s[{62+2*k}:{63+2*k}], s[{62+2*k}:{63+2*k}], s[54:55]')
    A('s_or_b64 s[62:63], s[62:63], s[64:65]\ns_or_b64 s[66:67], s[66:67], s[68:69]\ns_or_b64 s[62:63], s[62:63], s[66:67]')
    A(f's_cbranch_scc0 {D}')
    spin_tail(L, 2)
    A(f'{D}:')
    stamp(2)
    G = 88
    L = lab('ha')
    A(f'{L}:')
    for k in range(8):
        so = ['0', 's12', 's13', 's11'][k % 4]
        A(f'buffer_load_dwordx4 {vr(G+4*k,4)}, v73, s[48:51], {so} offen offset:{2560*(k//4)} sc1')
    A('s_waitcnt vmcnt(0)')
    untag(G, 32)
    ortree([v(G+i) for i in range(32)], 'v60')
    tag_end('v60', L, SLA)
    stamp(3)
    for a, b in ((0,1),(2,3),(0,2)):
        for base in (0, 4):
            for h2 in (0, 2): A(f'v_pk_add_f32 {vr(G+4*(base+a)+h2,2)}, {vr(G+4*(base+a)+h2,2)}, {vr(G+4*(base+b)+h2,2)}')
    for base in (G, G+16): A(f'v_permlane32_swap_b32 v{base}, v{base+2}\nv_permlane32_swap_b32 v{base+1}, v{base+3}')
    for base in (G, G+16): A(f'v_pk_add_f32 {vr(base,2)}, {vr(base,2)}, {vr(base+2,2)}')
    SA = [v(G), v(G+1)]; CA = [v(G+16), v(G+17)]
    round_list(SA + CA, ['v62', 'v63'])
    for r in CA: A(f'v_add_f32 {r}, 1.0, {r}')
    round_list(CA, ['v62'])
    for a, b in zip(CA, XN): A(f'v_mul_f32 {a}, {a}, {b}')
    round_list(CA, ['v62'])
    for a, b in zip(CA, SA): A(f'v_add_f32 {a}, {a}, {b}')
    for r in CA: A(f'v_cvt_pk_bf16_f32 {r}, {r}, {r}')
    for r in CA: A(f'v_min_u32 {r}, -2, {r}')
    A(f'ds_write_b64 v74, {vr(G+16,2)} offset:{L_H}\ns_mov_b64 exec, -1\ns_branch L_cq')
    A('L_c23:')
    A(f'''s_getpc_b64 s[8:9]
    L_pc1:
    s_sub_u32 s8, s8, L_pc1-L_base
    s_subb_u32 s9, s9, 0
    s_lshr_b32 s3, s2, 2
    s_andn2_b32 s3, s3, 1
    s_and_b32 s7, s4, 1
    s_add_u32 s3, s3, s7
    s_and_b32 s3, s3, 15
    s_lshl_b32 s3, s3, 10
    v_add_u32 v76, s3, v75
    v_min_u32 v76, L_end-L_base-12, v76
    global_load_dwordx4 v[80:83], v76, s[8:9] {PFF}
    s_barrier
    s_waitcnt vmcnt(0)
    s_call_b64 s[60:61], L_load10''')
    masks(['v4', 'v5', 'v6', 'v7'], 'v2', 'v64', 'v65')
    A('s_waitcnt lgkmcnt(0)')
    tags()
    A('L_cq:')
    A('v_mul_u32_u24 v73, 40, v3')
    L = lab('hx')
    A(f'{L}:\nds_read2_b64 {vr(X0,4)}, v73 offset0:{L_H//8} offset1:{L_H//8+1}\nds_read2_b64 {vr(X0+4,4)}, v73 offset0:{L_H//8+2} offset1:{L_H//8+3}\nds_read_b64 {vr(X0+8,2)}, v73 offset:{L_H+32}\ns_waitcnt lgkmcnt(0)')
    poll_end([v(X0+i) for i in range(10)], 'v60', L, 2)
    A(f'''s_mul_i32 s3, s59, 768
    s_lshl_b32 s7, s4, 8
    s_add_u32 s11, s3, s7
    s_add_u32 s11, s11, {R_SIB - 256}
    s_call_b64 s[60:61], L_mm10''')
    stamp(4)
    A(f'''v_lshrrev_b32 v76, 4, v2
    v_and_b32 v77, 15, v2
    v_mul_u32_u24 v73, 768, v76
    v_lshl_add_u32 v73, v77, 4, v73
    s_mul_i32 s3, s5, 6144
    s_add_u32 s3, s3, s7
    s_add_u32 s3, s3, {R_SIB - 256}
    v_add_u32 v73, s3, v73
    s_add_u32 s52, s42, s3
    s_addc_u32 s53, s43, 0
    v_lshlrev_b32 v74, 3, v77
    v_lshl_add_u32 v74, v76, 1, v74
    s_lshl_b32 s3, s4, 7
    v_add_u32 v74, s3, v74
    v_mov_b32 v79, 1
    s_mov_b32 s54, s14
    s_mov_b32 s55, s14''')
    HS = [62, 64, 66, 68, 18, 20, 22, 26]
    L = lab('hb')
    A(f'{L}:')
    for k in range(8): A(f's_load_dwordx2 s[{HS[k]}:{HS[k]+1}], s[52:53], {768*k + 128} glc')
    A('s_waitcnt lgkmcnt(0)')
    for k in range(8): A(f's_xor_b64 s[{HS[k]}:{HS[k]+1}], s[{HS[k]}:{HS[k]+1}], s[54:55]')
    for k in range(1, 8): A(f's_or_b64 s[62:63], s[62:63], s[{HS[k]}:{HS[k]+1}]')
    D = lab('hbh')
    A(f's_or_b32 s62, s62, s63\ns_and_b32 s62, s62, 15\ns_cbranch_scc0 {D}')
    spin_tail(L, 1)
    A(f'{D}:')
    stamp(12)
    A(f'global_load_dwordx4 v[80:83], v73, s[42:43] sc1\nglobal_load_dwordx4 v[84:87], v73, s[42:43] offset:3072 sc1\ns_waitcnt vmcnt(0)')
    untag(80, 8)
    ortree([v(80+i) for i in range(8)], 'v60')
    tag_end('v60', L, SLB)
    A('v_pk_add_f32 v[80:81], v[80:81], v[84:85]\nv_pk_add_f32 v[82:83], v[82:83], v[86:87]')
    A('v_permlane32_swap_b32 v80, v82\nv_permlane32_swap_b32 v81, v83\nv_pk_add_f32 v[80:81], v[80:81], v[82:83]')
    A('v_permlane16_swap_b32 v80, v81\nv_add_f32 v80, v80, v81\nv_cvt_pk_bf16_f32 v80, v80, v80')
    A(f'ds_write_b16 v74, v80 offset:{L_Q - 128}\ns_mov_b64 exec, 1\nds_add_u32 v0, v79 offset:{L_CQ}\ns_mov_b64 exec, -1')
    stamp(5)
    A('s_branch L_tail')

    A('L_mm10:\ns_waitcnt vmcnt(0)\nL_mm10n:')
    for s in range(10):
        F = F0 + 4*(s & 1)
        for t in range(4): A(f'v_and_b32 v{F+t}, v{X0+s}, v{4+t}')
        c = '0' if s == 0 else vr(D0, 4)
        A(f'v_mfma_f32_16x16x32_bf16 {vr(D0,4)}, {vr(F,4)}, {vr(W0+4*s,4)}, {c}')
    A('''v_and_b32 v65, 16, v2
    v_lshrrev_b32 v66, 5, v2
    v_lshl_add_u32 v64, v1, 1, v65
    v_lshl_add_u32 v64, v66, 3, v64
    v_add_u32 v64, s11, v64''')
    A(f'v_permlane32_swap_b32 v60, v62\nv_permlane32_swap_b32 v61, v63')
    A(f'v_add_f32 v60, v62, v60 row_ror:8 {DPPF}\nv_add_f32 v61, v63, v61 row_ror:8 {DPPF}')
    set_exec(0x00ff00ff, 0x00ff00ff)
    A('v_bfi_b32 v60, 15, s14, v60\nv_bfi_b32 v61, 15, s14, v61\nglobal_store_dwordx2 v64, v[60:61], s[42:43] sc1\ns_mov_b64 exec, -1')
    A('s_setpc_b64 s[60:61]')

    def calc_t(dst):
        A(f's_and_b32 s3, s2, 7\ns_mul_i32 s3, s3, 3\ns_lshr_b32 s7, s2, 5\ns_add_u32 s3, s3, s7\ns_lshl_b32 s3, s3, 2\ns_bfe_u32 s7, s2, 0x20003\ns_add_u32 {dst}, s3, s7')
    def lds_init():
        A('''v_mov_b32 v76, -1
        v_mov_b32 v77, -1
        v_mov_b32 v78, -1
        v_mov_b32 v79, -1
        v_lshlrev_b32 v80, 2, v2
        ds_write_b128 v75, v[76:79]
        ds_write_b32 v80, v0 offset:1024''')
    A('L_c0A:')
    A('v_mov_b32 v0, 0\nv_lshlrev_b32 v75, 4, v2')
    lds_init()
    A(f's_waitcnt lgkmcnt(0)\ns_barrier\ns_load_dwordx2 s[14:15], s[42:43], {R_E}')
    A(f'''s_mul_i32 s11, s12, 15360
    s_lshl_b32 s7, s13, 8
    s_add_u32 s11, s11, s7
    s_add_u32 s11, s11, {R_MOD}
    s_lshl_b32 s3, s13, 6
    s_add_u32 s3, s3, s12
    s_add_u32 s3, s3, {R_DONE}
    v_mul_u32_u24 v65, 80, v1
    v_add_u32 v149, s3, v65''')
    masks(['v4', 'v5', 'v6', 'v7'], 'v2', 'v60', 'v61')
    A(f's_waitcnt vmcnt(10)')
    C = [v(88+i) for i in range(10)]; E = [v(100+i) for i in range(10)]
    for i in range(5): A(f'v_lshlrev_b32 {C[2*i]}, 16, v{82+i}\nv_and_b32 {C[2*i+1]}, 0xffff0000, v{82+i}')
    for i in range(10): A(f'v_mul_f32 {E[i]}, {H(-LOG2E)}, {C[i]}')
    for i in range(10): A(f'v_exp_f32 {E[i]}, {E[i]}')
    for i in range(10): A(f'v_add_f32 {E[i]}, 1.0, {E[i]}')
    RC = [v(112+i) for i in range(10)]; QQ = [v(124+i) for i in range(10)]; RR = [v(136+i) for i in range(10)]
    for i in range(10): A(f'v_rcp_f32 {RC[i]}, {E[i]}')
    for i in range(10): A(f'v_mul_f32 {QQ[i]}, {RC[i]}, {C[i]}')
    for i in range(10): A(f'v_fma_f32 {RR[i]}, -{QQ[i]}, {E[i]}, {C[i]}')
    for i in range(10): A(f'v_fmac_f32 {QQ[i]}, {RR[i]}, {RC[i]}')
    for i in range(10): A(f'v_div_fixup_f32 {QQ[i]}, {QQ[i]}, {E[i]}, {C[i]}')
    for i in range(10): A(f'v_cvt_pk_bf16_f32 v{X0+i}, {QQ[i]}, {QQ[i]}')
    A('s_waitcnt lgkmcnt(0)')
    tags()
    stamp(1)
    A('''v_mov_b32 v148, s14
    s_call_b64 s[60:61], L_mm10
    s_mov_b64 exec, 0xff
    global_store_byte v149, v148, s[42:43] sc1
    s_mov_b64 exec, -1''')
    stamp(2)
    A('s_setprio 0')
    A('s_add_u32 s44, s44, 2560\ns_addc_u32 s45, s45, 0\ns_call_b64 s[60:61], L_load10\ns_mov_b32 s56, 0')
    W1 = 88
    for k in range(10):
        A(f'buffer_load_dwordx4 {vr(W1+4*k,4)}, v72, s[44:47], s56 offen offset:2560 nt')
        if k < 9: A('s_add_u32 s56, s56, s57')
    for rp in range(2):
        A('s_add_u32 s11, s11, 5120\ns_call_b64 s[60:61], L_mm10' + 'n'*rp)
        if rp == 0:
            for k in range(20): A(f'v_pk_mov_b32 {vr(W0+2*k,2)}, {vr(W1+2*k,2)}, {vr(W1+2*k,2)} op_sel:[0,1]')
    stamp(4)
    A('s_branch L_tail')
    A('L_c0B:')
    lds_init()
    A(f's_waitcnt lgkmcnt(0)\ns_barrier\ns_load_dwordx2 s[14:15], s[42:43], {R_E}\ns_waitcnt lgkmcnt(0)')
    tags()

    def trig_wait(val, L_TRIG=L_TRIG):
        if val <= 0: return
        L = lab('tg'); D = lab('tgd'); W = lab('tgw')
        A(f's_cmp_eq_u32 s4, 3\ns_cbranch_scc0 {W}\ns_lshl_b32 s8, s5, 7\ns_add_u32 s8, s8, {R_TK}\nds_read_b32 v90, v0 offset:{L_TB}\ns_waitcnt lgkmcnt(0)\nv_readfirstlane_b32 s9, v90')
        A(f'{L}:\ns_load_dword s3, s[42:43], s8 glc\ns_waitcnt lgkmcnt(0)\ns_sub_u32 s3, s3, s9\ns_cmp_ge_u32 s3, {val}\ns_cbranch_scc1 {D}')
        spin_tail(L, 4)
        A(f'{D}:\nv_mov_b32 v90, 1\nds_write_b32 v0, v90 offset:{L_TRIG}\n{W}:')
        lds_wait_ge(L_TRIG, 1, 'v0', 'v90', sleep=2)
    def sgate(base, offs, regs, mask):
        L = lab('sg'); D = lab('sgd')
        A(f'{L}:')
        for o, r in zip(offs, regs): A(f's_load_dword s{r}, {base}, {o} glc')
        A('s_waitcnt lgkmcnt(0)')
        A(f's_xor_b32 s3, s{regs[0]}, s14')
        for r in regs[1:len(offs)]: A(f's_xor_b32 s{r}, s{r}, s14\ns_or_b32 s3, s3, s{r}')
        if mask != -1: A(f's_and_b32 s3, s3, {mask}')
        A(f's_cbranch_scc0 {D}')
        spin_tail(L, 0)
        A(f'{D}:')
    A('L_tail:')
    A('v_lshrrev_b32 v4, 4, v2\nv_and_b32 v5, 15, v2\nv_lshrrev_b32 v6, 2, v5\nv_and_b32 v7, 3, v2\nv_lshlrev_b32 v7, 3, v7')
    A('s_cmp_ge_u32 s2, 96\ns_cbranch_scc0 L_tailB')
    A('''s_lshr_b32 s13, s10, 3
    s_and_b32 s12, s2, 7
    s_lshl_b32 s12, s12, 1
    s_cmp_ge_u32 s13, 10
    s_cselect_b32 s3, 10, 0
    s_addc_u32 s12, s12, 0
    s_sub_u32 s13, s13, s3''')
    A('s_lshr_b32 s3, s10, 5\ns_lshl_b32 s3, s3, 3\ns_add_u32 s3, s3, s6\ns_bfe_u32 s7, s10, 0x20003\ns_lshl2_add_u32 s10, s3, s7')
    A('s_cmp_lt_u32 s10, 80\ns_cselect_b32 s57, 1, 0\ns_cmp_eq_u32 s4, 1\ns_cselect_b32 s57, s57, 0')
    A(f'''v_and_b32 v100, 1, v2
    v_lshl_add_u32 v100, v100, 2, v4
    s_lshl_b32 s3, s10, 3
    v_add_u32 v100, s3, v100
    v_lshlrev_b32 v101, 2, v100
    v_lshlrev_b32 v100, 1, v100
    v_add_u32 v102, {R_MOD + 5*2560}, v101
    v_add_u32 v101, {R_X1}, v101
    v_lshrrev_b32 v103, 1, v2
    v_mul_u32_u24 v103, 2560, v103
    v_and_b32 v104, 1, v2
    v_lshl_add_u32 v103, v104, 4, v103
    s_lshl_b32 s3, s10, 5
    s_add_u32 s3, s3, {R_DN}
    v_add_u32 v103, s3, v103
    v_add_u32 v104, {32*2560}, v103
    v_add_u32 v105, {64*2560}, v103''')
    B0 = 8; AA = 56; DD = 68
    A(f'''v_lshl_add_u32 v84, v4, 3, v6
    s_mul_i32 s3, s4, 96
    v_add_u32 v84, s3, v84
    v_lshl_add_u32 v84, v84, 7, v7
    v_and_b32 v85, 7, v2
    v_mul_u32_u24 v91, 896, v85
    v_lshl_add_u32 v85, v4, 5, v91
    v_and_b32 v86, 8, v2
    v_lshl_add_u32 v85, v86, 1, v85
    v_cmp_eq_u32 vcc, 0, v86
    v_mov_b32 v86, 0x07060302
    v_mov_b32 v87, 0x0c0c0c0c
    v_cndmask_b32 v118, v87, v86, vcc
    v_cndmask_b32 v119, v86, v87, vcc
    s_lshr_b32 s3, s4, 1
    s_lshl1_add_u32 s3, s12, s3
    s_mul_i32 s3, s3, {8*896}
    s_add_u32 s3, s3, {R_O + 768}
    v_add_u32 v91, s3, v91
    s_and_b32 s7, s4, 1
    s_mul_i32 s7, s7, 384
    s_add_u32 s3, s3, s7
    s_sub_u32 s3, s3, 768
    v_add_u32 v85, s3, v85
    v_lshrrev_b32 v86, 5, v2
    v_lshl_add_u32 v86, v86, 4, v5
    v_lshlrev_b32 v86, 5, v86
    v_and_b32 v87, 1, v4
    v_lshl_add_u32 v86, v87, 2, v86
    s_lshl_b32 s3, s4, 3
    v_add_u32 v86, s3, v86
    v_lshlrev_b32 v87, 5, v2
    s_mul_i32 s3, s12, 2560
    s_lshl_b32 s7, s13, 8
    s_add_u32 s3, s3, s7
    s_add_u32 s3, s3, {R_P}
    v_lshl_add_u32 v88, v2, 2, s3
    v_mov_b32 v89, 1
    s_lshl_b32 s3, s10, 5
    s_add_u32 s3, s3, {R_DN}
    s_add_u32 s54, s42, s3
    s_addc_u32 s55, s43, 0
    v_mov_b32 v98, 0xffff''')
    A(f'''s_mul_i32 s3, s12, {384*1280}
    s_lshl_b32 s7, s13, 7
    s_add_u32 s3, s3, s7
    s_add_u32 s44, s24, s3
    s_addc_u32 s45, s25, 0
    s_mov_b32 s46, {384*1280}
    v_mul_u32_u24 v72, 1280, v3
    v_add_u32 v72, v72, v1''')
    SE = 3 - WDEF
    def trread(s):
        for ct in range(4):
            for hf in range(2):
                A(f'ds_read_b64_tr_b16 {vr(B0+(s*4+ct)*4+2*hf,2)}, v84 offset:{L_W + (32*s+4*hf)*128 + 32*ct}')
    if SE:
        A(f's_cmp_eq_u32 s4, 0\ns_cbranch_scc0 L_nodma\ns_movk_i32 s7, {L_W}\ns_setprio {DPRIO}')
        stamp(6)
        L = lab('dma'); L2 = lab('dmo')
        A(f's_mov_b32 s56, 0\n{L2}:\ns_mov_b32 s8, 0\n{L}:\ns_mov_b32 m0, s7\ns_add_u32 s7, s7, 1024\nbuffer_load_dwordx4 v72, s[44:47], s56 offen nt lds\ns_add_u32 s56, s56, 10240\ns_waitcnt vmcnt({TWA})')
        A(f's_add_u32 s8, s8, 1\ns_cmp_lt_u32 s8, {4*SE}\ns_cbranch_scc1 {L}')
        A(f's_add_u32 s7, s7, {4096*WDEF}\ns_add_u32 s56, s56, {40960*WDEF}\ns_cmp_lt_u32 s56, {384*1280}\ns_cbranch_scc1 {L2}')
        A(f's_waitcnt vmcnt(0)\nds_write_b32 v0, v89 offset:{L_WRDY}')
        stamp(7)
        A('L_nodma:')
    A('s_setprio 3')
    if SE:
        lds_wait_ge(L_WRDY, 1, 'v0', 'v90', sleep=8)
        for s in range(SE):
            trread(s)
            A('s_waitcnt lgkmcnt(0)')
    if not WDEF: stamp(8)
    A('s_cmp_eq_u32 s57, 0\ns_cbranch_scc1 L_nofin')
    if not SE: lds_wait_ge(L_CQ, 3, 'v0', 'v90', sleep=8)
    A('global_load_ushort v107, v100, s[38:39]')
    for r in range(1, 8): A(f'v_add_u32 v{131+r}, {r*15360}, v102')
    L = lab('gb')
    A(f'{L}:')
    for r in range(8): A(f'global_load_dword v{120+r}, {"v102" if r == 0 else v(131+r)}, s[42:43] sc1')
    A('s_waitcnt vmcnt(0)')
    untag(120, 8)
    ortree([v(120+i) for i in range(8)], 'v90')
    tag_end('v90', L, 16)
    A('v_pk_add_f32 v[120:121], v[120:121], v[122:123]\nv_pk_add_f32 v[124:125], v[124:125], v[126:127]\nv_pk_add_f32 v[120:121], v[120:121], v[124:125]\nv_add_f32 v106, v120, v121')
    round_list(['v106'], ['v90'])
    A('L_nofin:')
    if TLB:
        lds_wait_ge(L_CSTAT, 1, 'v0', 'v90', sleep=2)
        A(f's_mul_i32 s3, s6, 24576\ns_mul_i32 s7, s5, 768\ns_add_u32 s3, s3, s7\ns_add_u32 s3, s3, {R_O}\nv_mov_b32 v90, s3\ns_mov_b64 exec, 1\nglobal_load_dword v92, v88, s[42:43] sc1\nglobal_load_dword v92, v90, s[42:43] sc1\ns_mov_b64 exec, -1')
    if WDEF:
        A(f's_mul_i32 s7, s4, 12288\ns_add_u32 s7, s7, {L_W + 4096*SE}\ns_mul_i32 s56, s4, 122880\ns_add_u32 s56, s56, {40960*SE}')
    lds_wait_ge(L_CO, 9, 'v0', 'v90', sleep=1)
    if WDEF:
        for k in range(4*WDEF):
            A('s_mov_b32 m0, s7\ns_add_u32 s7, s7, 1024\nbuffer_load_dwordx4 v72, s[44:47], s56 offen nt lds\ns_add_u32 s56, s56, 10240')
        OX = 120
        for s in range(SE, 2):
            A(f's_waitcnt vmcnt({4*(2-s)}) lgkmcnt(0)')
            trread(s)
        if OEARLY < 4: A(f's_waitcnt vmcnt({OEARLY})')
        for s in range(3): A(f'global_load_dwordx4 {vr(OX+4*s,4)}, v85, s[42:43] offset:{128*s} sc1')
        A('global_load_dwordx4 v[108:111], v91, s[42:43] sc1')
        A(f's_waitcnt vmcnt(4) lgkmcnt(0)')
        trread(2)
        stamp(8)
        stamp(9)
        A('s_waitcnt lgkmcnt(0)\ns_branch L_wochk')
    else: stamp(9)
    OX = 120
    if G1:
        L = lab('sw'); D = lab('swd')
        A(f'{L}:\ns_load_dwordx16 s[16:31], s[52:53], 0 glc\ns_load_dwordx4 s[32:35], s[52:53], 64 glc\ns_load_dwordx4 s[44:47], s[52:53], 80 glc\ns_load_dwordx8 s[60:67], s[52:53], 96 glc\ns_waitcnt lgkmcnt(0)')
        A('s_add_u32 s3, s18, s22\ns_add_u32 s7, s26, s30\ns_add_u32 s3, s3, s34\ns_add_u32 s7, s7, s46\ns_add_u32 s3, s3, s62\ns_add_u32 s7, s7, s66\ns_add_u32 s3, s3, s7\ns_lshl_b32 s7, s14, 3')
        A(f's_cmp_eq_u32 s3, s7\ns_cbranch_scc1 {D}')
        spin_tail(L, 0)
        A(f'{D}:')
    else:
        L = lab('wg'); D = lab('wgd')
        A(f's_mov_b64 exec, 0xff\n{L}:\nglobal_load_dwordx4 v[108:111], v91, s[42:43] sc1\ns_waitcnt vmcnt(0)\nv_cmp_ne_u64 vcc, s[14:15], v[110:111]\ns_bcnt1_i32_b64 s3, vcc\ns_cmp_le_u32 s3, {GATE}\ns_cbranch_scc1 {D}')
        spin_tail(L, 1)
        A(f'{D}:')
    L = lab('wo'); L2 = lab('wp'); D = lab('woq')
    A(f'{L}:\ns_mov_b64 exec, -1')
    if FREE: A(f's_waitcnt vmcnt(0)\nv_not_b32 v{OX}, s14\nv_not_b32 v{OX+4}, s14\nv_not_b32 v{OX+8}, s14\nv_not_b32 v110, s14')
    A(f'{L2}:')
    for s in range(3): A(f'global_load_dwordx4 {vr(OX+4*s,4)}, v85, s[42:43] offset:{128*s} sc1')
    A('global_load_dwordx4 v[108:111], v91, s[42:43] sc1')
    def packA(s):
        A(f'v_perm_b32 v{AA+4*s}, v{OX+4*s+1}, v{OX+4*s}, v118\nv_perm_b32 v{AA+4*s+1}, v{OX+4*s+3}, v{OX+4*s+2}, v118\nv_perm_b32 v{AA+4*s+2}, v{OX+4*s+1}, v{OX+4*s}, v119\nv_perm_b32 v{AA+4*s+3}, v{OX+4*s+3}, v{OX+4*s+2}, v119')
    A('L_wochk:')
    if not FREE:
        A('s_waitcnt vmcnt(3)')
        packA(0)
    if FREE: A('s_sleep 1')
    A(f'''s_waitcnt vmcnt({CAP*4 if FREE else 0})
    v_bitop3_b32 v90, v{OX}, v{OX+4}, s14 bitop3:0x7e
    v_bitop3_b32 v92, v{OX+8}, v110, s14 bitop3:0x7e
    v_bitop3_b32 v90, v90, v92, v98 bitop3:0xa8
    v_cmp_ne_u32 vcc, 0, v90
    s_cbranch_vccz {D}
    s_mov_b64 exec, vcc''')
    spin_tail(L2, 0)
    A(f'{D}:\ns_mov_b64 exec, -1')
    if FREE: packA(0)
    bt = lambda d, a: f'v_bitop3_b32 {d}, v{OX+a}, v{OX+a+1}, s14 bitop3:0x7e'
    fac = [f'v_max_f32 v116, v108, v108 quad_perm:[1,0,3,2] {DPPF}\nv_perm_b32 v{AA+4}, v{OX+5}, v{OX+4}, v118\nv_perm_b32 v{AA+5}, v{OX+7}, v{OX+6}, v118',
           f'v_max_f32 v116, v116, v116 quad_perm:[2,3,0,1] {DPPF}\nv_perm_b32 v{AA+6}, v{OX+5}, v{OX+4}, v119\nv_perm_b32 v{AA+7}, v{OX+7}, v{OX+6}, v119',
           f'v_max_f32 v116, v116, v116 row_half_mirror {DPPF}\nv_perm_b32 v{AA+8}, v{OX+9}, v{OX+8}, v118',
           f'v_sub_f32 v116, v108, v116\nv_mul_f32 v116, {H(LOG2E)}, v116\nv_exp_f32 v116, v116',
           f'v_perm_b32 v{AA+9}, v{OX+11}, v{OX+10}, v118\nv_mul_f32 v117, v116, v109\nv_perm_b32 v{AA+10}, v{OX+9}, v{OX+8}, v119',
           f'v_add_f32 v117, v117, v117 quad_perm:[1,0,3,2] {DPPF}\nv_perm_b32 v{AA+11}, v{OX+11}, v{OX+10}, v119',
           f'v_add_f32 v117, v117, v117 quad_perm:[2,3,0,1] {DPPF}\n' + bt('v90', 0),
           f'v_add_f32 v117, v117, v117 row_half_mirror {DPPF}\nv_rcp_f32 v117, v117',
           bt('v92', 2) + f'\nv_mul_f32 v116, v116, v117\n' + bt('v93', 4),
           '\n'.join(f'v_mov_b32 v{112+r}, v116 row_newbcast:{r} row_mask:0x5 bank_mask:0xf' for r in range(4)),
           '\n'.join(f'v_mov_b32 v{112+r}, v116 row_newbcast:{4+r} row_mask:0xa bank_mask:0xf' for r in range(4)),
           bt('v94', 6) + '\n' + bt('v95', 8) + '\n' + bt('v96', 10) + '\nv_or3_b32 v90, v90, v92, v93\nv_or3_b32 v94, v94, v95, v96\nv_or_b32 v90, v90, v94\nv_lshlrev_b32 v90, 16, v90']
    k = 0
    for s in range(3):
        for ct in range(4):
            c = '0' if s == 0 else vr(DD+4*ct, 4)
            A(f'v_mfma_f32_16x16x32_bf16 {vr(DD+4*ct,4)}, {vr(AA+4*s,4)}, {vr(B0+(s*4+ct)*4,4)}, {c}')
            A(fac[k]); k += 1
    D = lab('wod')
    A(f'v_cmp_ne_u64 s[8:9], v[110:111], s[14:15]\nv_cmp_ne_u32 vcc, 0, v90\ns_or_b64 vcc, vcc, s[8:9]\ns_cbranch_scc0 {D}')
    spin_tail(L, 0)
    A(f'{D}:')
    stamp(10)
    for ct in range(4): A(f'v_pk_mul_f32 {vr(DD+4*ct,2)}, {vr(DD+4*ct,2)}, v[112:113]')
    for ct in range(4): A(f'v_pk_fma_f32 {vr(DD+4*ct,2)}, {vr(DD+4*ct+2,2)}, v[114:115], {vr(DD+4*ct,2)}')
    for ct in range(4): A(f'v_add_f32 v{DD+4*ct}, v{DD+4*ct}, v{DD+4*ct+1}')
    A(f'v_permlane32_swap_b32 v{DD}, v{DD+4}\nv_permlane32_swap_b32 v{DD+8}, v{DD+12}')
    A(f'v_add_f32 v{DD}, v{DD}, v{DD+4}\nv_add_f32 v{DD+8}, v{DD+8}, v{DD+12}')
    A(f'ds_write_b32 v86, v{DD} offset:{L_PACC}\nds_write_b32 v86, v{DD+8} offset:{L_PACC + 1024}')
    A(f's_mov_b64 exec, 1\nds_add_rtn_u32 v90, v0, v89 offset:{L_CWO}\ns_mov_b64 exec, -1\nds_read_b128 v[92:95], v87 offset:{L_PACC}\nds_read_b128 v[96:99], v87 offset:{L_PACC+16}')
    A('s_waitcnt lgkmcnt(0)\nv_readfirstlane_b32 s3, v90')
    A('v_pk_add_f32 v[92:93], v[92:93], v[94:95]\nv_pk_add_f32 v[96:97], v[96:97], v[98:99]\nv_pk_add_f32 v[92:93], v[92:93], v[96:97]\nv_add_f32 v92, v92, v93\nv_bfi_b32 v92, 15, s14, v92')
    A('s_cmp_eq_u32 s3, 3\ns_cbranch_scc0 L_wonost\nglobal_store_dword v88, v92, s[42:43] sc1\nL_wonost:')
    stamp(11)
    A('s_cmp_eq_u32 s57, 0\ns_cbranch_scc1 L_fin')
    L = lab('fx'); D = lab('fxd')
    A(f'{L}:\nglobal_load_dword v20, v101, s[42:43] sc1\ns_waitcnt vmcnt(0)\nv_xor_b32 v21, s14, v20\nv_lshlrev_b32 v21, 16, v21\nv_cmp_ne_u32 vcc, 0, v21\ns_cbranch_vccz {D}')
    spin_tail(L, 1)
    A(f'{D}:')
    def pend_poll(loads, regs, init, tmp, pre_sleep=0):
        n = len(loads)
        M = [f's[{62+2*k}:{63+2*k}]' for k in range(n)]
        for k in range(n): A(f's_mov_b64 {M[k]}, {init}')
        if FREE:
            for k in range(n): A(f'v_not_b32 v{regs[k]}, s14')
        L = lab('pl'); D = lab('pld')
        A(f'{L}:')
        for k in range(n): A(f's_mov_b64 exec, {M[k]}\n{loads[k]}')
        A(f's_mov_b64 exec, {init}')
        for k in range(n):
            r = regs[k]
            if not FREE: A(f's_waitcnt vmcnt({n-1-k})')
            elif k == 0: A(f's_waitcnt vmcnt({CAP*n})' + (f'\ns_sleep {FS}' if FS else ''))
            A(f'v_bitop3_b32 v{tmp}, v{r}, v{r+1}, s14 bitop3:0x7e\nv_bitop3_b32 v{tmp+1}, v{r+2}, v{r+3}, s14 bitop3:0x7e\nv_bitop3_b32 v{tmp}, v{tmp}, v{tmp+1}, 15 bitop3:0xa8\nv_cmp_ne_u32 {M[k]}, 0, v{tmp}')
        A(f's_or_b64 s[8:9], {M[0]}, {M[1]}')
        for k in range(2, n): A(f's_or_b64 s[8:9], s[8:9], {M[k]}')
        A(f's_cbranch_scc0 {D}')
        spin_tail(L, 0)
        A(f'{D}:')
    if G4: sgate('s[54:55]', [2560*((k*96)//G4 + (k*5) % (96//G4)) for k in range(G4)], list(range(16, 32)), 15)
    elif FSL: A(f's_sleep {FSL}')
    pend_poll([f'global_load_dwordx4 {vr(8+4*k,4)}, v{103+k}, s[42:43] sc1' for k in range(3)], [8, 12, 16], '-1', 90)
    untag(8, 12, 28)
    A('''v_pk_add_f32 v[22:23], v[28:29], v[32:33]
    v_pk_add_f32 v[24:25], v[30:31], v[34:35]
    v_pk_add_f32 v[22:23], v[22:23], v[36:37]
    v_pk_add_f32 v[24:25], v[24:25], v[38:39]
    v_permlane32_swap_b32 v22, v24
    v_permlane32_swap_b32 v23, v25
    v_pk_add_f32 v[22:23], v[22:23], v[24:25]
    v_permlane16_swap_b32 v22, v23
    v_add_f32 v26, v22, v23''')
    A(f'v_add_f32 v26, v26, v26 row_ror:2 {DPPF}')
    stamp(12)
    A(f'v_add_f32 v26, v26, v26 row_ror:4 {DPPF}\nv_and_b32 v20, 0xffff0000, v20\nv_add_f32 v26, v26, v26 row_ror:8 {DPPF}')
    A('v_cvt_pk_bf16_f32 v26, v26, v26\nv_and_b32 v26, 0xffff0000, v26\nv_mul_f32 v26, v26, v106\nv_cvt_pk_bf16_f32 v26, v26, v26\nv_and_b32 v26, 0xffff0000, v26')
    A('v_add_f32 v26, v26, v20\nv_cvt_pk_bf16_f32 v26, v26, v26')
    set_exec(0x00030003, 0x00030003)
    A('global_store_short v100, v26, s[38:39]')
    stamp(13)
    A(f's_cmp_eq_u32 s10, 0\ns_cbranch_scc0 L_fin\ns_mov_b64 exec, 1\nv_mov_b32 v40, {R_E}\nv_mov_b32 v42, s14\nv_mov_b32 v43, s15\nglobal_store_dwordx2 v40, v[42:43], s[42:43] sc1')
    A('s_branch L_fin')

    A('L_tailB:')
    lds_wait_ge(L_CQ, 3, 'v0', 'v90', sleep=8)
    calc_t('s12')
    G0 = 8; U0 = 28; WD = 48
    P0 = 100; HA = 100
    A(f'''s_and_b32 s57, s12, 3
    s_mul_i32 s13, s57, 160
    s_mul_i32 s3, s4, 40
    v_lshl_add_u32 v80, v5, 2, s3
    v_add_u32 v81, v80, v4
    v_lshlrev_b32 v85, 1, v81
    v_add_u32 v81, s13, v81
    v_lshlrev_b32 v82, 1, v81
    v_lshlrev_b32 v86, 2, v81
    v_add_u32 v80, s13, v80
    v_mul_u32_u24 v83, 15360, v4
    v_lshl_add_u32 v83, v80, 2, v83
    s_add_u32 s44, s42, {R_MOD + 5120}
    s_addc_u32 s45, s43, 0
    s_mov_b32 s46, {8*15360}
    s_movk_i32 s20, 5120
    s_mov_b32 s21, {4*15360}
    s_mov_b32 s22, {4*15360 + 5120}
    v_mul_u32_u24 v84, 2560, v4
    v_lshl_add_u32 v84, v80, 2, v84
    s_add_u32 s48, s42, {R_P}
    s_addc_u32 s49, s43, 0
    s_mov_b32 s50, {16*2560}''')
    set_exec(0x03ff03ff, 0x03ff03ff)
    A('global_load_ushort v71, v82, s[16:17]')
    L = lab('mf')
    A(f'{L}:')
    for k, (so, off) in enumerate((('0', 0), ('s21', 0), ('0', 2560), ('s21', 2560), ('s20', 0), ('s22', 0))):
        A(f'buffer_load_dwordx4 {vr(100+4*k,4)}, v83, s[44:47], {so} offen offset:{off} sc1')
    A('s_waitcnt vmcnt(0)')
    untag(100, 24)
    ortree([v(100+i) for i in range(24)], 'v90')
    tag_end('v90', L, 16)
    for b0 in (100, 108, 116): A(f'v_pk_add_f32 {vr(b0,2)}, {vr(b0,2)}, {vr(b0+4,2)}\nv_pk_add_f32 {vr(b0+2,2)}, {vr(b0+2,2)}, {vr(b0+6,2)}')
    for b0 in (100, 108, 116): A(f'v_permlane32_swap_b32 v{b0}, v{b0+2}\nv_permlane32_swap_b32 v{b0+1}, v{b0+3}')
    for b0 in (100, 108, 116): A(f'v_pk_add_f32 {vr(b0,2)}, {vr(b0,2)}, {vr(b0+2,2)}')
    for b0 in (100, 108, 116): A(f'v_permlane16_swap_b32 v{b0}, v{b0+1}')
    for k, b0 in enumerate((100, 108, 116)): A(f'v_add_f32 v{68+k}, v{b0}, v{b0+1}')
    round_list(['v68', 'v69', 'v70'], ['v90', 'v91'])
    A('v_lshlrev_b32 v71, 16, v71\nv_add_f32 v70, 1.0, v70')
    round_list(['v70'], ['v90'])
    A(f'''v_mov_b32 v90, 1.0
    ds_write_b16_d16_hi v85, v70 offset:{L_A + 2*LAP}
    ds_write_b16_d16_hi v85, v69 offset:{L_A + 3*LAP}
    ds_write_b16_d16_hi v85, v90 offset:{L_A + 5*LAP}
    s_mov_b64 exec, -1
    v_add_u32 v86, {R_X1}, v86''')
    A(f'''v_mul_u32_u24 v72, 3072, v3
    v_add_u32 v72, v72, v1
    s_lshr_b32 s3, s12, 2
    s_lshl_b32 s3, s3, 7
    s_lshl_b32 s7, s57, 2
    s_add_u32 s7, s7, s4
    s_mul_i32 s7, s7, {40*3072}
    s_add_u32 s3, s3, s7
    s_add_u32 s44, s28, s3
    s_addc_u32 s45, s29, 0
    s_mov_b32 s46, {40*3072}
    s_add_u32 s52, s30, s3
    s_addc_u32 s53, s31, 0
    s_mov_b32 s54, {40*3072}
    s_mov_b32 s55, 0x20000
    s_mul_i32 s11, s4, 5120
    s_add_u32 s7, s11, {L_W}''')
    A(f'''v_lshl_add_u32 v87, v4, 3, v6
    v_lshl_add_u32 v87, v87, 7, v7
    s_lshl_b32 s3, s4, 5
    v_add_u32 v87, s3, v87
    v_and_b32 v88, 1, v4
    v_lshl_add_u32 v88, v88, 3, v6
    v_mul_u32_u24 v88, 1280, v88
    v_lshrrev_b32 v89, 1, v4
    v_lshl_add_u32 v89, v89, 5, v7
    s_mul_i32 s3, s4, 320
    v_add3_u32 v88, v88, v89, s3
    v_mov_b32 v79, 1''')
    if TLB:
        lds_wait_ge(L_CSTAT, 1, 'v0', 'v90', sleep=2)
        A(f's_mul_i32 s3, s6, 24576\ns_mul_i32 s8, s5, 768\ns_add_u32 s3, s3, s8\ns_add_u32 s3, s3, {R_O}\nv_mov_b32 v90, s3\ns_mul_i32 s3, s12, 2560\ns_add_u32 s3, s3, {R_DN}\nv_mov_b32 v91, s3\ns_mov_b64 exec, 1\nglobal_load_dword v92, v91, s[42:43] sc1\nglobal_load_dword v92, v90, s[42:43] sc1\ns_waitcnt vmcnt(0)\ns_mov_b64 exec, -1')
    lds_wait_ge(L_CO, 9, 'v0', 'v90', sleep=1)
    stamp(6)
    if PT:
        A(f's_lshl_b32 s3, s12, 2\ns_add_u32 s3, s3, s4\ns_mul_i32 s3, s3, 640\ns_add_u32 s3, s3, {R_GU}\nv_lshl_add_u32 v90, v2, 7, s3\ns_mov_b64 exec, 31\nglobal_load_dword v91, v90, s[42:43] sc1\ns_mov_b64 exec, -1')
    L = lab('dmb')
    A(f'''s_mov_b32 s56, 0
    {L}:
    s_mov_b32 m0, s7
    s_add_u32 s3, s7, 20480
    buffer_load_dwordx4 v72, s[44:47], s56 offen nt lds
    s_mov_b32 m0, s3
    s_add_u32 s7, s7, 1024
    buffer_load_dwordx4 v72, s[52:55], s56 offen nt lds
    s_add_u32 s56, s56, {8*3072}
    s_cmp_lt_u32 s56, {40*3072}
    s_cbranch_scc1 {L}
    s_mul_i32 s3, s12, 20480
    s_add_u32 s3, s3, s11
    s_add_u32 s44, s32, s3
    s_addc_u32 s45, s33, 0
    s_movk_i32 s46, 5120
    s_add_u32 s7, s11, {L_W + 40960}
    s_mov_b32 m0, s7
    s_movk_i32 s56, 4096''')
    for k in range(4): A(f'buffer_load_dwordx4 v75, s[44:47], 0 offen offset:{1024*k} nt lds')
    A('s_add_u32 s7, s7, 4096\ns_mov_b32 m0, s7\ns_nop 0\nbuffer_load_dwordx4 v75, s[44:47], s56 offen nt lds')
    A(f'''v_min_u32 v76, 5, v5
    v_mul_u32_u24 v76, {LAP}, v76
    v_lshl_add_u32 v76, v4, 4, v76
    s_andn2_b32 s3, s12, 3
    s_add_u32 s3, s3, s4
    s_lshl_b32 s3, s3, 2
    s_add_u32 s3, s3, s57
    s_mul_i32 s3, s3, 640
    s_add_u32 s3, s3, {R_GU}
    v_min_u32 v77, 16, v2
    v_lshl_add_u32 v77, v77, 4, s3
    v_and_b32 v78, 7, v2
    v_lshl_add_u32 v78, v4, 3, v78
    v_lshlrev_b32 v78, 4, v78
    v_add_u32 v74, 384, v78
    v_cmp_eq_u32 vcc, 8, v2
    v_mov_b32 v90, 256
    v_cndmask_b32 v78, v78, v90, vcc
    v_cndmask_b32 v74, v74, v90, vcc
    s_mul_i32 s3, s12, 2560
    s_add_u32 s3, s3, {R_GU}
    v_add_u32 v78, s3, v78
    v_add_u32 v74, s3, v74
    v_lshlrev_b32 v92, 6, v5
    v_lshl_add_u32 v92, v4, 4, v92
    s_mul_i32 s3, s12, 2560
    s_mul_i32 s7, s4, 640
    s_add_u32 s3, s3, s7
    s_add_u32 s3, s3, {R_DN}
    v_add_u32 v92, s3, v92
    v_lshrrev_b32 v90, 1, v4
    v_and_b32 v91, 1, v2
    v_cmp_eq_u32 s[62:63], v90, v91
    v_lshrrev_b32 v90, 1, v5
    s_lshl_b32 s11, s14, 3
    s_movk_i32 s20, 10240
    s_movk_i32 s21, 20480
    s_movk_i32 s22, 30720
    s_add_u32 s52, s42, {GU2}
    s_addc_u32 s53, s43, 0
    s_mov_b32 s13, 0
    v_mov_b32 v93, {H(1/640)}
    v_mov_b32 v135, s14
    v_mov_b32 v139, s14''')
    MS = ['s[24:25]', 's[28:29]', 's[30:31]', 's[32:33]', 's[26:27]']
    for m in range(5):
        A(f'v_cmp_eq_u32 vcc, {m}, v90\ns_and_b64 {MS[m]}, vcc, s[62:63]')
    A('v_cmp_eq_u32 s[34:35], 20, v2')
    A(f's_waitcnt vmcnt(5)\ns_mov_b64 exec, 1\nds_add_u32 v0, v79 offset:{L_WRDY}\ns_mov_b64 exec, -1')
    stamp(7)
    lds_wait_ge(L_WRDY, 4, 'v0', 'v90', sleep=0)
    for s in range(5):
        for hf in range(2):
            A(f'ds_read_b64_tr_b16 {vr(G0+4*s+2*hf,2)}, v87 offset:{L_W + (32*s+4*hf)*128}')
            A(f'ds_read_b64_tr_b16 {vr(U0+4*s+2*hf,2)}, v87 offset:{L_W + 20480 + (32*s+4*hf)*128}')
        if s == 2: A('s_waitcnt lgkmcnt(0)')
    stamp(8)
    A(f's_waitcnt vmcnt(0)\ns_mov_b64 exec, 1\nds_add_u32 v0, v79 offset:{L_WRDY}\ns_mov_b64 exec, -1')
    lds_wait_ge(L_WRDY, 8, 'v0', 'v90', sleep=0)
    for s in range(5):
        for hf in range(2):
            A(f'ds_read_b64_tr_b16 {vr(WD+4*s+2*hf,2)}, v88 offset:{L_W + 40960 + 4*hf*1280 + 64*s}')
    stamp(9)
    A('s_mov_b32 s18, 0x03ff03ff\ns_mov_b32 s19, 0x03ff03ff')
    if G2:
        A(f's_mul_i32 s3, s57, 640\ns_mul_i32 s7, s4, 160\ns_add_u32 s3, s3, s7\ns_and_b32 s7, s12, 4\ns_mul_i32 s7, s7, 39\ns_add_u32 s3, s3, s7\ns_add_u32 s54, s48, s3\ns_addc_u32 s55, s49, 0')
        sgate('s[54:55]', [2560*(k*16//G2) for k in range(G2)], [62,63,64,65,66,67,68,69,16,17,23,38,39,56,60,61], 15)
    pend_poll([f'buffer_load_dwordx4 {vr(144+4*i,4)}, v84, s[48:51], {["0","s20","s21","s22"][i]} offen sc1' for i in range(4)], [144+4*i for i in range(4)], 's[18:19]', 90)
    untag(144, 16, P0)
    A(f'''v_pk_add_f32 v[96:97], {vr(P0,2)}, {vr(P0+4,2)}
    v_pk_add_f32 v[98:99], {vr(P0+2,2)}, {vr(P0+6,2)}
    v_pk_add_f32 v[116:117], {vr(P0+8,2)}, {vr(P0+12,2)}
    v_pk_add_f32 v[118:119], {vr(P0+10,2)}, {vr(P0+14,2)}
    v_pk_add_f32 v[96:97], v[96:97], v[116:117]
    v_pk_add_f32 v[98:99], v[98:99], v[118:119]
    v_permlane32_swap_b32 v96, v98
    v_permlane32_swap_b32 v97, v99
    v_pk_add_f32 v[96:97], v[96:97], v[98:99]
    v_permlane16_swap_b32 v96, v97
    v_add_f32 v96, v96, v97
    v_cvt_pk_bf16_f32 v96, v96, v96''')
    stamp(10)
    A('''v_and_b32 v96, 0xffff0000, v96
    v_mul_f32 v96, v96, v68
    v_cvt_pk_bf16_f32 v96, v96, v96
    v_and_b32 v96, 0xffff0000, v96
    v_add_f32 v96, v96, v71
    v_cvt_pk_bf16_f32 v96, v96, v96
    v_and_b32 v96, 0xffff0000, v96
    v_mul_f32 v97, v96, v70''')
    A(f'ds_write_b16_d16_hi v85, v96 offset:{L_A + 4*LAP}\nv_and_b32 v98, 0xffff0000, v97\nds_write_b16_d16_hi v85, v97 offset:{L_A}\nv_sub_f32 v98, v97, v98\nds_write_b16_d16_hi v85, v98 offset:{L_A + LAP}')
    A(f's_mov_b64 exec, 1\nds_add_u32 v0, v79 offset:{L_CA}\ns_mov_b64 exec, -1')
    L = lab('h2'); D = lab('h2d')
    A(f'{L}:\nds_read_b32 v90, v0 offset:{L_CA}')
    for s in range(5): A(f'ds_read_b128 {vr(HA+4*s,4)}, v76 offset:{L_A + 64*s}')
    A(f's_waitcnt lgkmcnt(0)\nv_cmp_gt_u32 vcc, 4, v90\ns_cbranch_vccz {D}')
    spin_tail(L, 0)
    A(f'{D}:')
    for s in range(5):
        A(f'v_mfma_f32_16x16x32_bf16 v[128:131], {vr(HA+4*s,4)}, {vr(HA+4*s,4)}, {"0" if s==0 else "v[128:131]"}')
        A(f'v_mfma_f32_16x16x32_bf16 v[120:123], {vr(HA+4*s,4)}, {vr(G0+4*s,4)}, {"0" if s==0 else "v[120:123]"}')
        A(f'v_mfma_f32_16x16x32_bf16 v[124:127], {vr(HA+4*s,4)}, {vr(U0+4*s,4)}, {"0" if s==0 else "v[124:127]"}')
    A('s_and_b32 s3, s14, 0xffff\nv_or_b32 v96, s3, v96')
    A('s_mov_b64 exec, 0x10ffff')
    A('''v_add_f32 v132, v120, v121
    v_cndmask_b32 v133, v122, v129, s[34:35]
    v_mov_b32 v134, v123
    v_cndmask_b32 v132, v132, v128, s[34:35]
    global_store_dwordx4 v77, v[132:135], s[42:43] ''' + ('' if DUAL else 'sc1') + '''
    v_add_f32 v136, v124, v125
    v_mov_b32 v137, v126
    v_mov_b32 v138, v127
    s_mov_b64 exec, 0xffff
    global_store_dwordx4 v77, v[136:139], s[42:43] offset:384 ''' + ('' if DUAL else 'sc1'))
    copyB = 's_mov_b64 exec, 0xffff\nglobal_store_dwordx4 v77, v[136:139], s[52:53] offset:384 sc1\ns_mov_b64 exec, 0x10ffff\nglobal_store_dwordx4 v77, v[132:135], s[52:53] sc1\ns_mov_b64 exec, 0xff01ff'
    stamp(11)
    A('s_mov_b64 exec, 0xff01ff')
    if ACK and not DUAL: A('s_waitcnt vmcnt(0)')
    L = lab('gu'); D = lab('gud')
    D1 = lab('gua')
    def gu_round(base, wait, D=D):
        for k in range(4):
            A(f'global_load_dwordx4 {vr(100+8*k,4)}, v78, {base} offset:{640*k} sc1')
            A(f'global_load_dwordx4 {vr(104+8*k,4)}, v74, {base} offset:{640*k} sc1')
        A(f's_waitcnt vmcnt({wait})')
        A(f'''v_add3_u32 v90, v103, v107, v111
        v_add3_u32 v91, v115, v119, v123
        v_add3_u32 v90, v90, v127, v131
        v_add_u32 v90, v90, v91
        v_cmp_ne_u32 vcc, s11, v90
        s_cbranch_vccz {D}''')
    if DUAL:
        L1 = lab('gf')
        A(f'{L1}:')
        gu_round('s[42:43]', 0, D1)
        A(f's_add_u32 s13, s13, 1\ns_cmp_lt_u32 s13, {DR}\ns_cbranch_scc1 {L1}')
        A(copyB)
    A(f'{L}:')
    gu_round('s[52:53]' if DUAL else 's[42:43]', 0)
    spin_tail(L, 0)
    if DUAL: A(f'{D1}:\n' + copyB)
    A(f'{D}:')
    stamp(13)
    A('s_cmp_lt_u32 s12, 4\ns_cbranch_scc0 L_nox1\ns_mov_b64 exec, s[18:19]\nglobal_store_dword v86, v96, s[42:43] sc1\ns_mov_b64 exec, 0xff01ff\nL_nox1:')
    A(f'''v_pk_add_f32 v[140:141], v[100:101], v[108:109]
    v_pk_add_f32 v[142:143], v[116:117], v[124:125]
    v_pk_add_f32 v[144:145], v[104:105], v[112:113]
    v_pk_add_f32 v[140:141], v[140:141], v[142:143]
    v_pk_add_f32 v[146:147], v[120:121], v[128:129]
    v_readlane_b32 s8, v140, 8
    v_readlane_b32 s9, v141, 8
    v_add_f32 v148, v102, v110
    v_add_f32 v149, v118, v126
    v_mul_f32 v94, s9, v93
    v_mul_f32 v95, s8, v93
    v_add_f32 v150, v106, v114
    v_fma_f32 v95, -v94, v94, v95
    v_add_f32 v151, v122, v130
    v_max_f32 v95, 0, v95
    v_pk_add_f32 v[144:145], v[144:145], v[146:147]
    v_cvt_pk_bf16_f32 v90, v94, v95
    v_add_f32 v148, v148, v149
    v_and_b32 v95, 0xffff0000, v90
    v_lshlrev_b32 v94, 16, v90
    v_add_f32 v95, {H(1e-5)}, v95
    v_add_f32 v150, v150, v151
    v_cvt_pk_bf16_f32 v95, v95, v95
    v_fma_f32 v140, -v94, v141, v140
    v_and_b32 v95, 0xffff0000, v95
    v_sqrt_f32 v95, v95
    v_fma_f32 v144, -v94, v145, v144
    v_cvt_pk_bf16_f32 v95, v95, v95
    v_and_b32 v95, 0xffff0000, v95
    v_rcp_f32 v95, v95
    v_fma_f32 v152, v140, v95, v148
    v_fma_f32 v154, v144, v95, v150''')
    round_list(['v152', 'v154'], ['v90'])
    K0 = -2.0 * LOG2E * 0.7978845608028654
    A(f'''v_mul_f32 v153, v152, v152
    v_mov_b32 v155, {H(K0)}
    v_fmac_f32 v155, {H(K0*0.044715)}, v153
    v_mul_f32 v155, v155, v152
    v_exp_f32 v155, v155
    v_add_f32 v155, 1.0, v155
    v_rcp_f32 v155, v155
    v_mul_f32 v152, v152, v155
    v_cvt_pk_bf16_f32 v152, v152, v152
    v_and_b32 v152, 0xffff0000, v152
    v_mul_f32 v152, v152, v154''')
    A(f'v_mov_b32 v153, v152 quad_perm:[1,0,3,2] {DPPF}\nv_cvt_pk_bf16_f32 v152, v152, v153\nv_cvt_pk_bf16_f32 v154, v152, v153'.replace('v_cvt_pk_bf16_f32 v152, v152, v153\nv_cvt_pk_bf16_f32 v154, v152, v153', 'v_cvt_pk_bf16_f32 v154, v152, v153\nv_cvt_pk_bf16_f32 v152, v152, v153'))
    A('s_mov_b64 exec, -1\nv_permlane32_swap_b32 v152, v154')
    for d in range(4): A(f'v_mov_b32 v{140+d}, v152 row_newbcast:{2*d} {DPPF}')
    for m in range(5):
        F = 144 + 4*(m & 1)
        for d in range(4): A(f'v_cndmask_b32 v{F+d}, 0, v{140+d}, {MS[m]}')
        A(f'v_mfma_f32_16x16x32_bf16 v[156:159], {vr(WD+4*m,4)}, {vr(F,4)}, {"0" if m==0 else "v[156:159]"}')
    set_exec(0x03ff03ff, 0x03ff03ff)
    for i in range(4): A(f'v_bfi_b32 v{156+i}, 15, s14, v{156+i}')
    A('global_store_dwordx4 v92, v[156:159], s[42:43] sc1')
    stamp(12)

    A('L_fin:')
    if stamps:
        A('s_memrealtime s[98:99]\ns_waitcnt vmcnt(0) lgkmcnt(0)\ns_mov_b64 exec, 1')
        A(f's_mul_i32 s3, s2, 12\ns_add_u32 s3, s3, s4\ns_lshl_b32 s3, s3, 6\ns_add_u32 s3, s3, {R_STAMP}\nv_mov_b32 v0, s3')
        for i in range(15): A(f'v_mov_b32 v{8+i}, s{70+2*i}')
        A('v_mov_b32 v23, s58')
        for i in range(4): A(f'global_store_dwordx4 v0, {vr(8+4*i,4)}, s[42:43] offset:{16*i}')
        if stamps == 2:
            A('s_cmp_eq_u32 s2, 96\ns_cbranch_scc0 L_end\ns_cmp_eq_u32 s4, 1\ns_cbranch_scc0 L_end\ns_nop 4')
            for i in range(1, 15): A(f'v_subrev_u32 v{8+i}, s70, v{8+i}')
            A('v_mov_b32 v0, 0')
            for i in range(4): A(f'global_store_dwordx4 v0, {vr(8+4*i,4)}, s[40:41] offset:{16*i}')
    A('L_end:\ns_endpgm')
    npad = A.pad()
    hdr = open('cdna_kernels/' + NAME + '.s.ref').read().split('; Override launch')[0]
    pre = ''
    if stamps:
        pre = ''.join(f'  s_mov_b32 s{70+2*i}, 0\n' for i in range(15))
    txt = hdr + f'''; @launch grid=(256,1,1) block=(768,1,1) lds={LDS_BYTES}
.amdgcn_target "amdgcn-amd-amdhsa--gfx950"
.text
.globl {NAME}_kernel
.p2align 8
.type {NAME}_kernel,@function
{NAME}_kernel:
''' + pre + A.text() + f'''.section .rodata,"a"
.p2align 6
.amdhsa_kernel {NAME}_kernel
  .amdhsa_next_free_vgpr 168
  .amdhsa_next_free_sgpr 102
  .amdhsa_accum_offset 168
  .amdhsa_group_segment_fixed_size 0
  .amdhsa_kernarg_size 112
  .amdhsa_user_sgpr_count 2
  .amdhsa_user_sgpr_kernarg_segment_ptr 1
  .amdhsa_system_sgpr_workgroup_id_x 1
.end_amdhsa_kernel
'''
    return txt, npad

if __name__ == '__main__':
    kw = {}
    outp = sys.argv[1]
    for a in sys.argv[2:]:
        k, val = a.split('=')
        kw[k] = int(val) if val.lstrip('-').isdigit() else val
    txt, npad = gen(**kw)
    open(outp, 'w').write(txt)
    print('nops inserted', npad)
```

```python
import sys, struct
from asmlib import Asm
NAME = 'adaLN_cond__sliding_block_cached__geglu_ffn__decode'
def f2u(x): return struct.unpack('<I', struct.pack('<f', x))[0]
def H(x): return '0x%08x' % f2u(x)
LOG2E = 1.4426950408889634

R_E = 0
R_TK = 1024
R_MOD = R_TK + 32*128
R_MA = R_MOD + 2*15360
R_Q = R_MA + 4*5120
R_O = R_Q + 32*768
R_P = R_O + 256*896
R_X1 = R_P + 8*16*2560
R_DN = R_X1 + 2560
R_GU = R_DN + 96*2560
GU2 = 0x180000 - R_GU
assert R_GU + 96*2560 <= 0x140000
R_STAMP = 0x140000
L_ML = 0; L_H = 128; L_ST2 = 512
L_CSTAT = 1024; L_CO = 1028; L_TRIG = 1032; L_WRDY = 1036; L_CWO = 1040; L_CQ = 1044; L_OK = 1048; L_CA = 1052; L_TRIGB = 1056
L_Q = 1280
L_ST = 1792
L_A = 3072; LAP = 336
L_PACC = 3072
L_OS = 5120
L_TB = 1664
L_F = 1920
L_W = 11264
L_CM = 1060; L_MS = 2048
L_HB = L_W
LDS_BYTES = L_W + 61440

DPPF = 'row_mask:0xf bank_mask:0xf'

def gen(T=3, SG=5, TD=2, TKW=4, XB=40, DEARLY=0, DNW=1, IL=0, SWZ=1, DPOS=0, DW=2, WT=0, FB=2, XAT=0, PREP=4, PFC=0, PFP='nt', CS=4, XA=30, HAW=3, PRIO=1, TN=8, PFF='', GATE=6, FSL=4, FREE=0, CAP=2, DUAL=1, G1=0, G2=0, G4=0, DR=24, FS=0, TLB=2, WDEF=0, OEARLY=4, DPRIO=1, TRIGM=60, TWA=12, ACK=1, PT=1, stamps=False, TIMEOUT=1 << 20, SLA=8, SLB=4):
    A = Asm()
    uid = [0]
    def lab(p):
        uid[0] += 1
        return f'L_{p}{uid[0]}'
    def stamp(i):
        if stamps == 1 or (stamps and i == 0): A(f's_memrealtime s[{70+2*i}:{71+2*i}]')
    def spin_tail(L, sleep):
        if sleep: A(f's_sleep {sleep}')
        A(f's_sub_u32 s58, s58, 1\ns_cbranch_scc0 {L}\ns_branch L_fin')
    def lds_wait_ge(off, val, vz, vt, sleep=1):
        L = lab('w'); D = lab('d')
        A(f'{L}:\nds_read_b32 {vt}, {vz} offset:{off}\ns_waitcnt lgkmcnt(0)\nv_readfirstlane_b32 s3, {vt}\ns_cmp_ge_u32 s3, {val}\ns_cbranch_scc1 {D}')
        spin_tail(L, sleep)
        A(f'{D}:')
    def maxtree(regs, dst):
        regs = list(regs)
        if len(regs) == 2:
            A(f'v_max_u32 {dst}, {regs[0]}, {regs[1]}'); return
        A(f'v_max3_u32 {dst}, {regs[0]}, {regs[1]}, {regs[2]}')
        rest = regs[3:]
        while len(rest) >= 2:
            A(f'v_max3_u32 {dst}, {dst}, {rest[0]}, {rest[1]}'); rest = rest[2:]
        if rest: A(f'v_max_u32 {dst}, {dst}, {rest[0]}')
    def poll_end(regs, tmp, L, sleep):
        D = lab('ok')
        if len(regs) > 1: maxtree(regs, tmp)
        else: tmp = regs[0]
        A(f'v_cmp_eq_u32 vcc, -1, {tmp}\ns_cbranch_vccz {D}')
        spin_tail(L, sleep)
        A(f'{D}:')
    def allred8(regs, op='v_add_f32'):
        for pat in ('quad_perm:[1,0,3,2]', 'quad_perm:[2,3,0,1]', 'row_half_mirror'):
            for r in regs: A(f'{op} {r}, {r}, {r} {pat} {DPPF}')
    def red_hi(regs, op='v_add_f32'):
        for r in regs: A(f'{op} {r}, {r}, {r} row_ror:8 {DPPF}')
        for r in regs: A(f'{op} {r}, {r}, {r} row_bcast:15 row_mask:0xa bank_mask:0xf')
        for r in regs: A(f'{op} {r}, {r}, {r} row_bcast:31 row_mask:0xc bank_mask:0xf')
    def round_list(regs, tmps):
        regs = list(regs)
        prs = [(regs[i], regs[i+1] if i+1 < len(regs) else None) for i in range(0, len(regs), 2)]
        for k0 in range(0, len(prs), len(tmps)):
            blk = prs[k0:k0+len(tmps)]
            for (a, b), t in zip(blk, tmps): A(f'v_cvt_pk_bf16_f32 {t}, {a}, {b if b else a}')
            for (a, b), t in zip(blk, tmps):
                A(f'v_lshlrev_b32 {a}, 16, {t}')
                if b: A(f'v_and_b32 {b}, 0xffff0000, {t}')
    def masks(dst4, vl, t0, t1):
        A(f'v_and_b32 {t0}, 1, {vl}\nv_lshlrev_b32 {t0}, 4, {t0}\nv_mov_b32 {t1}, 0xffff\nv_lshlrev_b32 {t0}, {t0}, {t1}\nv_bfe_u32 {t1}, {vl}, 1, 2')
        for t in range(4):
            A(f'v_cmp_eq_u32 vcc, {t}, {t1}\nv_cndmask_b32 {dst4[t]}, 0, {t0}, vcc')
    def v(i): return f'v{i}'
    def vr(i, n): return f'v[{i}:{i+n-1}]'
    def set_exec(lo, hi):
        if lo == 0xffffffff and hi == 0xffffffff: A('s_mov_b64 exec, -1')
        elif hi == 0 and lo <= 64: A(f's_mov_b64 exec, {lo}')
        else: A(f's_mov_b32 exec_lo, 0x{lo:x}\ns_mov_b32 exec_hi, 0x{hi:x}')
    def tags():
        A('s_mul_i32 s14, s14, 0x9e3779b1\ns_add_u32 s14, s14, 0x7f4a7c15\ns_mul_i32 s15, s15, 0x85ebca6b\ns_add_u32 s15, s15, 0xc2b2ae35')
        A('s_and_b32 s3, s14, 15\ns_sub_u32 s36, 0, s3\ns_subb_u32 s37, 0, s3')
    def untag(base, n, dst=None):
        if dst is None: dst = base
        for i in range(0, n, 2): A(f'v_lshl_add_u64 {vr(dst+i,2)}, {vr(base+i,2)}, 0, s[36:37]')
    def ortree(regs, dst):
        regs = list(regs)
        if len(regs) == 2:
            A(f'v_or_b32 {dst}, {regs[0]}, {regs[1]}'); return
        A(f'v_or3_b32 {dst}, {regs[0]}, {regs[1]}, {regs[2]}')
        rest = regs[3:]
        while len(rest) >= 2:
            A(f'v_or3_b32 {dst}, {dst}, {rest[0]}, {rest[1]}'); rest = rest[2:]
        if rest: A(f'v_or_b32 {dst}, {dst}, {rest[0]}')
    def tag_end(tmp, L, sleep):
        D = lab('ok')
        A(f'v_and_b32 {tmp}, 15, {tmp}\nv_cmp_ne_u32 vcc, 0, {tmp}\ns_cbranch_vccz {D}')
        spin_tail(L, sleep)
        A(f'{D}:')

    A('L_base:')
    stamp(0)
    A('''s_cmp_ge_u32 s2, 256
    s_cbranch_scc1 L_end
    s_load_dwordx16 s[16:31], s[0:1], 0
    s_load_dwordx8 s[32:39], s[0:1], 64
    s_load_dwordx4 s[40:43], s[0:1], 96
    v_readfirstlane_b32 s4, v0
    v_and_b32 v2, 63, v0
    s_lshr_b32 s5, s2, 3
    s_and_b32 s6, s2, 7
    s_lshl2_add_u32 s5, s6, s5
    s_and_b32 s5, s5, 31
    s_lshr_b32 s4, s4, 6
    v_lshrrev_b32 v3, 3, v2
    v_and_b32 v1, 7, v2
    v_lshlrev_b32 v1, 4, v1
    s_mov_b32 s47, 0x20000
    s_mov_b32 s51, 0x20000''')
    A(f's_mov_b32 s58, {TIMEOUT}')
    A('s_lshl3_add_u32 s59, s5, s6')
    W0 = 8; X0 = 48; D0 = 60; F0 = 64
    A('s_cmp_lt_u32 s4, 4\ns_cbranch_scc0 L_strm')
    A('s_setprio 3\ns_sub_u32 s10, s2, 96\ns_cbranch_scc1 L_cB\ns_cmp_ge_u32 s10, 80\ns_cbranch_scc1 L_rest\ns_cmp_ge_u32 s4, 2\ns_cbranch_scc1 L_cN')
    A(f'''s_mul_i32 s12, s10, 3277
    s_lshr_b32 s12, s12, 16
    s_mul_i32 s7, s12, 20
    s_sub_u32 s13, s10, s7
    s_lshl1_add_u32 s8, s12, s4
    L_rest2:
    v_mul_u32_u24 v72, {10*7680}, v3
    v_add_u32 v72, v72, v1
    s_mul_i32 s3, s8, {80*7680}
    s_lshl_b32 s7, s13, 7
    s_add_u32 s3, s3, s7
    s_mov_b32 s46, {80*7680}
    s_movk_i32 s57, 7680
    v_mul_u32_u24 v74, 20, v3
    s_mul_i32 s7, s8, 160
    v_add_u32 v74, s7, v74
    s_getpc_b64 s[60:61]
    L_pc0:
    s_add_u32 s60, s60, L_cA-L_pc0
    s_addc_u32 s61, s61, 0
    s_waitcnt lgkmcnt(0)
    s_add_u32 s44, s36, s3
    s_addc_u32 s45, s37, 0
    global_load_dwordx4 v[82:85], v74, s[34:35]
    global_load_dword v86, v74, s[34:35] offset:16
    s_cmp_lt_u32 s10, 80
    s_cbranch_scc0 L_cA''')
    A('L_load10:\ns_mov_b32 s56, 0')
    for s in range(10):
        A(f'buffer_load_dwordx4 {vr(W0+4*s,4)}, v72, s[44:47], s56 offen nt')
        if s < 9: A('s_add_u32 s56, s56, s57')
    A('s_setpc_b64 s[60:61]')
    A('L_strm:')

    NPOOL = 512 - 64*SG
    SL = lambda i, t: 8 + (i*3 + t)*4
    G0_ = 128; Q0 = 140; D0_ = 152; F = 164
    S = [v(G0_+g) for g in range(SG)]
    VL = 'v134'; X0_ = 'v135'; X1_ = 'v136'; X2_ = 'v137'; X3_ = 'v138'; X4_ = 'v139'
    if PRIO: A('s_setprio 1')
    A(f'''v_mul_u32_u24 v4, 384, v3
    s_mul_i32 s3, s5, 12582912
    s_add_u32 s3, s3, {28672*384}
    s_lshl3_add_u32 s7, s6, s4
    s_mul_i32 s57, s7, {3072 if IL else SG*3072}
    s_sub_u32 s57, s57, {4*(3072 if IL else SG*3072)}
    s_mov_b32 s56, s57
    v_add_u32 v3, v1, v4
    s_mov_b32 s46, 1572864
    s_mov_b32 s50, 1572864
    s_waitcnt lgkmcnt(0)
    s_add_u32 s44, s18, s3
    s_addc_u32 s45, s19, 0
    s_add_u32 s48, s20, s3
    s_addc_u32 s49, s21, 0''')
    def ld(reg, srd, so, t, throttle=True):
        A(f'buffer_load_dwordx4 {vr(reg,4)}, v3, {srd}, {so} offen offset:{t*128} nt')
        if throttle: A(f's_waitcnt vmcnt({T})')
    KS = 's[44:47]'; VS = 's[48:51]'
    if FB:
        A('s_sub_u32 s13, s2, 96')
        if FB >= 2: A('s_cselect_b32 s13, 0, s13')
        A('s_cmp_lt_u32 s13, 80\ns_cbranch_scc0 L_nb0\ns_barrier\nL_nb0:')
    n = 0
    for g in range(SG):
        for t in range(3):
            n += 1
            ld(SL(g, t), KS, 's56', t, throttle=(n > T+1))
            if n == T+1:
                for r in S: A(f'v_mov_b32 {r}, 0')
                masks(['v4', 'v5', 'v6', 'v7'], 'v2', X0_, X1_)
                A(f's_lshl_b32 s3, s5, 7\ns_add_u32 s3, s3, {R_TK}\ns_add_u32 s52, s42, s3\ns_addc_u32 s53, s43, 0')
                A(f's_cmp_lt_u32 s2, 96\ns_movk_i32 s10, {XA}\ns_cselect_b32 s10, {XB}, s10\ns_sub_u32 s10, {NPOOL}, s10')
                if FB: A(f'v_mov_b32 v0, 0\ns_cmp_lt_u32 s13, 80\ns_cbranch_scc1 L_nb1\ns_barrier\nL_nb1:\ns_waitcnt vmcnt({T})')
                else: A(f'v_mov_b32 v0, 0\ns_barrier\ns_waitcnt vmcnt({T})')
        if g < SG-1: A(f's_add_u32 s56, s56, {196608 if IL else 3072}')
    for g in range(SG):
        for t in range(3): ld(SL(SG+g, t), VS, 's57', t, throttle=not (g == SG-1 and t == 2))
        if g < SG-1: A(f's_add_u32 s57, s57, {196608 if IL else 3072}')
    stamp(1)
    if PRIO: A('s_setprio 0')
    lds_wait_ge(L_CQ, 1, 'v0', X0_, sleep=2)
    A(f'ds_read_b64 v[136:137], v0 offset:{L_TB}')
    tick = 's_mov_b32 s12, 1\ns_atomic_add s12, s[52:53], 0 glc'
    if XAT: tick += '\ns_mov_b32 s62, 1\ns_atomic_add s62, s[52:53], 0x80000 glc\ns_mov_b32 s63, 1\ns_atomic_add s63, s[52:53], 0x88000 glc'
    for t in range(3): A(f'ds_read_b128 {vr(Q0+4*t,4)}, v1 offset:{L_Q + 128*t}')
    stamp(2)
    A(f's_waitcnt vmcnt({3*SG}) lgkmcnt(0)\nv_mov_b32 v1, 1\nv_readfirstlane_b32 s14, v136\nv_readfirstlane_b32 s15, v137')
    A(tick)
    for t in range(3):
        for d in range(4):
            for g in range(SG):
                A(f'v_dot2c_f32_bf16 {S[g]}, v{SL(g,t)+d}, v{Q0+4*t+d}')
    allred8(S)
    round_list(S, [X0_, X1_, X2_])
    for r in S: A(f'v_mul_f32 {r}, 0x3d93cd3a, {r}')
    round_list(S, [X0_, X1_, X2_])
    A(f'v_max3_f32 {X0_}, {S[0]}, {S[1]}, {S[2]}')
    for g in range(3, SG): A(f'v_max_f32 {X0_}, {X0_}, {S[g]}')
    red_hi([X0_], 'v_max_f32')
    A(f'v_readlane_b32 s8, {X0_}, 63')
    def take(X, last):
        A(f's_waitcnt lgkmcnt(0)\ns_mov_b32 s11, s12\ns_cmp_lt_u32 s11, {NPOOL}\ns_cbranch_scc0 {last}')
        A(f's_mul_i32 s54, s11, 3072\ns_add_u32 s54, s54, {64*SG*3072}')
        if TD < 3: A(f's_waitcnt vmcnt({TD})')
        for t in range(3): ld(SL(X, t), KS, 's54', t, throttle=False)
        for t in range(3): ld(SL(X+1, t), VS, 's54', t, throttle=False)
        A(f's_waitcnt vmcnt(6)')
    def nexttick():
        Lk = lab('nt')
        A(f's_movk_i32 s12, {NPOOL}\ns_cmp_lt_u32 s11, s10\ns_cbranch_scc0 {Lk}\n{tick}\n{Lk}:')
    for r in S: A(f'v_subrev_f32 {r}, s8, {r}')
    for r in S: A(f'v_mul_f32 {r}, {H(LOG2E)}, {r}')
    for r in S: A(f'v_exp_f32 {r}, {r}')
    A(f'v_add_f32 {VL}, {S[0]}, {S[1]}')
    for g in range(2, SG): A(f'v_add_f32 {VL}, {VL}, {S[g]}')
    for r in S: A(f'v_cvt_pk_bf16_f32 {r}, {r}, {r}')
    stamp(3)
    _e0 = len(A.L)
    A(f'''v_and_b32 v61, 7, v2
    v_lshlrev_b32 v60, 3, v61
    v_lshlrev_b32 v62, 5, v61
    v_and_b32 v63, 16, v2
    s_mul_i32 s3, s4, 768
    v_add3_u32 v56, v62, v63, s3
    v_lshrrev_b32 v62, 5, v2
    v_lshl_add_u32 v56, v62, 3, v56
    s_mul_i32 s3, s59, 896
    s_add_u32 s3, s3, {R_O}
    v_lshl_add_u32 v57, v2, 4, s3
    s_and_b32 s9, s14, 0xffff
    v_mov_b32 v62, 0xffff
    v_lshlrev_b32 v58, 4, v2
    v_lshlrev_b32 v61, 2, v61
    s_lshl_b32 s3, s4, 3
    v_mov_b32 v59, s3
    s_waitcnt vmcnt(3)''')
    def mf(slot, first=False, waits=False):
        for t in range(3):
            if waits: A(f's_waitcnt vmcnt({2-t})')
            c = '0' if first else vr(D0_+4*t, 4)
            A(f'v_mfma_f32_16x16x32_bf16 {vr(D0_+4*t,4)}, {vr(F,4)}, {vr(SL(slot,t),4)}, {c}')
    for g in range(SG):
        for t in range(4): A(f'v_and_b32 v{F+t}, {S[g]}, v{4+t}')
        if g < SG-1: mf(SG+g, first=(g == 0))
    take(0, 'L_lastS')
    mf(2*SG-1)
    A('s_branch L_loopA')
    A('L_loop:')
    for X, Y, nm, pv in ((0, 2, 'A', 'B'), (2, 0, 'B', 'A')):
        take(X, f'L_last{pv}')
        mf(Y+1)
        A(f'L_loop{nm}:')
        if TKW >= 3:
            if TKW < 6: A(f's_waitcnt vmcnt({TKW})')
            nexttick()
        A(f'v_mov_b32 {X0_}, 0\nv_mov_b32 {X1_}, 0\ns_waitcnt vmcnt(3)')
        for t in range(3):
            for d in range(0, 4, 2):
                A(f'v_dot2c_f32_bf16 {X0_}, v{SL(X,t)+d}, v{Q0+4*t+d}\nv_dot2c_f32_bf16 {X1_}, v{SL(X,t)+d+1}, v{Q0+4*t+d+1}')
        A(f'v_add_f32 {X0_}, {X0_}, {X1_}')
        allred8([X0_])
        A(f'''v_cvt_pk_bf16_f32 {X0_}, {X0_}, {X0_}
        v_and_b32 {X0_}, 0xffff0000, {X0_}
        v_mul_f32 {X0_}, 0x3d93cd3a, {X0_}
        v_cvt_pk_bf16_f32 {X0_}, {X0_}, {X0_}
        v_and_b32 {X0_}, 0xffff0000, {X0_}
        v_cmp_lt_f32 vcc, s8, {X0_}
        s_cbranch_vccz L_nm{nm}
        s_call_b64 s[60:61], L_newmax
        L_nm{nm}:
        v_subrev_f32 {X0_}, s8, {X0_}
        v_mul_f32 {X0_}, {H(LOG2E)}, {X0_}
        v_exp_f32 {X0_}, {X0_}
        v_add_f32 {VL}, {VL}, {X0_}
        v_cvt_pk_bf16_f32 {X0_}, {X0_}, {X0_}''')
        for t in range(4): A(f'v_and_b32 v{F+t}, {X0_}, v{4+t}')
        if TKW < 3:
            A(f's_waitcnt vmcnt({TKW})')
            nexttick()
    A('s_branch L_loop')
    A('L_newmax:')
    A(f'v_mov_b32 {X1_}, {X0_}')
    red_hi([X1_], 'v_max_f32')
    A(f'v_mov_b32 {X2_}, s8\nv_readlane_b32 s8, {X1_}, 63\nv_subrev_f32 {X2_}, s8, {X2_}\nv_mul_f32 {X2_}, {H(LOG2E)}, {X2_}\nv_exp_f32 {X2_}, {X2_}')
    A(f'v_mul_f32 {VL}, {VL}, {X2_}')
    for i in range(12): A(f'v_mul_f32 v{D0_+i}, v{D0_+i}, {X2_}')
    A('s_setpc_b64 s[60:61]')
    A('L_post:')
    stamp(4)
    A(f'v_mov_b32 v133, s8')
    red_hi([VL])
    A(f'''s_lshl_b64 exec, 1, 63
    ds_write2_b32 v59, v133, {VL} offset0:{(L_ST2 - 32)//4} offset1:{(L_ST2 - 32)//4 + 1}
    ds_add_rtn_u32 v143, v0, v1 offset:{L_CSTAT}
    s_mov_b64 exec, -1
    ds_read_b64 v[144:145], v60 offset:{L_ST2}
    s_waitcnt lgkmcnt(0)
    v_readlane_b32 s3, v143, 63
    v_mov_b32 v146, v144
    s_cmp_eq_u32 s3, 7
    s_cbranch_scc0 L_postx''')
    allred8(['v146'], 'v_max_f32')
    A(f'v_sub_f32 v144, v144, v146\nv_mul_f32 v144, {H(LOG2E)}, v144\nv_exp_f32 v144, v144\nv_mul_f32 v147, v144, v145')
    allred8(['v147'])
    A(f's_mov_b64 exec, 0xff\nds_write_b32 v61, v144 offset:{L_F}\nds_write_b64 v0, v[146:147] offset:{L_F+32}\ns_mov_b64 exec, -1')
    A('L_postx:')
    stamp(5)
    A('s_setpc_b64 s[60:61]')
    for nm, slot in (('S', 2*SG-1), ('A', 1), ('B', 3)):
        A(f'L_last{nm}:\ns_call_b64 s[60:61], L_post')
        mf(slot, waits=True)
        if nm != 'B': A('s_branch L_epi')
    A('L_epi:')
    stamp(6)
    for t in range(3):
        d = D0_ + 4*t
        A(f'v_permlane32_swap_b32 v{d}, v{d+2}\nv_permlane32_swap_b32 v{d+1}, v{d+3}')
    for t in range(3):
        d = D0_ + 4*t
        A(f'v_add_f32 v{d}, v{d+2}, v{d} row_ror:8 {DPPF}\nv_add_f32 v{d+1}, v{d+3}, v{d+1} row_ror:8 {DPPF}')
    set_exec(0x00ff00ff, 0x00ff00ff)
    for t in range(3): A(f'ds_write_b64 v56, {vr(D0_+4*t,2)} offset:{L_OS - 4*768 + 256*t}')
    A(f's_mov_b64 exec, 1\nds_add_rtn_u32 v6, v0, v1 offset:{L_CO}')
    set_exec(0xffffffff, 0x1ffff)
    A(f'ds_read_b128 v[100:103], v0 offset:{L_F}\nds_read_b128 v[104:107], v0 offset:{L_F+16}\nds_read_b64 v[108:109], v0 offset:{L_F+32}\nv_mov_b32 v110, s14\nv_mov_b32 v111, s15')
    for w in range(8): A(f'ds_read_b128 {vr(64+4*w,4)}, v58 offset:{L_OS + 768*w}')
    A('s_mov_b32 exec_hi, 0xffff\ns_waitcnt lgkmcnt(0)\nv_readfirstlane_b32 s3, v6')
    def fsel(w): return f'{vr(100+(w&~1),2)}', (w & 1)
    for w in (0, 4):
        fr, hi = fsel(w)
        for h2 in (0, 2): A(f'v_pk_mul_f32 {vr(64+4*w+h2,2)}, {vr(64+4*w+h2,2)}, {fr} op_sel:[0,{hi}] op_sel_hi:[1,{hi}]')
    for k in (1, 2, 3):
        for base in (0, 4):
            fr, hi = fsel(base+k)
            for h2 in (0, 2): A(f'v_pk_fma_f32 {vr(64+4*base+h2,2)}, {vr(64+4*(base+k)+h2,2)}, {fr}, {vr(64+4*base+h2,2)} op_sel:[0,{hi},0] op_sel_hi:[1,{hi},1]')
    A('v_pk_add_f32 v[64:65], v[64:65], v[80:81]\nv_pk_add_f32 v[66:67], v[66:67], v[82:83]')
    A('v_cvt_pk_bf16_f32 v64, v64, v65\nv_cvt_pk_bf16_f32 v66, v66, v67\nv_lshl_or_b32 v108, v64, 16, s9\nv_bfi_b32 v109, v62, s9, v64\nv_lshl_or_b32 v110, v66, 16, s9\nv_bfi_b32 v111, v62, s9, v66')
    A('s_cmp_eq_u32 s3, 7\ns_cbranch_scc0 L_fin\ns_mov_b32 exec_hi, 0x1ffff')
    A(f'global_store_dwordx4 v57, v[108:111], s[42:43] sc1\ns_mov_b64 exec, 1\nds_add_u32 v0, v1 offset:{L_CO}')
    stamp(7)
    A('s_branch L_fin')
    if SG < 5:
        import re as _re
        for _k in range(_e0, len(A.L)):
            A.L[_k] = _re.sub(r'\bv(5[6-9]|6[0-3])\b', lambda m: 'v%d' % (int(m.group(1)) + 56), A.L[_k])

    A('L_ctrl:')
    A('L_rest:\ns_cmp_ge_u32 s10, 120\ns_cselect_b32 s12, 1, 0\ns_cselect_b32 s7, 40, 0\ns_sub_u32 s13, s10, 60\ns_sub_u32 s13, s13, s7\ns_lshl2_add_u32 s8, s12, s4\ns_branch L_rest2')
    def calc_t(dst):
        A(f's_and_b32 s3, s2, 7\ns_mul_i32 s3, s3, 3\ns_lshr_b32 s7, s2, 5\ns_add_u32 s3, s3, s7\ns_lshl_b32 s3, s3, 2\ns_bfe_u32 s7, s2, 0x20003\ns_add_u32 {dst}, s3, s7')
    def cstart(bar=True):
        Lk = lab('ci')
        A(f'''v_mov_b32 v0, 0
        v_lshlrev_b32 v75, 4, v2
        v_lshlrev_b32 v80, 2, v2
        v_mov_b32 v79, 1
        s_cmp_eq_u32 s4, 0
        s_cbranch_scc0 {Lk}
        ds_write_b32 v80, v0 offset:1024
        {Lk}:
        s_waitcnt lgkmcnt(0)''')
        if bar: A('s_barrier')
        A(f's_load_dwordx2 s[14:15], s[42:43], {R_E}')
    A('L_cN:')
    cstart()
    A(f'''s_getpc_b64 s[8:9]
    L_pc1:
    s_sub_u32 s8, s8, L_pc1-L_base
    s_subb_u32 s9, s9, 0
    s_lshr_b32 s3, s2, 3
    s_lshl1_add_u32 s3, s3, s4
    s_and_b32 s3, s3, 15
    s_lshl_b32 s3, s3, 10
    v_add_u32 v76, s3, v75
    v_min_u32 v76, L_end-L_base-12, v76
    global_load_dwordx4 v[160:163], v76, s[8:9] {PFF}
    s_waitcnt vmcnt(0) lgkmcnt(0)''')
    tags()
    A('s_branch L_hopB')
    A('L_cA:')
    cstart()
    masks(['v4', 'v5', 'v6', 'v7'], 'v2', 'v60', 'v61')
    A(f'''s_mul_i32 s11, s12, 5120
    s_lshl_b32 s7, s13, 8
    s_add_u32 s11, s11, s7
    s_add_u32 s11, s11, {R_MA}
    s_mov_b32 s54, 1
    s_cmp_lt_u32 s10, 80
    s_cbranch_scc1 L_cA1
    s_mul_i32 s11, s12, 15360
    s_add_u32 s11, s11, s7
    s_add_u32 s11, s11, {R_MOD}
    s_mov_b32 s54, 3
    s_setprio 0
    s_waitcnt vmcnt(0)
    s_call_b64 s[60:61], L_load10
    L_cA1:
    s_waitcnt vmcnt(10)''')
    C = [v(88+i) for i in range(10)]; E = [v(100+i) for i in range(10)]
    for i in range(5): A(f'v_lshlrev_b32 {C[2*i]}, 16, v{82+i}\nv_and_b32 {C[2*i+1]}, 0xffff0000, v{82+i}')
    for i in range(10): A(f'v_mul_f32 {E[i]}, {H(-LOG2E)}, {C[i]}')
    for i in range(10): A(f'v_exp_f32 {E[i]}, {E[i]}')
    for i in range(10): A(f'v_add_f32 {E[i]}, 1.0, {E[i]}')
    RC = [v(112+i) for i in range(10)]; QQ = [v(124+i) for i in range(10)]; RR = [v(136+i) for i in range(10)]
    for i in range(10): A(f'v_rcp_f32 {RC[i]}, {E[i]}')
    for i in range(10): A(f'v_mul_f32 {QQ[i]}, {RC[i]}, {C[i]}')
    for i in range(10): A(f'v_fma_f32 {RR[i]}, -{QQ[i]}, {E[i]}, {C[i]}')
    for i in range(10): A(f'v_fmac_f32 {QQ[i]}, {RR[i]}, {RC[i]}')
    for i in range(10): A(f'v_div_fixup_f32 {QQ[i]}, {QQ[i]}, {E[i]}, {C[i]}')
    for i in range(10): A(f'v_cvt_pk_bf16_f32 v{X0+i}, {QQ[i]}, {QQ[i]}')
    for i in range(4): A(f'v_mov_b32 v{D0+i}, 0')
    A('s_waitcnt lgkmcnt(0)')
    tags()
    stamp(1)
    A('s_waitcnt vmcnt(0)\ns_branch L_mm10')
    W1 = 88; X1r = 128
    A('L_cB:')
    A(f'''v_mul_u32_u24 v72, {10*12288}, v3
    s_mul_i32 s3, s4, {160*12288}
    s_mul_i32 s7, s5, 384
    s_add_u32 s3, s3, s7
    s_lshr_b32 s12, s2, 5
    s_lshl_b32 s7, s12, 7
    s_add_u32 s3, s3, s7
    v_add_u32 v72, v72, v1
    s_mov_b32 s46, {160*12288}
    s_movk_i32 s57, 12288
    v_mul_u32_u24 v73, 20, v2
    v_min_u32 v74, 39, v2
    s_mul_i32 s13, s4, 320
    v_lshl_add_u32 v74, v74, 3, s13''')
    cstart(FB < 2)
    A(f'''s_add_u32 s44, s22, s3
    s_addc_u32 s45, s23, 0
    global_load_dwordx4 v[140:143], v73, s[16:17]
    global_load_dword v144, v73, s[16:17] offset:16
    global_load_dwordx2 v[146:147], v74, s[16:17]
    s_call_b64 s[60:61], L_load10
    s_mov_b32 s56, {80*12288}''')
    for k in range(10):
        A(f'buffer_load_dwordx4 {vr(W1+4*k,4)}, v72, s[44:47], s56 offen nt')
        if k < 9: A('s_add_u32 s56, s56, s57')
    if FB == 2: A('s_barrier')
    A(f'''s_or_b32 s3, s12, s4
    s_cbranch_scc1 L_notk
    s_lshl_b32 s3, s5, 7
    v_mov_b32 v60, s3
    s_mov_b64 exec, 1
    global_store_dword v60, v0, s[42:43] offset:{R_TK} sc1
    s_mov_b64 exec, -1
    L_notk:''')
    masks(['v4', 'v5', 'v6', 'v7'], 'v2', 'v64', 'v65')
    A(f'''s_mul_i32 s11, s5, 768
    s_lshl_b32 s7, s12, 8
    s_add_u32 s11, s11, s7
    s_add_u32 s11, s11, {R_Q}
    v_lshlrev_b32 v74, 1, v74
    s_mov_b32 s54, 3
    v_add_u32 v76, {R_MA}, v74
    v_add_u32 v77, {R_MA + 5120}, v74
    v_add_u32 v78, {R_MA + 10240}, v74
    v_add_u32 v81, {R_MA + 15360}, v74
    v_mul_u32_u24 v73, 40, v3
    s_lshl_b32 s3, s13, 1
    v_add_u32 v73, s3, v73
    s_waitcnt vmcnt(20) lgkmcnt(0)''')
    tags()
    XA = [v(150+i) for i in range(10)]
    for i in range(5):
        A(f'v_lshlrev_b32 {XA[2*i]}, 16, v{140+i}\nv_and_b32 {XA[2*i+1]}, 0xffff0000, v{140+i}')
    XN = ['v160', 'v161', 'v162', 'v163']
    A('v_lshlrev_b32 v160, 16, v146\nv_and_b32 v161, 0xffff0000, v146\nv_lshlrev_b32 v162, 16, v147\nv_and_b32 v163, 0xffff0000, v147')
    A(f'v_add_f32 v60, {XA[0]}, {XA[1]}')
    for i in range(2, 10): A(f'v_add_f32 v60, v60, {XA[i]}')
    allred8(['v60']); red_hi(['v60'])
    A(f'v_mul_f32 v60, {H(1/640)}, v60\nv_readlane_b32 s8, v60, 63')
    for i in range(10): A(f'v_subrev_f32 {XA[i]}, s8, {XA[i]}')
    A(f'v_mul_f32 v61, {XA[0]}, {XA[0]}')
    for i in range(1, 10): A(f'v_fmac_f32 v61, {XA[i]}, {XA[i]}')
    allred8(['v61']); red_hi(['v61'])
    A(f'v_mul_f32 v61, {H(1/640)}, v61')
    round_list(['v60', 'v61'], ['v62'])
    A(f'v_add_f32 v61, {H(1e-5)}, v61')
    round_list(['v61'], ['v62'])
    A('v_sqrt_f32 v61, v61')
    round_list(['v61'], ['v62'])
    A('v_rcp_f32 v61, v61\nv_readlane_b32 s8, v60, 63\nv_readlane_b32 s9, v61, 63')
    for r in XN: A(f'v_subrev_f32 {r}, s8, {r}')
    round_list(XN, ['v62', 'v63'])
    for r in XN: A(f'v_mul_f32 {r}, s9, {r}')
    round_list(XN, ['v62', 'v63'])
    set_exec(0xffffffff, 0xff)
    stamp(1)
    A(f's_waitcnt vmcnt({HAW})')
    stamp(2)
    G = 128
    L = lab('ha')
    A(f'{L}:')
    for k in range(8): A(f'global_load_dwordx4 {vr(G+4*k,4)}, {["v76","v77","v78","v81"][k%4]}, s[42:43] offset:{2560*(k//4)} sc1')
    if FB == 3: A('s_cmp_eq_u32 s56, 0\ns_cbranch_scc1 L_nb3\ns_mov_b32 s56, 0\ns_barrier\nL_nb3:')
    A('s_waitcnt vmcnt(0)')
    untag(G, 32)
    ortree([v(G+i) for i in range(32)], 'v60')
    tag_end('v60', L, SLA)
    stamp(3)
    for a, b in ((0,1),(2,3),(0,2)):
        for base in (0, 4):
            for h2 in (0, 2): A(f'v_pk_add_f32 {vr(G+4*(base+a)+h2,2)}, {vr(G+4*(base+a)+h2,2)}, {vr(G+4*(base+b)+h2,2)}')
    SA = [v(G+i) for i in range(4)]; CA = [v(G+16+i) for i in range(4)]
    TT = ['v60', 'v61', 'v62', 'v63']
    round_list(CA + SA, TT)
    for r in CA: A(f'v_add_f32 {r}, 1.0, {r}')
    round_list(CA, TT)
    for a, b in zip(CA, XN): A(f'v_mul_f32 {a}, {a}, {b}')
    round_list(CA, TT)
    for a, b in zip(CA, SA): A(f'v_add_f32 {a}, {a}, {b}')
    for r in CA: A(f'v_cvt_pk_bf16_f32 {r}, {r}, {r}')
    A(f'ds_write_b128 v74, v[144:147] offset:{L_HB}\ns_mov_b64 exec, -1')
    for k in range(5): A(f'ds_read_b64 {vr(X1r+2*k,2)}, v73 offset:{L_HB + 320 + 8*k}')
    for k in range(5): A(f'ds_read_b64 {vr(X0+2*k,2)}, v73 offset:{L_HB + 8*k}')
    A('s_waitcnt lgkmcnt(0)')
    for s in range(10):
        F = F0 + 4*(s & 1)
        for t in range(4): A(f'v_and_b32 v{F+t}, v{X1r+s}, v{4+t}')
        c = '0' if s == 0 else vr(D0, 4)
        A(f'v_mfma_f32_16x16x32_bf16 {vr(D0,4)}, {vr(F,4)}, {vr(W1+4*s,4)}, {c}')
    A('L_mm10:')
    for s in range(10):
        F = F0 + 4*(s & 1)
        for t in range(4): A(f'v_and_b32 v{F+t}, v{X0+s}, v{4+t}')
        A(f'v_mfma_f32_16x16x32_bf16 {vr(D0,4)}, {vr(F,4)}, {vr(W0+4*s,4)}, {vr(D0,4)}')
    A('''v_and_b32 v65, 16, v2
    v_lshrrev_b32 v66, 5, v2
    v_lshl_add_u32 v64, v1, 1, v65
    v_lshl_add_u32 v64, v66, 3, v64
    s_lshl_b32 s3, s4, 8
    v_add_u32 v64, s3, v64
    v_add_u32 v67, s11, v80
    s_and_b32 s9, s14, 0xffff''')
    A(f'v_permlane32_swap_b32 v60, v62\nv_permlane32_swap_b32 v61, v63')
    A(f'v_add_f32 v60, v62, v60 row_ror:8 {DPPF}\nv_add_f32 v61, v63, v61 row_ror:8 {DPPF}')
    set_exec(0x00ff00ff, 0x00ff00ff)
    A(f'''ds_write_b64 v64, v[60:61] offset:{L_MS}
    s_mov_b64 exec, 1
    ds_add_rtn_u32 v66, v0, v79 offset:{L_CM}
    s_mov_b64 exec, -1
    ds_read2st64_b32 v[68:69], v80 offset0:{L_MS//256} offset1:{L_MS//256+1}
    ds_read2st64_b32 v[70:71], v80 offset0:{L_MS//256+2} offset1:{L_MS//256+3}
    s_waitcnt lgkmcnt(0)
    v_readfirstlane_b32 s3, v66
    s_cmp_eq_u32 s54, 1
    s_cbranch_scc1 L_two
    v_pk_add_f32 v[68:69], v[68:69], v[70:71]
    L_two:
    v_add_f32 v68, v68, v69
    v_cvt_pk_bf16_f32 v69, v68, v68
    v_bfi_b32 v68, 15, s14, v68
    v_lshl_or_b32 v69, v69, 16, s9
    s_cmp_lt_u32 s2, 96
    s_cselect_b64 vcc, -1, 0
    v_cndmask_b32 v68, v68, v69, vcc
    s_cmp_eq_u32 s3, s54
    s_cbranch_scc0 L_nopub
    global_store_dword v67, v68, s[42:43] sc1
    L_nopub:
    s_setprio 3''')
    stamp(4)
    A('L_hopB:\ns_cmp_eq_u32 s4, 1\ns_cbranch_scc0 L_tail')
    A(f'''s_mul_i32 s3, s5, 768
    s_add_u32 s3, s3, {R_Q}
    v_add_u32 v73, s3, v75
    s_add_u32 s52, s42, s3
    s_addc_u32 s53, s43, 0
    v_mov_b32 v64, s14
    v_mov_b32 v65, s15
    ds_write_b64 v0, v[64:65] offset:{L_TB}
    v_mov_b32 v76, 0x07060302
    v_lshlrev_b32 v74, 3, v2
    s_lshl_b32 s7, s6, 4
    s_add_u32 s52, s52, s7
    s_addc_u32 s53, s53, 0''')
    set_exec(0xffffffff, 0xffff)
    L = lab('hb'); D = lab('hbh')
    A(f'{L}:')
    for k in range(3): A(f's_load_dword s{62+k}, s[52:53], {256*k} glc')
    A(f's_waitcnt lgkmcnt(0)\ns_xor_b32 s62, s62, s14\ns_xor_b32 s63, s63, s14\ns_xor_b32 s64, s64, s14\ns_or_b32 s62, s62, s63\ns_or_b32 s62, s62, s64\ns_and_b32 s62, s62, 0xffff\ns_cbranch_scc0 {D}')
    spin_tail(L, SLB)
    A(f'{D}:')
    stamp(12)
    D = lab('hbd')
    A(f'''global_load_dwordx4 v[84:87], v73, s[42:43] sc1
    s_waitcnt vmcnt(0)
    v_bitop3_b32 v60, v84, v85, s14 bitop3:0x7e
    v_bitop3_b32 v61, v86, v87, s14 bitop3:0x7e
    v_or_b32 v60, v60, v61
    v_lshlrev_b32 v60, 16, v60
    v_cmp_ne_u32 vcc, 0, v60
    s_cbranch_vccz {D}''')
    spin_tail(L, SLB)
    A(f'''{D}:
    v_perm_b32 v84, v85, v84, v76
    v_perm_b32 v85, v87, v86, v76
    ds_write_b64 v74, v[84:85] offset:{L_Q}
    s_mov_b64 exec, 1
    ds_add_u32 v0, v79 offset:{L_CQ}
    s_mov_b64 exec, -1''')
    stamp(5)

    def trig_wait(val, L_TRIG=L_TRIG):
        if val <= 0: return
        L = lab('tg'); D = lab('tgd'); W = lab('tgw')
        A(f's_cmp_eq_u32 s4, 3\ns_cbranch_scc0 {W}\ns_lshl_b32 s8, s5, 7\ns_add_u32 s8, s8, {R_TK}\nds_read_b32 v90, v0 offset:{L_TB}\ns_waitcnt lgkmcnt(0)\nv_readfirstlane_b32 s9, v90')
        A(f'{L}:\ns_load_dword s3, s[42:43], s8 glc\ns_waitcnt lgkmcnt(0)\ns_sub_u32 s3, s3, s9\ns_cmp_ge_u32 s3, {val}\ns_cbranch_scc1 {D}')
        spin_tail(L, 4)
        A(f'{D}:\nv_mov_b32 v90, 1\nds_write_b32 v0, v90 offset:{L_TRIG}\n{W}:')
        lds_wait_ge(L_TRIG, 1, 'v0', 'v90', sleep=2)
    def sgate(base, offs, regs, mask):
        L = lab('sg'); D = lab('sgd')
        A(f'{L}:')
        for o, r in zip(offs, regs): A(f's_load_dword s{r}, {base}, {o} glc')
        A('s_waitcnt lgkmcnt(0)')
        A(f's_xor_b32 s3, s{regs[0]}, s14')
        for r in regs[1:len(offs)]: A(f's_xor_b32 s{r}, s{r}, s14\ns_or_b32 s3, s3, s{r}')
        if mask != -1: A(f's_and_b32 s3, s3, {mask}')
        A(f's_cbranch_scc0 {D}')
        spin_tail(L, 0)
        A(f'{D}:')
    def ffn_prefetch():
        if not PFC: return
        Lk = lab('pf')
        A(f'''s_lshr_b32 s8, s2, 3
        s_lshl2_add_u32 s8, s8, s4
        s_cmp_ge_u32 s8, 120
        s_cbranch_scc1 {Lk}
        s_cmp_lt_u32 s8, 40
        s_cselect_b32 s64, s28, s30
        s_cselect_b32 s65, s29, s31
        s_cselect_b32 s9, 0, 40
        s_cmp_lt_u32 s8, 80
        s_cselect_b32 s64, s64, s32
        s_cselect_b32 s65, s65, s33
        s_cselect_b32 s9, s9, 80
        s_movk_i32 s66, 384
        s_cselect_b32 s67, 3072, s66
        s_cselect_b32 s66, s66, 245760
        s_sub_u32 s8, s8, s9
        s_mul_i32 s8, s8, s67
        s_lshl_b32 s8, s8, 4
        s_mul_i32 s9, s6, s66
        s_add_u32 s8, s8, s9
        v_lshrrev_b32 v165, 2, v2
        v_mul_u32_u24 v165, s67, v165
        v_lshl_add_u32 v165, v7, 4, v165
        s_mov_b32 s66, 1966080
        s_mov_b32 s67, 0x20000''')
        lds_wait_ge(L_CSTAT, PFC, 'v0', 'v90', sleep=1)
        set_exec(0x77777777, 0x77777777)
        A(f'buffer_load_dword v166, v165, s[64:67], s8 offen {PFP}\ns_mov_b64 exec, -1\n{Lk}:')
    A('L_tail:')
    A('v_lshrrev_b32 v4, 4, v2\nv_and_b32 v5, 15, v2\nv_lshrrev_b32 v6, 2, v5\nv_and_b32 v7, 3, v2\nv_lshlrev_b32 v7, 3, v7')
    A('s_cmp_ge_u32 s2, 96\ns_cbranch_scc0 L_tailB')
    A('''s_lshr_b32 s13, s10, 3
    s_and_b32 s12, s2, 7
    s_lshl_b32 s12, s12, 1
    s_cmp_ge_u32 s13, 10
    s_cselect_b32 s3, 10, 0
    s_addc_u32 s12, s12, 0
    s_sub_u32 s13, s13, s3''')
    A('s_lshr_b32 s3, s10, 5\ns_lshl_b32 s3, s3, 3\ns_add_u32 s3, s3, s6\ns_bfe_u32 s7, s10, 0x20003\ns_lshl2_add_u32 s10, s3, s7')
    A('s_cmp_lt_u32 s10, 80\ns_cselect_b32 s57, 1, 0\ns_cmp_eq_u32 s4, 1\ns_cselect_b32 s57, s57, 0')
    A(f'''v_and_b32 v100, 1, v2
    v_lshl_add_u32 v100, v100, 2, v4
    s_lshl_b32 s3, s10, 3
    v_add_u32 v100, s3, v100
    v_lshlrev_b32 v101, 2, v100
    v_lshlrev_b32 v100, 1, v100
    v_add_u32 v102, {R_MOD + 5*2560}, v101
    v_add_u32 v101, {R_X1}, v101
    v_lshrrev_b32 v103, 1, v2
    v_mul_u32_u24 v103, 2560, v103
    v_and_b32 v104, 1, v2
    v_lshl_add_u32 v103, v104, 4, v103
    s_lshl_b32 s3, s10, 5
    s_add_u32 s3, s3, {R_DN}
    v_add_u32 v103, s3, v103
    v_add_u32 v104, {32*2560}, v103
    v_add_u32 v105, {64*2560}, v103''')
    B0 = 8; AA = 56; DD = 68
    A(f'''v_lshl_add_u32 v84, v4, 3, v6
    s_mul_i32 s3, s4, 96
    v_add_u32 v84, s3, v84
    v_lshl_add_u32 v84, v84, 7, v7
    v_mul_u32_u24 v91, 896, v3
    v_add_u32 v85, v91, v1
    v_mov_b32 v118, 0x07060302
    s_mul_i32 s3, s4, 2048
    s_add_u32 s3, s3, {L_W + 49152}
    v_lshl_add_u32 v119, v2, 3, s3
    v_lshl_add_u32 v133, v1, 2, s3
    v_lshl_add_u32 v133, v4, 4, v133
    v_lshl_add_u32 v134, v3, 3, s3
    v_lshrrev_b32 v135, 1, v1
    v_add_u32 v135, s3, v135
    s_lshr_b32 s3, s4, 1
    s_lshl1_add_u32 s3, s12, s3
    s_mul_i32 s3, s3, {8*896}
    s_add_u32 s3, s3, {R_O + 768}
    v_add_u32 v91, s3, v91
    s_and_b32 s7, s4, 1
    s_mul_i32 s7, s7, 384
    s_add_u32 s3, s3, s7
    s_sub_u32 s3, s3, 768
    v_add_u32 v85, s3, v85
    v_lshrrev_b32 v86, 5, v2
    v_lshl_add_u32 v86, v86, 4, v5
    v_lshlrev_b32 v86, 5, v86
    v_and_b32 v87, 1, v4
    v_lshl_add_u32 v86, v87, 2, v86
    s_lshl_b32 s3, s4, 3
    v_add_u32 v86, s3, v86
    v_lshlrev_b32 v87, 5, v2
    s_mul_i32 s3, s12, 2560
    s_lshl_b32 s7, s13, 8
    s_add_u32 s3, s3, s7
    s_add_u32 s3, s3, {R_P}
    v_lshl_add_u32 v88, v2, 2, s3
    v_mov_b32 v89, 1
    s_lshl_b32 s3, s10, 5
    s_add_u32 s3, s3, {R_DN}
    s_add_u32 s54, s42, s3
    s_addc_u32 s55, s43, 0
    v_mov_b32 v98, 0xffff''')
    A(f'''s_mul_i32 s3, s12, {384*1280}
    s_lshl_b32 s7, s13, 7
    s_add_u32 s3, s3, s7
    s_add_u32 s44, s24, s3
    s_addc_u32 s45, s25, 0
    s_mov_b32 s46, {384*1280}
    v_mul_u32_u24 v72, 1280, v3
    v_add_u32 v72, v72, v1''')
    SE = 3 - WDEF
    def trread(s):
        for ct in range(4):
            for hf in range(2):
                A(f'ds_read_b64_tr_b16 {vr(B0+(s*4+ct)*4+2*hf,2)}, v84 offset:{L_W + (32*s+4*hf)*128 + 32*ct}')
    if SE:
        A(f's_cmp_eq_u32 s4, 0\ns_cbranch_scc0 L_nodma\ns_movk_i32 s7, {L_W}\ns_setprio {DPRIO}')
        stamp(6)
        L = lab('dma'); L2 = lab('dmo')
        A(f's_mov_b32 s56, 0\n{L2}:\ns_mov_b32 s8, 0\n{L}:\ns_mov_b32 m0, s7\ns_add_u32 s7, s7, 1024\nbuffer_load_dwordx4 v72, s[44:47], s56 offen nt lds\ns_add_u32 s56, s56, 10240\ns_waitcnt vmcnt({TWA})')
        A(f's_add_u32 s8, s8, 1\ns_cmp_lt_u32 s8, {4*SE}\ns_cbranch_scc1 {L}')
        A(f's_add_u32 s7, s7, {4096*WDEF}\ns_add_u32 s56, s56, {40960*WDEF}\ns_cmp_lt_u32 s56, {384*1280}\ns_cbranch_scc1 {L2}')
        A(f's_waitcnt vmcnt(0)\nds_write_b32 v0, v89 offset:{L_WRDY}')
        stamp(7)
        A('L_nodma:')
    A('s_setprio 3')
    if SE:
        lds_wait_ge(L_WRDY, 1, 'v0', 'v90', sleep=8)
        for s in range(SE):
            trread(s)
            A('s_waitcnt lgkmcnt(0)')
    if not WDEF: stamp(8)
    A('s_cmp_eq_u32 s57, 0\ns_cbranch_scc1 L_nofin')
    if not SE: lds_wait_ge(L_CQ, 1, 'v0', 'v90', sleep=8)
    A('global_load_ushort v107, v100, s[38:39]')
    A('v_add_u32 v132, 15360, v102')
    L = lab('gb')
    A(f'{L}:\nglobal_load_dword v120, v102, s[42:43] sc1\nglobal_load_dword v121, v132, s[42:43] sc1\ns_waitcnt vmcnt(0)')
    untag(120, 2)
    ortree(['v120', 'v121'], 'v90')
    tag_end('v90', L, 16)
    A('v_add_f32 v106, v120, v121')
    round_list(['v106'], ['v90'])
    A('L_nofin:')
    if TLB:
        A('s_cmp_eq_u32 s4, 2\ns_cbranch_scc0 L_nowarm')
        if TLB == 1: lds_wait_ge(L_CSTAT, 1, 'v0', 'v90', sleep=2)
        A(f's_mul_i32 s3, s59, 896\ns_add_u32 s3, s3, {R_O}\nv_lshl_add_u32 v90, v2, 7, s3\ns_mov_b64 exec, 0x7f\nglobal_load_dword v167, v90, s[42:43] sc1')
        set_exec(1, 1)
        A('global_load_dword v167, v88, s[42:43] sc1\ns_mov_b64 exec, -1\nL_nowarm:')
    if WDEF:
        A(f's_mul_i32 s7, s4, 12288\ns_add_u32 s7, s7, {L_W + 4096*SE}\ns_mul_i32 s56, s4, 122880\ns_add_u32 s56, s56, {40960*SE}')
    ffn_prefetch()
    for c in range(1, PREP): A(f's_mov_b32 s{15+c}, {c*40960}')
    if CS and not WDEF: lds_wait_ge(L_CSTAT, CS, 'v0', 'v90', sleep=1)
    else: lds_wait_ge(L_CO, 9, 'v0', 'v90', sleep=1)
    if WDEF:
        for k in range(4*WDEF):
            A('s_mov_b32 m0, s7\ns_add_u32 s7, s7, 1024\nbuffer_load_dwordx4 v72, s[44:47], s56 offen nt lds\ns_add_u32 s56, s56, 10240')
        OX = 120
        for s in range(SE, 2):
            A(f's_waitcnt vmcnt({4*(2-s)}) lgkmcnt(0)')
            trread(s)
        if OEARLY < 4: A(f's_waitcnt vmcnt({OEARLY})')
        for s in range(3): A(f'global_load_dwordx4 {vr(OX+4*s,4)}, v85, s[42:43] offset:{128*s} sc1')
        A('global_load_dwordx4 v[108:111], v91, s[42:43] sc1')
        A(f's_waitcnt vmcnt(4) lgkmcnt(0)')
        trread(2)
        stamp(8)
        stamp(9)
        A('s_waitcnt lgkmcnt(0)\ns_branch L_wochk')
    else: stamp(9)
    OX = 120
    if G1:
        L = lab('sw'); D = lab('swd')
        A(f'{L}:\ns_load_dwordx16 s[16:31], s[52:53], 0 glc\ns_load_dwordx4 s[32:35], s[52:53], 64 glc\ns_load_dwordx4 s[44:47], s[52:53], 80 glc\ns_load_dwordx8 s[60:67], s[52:53], 96 glc\ns_waitcnt lgkmcnt(0)')
        A('s_add_u32 s3, s18, s22\ns_add_u32 s7, s26, s30\ns_add_u32 s3, s3, s34\ns_add_u32 s7, s7, s46\ns_add_u32 s3, s3, s62\ns_add_u32 s7, s7, s66\ns_add_u32 s3, s3, s7\ns_lshl_b32 s7, s14, 3')
        A(f's_cmp_eq_u32 s3, s7\ns_cbranch_scc1 {D}')
        spin_tail(L, 0)
        A(f'{D}:')
    else:
        L = lab('wg'); D = lab('wgd')
        set_exec(0x01010101, 0x01010101)
        A(f'{L}:\nglobal_load_dwordx4 v[108:111], v91, s[42:43] sc1\ns_waitcnt vmcnt(0)\nv_cmp_ne_u64 vcc, s[14:15], v[110:111]\ns_bcnt1_i32_b64 s3, vcc\ns_cmp_le_u32 s3, {GATE}\ns_cbranch_scc1 {D}')
        spin_tail(L, 1)
        A(f'{D}:')
    stamp(3)
    if stamps == 1: A('s_mov_b32 s82, s58')
    L = lab('wo'); L2 = lab('wp'); D = lab('woq')
    A(f'{L}:\ns_mov_b64 exec, -1')
    A(f'{L2}:')
    for s in range(3): A(f'global_load_dwordx4 {vr(OX+4*s,4)}, v85, s[42:43] offset:{128*s} sc1')
    A('global_load_dwordx4 v[108:111], v91, s[42:43] sc1')
    A('L_wochk:')
    bt = lambda d, a: f'v_bitop3_b32 {d}, v{OX+a}, v{OX+a+1}, s14 bitop3:0x7e'
    for s in range(3):
        A(f's_waitcnt vmcnt({3-s})\nv_perm_b32 v{136+2*s}, v{OX+4*s+1}, v{OX+4*s}, v118\nv_perm_b32 v{137+2*s}, v{OX+4*s+3}, v{OX+4*s+2}, v118\nds_write_b64 v119, {vr(136+2*s,2)} offset:{512*s}')
        A(bt(f'v{92+2*s}', 4*s) + '\n' + bt(f'v{93+2*s}', 4*s+2))
    A(f'''s_waitcnt vmcnt(0)
    ds_write_b64 v134, v[108:109] offset:1536
    s_mov_b64 s[8:9], exec
    s_mov_b64 exec, -1''')
    for s in range(3): A(f'ds_read_b128 {vr(AA+4*s,4)}, v133 offset:{512*s}')
    A(f'''ds_read_b64 v[142:143], v135 offset:1536
    s_mov_b64 exec, s[8:9]
    v_or3_b32 v90, v92, v93, v94
    v_or3_b32 v95, v95, v96, v97
    v_cmp_ne_u64 s[8:9], v[110:111], s[14:15]
    v_bitop3_b32 v90, v90, v95, v98 bitop3:0xa8
    v_cmp_ne_u32 vcc, 0, v90
    s_or_b64 exec, vcc, s[8:9]
    s_cbranch_scc0 {D}''')
    spin_tail(L2, 0)
    A(f'{D}:\ns_mov_b64 exec, -1\ns_waitcnt lgkmcnt(0)')
    stamp(2)
    if stamps == 1: A('s_sub_u32 s82, s82, s58')
    fac = [f'v_max_f32 v116, v142, v142 quad_perm:[1,0,3,2] {DPPF}',
           f'v_max_f32 v116, v116, v116 quad_perm:[2,3,0,1] {DPPF}',
           f'v_max_f32 v116, v116, v116 row_half_mirror {DPPF}\nv_sub_f32 v116, v142, v116',
           f'v_mul_f32 v116, {H(LOG2E)}, v116\nv_exp_f32 v116, v116',
           f'v_mul_f32 v117, v116, v143',
           f'v_add_f32 v117, v117, v117 quad_perm:[1,0,3,2] {DPPF}',
           f'v_add_f32 v117, v117, v117 quad_perm:[2,3,0,1] {DPPF}',
           f'v_add_f32 v117, v117, v117 row_half_mirror {DPPF}\nv_rcp_f32 v117, v117',
           f'v_mul_f32 v116, v116, v117',
           '\n'.join(f'v_mov_b32 v{112+r}, v116 row_newbcast:{r} row_mask:0x5 bank_mask:0xf' for r in range(2)),
           '\n'.join(f'v_mov_b32 v{112+r}, v116 row_newbcast:{r} row_mask:0x5 bank_mask:0xf' for r in range(2, 4)),
           '\n'.join(f'v_mov_b32 v{112+r}, v116 row_newbcast:{4+r} row_mask:0xa bank_mask:0xf' for r in range(4))]
    k = 0
    for s in range(3):
        for ct in range(4):
            c = '0' if s == 0 else vr(DD+4*ct, 4)
            A(f'v_mfma_f32_16x16x32_bf16 {vr(DD+4*ct,4)}, {vr(AA+4*s,4)}, {vr(B0+(s*4+ct)*4,4)}, {c}')
            A(fac[k]); k += 1
    stamp(10)
    A('s_mov_b32 exec_lo, 0')
    for ct in (0, 2):
        A(f'v_pk_mul_f32 {vr(144+ct,2)}, {vr(DD+4*ct+4,2)}, v[112:113]\nv_pk_fma_f32 {vr(144+ct,2)}, {vr(DD+4*ct+6,2)}, v[114:115], {vr(144+ct,2)}')
    A('s_not_b64 exec, exec')
    for ct in (0, 2):
        A(f'v_pk_mul_f32 {vr(144+ct,2)}, {vr(DD+4*ct,2)}, v[112:113]\nv_pk_fma_f32 {vr(144+ct,2)}, {vr(DD+4*ct+2,2)}, v[114:115], {vr(144+ct,2)}')
    A(f's_mov_b64 exec, -1\nv_add_f32 v{DD}, v144, v145\nv_add_f32 v{DD+8}, v146, v147')
    A(f'ds_write_b32 v86, v{DD} offset:{L_PACC}\nds_write_b32 v86, v{DD+8} offset:{L_PACC + 1024}')
    A(f's_mov_b64 exec, 1\nds_add_rtn_u32 v90, v0, v89 offset:{L_CWO}\ns_mov_b64 exec, -1\nds_read_b128 v[92:95], v87 offset:{L_PACC}\nds_read_b128 v[96:99], v87 offset:{L_PACC+16}')
    A('s_waitcnt lgkmcnt(0)\nv_readfirstlane_b32 s3, v90')
    A('v_pk_add_f32 v[92:93], v[92:93], v[94:95]\nv_pk_add_f32 v[96:97], v[96:97], v[98:99]\nv_pk_add_f32 v[92:93], v[92:93], v[96:97]\nv_add_f32 v92, v92, v93\nv_bfi_b32 v92, 15, s14, v92')
    A('s_cmp_eq_u32 s3, 3\ns_cbranch_scc0 L_wonost\nglobal_store_dword v88, v92, s[42:43] sc1')
    for c in range(1, PREP): A(f'buffer_store_dword v92, v88, s[40:43], s{15+c} offen sc1')
    A('L_wonost:')
    stamp(11)
    A('s_cmp_eq_u32 s57, 0\ns_cbranch_scc1 L_fin')
    L = lab('fx'); D = lab('fxd')
    A(f'{L}:\nglobal_load_dword v20, v101, s[42:43] sc1\ns_waitcnt vmcnt(0)\nv_xor_b32 v21, s14, v20\nv_lshlrev_b32 v21, 16, v21\nv_cmp_ne_u32 vcc, 0, v21\ns_cbranch_vccz {D}')
    spin_tail(L, 1)
    A(f'{D}:')
    def pend_poll(loads, regs, init, tmp, pre_sleep=0):
        n = len(loads)
        M = [f's[{62+2*k}:{63+2*k}]' for k in range(n)]
        for k in range(n): A(f's_mov_b64 {M[k]}, {init}')
        if FREE:
            for k in range(n): A(f'v_not_b32 v{regs[k]}, s14')
        L = lab('pl'); D = lab('pld')
        A(f'{L}:')
        for k in range(n): A(f's_mov_b64 exec, {M[k]}\n{loads[k]}')
        A(f's_mov_b64 exec, {init}')
        for k in range(n):
            r = regs[k]
            if not FREE: A(f's_waitcnt vmcnt({n-1-k})')
            elif k == 0: A(f's_waitcnt vmcnt({CAP*n})' + (f'\ns_sleep {FS}' if FS else ''))
            A(f'v_bitop3_b32 v{tmp}, v{r}, v{r+1}, s14 bitop3:0x7e\nv_bitop3_b32 v{tmp+1}, v{r+2}, v{r+3}, s14 bitop3:0x7e\nv_bitop3_b32 v{tmp}, v{tmp}, v{tmp+1}, 15 bitop3:0xa8\nv_cmp_ne_u32 {M[k]}, 0, v{tmp}')
        A(f's_or_b64 s[8:9], {M[0]}, {M[1]}')
        for k in range(2, n): A(f's_or_b64 s[8:9], s[8:9], {M[k]}')
        A(f's_cbranch_scc0 {D}')
        spin_tail(L, 0)
        A(f'{D}:')
    if G4: sgate('s[54:55]', [2560*((k*96)//G4 + (k*5) % (96//G4)) for k in range(G4)], list(range(16, 32)), 15)
    elif FSL: A(f's_sleep {FSL}')
    pend_poll([f'global_load_dwordx4 {vr(8+4*k,4)}, v{103+k}, s[42:43] sc1' for k in range(3)], [8, 12, 16], '-1', 90)
    untag(8, 12, 28)
    A('''v_pk_add_f32 v[22:23], v[28:29], v[32:33]
    v_pk_add_f32 v[24:25], v[30:31], v[34:35]
    v_pk_add_f32 v[22:23], v[22:23], v[36:37]
    v_pk_add_f32 v[24:25], v[24:25], v[38:39]
    v_permlane32_swap_b32 v22, v24
    v_permlane32_swap_b32 v23, v25
    v_pk_add_f32 v[22:23], v[22:23], v[24:25]
    v_permlane16_swap_b32 v22, v23
    v_add_f32 v26, v22, v23''')
    A(f'v_add_f32 v26, v26, v26 row_ror:2 {DPPF}')
    stamp(12)
    A(f'v_add_f32 v26, v26, v26 row_ror:4 {DPPF}\nv_and_b32 v20, 0xffff0000, v20\nv_add_f32 v26, v26, v26 row_ror:8 {DPPF}')
    A('v_cvt_pk_bf16_f32 v26, v26, v26\nv_and_b32 v26, 0xffff0000, v26\nv_mul_f32 v26, v26, v106\nv_cvt_pk_bf16_f32 v26, v26, v26\nv_and_b32 v26, 0xffff0000, v26')
    A('v_add_f32 v26, v26, v20\nv_cvt_pk_bf16_f32 v26, v26, v26')
    set_exec(0x00030003, 0x00030003)
    A('global_store_short v100, v26, s[38:39]')
    stamp(13)
    A(f's_cmp_eq_u32 s10, 0\ns_cbranch_scc0 L_fin\ns_mov_b64 exec, 1\nv_mov_b32 v40, {R_E}\nv_mov_b32 v42, s14\nv_mov_b32 v43, s15\nglobal_store_dwordx2 v40, v[42:43], s[42:43] sc1')
    A('s_branch L_fin')

    A('L_tailB:')
    lds_wait_ge(L_CQ, 1, 'v0', 'v90', sleep=8)
    calc_t('s12')
    G0 = 8; U0 = 28; WD = 48
    P0 = 100; HA = 100
    A(f'''s_and_b32 s57, s12, 3
    s_mul_i32 s13, s57, 160
    s_mul_i32 s3, s4, 40
    v_lshl_add_u32 v80, v5, 2, s3
    v_add_u32 v81, v80, v4
    v_lshlrev_b32 v85, 1, v81
    v_add_u32 v81, s13, v81
    v_lshlrev_b32 v82, 1, v81
    v_lshlrev_b32 v86, 2, v81
    v_add_u32 v80, s13, v80
    s_add_u32 s44, s42, {R_MOD + 5120}
    s_addc_u32 s45, s43, 0
    s_mov_b32 s46, {2*15360}
    s_movk_i32 s20, 5120
    s_movk_i32 s21, 15360
    s_movk_i32 s22, {15360 + 5120}
    v_mul_u32_u24 v84, 2560, v4
    v_lshl_add_u32 v84, v80, 2, v84
    s_and_b32 s3, s6, {PREP-1}
    s_mul_i32 s3, s3, 40960
    s_add_u32 s3, s3, {R_P}
    s_add_u32 s48, s42, s3
    s_addc_u32 s49, s43, 0
    s_mov_b32 s50, {16*2560}''')
    set_exec(0x03ff03ff, 0x03ff03ff)
    A('global_load_ushort v71, v82, s[16:17]')
    L = lab('mf')
    A(f'{L}:')
    for k, (so, off) in enumerate((('0', 0), ('s21', 0), ('0', 2560), ('s21', 2560), ('s20', 0), ('s22', 0))):
        A(f'buffer_load_dword v{100+k}, v86, s[44:47], {so} offen offset:{off} sc1')
    A('s_waitcnt vmcnt(0)')
    untag(100, 6)
    ortree([v(100+i) for i in range(6)], 'v90')
    tag_end('v90', L, 16)
    for k in range(3): A(f'v_add_f32 v{68+k}, v{100+2*k}, v{101+2*k}')
    round_list(['v68', 'v69', 'v70'], ['v90', 'v91'])
    A('v_lshlrev_b32 v71, 16, v71\nv_add_f32 v70, 1.0, v70')
    round_list(['v70'], ['v90'])
    A(f'''v_mov_b32 v90, 1.0
    ds_write_b16_d16_hi v85, v70 offset:{L_A + 2*LAP}
    ds_write_b16_d16_hi v85, v69 offset:{L_A + 3*LAP}
    ds_write_b16_d16_hi v85, v90 offset:{L_A + 5*LAP}
    s_mov_b64 exec, -1
    v_add_u32 v86, {R_X1}, v86''')
    A(f'''v_mul_u32_u24 v72, 3072, v3
    v_and_b32 v73, 16, v2
    v_lshlrev_b32 v73, {1 if SWZ else 8}, v73
    v_and_b32 v73, 32, v73
    s_and_b32 s3, s4, {1 if SWZ else 0}
    s_lshl_b32 s3, s3, 6
    v_or_b32 v73, s3, v73
    v_xor_b32 v73, v73, v1
    v_add_u32 v72, v72, v73
    s_lshr_b32 s3, s12, 2
    s_lshl_b32 s3, s3, 7
    s_lshl_b32 s7, s57, 2
    s_add_u32 s7, s7, s4
    s_mul_i32 s7, s7, {40*3072}
    s_add_u32 s3, s3, s7
    s_add_u32 s44, s28, s3
    s_addc_u32 s45, s29, 0
    s_mov_b32 s46, {40*3072}
    s_add_u32 s52, s30, s3
    s_addc_u32 s53, s31, 0
    s_mov_b32 s54, {40*3072}
    s_mov_b32 s55, 0x20000
    s_mul_i32 s11, s4, 5120
    s_add_u32 s7, s11, {L_W}''')
    A(f'''v_lshl_add_u32 v87, v4, 3, v6
    v_lshl_add_u32 v87, v87, 7, v7
    v_and_b32 v88, 1, v4
    v_lshrrev_b32 v89, 1, v6
    v_lshl_or_b32 v89, v88, 1, v89
    v_and_b32 v89, {3 if SWZ else 0}, v89
    v_xor_b32 v89, s4, v89
    v_lshl_add_u32 v87, v89, 5, v87
    v_lshl_add_u32 v88, v88, 3, v6
    v_mul_u32_u24 v88, 320, v88
    v_lshrrev_b32 v89, 1, v4
    v_lshl_add_u32 v89, v89, 5, v7
    v_add3_u32 v88, v88, v89, s11
    v_mov_b32 v79, 1''')
    def gu_touch():
        A(f's_lshl_b32 s3, s12, 2\ns_add_u32 s3, s3, s4\ns_mul_i32 s3, s3, 640\ns_add_u32 s3, s3, {R_GU}\nv_lshl_add_u32 v90, v2, 7, s3\ns_mov_b64 exec, 31\nglobal_load_dword v167, v90, s[42:43] sc1')
        if DNW: A(f'v_subrev_u32 v90, {R_GU - R_DN}, v90\nglobal_load_dword v167, v90, s[42:43] sc1')
        A('s_mov_b64 exec, -1')
    for n in range(5):
        A(f'v_add_u32 v90, {64*n}, v2\nv_mul_u32_u24 v91, 3277, v90\nv_lshrrev_b32 v91, 16, v91\nv_mul_u32_u24 v91, 960, v91\nv_lshl_add_u32 v{160+n}, v90, 4, v91')
    A(f's_add_u32 s23, s11, {L_W + 40960}')
    def down_dma():
        for n in range(5):
            A(f's_add_u32 m0, s23, {1024*n}\ns_nop 0\nbuffer_load_dwordx4 v{160+n}, s[44:47], 0 offen nt lds')
    if TLB:
        if TLB == 1: lds_wait_ge(L_CSTAT, 1, 'v0', 'v90', sleep=2)
        A(f's_cmp_eq_u32 s4, 2\ns_cbranch_scc0 L_nowarmB\ns_mul_i32 s3, s59, 896\ns_add_u32 s3, s3, {R_O}\nv_lshl_add_u32 v90, v2, 7, s3\ns_mov_b64 exec, 0x7f\nglobal_load_dword v167, v90, s[42:43] sc1\ns_mov_b64 exec, -1\nL_nowarmB:')
    if WT:
        if WT == 2: lds_wait_ge(L_CSTAT, 1, 'v0', 'v90', sleep=2)
        A(f'''v_mul_u32_u24 v90, 24576, v2
        s_mul_i32 s3, s12, 20480
        v_mov_b32 v91, s3
        s_mov_b64 exec, 31
        buffer_load_dword v167, v90, s[44:47], 0 offen nt
        buffer_load_dword v167, v90, s[52:55], 0 offen nt
        s_mov_b64 exec, 1
        global_load_dword v167, v91, s[32:33] nt
        s_mov_b64 exec, -1''')
    lds_wait_ge(L_CO, 9, 'v0', 'v90', sleep=1)
    stamp(6)
    L = lab('dmb')
    A(f'''s_mov_b32 s56, 0
    {L}:
    s_mov_b32 m0, s7
    s_add_u32 s3, s7, 20480
    buffer_load_dwordx4 v72, s[44:47], s56 offen nt lds
    s_mov_b32 m0, s3
    s_add_u32 s7, s7, 1024
    buffer_load_dwordx4 v72, s[52:55], s56 offen nt lds
    v_xor_b32 v72, {64 if SWZ else 0}, v72
    s_add_u32 s56, s56, {8*3072}
    s_cmp_lt_u32 s56, {40*3072}
    s_cbranch_scc1 {L}''')
    A(f'''s_mul_i32 s3, s12, 20480
    s_mul_i32 s7, s4, 320
    s_add_u32 s3, s3, s7
    s_add_u32 s44, s32, s3
    s_addc_u32 s45, s33, 0
    s_movk_i32 s46, {15*1280 + 320}''')
    A(f'''v_min_u32 v76, 5, v5
    v_mul_u32_u24 v76, {LAP}, v76
    v_lshl_add_u32 v76, v4, 4, v76
    s_andn2_b32 s3, s12, 3
    s_add_u32 s3, s3, s4
    s_lshl_b32 s3, s3, 2
    s_add_u32 s3, s3, s57
    s_mul_i32 s3, s3, 640
    s_add_u32 s3, s3, {R_GU}
    v_min_u32 v77, 16, v2
    v_lshl_add_u32 v77, v77, 4, s3
    v_and_b32 v78, 7, v2
    v_lshl_add_u32 v78, v4, 3, v78
    v_lshlrev_b32 v78, 4, v78
    v_add_u32 v74, 384, v78
    v_cmp_eq_u32 vcc, 8, v2
    v_mov_b32 v90, 256
    v_cndmask_b32 v78, v78, v90, vcc
    v_cndmask_b32 v74, v74, v90, vcc
    s_mul_i32 s3, s12, 2560
    s_add_u32 s3, s3, {R_GU}
    v_add_u32 v78, s3, v78
    v_add_u32 v74, s3, v74
    v_lshlrev_b32 v92, 6, v5
    v_lshl_add_u32 v92, v4, 4, v92
    s_mul_i32 s3, s12, 2560
    s_mul_i32 s7, s4, 640
    s_add_u32 s3, s3, s7
    s_add_u32 s3, s3, {R_DN}
    v_add_u32 v92, s3, v92
    v_lshrrev_b32 v90, 1, v4
    v_and_b32 v91, 1, v2
    v_cmp_eq_u32 s[62:63], v90, v91
    v_lshrrev_b32 v90, 1, v5
    s_lshl_b32 s11, s14, 3
    s_movk_i32 s20, 10240
    s_movk_i32 s21, 20480
    s_movk_i32 s22, 30720
    s_mov_b32 s52, {GU2}
    s_mov_b32 s13, 0
    v_mov_b32 v93, {H(1/640)}
    v_mov_b32 v135, s14
    v_mov_b32 v139, s14''')
    MS = ['s[24:25]', 's[28:29]', 's[30:31]', 's[32:33]', 's[26:27]']
    for m in range(5):
        A(f'v_cmp_eq_u32 vcc, {m}, v90\ns_and_b64 {MS[m]}, vcc, s[62:63]')
    A('v_cmp_eq_u32 s[34:35], 20, v2')
    A(f's_waitcnt vmcnt({DW})')
    down_dma()
    gu_touch()
    A(f's_waitcnt vmcnt(7)\ns_mov_b64 exec, 1\nds_add_u32 v0, v79 offset:{L_WRDY}\ns_mov_b64 exec, -1')
    stamp(7)
    lds_wait_ge(L_WRDY, 4, 'v0', 'v90', sleep=0)
    for s in range(5):
        for hf in range(2):
            A(f'ds_read_b64_tr_b16 {vr(G0+4*s+2*hf,2)}, v87 offset:{L_W + (32*s+4*hf)*128}')
            A(f'ds_read_b64_tr_b16 {vr(U0+4*s+2*hf,2)}, v87 offset:{L_W + 20480 + (32*s+4*hf)*128}')
    stamp(8)
    stamp(9)
    A('s_mov_b32 s18, 0x03ff03ff\ns_mov_b32 s19, 0x03ff03ff')
    if G2:
        A(f's_mul_i32 s3, s57, 640\ns_mul_i32 s7, s4, 160\ns_add_u32 s3, s3, s7\ns_and_b32 s7, s12, 4\ns_mul_i32 s7, s7, 39\ns_add_u32 s3, s3, s7\ns_add_u32 s54, s48, s3\ns_addc_u32 s55, s49, 0')
        sgate('s[54:55]', [2560*(k*16//G2) for k in range(G2)], [62,63,64,65,66,67,68,69,16,17,23,38,39,56,60,61], 15)
    pend_poll([f'buffer_load_dwordx4 {vr(144+4*i,4)}, v84, s[48:51], {["0","s20","s21","s22"][i]} offen sc1' for i in range(4)], [144+4*i for i in range(4)], 's[18:19]', 90)
    untag(144, 16, P0)
    A(f'''v_pk_add_f32 v[96:97], {vr(P0,2)}, {vr(P0+4,2)}
    v_pk_add_f32 v[98:99], {vr(P0+2,2)}, {vr(P0+6,2)}
    v_pk_add_f32 v[116:117], {vr(P0+8,2)}, {vr(P0+12,2)}
    v_pk_add_f32 v[118:119], {vr(P0+10,2)}, {vr(P0+14,2)}
    v_pk_add_f32 v[96:97], v[96:97], v[116:117]
    v_pk_add_f32 v[98:99], v[98:99], v[118:119]
    v_permlane32_swap_b32 v96, v98
    v_permlane32_swap_b32 v97, v99
    v_pk_add_f32 v[96:97], v[96:97], v[98:99]
    v_permlane16_swap_b32 v96, v97
    v_add_f32 v96, v96, v97
    v_cvt_pk_bf16_f32 v96, v96, v96''')
    stamp(10)
    A('''v_and_b32 v96, 0xffff0000, v96
    v_mul_f32 v96, v96, v68
    v_cvt_pk_bf16_f32 v96, v96, v96
    v_and_b32 v96, 0xffff0000, v96
    v_add_f32 v96, v96, v71
    v_cvt_pk_bf16_f32 v96, v96, v96
    v_and_b32 v96, 0xffff0000, v96
    v_mul_f32 v97, v96, v70''')
    A(f'ds_write_b16_d16_hi v85, v96 offset:{L_A + 4*LAP}\nv_and_b32 v98, 0xffff0000, v97\nds_write_b16_d16_hi v85, v97 offset:{L_A}\nv_sub_f32 v98, v97, v98\nds_write_b16_d16_hi v85, v98 offset:{L_A + LAP}')
    A(f's_mov_b64 exec, 1\nds_add_u32 v0, v79 offset:{L_CA}\ns_mov_b64 exec, -1')
    L = lab('h2'); D = lab('h2d')
    A(f'{L}:\nds_read_b32 v90, v0 offset:{L_CA}')
    for s in range(5): A(f'ds_read_b128 {vr(HA+4*s,4)}, v76 offset:{L_A + 64*s}')
    A(f'L_h2w:\ns_waitcnt lgkmcnt(0)\nv_cmp_gt_u32 vcc, 4, v90\ns_cbranch_vccz {D}')
    spin_tail(L, 0)
    A(f'{D}:')
    for s in range(5):
        if DPOS == 1: A(f's_add_u32 m0, s23, {1024*s}')
        A(f'v_mfma_f32_16x16x32_bf16 v[128:131], {vr(HA+4*s,4)}, {vr(HA+4*s,4)}, {"0" if s==0 else "v[128:131]"}')
        if DPOS == 1: A(f'buffer_load_dwordx4 v{160+s}, s[44:47], 0 offen nt lds')
        A(f'v_mfma_f32_16x16x32_bf16 v[120:123], {vr(HA+4*s,4)}, {vr(G0+4*s,4)}, {"0" if s==0 else "v[120:123]"}')
        A(f'v_mfma_f32_16x16x32_bf16 v[124:127], {vr(HA+4*s,4)}, {vr(U0+4*s,4)}, {"0" if s==0 else "v[124:127]"}')
    A('s_and_b32 s3, s14, 0xffff\nv_or_b32 v96, s3, v96')
    A('s_mov_b64 exec, 0x10ffff')
    A('''v_add_f32 v132, v120, v121
    v_cndmask_b32 v133, v122, v129, s[34:35]
    v_mov_b32 v134, v123
    v_cndmask_b32 v132, v132, v128, s[34:35]
    global_store_dwordx4 v77, v[132:135], s[42:43] ''' + ('' if DUAL else 'sc1') + '''
    v_add_f32 v136, v124, v125
    v_mov_b32 v137, v126
    v_mov_b32 v138, v127
    s_mov_b64 exec, 0xffff
    global_store_dwordx4 v77, v[136:139], s[42:43] offset:384 ''' + ('' if DUAL else 'sc1'))
    copyB = 's_mov_b64 exec, 0xffff\nglobal_store_dwordx4 v77, v[136:139], s[52:53] offset:384 sc1\ns_mov_b64 exec, 0x10ffff\nglobal_store_dwordx4 v77, v[132:135], s[52:53] sc1\ns_mov_b64 exec, 0xff01ff'
    stamp(11)
    def down_tr():
        A('s_mov_b64 exec, -1')
        for s in range(5):
            for hf in range(2):
                A(f'ds_read_b64_tr_b16 {vr(WD+4*s+2*hf,2)}, v88 offset:{L_W + 40960 + 4*hf*320 + 64*s}')
        A('s_mov_b64 exec, 0xff01ff')
    if DPOS == 0: down_tr()
    A('s_mov_b64 exec, 0xff01ff')
    if ACK and not DUAL: A('s_waitcnt vmcnt(0)')
    L = lab('gu'); D = lab('gud')
    D1 = lab('gua')
    def gu_round(base, wait, D=D):
        for k in range(4):
            A(f'global_load_dwordx4 {vr(100+8*k,4)}, v78, {base} offset:{640*k} sc1')
            A(f'global_load_dwordx4 {vr(104+8*k,4)}, v74, {base} offset:{640*k} sc1')
        A(f's_waitcnt vmcnt({wait})')
        A(f'''v_add3_u32 v90, v103, v107, v111
        v_add3_u32 v91, v115, v119, v123
        v_add3_u32 v90, v90, v127, v131
        v_add_u32 v90, v90, v91
        v_cmp_ne_u32 vcc, s11, v90
        s_cbranch_vccz {D}''')
    if DUAL:
        L1 = lab('gf')
        A(f'{L1}:')
        gu_round('s[42:43]', 0, D1)
        A(f's_add_u32 s13, s13, 1\ns_cmp_lt_u32 s13, {DR}\ns_cbranch_scc1 {L1}')
        A(copyB)
    A(f'{L}:')
    gu_round('s[52:53]' if DUAL else 's[42:43]', 0)
    spin_tail(L, 0)
    if DUAL: A(f'{D1}:')
    A(f'{D}:')
    stamp(13)
    if DPOS == 1: down_tr()
    A('s_cmp_lt_u32 s12, 4\ns_cbranch_scc0 L_nox1\ns_mov_b64 exec, s[18:19]\nglobal_store_dword v86, v96, s[42:43] sc1\ns_mov_b64 exec, 0xff01ff\nL_nox1:')
    A(f'''v_pk_add_f32 v[140:141], v[100:101], v[108:109]
    v_pk_add_f32 v[142:143], v[116:117], v[124:125]
    v_pk_add_f32 v[144:145], v[104:105], v[112:113]
    v_pk_add_f32 v[140:141], v[140:141], v[142:143]
    v_pk_add_f32 v[146:147], v[120:121], v[128:129]
    v_readlane_b32 s8, v140, 8
    v_readlane_b32 s9, v141, 8
    v_add_f32 v148, v102, v110
    v_add_f32 v149, v118, v126
    v_mul_f32 v94, s9, v93
    v_mul_f32 v95, s8, v93
    v_add_f32 v150, v106, v114
    v_fma_f32 v95, -v94, v94, v95
    v_add_f32 v151, v122, v130
    v_max_f32 v95, 0, v95
    v_pk_add_f32 v[144:145], v[144:145], v[146:147]
    v_cvt_pk_bf16_f32 v90, v94, v95
    v_add_f32 v148, v148, v149
    v_and_b32 v95, 0xffff0000, v90
    v_lshlrev_b32 v94, 16, v90
    v_add_f32 v95, {H(1e-5)}, v95
    v_add_f32 v150, v150, v151
    v_cvt_pk_bf16_f32 v95, v95, v95
    v_fma_f32 v140, -v94, v141, v140
    v_and_b32 v95, 0xffff0000, v95
    v_sqrt_f32 v95, v95
    v_fma_f32 v144, -v94, v145, v144
    v_cvt_pk_bf16_f32 v95, v95, v95
    v_and_b32 v95, 0xffff0000, v95
    v_rcp_f32 v95, v95
    v_fma_f32 v152, v140, v95, v148
    v_fma_f32 v154, v144, v95, v150''')
    round_list(['v152', 'v154'], ['v90'])
    K0 = -2.0 * LOG2E * 0.7978845608028654
    A(f'''v_mul_f32 v153, v152, v152
    v_mov_b32 v155, {H(K0)}
    v_fmac_f32 v155, {H(K0*0.044715)}, v153
    v_mul_f32 v155, v155, v152
    v_exp_f32 v155, v155
    v_add_f32 v155, 1.0, v155
    v_rcp_f32 v155, v155
    v_mul_f32 v152, v152, v155
    v_cvt_pk_bf16_f32 v152, v152, v152
    v_and_b32 v152, 0xffff0000, v152
    v_mul_f32 v152, v152, v154''')
    A(f'v_mov_b32 v153, v152 quad_perm:[1,0,3,2] {DPPF}\nv_cvt_pk_bf16_f32 v152, v152, v153\nv_cvt_pk_bf16_f32 v154, v152, v153'.replace('v_cvt_pk_bf16_f32 v152, v152, v153\nv_cvt_pk_bf16_f32 v154, v152, v153', 'v_cvt_pk_bf16_f32 v154, v152, v153\nv_cvt_pk_bf16_f32 v152, v152, v153'))
    A('s_mov_b64 exec, -1\ns_waitcnt lgkmcnt(0)\nv_permlane32_swap_b32 v152, v154')
    for d in range(4): A(f'v_mov_b32 v{140+d}, v152 row_newbcast:{2*d} {DPPF}')
    for m in range(5):
        F = 144 + 4*(m & 1)
        for d in range(4): A(f'v_cndmask_b32 v{F+d}, 0, v{140+d}, {MS[m]}')
        A(f'v_mfma_f32_16x16x32_bf16 v[156:159], {vr(WD+4*m,4)}, {vr(F,4)}, {"0" if m==0 else "v[156:159]"}')
    set_exec(0x03ff03ff, 0x03ff03ff)
    for i in range(4): A(f'v_bfi_b32 v{156+i}, 15, s14, v{156+i}')
    A('global_store_dwordx4 v92, v[156:159], s[42:43] sc1')
    stamp(12)
    if DUAL: A(copyB)

    A('L_fin:')
    if stamps == 3:
        A('s_cmp_eq_u32 s4, 1\ns_cbranch_scc0 L_end\ns_cmp_ge_u32 s2, 96\ns_cbranch_scc0 L_end\ns_cmp_eq_u32 s57, 1\ns_cbranch_scc0 L_end')
    if stamps:
        A('s_memrealtime s[98:99]\ns_waitcnt vmcnt(0) lgkmcnt(0)\ns_mov_b64 exec, 1')
        A(f's_mul_i32 s3, s2, 12\ns_add_u32 s3, s3, s4\ns_lshl_b32 s3, s3, 6\ns_add_u32 s3, s3, {R_STAMP}\nv_mov_b32 v0, s3')
        for i in range(15): A(f'v_mov_b32 v{8+i}, s{70+2*i}')
        A('v_mov_b32 v23, s58')
        for i in range(4): A(f'global_store_dwordx4 v0, {vr(8+4*i,4)}, s[42:43] offset:{16*i}')
    A('L_end:\ns_endpgm')
    import re as _re
    for k, l in enumerate(A.L):
        if l.startswith('s_load_dwordx4 s[40:43], s[0:1], 96'):
            A.L[k] = 's_load_dwordx2 s[40:41], s[0:1], 104'; continue
        m = _re.match(r'global_load_(\w+) (\S+), (v\d+), s\[(42:43|52:53)\](.*)', l)
        if m:
            A.L[k] = f'buffer_load_{m.group(1)} {m.group(2)}, {m.group(3)}, s[40:43], {"0" if m.group(4)=="42:43" else "s52"} offen{m.group(5)}'; continue
        m = _re.match(r'global_store_(\w+) (v\d+), (\S+), s\[(42:43|52:53)\](.*)', l)
        if m:
            A.L[k] = f'buffer_store_{m.group(1)} {m.group(3)}, {m.group(2)}, s[40:43], {"0" if m.group(4)=="42:43" else "s52"} offen{m.group(5)}'; continue
        A.L[k] = _re.sub(r'\bs43\b', 's41', _re.sub(r'\bs42\b', 's40', l.replace('s[42:43]', 's[40:41]')))
    k = A.L.index('s_mov_b32 s47, 0x20000')
    A.L[k:k] = ['s_mov_b32 s42, 0x200000', 's_mov_b32 s43, 0x20000']
    npad = A.pad()
    hdr = open('cdna_kernels/' + NAME + '.s.ref').read().split('; Override launch')[0]
    pre = ''
    if stamps:
        pre = ''.join(f'  s_mov_b32 s{70+2*i}, 0\n' for i in range(15))
    txt = hdr + f'''; @launch grid=(256,1,1) block=(768,1,1) lds={LDS_BYTES}
.amdgcn_target "amdgcn-amd-amdhsa--gfx950"
.text
.globl {NAME}_kernel
.p2align 8
.type {NAME}_kernel,@function
{NAME}_kernel:
''' + pre + A.text() + f'''.section .rodata,"a"
.p2align 6
.amdhsa_kernel {NAME}_kernel
  .amdhsa_next_free_vgpr 168
  .amdhsa_next_free_sgpr 102
  .amdhsa_accum_offset 168
  .amdhsa_group_segment_fixed_size 0
  .amdhsa_kernarg_size 112
  .amdhsa_user_sgpr_count 2
  .amdhsa_user_sgpr_kernarg_segment_ptr 1
  .amdhsa_system_sgpr_workgroup_id_x 1
.end_amdhsa_kernel
'''
    return txt, npad

if __name__ == '__main__':
    kw = {}
    outp = sys.argv[1]
    for a in sys.argv[2:]:
        k, val = a.split('=')
        kw[k] = int(val) if val.lstrip('-').isdigit() else val
    txt, npad = gen(**kw)
    open(outp, 'w').write(txt)
    print('nops inserted', npad)
```

```python
import sys, struct
from asmlib import Asm
NAME = 'adaLN_cond__sliding_block_cached__geglu_ffn__decode'
def f2u(x): return struct.unpack('<I', struct.pack('<f', x))[0]
def H(x): return '0x%08x' % f2u(x)
LOG2E = 1.4426950408889634

R_E = 0
R_XC = 512
R_TK = 1024
R_MOD = R_TK + 32*128
R_MA = R_MOD + 2*15360
R_Q = R_MA + 4*5120
R_O = R_Q + 32*768
R_P = R_O + 256*896
R_X1 = R_P + 8*16*2560
R_DN = R_X1 + 2560
R_GU = R_DN + 96*2560
GU2 = 0x180000 - R_GU
assert R_GU + 96*2560 <= 0x140000
R_STAMP = 0x140000
L_ML = 0; L_H = 128; L_ST2 = 512
L_CSTAT = 1024; L_CO = 1028; L_TRIG = 1032; L_WRDY = 1036; L_CWO = 1040; L_CQ = 1044; L_OK = 1048; L_CA = 1052; L_TRIGB = 1056
L_Q = 1280
L_ST = 1792
L_A = 3072; LAP = 336
L_PACC = 3072
L_OS = 5120
L_TB = 1664
L_F = 1920
L_W = 11264
L_CM = 1060; L_MS = 2048
L_HB = L_W
L_DN = L_W + 57344
LDS_BYTES = L_DN + 20480

DPPF = 'row_mask:0xf bank_mask:0xf'

def gen(T=3, SG=5, TD=2, TKW=4, XB=40, DEARLY=0, DNW=1, IL=0, SWZ=1, DPOS=0, DW=2, WT=0, FB=2, XAT=0, PSL=0, PE=2, ADM=0, FG=1, PREP=2, PFC=0, PFP='nt', CS=4, XA=30, HAW=3, PRIO=1, TN=8, PFF='', GATE=6, FSL=14, FREE=0, CAP=2, DUAL=1, G1=0, G2=0, G4=0, DR=24, FS=0, TLB=2, WDEF=0, OEARLY=4, DPRIO=1, TRIGM=60, TWA=12, ACK=1, PT=1, stamps=False, TIMEOUT=1 << 20, SLA=8, SLB=4):
    A = Asm()
    uid = [0]
    def lab(p):
        uid[0] += 1
        return f'L_{p}{uid[0]}'
    def stamp(i):
        if stamps == 1 or (stamps and i == 0): A(f's_memrealtime s[{70+2*i}:{71+2*i}]')
    def spin_tail(L, sleep):
        if sleep: A(f's_sleep {sleep}')
        A(f's_sub_u32 s58, s58, 1\ns_cbranch_scc0 {L}\ns_branch L_fin')
    def lds_wait_ge(off, val, vz, vt, sleep=1):
        L = lab('w'); D = lab('d')
        A(f'{L}:\nds_read_b32 {vt}, {vz} offset:{off}\ns_waitcnt lgkmcnt(0)\nv_readfirstlane_b32 s3, {vt}\ns_cmp_ge_u32 s3, {val}\ns_cbranch_scc1 {D}')
        spin_tail(L, sleep)
        A(f'{D}:')
    def maxtree(regs, dst):
        regs = list(regs)
        if len(regs) == 2:
            A(f'v_max_u32 {dst}, {regs[0]}, {regs[1]}'); return
        A(f'v_max3_u32 {dst}, {regs[0]}, {regs[1]}, {regs[2]}')
        rest = regs[3:]
        while len(rest) >= 2:
            A(f'v_max3_u32 {dst}, {dst}, {rest[0]}, {rest[1]}'); rest = rest[2:]
        if rest: A(f'v_max_u32 {dst}, {dst}, {rest[0]}')
    def poll_end(regs, tmp, L, sleep):
        D = lab('ok')
        if len(regs) > 1: maxtree(regs, tmp)
        else: tmp = regs[0]
        A(f'v_cmp_eq_u32 vcc, -1, {tmp}\ns_cbranch_vccz {D}')
        spin_tail(L, sleep)
        A(f'{D}:')
    def allred8(regs, op='v_add_f32'):
        for pat in ('quad_perm:[1,0,3,2]', 'quad_perm:[2,3,0,1]', 'row_half_mirror'):
            for r in regs: A(f'{op} {r}, {r}, {r} {pat} {DPPF}')
    def red_hi(regs, op='v_add_f32'):
        for r in regs: A(f'{op} {r}, {r}, {r} row_ror:8 {DPPF}')
        for r in regs: A(f'{op} {r}, {r}, {r} row_bcast:15 row_mask:0xa bank_mask:0xf')
        for r in regs: A(f'{op} {r}, {r}, {r} row_bcast:31 row_mask:0xc bank_mask:0xf')
    def round_list(regs, tmps):
        regs = list(regs)
        prs = [(regs[i], regs[i+1] if i+1 < len(regs) else None) for i in range(0, len(regs), 2)]
        for k0 in range(0, len(prs), len(tmps)):
            blk = prs[k0:k0+len(tmps)]
            for (a, b), t in zip(blk, tmps): A(f'v_cvt_pk_bf16_f32 {t}, {a}, {b if b else a}')
            for (a, b), t in zip(blk, tmps):
                A(f'v_lshlrev_b32 {a}, 16, {t}')
                if b: A(f'v_and_b32 {b}, 0xffff0000, {t}')
    def masks(dst4, vl, t0, t1):
        A(f'v_and_b32 {t0}, 1, {vl}\nv_lshlrev_b32 {t0}, 4, {t0}\nv_mov_b32 {t1}, 0xffff\nv_lshlrev_b32 {t0}, {t0}, {t1}\nv_bfe_u32 {t1}, {vl}, 1, 2')
        for t in range(4):
            A(f'v_cmp_eq_u32 vcc, {t}, {t1}\nv_cndmask_b32 {dst4[t]}, 0, {t0}, vcc')
    def v(i): return f'v{i}'
    def vr(i, n): return f'v[{i}:{i+n-1}]'
    def set_exec(lo, hi):
        if lo == 0xffffffff and hi == 0xffffffff: A('s_mov_b64 exec, -1')
        elif hi == 0 and lo <= 64: A(f's_mov_b64 exec, {lo}')
        else: A(f's_mov_b32 exec_lo, 0x{lo:x}\ns_mov_b32 exec_hi, 0x{hi:x}')
    def tags():
        A('s_mul_i32 s14, s14, 0x9e3779b1\ns_add_u32 s14, s14, 0x7f4a7c15\ns_mul_i32 s15, s15, 0x85ebca6b\ns_add_u32 s15, s15, 0xc2b2ae35')
        A('s_and_b32 s3, s14, 15\ns_sub_u32 s36, 0, s3\ns_subb_u32 s37, 0, s3')
    def tailtags():
        A('s_and_b32 s3, s14, 63\ns_sub_u32 s36, 0, s3\ns_subb_u32 s37, 0, s3')
    def untag(base, n, dst=None):
        if dst is None: dst = base
        for i in range(0, n, 2): A(f'v_lshl_add_u64 {vr(dst+i,2)}, {vr(base+i,2)}, 0, s[36:37]')
    def ortree(regs, dst):
        regs = list(regs)
        if len(regs) == 2:
            A(f'v_or_b32 {dst}, {regs[0]}, {regs[1]}'); return
        A(f'v_or3_b32 {dst}, {regs[0]}, {regs[1]}, {regs[2]}')
        rest = regs[3:]
        while len(rest) >= 2:
            A(f'v_or3_b32 {dst}, {dst}, {rest[0]}, {rest[1]}'); rest = rest[2:]
        if rest: A(f'v_or_b32 {dst}, {dst}, {rest[0]}')
    def tag_end(tmp, L, sleep):
        D = lab('ok')
        A(f'v_and_b32 {tmp}, 15, {tmp}\nv_cmp_ne_u32 vcc, 0, {tmp}\ns_cbranch_vccz {D}')
        spin_tail(L, sleep)
        A(f'{D}:')

    A('L_base:')
    stamp(0)
    A('''s_cmp_ge_u32 s2, 256
    s_cbranch_scc1 L_end
    s_load_dwordx16 s[16:31], s[0:1], 0
    s_load_dwordx8 s[32:39], s[0:1], 64
    s_load_dwordx4 s[40:43], s[0:1], 96
    v_readfirstlane_b32 s4, v0
    v_and_b32 v2, 63, v0
    s_lshr_b32 s5, s2, 3
    s_and_b32 s6, s2, 7
    s_lshl2_add_u32 s5, s6, s5
    s_and_b32 s5, s5, 31
    s_lshr_b32 s4, s4, 6
    v_lshrrev_b32 v3, 3, v2
    v_and_b32 v1, 7, v2
    v_lshlrev_b32 v1, 4, v1
    s_mov_b32 s47, 0x20000
    s_mov_b32 s51, 0x20000''')
    A(f's_mov_b32 s58, {TIMEOUT}')
    A('s_lshl3_add_u32 s59, s5, s6')
    W0 = 8; X0 = 48; D0 = 60; F0 = 64
    A('s_cmp_lt_u32 s4, 4\ns_cbranch_scc0 L_strm')
    A('s_setprio 3\ns_sub_u32 s10, s2, 96\ns_cbranch_scc1 L_cB\ns_cmp_ge_u32 s10, 80\ns_cbranch_scc1 L_rest\ns_cmp_ge_u32 s4, 2\ns_cbranch_scc1 L_cN')
    A(f'''s_mul_i32 s12, s10, 3277
    s_lshr_b32 s12, s12, 16
    s_mul_i32 s7, s12, 20
    s_sub_u32 s13, s10, s7
    s_lshl1_add_u32 s8, s12, s4
    L_rest2:
    v_mul_u32_u24 v72, {10*7680}, v3
    v_add_u32 v72, v72, v1
    s_mul_i32 s3, s8, {80*7680}
    s_lshl_b32 s7, s13, 7
    s_add_u32 s3, s3, s7
    s_mov_b32 s46, {80*7680}
    s_movk_i32 s57, 7680
    v_mul_u32_u24 v74, 20, v3
    s_mul_i32 s7, s8, 160
    v_add_u32 v74, s7, v74
    s_getpc_b64 s[60:61]
    L_pc0:
    s_add_u32 s60, s60, L_cA-L_pc0
    s_addc_u32 s61, s61, 0
    s_waitcnt lgkmcnt(0)
    s_add_u32 s44, s36, s3
    s_addc_u32 s45, s37, 0
    global_load_dwordx4 v[82:85], v74, s[34:35]
    global_load_dword v86, v74, s[34:35] offset:16
    s_cmp_lt_u32 s10, 80
    s_cbranch_scc0 L_cA''')
    A('L_load10:\ns_mov_b32 s56, 0')
    for s in range(10):
        A(f'buffer_load_dwordx4 {vr(W0+4*s,4)}, v72, s[44:47], s56 offen nt')
        if s < 9: A('s_add_u32 s56, s56, s57')
    A('s_setpc_b64 s[60:61]')
    A('L_strm:')

    NPOOL = 512 - 64*SG
    SL = lambda i, t: 8 + (i*3 + t)*4
    G0_ = 128; Q0 = 140; D0_ = 152; F = 164
    S = [v(G0_+g) for g in range(SG)]
    VL = 'v134'; X0_ = 'v135'; X1_ = 'v136'; X2_ = 'v137'; X3_ = 'v138'; X4_ = 'v139'
    if PRIO: A('s_setprio 1')
    A(f'''v_mul_u32_u24 v4, 384, v3
    s_mul_i32 s3, s5, 12582912
    s_add_u32 s3, s3, {28672*384}
    s_lshl3_add_u32 s7, s6, s4
    s_mul_i32 s57, s7, {3072 if IL else SG*3072}
    s_sub_u32 s57, s57, {4*(3072 if IL else SG*3072)}
    s_mov_b32 s56, s57
    v_add_u32 v3, v1, v4
    s_mov_b32 s46, 1572864
    s_mov_b32 s50, 1572864
    s_waitcnt lgkmcnt(0)
    s_add_u32 s44, s18, s3
    s_addc_u32 s45, s19, 0
    s_add_u32 s48, s20, s3
    s_addc_u32 s49, s21, 0''')
    def ld(reg, srd, so, t, throttle=True):
        A(f'buffer_load_dwordx4 {vr(reg,4)}, v3, {srd}, {so} offen offset:{t*128} nt')
        if throttle: A(f's_waitcnt vmcnt({T})')
    KS = 's[44:47]'; VS = 's[48:51]'
    if FB:
        A('s_sub_u32 s13, s2, 96')
        if FB >= 2: A('s_cselect_b32 s13, 0, s13')
        A('s_cmp_lt_u32 s13, 80\ns_cbranch_scc0 L_nb0\ns_barrier\nL_nb0:')
    n = 0
    for g in range(SG):
        for t in range(3):
            n += 1
            ld(SL(g, t), KS, 's56', t, throttle=(n > T+1))
            if n == T+1:
                for r in S: A(f'v_mov_b32 {r}, 0')
                masks(['v4', 'v5', 'v6', 'v7'], 'v2', X0_, X1_)
                A(f's_lshl_b32 s3, s5, 7\ns_add_u32 s3, s3, {R_TK}\ns_add_u32 s52, s42, s3\ns_addc_u32 s53, s43, 0')
                A(f's_cmp_lt_u32 s2, 96\ns_movk_i32 s10, {XA}\ns_cselect_b32 s10, {XB}, s10\ns_sub_u32 s10, {NPOOL}, s10')
                if FB: A(f'v_mov_b32 v0, 0\ns_cmp_lt_u32 s13, 80\ns_cbranch_scc1 L_nb1\ns_barrier\nL_nb1:\ns_waitcnt vmcnt({T})')
                else: A(f'v_mov_b32 v0, 0\ns_barrier\ns_waitcnt vmcnt({T})')
        if g < SG-1: A(f's_add_u32 s56, s56, {196608 if IL else 3072}')
    for g in range(SG):
        for t in range(3): ld(SL(SG+g, t), VS, 's57', t, throttle=not (g == SG-1 and t == 2))
        if g < SG-1: A(f's_add_u32 s57, s57, {196608 if IL else 3072}')
    stamp(1)
    if PRIO: A('s_setprio 0')
    lds_wait_ge(L_CQ, 1, 'v0', X0_, sleep=2)
    A(f'ds_read_b64 v[136:137], v0 offset:{L_TB}')
    tick = 's_mov_b32 s12, 1\ns_atomic_add s12, s[52:53], 0 glc'
    if XAT: tick += '\ns_mov_b32 s62, 1\ns_atomic_add s62, s[52:53], 0x80000 glc\ns_mov_b32 s63, 1\ns_atomic_add s63, s[52:53], 0x88000 glc'
    for t in range(3): A(f'ds_read_b128 {vr(Q0+4*t,4)}, v1 offset:{L_Q + 128*t}')
    stamp(2)
    A(f's_waitcnt vmcnt({3*SG}) lgkmcnt(0)\nv_mov_b32 v1, 1\nv_readfirstlane_b32 s14, v136\nv_readfirstlane_b32 s15, v137')
    A(tick)
    for t in range(3):
        for d in range(4):
            for g in range(SG):
                A(f'v_dot2c_f32_bf16 {S[g]}, v{SL(g,t)+d}, v{Q0+4*t+d}')
    allred8(S)
    round_list(S, [X0_, X1_, X2_])
    for r in S: A(f'v_mul_f32 {r}, 0x3d93cd3a, {r}')
    round_list(S, [X0_, X1_, X2_])
    A(f'v_max3_f32 {X0_}, {S[0]}, {S[1]}, {S[2]}')
    for g in range(3, SG): A(f'v_max_f32 {X0_}, {X0_}, {S[g]}')
    red_hi([X0_], 'v_max_f32')
    A(f'v_readlane_b32 s8, {X0_}, 63')
    def take(X, last):
        A(f's_waitcnt lgkmcnt(0)\ns_mov_b32 s11, s12\ns_cmp_lt_u32 s11, {NPOOL}\ns_cbranch_scc0 {last}')
        A(f's_mul_i32 s54, s11, 3072\ns_add_u32 s54, s54, {64*SG*3072}')
        if TD < 3: A(f's_waitcnt vmcnt({TD})')
        for t in range(3): ld(SL(X, t), KS, 's54', t, throttle=False)
        for t in range(3): ld(SL(X+1, t), VS, 's54', t, throttle=False)
        A(f's_waitcnt vmcnt(6)')
    def nexttick():
        Lk = lab('nt')
        A(f's_movk_i32 s12, {NPOOL}\ns_cmp_lt_u32 s11, s10\ns_cbranch_scc0 {Lk}\n{tick}\n{Lk}:')
    for r in S: A(f'v_subrev_f32 {r}, s8, {r}')
    for r in S: A(f'v_mul_f32 {r}, {H(LOG2E)}, {r}')
    for r in S: A(f'v_exp_f32 {r}, {r}')
    A(f'v_add_f32 {VL}, {S[0]}, {S[1]}')
    for g in range(2, SG): A(f'v_add_f32 {VL}, {VL}, {S[g]}')
    for r in S: A(f'v_cvt_pk_bf16_f32 {r}, {r}, {r}')
    stamp(3)
    _e0 = len(A.L)
    A(f'''v_and_b32 v61, 7, v2
    v_lshlrev_b32 v60, 3, v61
    v_lshlrev_b32 v62, 5, v61
    v_and_b32 v63, 16, v2
    s_mul_i32 s3, s4, 768
    v_add3_u32 v56, v62, v63, s3
    v_lshrrev_b32 v62, 5, v2
    v_lshl_add_u32 v56, v62, 3, v56
    s_mul_i32 s3, s59, 896
    s_add_u32 s3, s3, {R_O}
    v_lshl_add_u32 v57, v2, 4, s3
    s_and_b32 s9, s14, 0xffff
    v_mov_b32 v62, 0xffff
    v_lshlrev_b32 v58, 4, v2
    v_lshlrev_b32 v61, 2, v61
    s_lshl_b32 s3, s4, 3
    v_mov_b32 v59, s3
    s_mov_b32 s62, 0x00ff00ff
    s_mov_b32 s63, 0x00ff00ff
    s_waitcnt vmcnt(3)''')
    def mf(slot, first=False, waits=False):
        for t in range(3):
            if waits: A(f's_waitcnt vmcnt({2-t})')
            c = '0' if first else vr(D0_+4*t, 4)
            A(f'v_mfma_f32_16x16x32_bf16 {vr(D0_+4*t,4)}, {vr(F,4)}, {vr(SL(slot,t),4)}, {c}')
    for g in range(SG):
        for t in range(4): A(f'v_and_b32 v{F+t}, {S[g]}, v{4+t}')
        if g < SG-1: mf(SG+g, first=(g == 0))
    take(0, 'L_lastS')
    mf(2*SG-1)
    A('s_branch L_loopA')
    A('L_loop:')
    for X, Y, nm, pv in ((0, 2, 'A', 'B'), (2, 0, 'B', 'A')):
        take(X, f'L_last{pv}')
        mf(Y+1)
        A(f'L_loop{nm}:')
        if TKW >= 3:
            if TKW < 6: A(f's_waitcnt vmcnt({TKW})')
            nexttick()
        A(f'v_mov_b32 {X0_}, 0\nv_mov_b32 {X1_}, 0\ns_waitcnt vmcnt(3)')
        for t in range(3):
            for d in range(0, 4, 2):
                A(f'v_dot2c_f32_bf16 {X0_}, v{SL(X,t)+d}, v{Q0+4*t+d}\nv_dot2c_f32_bf16 {X1_}, v{SL(X,t)+d+1}, v{Q0+4*t+d+1}')
        A(f'v_add_f32 {X0_}, {X0_}, {X1_}')
        allred8([X0_])
        A(f'''v_cvt_pk_bf16_f32 {X0_}, {X0_}, {X0_}
        v_and_b32 {X0_}, 0xffff0000, {X0_}
        v_mul_f32 {X0_}, 0x3d93cd3a, {X0_}
        v_cvt_pk_bf16_f32 {X0_}, {X0_}, {X0_}
        v_and_b32 {X0_}, 0xffff0000, {X0_}
        v_cmp_lt_f32 vcc, s8, {X0_}
        s_cbranch_vccz L_nm{nm}
        s_call_b64 s[60:61], L_newmax
        L_nm{nm}:
        v_subrev_f32 {X0_}, s8, {X0_}
        v_mul_f32 {X0_}, {H(LOG2E)}, {X0_}
        v_exp_f32 {X0_}, {X0_}
        v_add_f32 {VL}, {VL}, {X0_}
        v_cvt_pk_bf16_f32 {X0_}, {X0_}, {X0_}''')
        for t in range(4): A(f'v_and_b32 v{F+t}, {X0_}, v{4+t}')
        if TKW < 3:
            A(f's_waitcnt vmcnt({TKW})')
            nexttick()
    A('s_branch L_loop')
    A('L_newmax:')
    A(f'v_mov_b32 {X1_}, {X0_}')
    red_hi([X1_], 'v_max_f32')
    A(f'v_mov_b32 {X2_}, s8\nv_readlane_b32 s8, {X1_}, 63\nv_subrev_f32 {X2_}, s8, {X2_}\nv_mul_f32 {X2_}, {H(LOG2E)}, {X2_}\nv_exp_f32 {X2_}, {X2_}')
    A(f'v_mul_f32 {VL}, {VL}, {X2_}')
    for i in range(12): A(f'v_mul_f32 v{D0_+i}, v{D0_+i}, {X2_}')
    A('s_setpc_b64 s[60:61]')
    for nm, slot in (('S', 2*SG-1), ('A', 1), ('B', 3)):
        A(f'L_last{nm}:')
        stamp(4)
        A(f's_mov_b64 exec, 1\nds_add_u32 v0, v1 offset:{L_CSTAT}\ns_mov_b64 exec, -1')
        mf(slot, waits=True)
        if nm != 'B': A('s_branch L_epi')
    A('L_epi:')
    stamp(6)
    d = D0_
    A(f'''v_add_f32 {VL}, {VL}, {VL} row_ror:8 {DPPF}
    v_mov_b32 v133, s8
    v_mov_b32 v110, s14
    v_add_f32 {VL}, {VL}, {VL} row_bcast:15 row_mask:0xa bank_mask:0xf
    v_mov_b32 v111, s15
    v_permlane32_swap_b32 v{d}, v{d+2}
    v_add_f32 {VL}, {VL}, {VL} row_bcast:31 row_mask:0xc bank_mask:0xf
    v_permlane32_swap_b32 v{d+1}, v{d+3}
    v_permlane32_swap_b32 v{d+4}, v{d+6}
    v_permlane32_swap_b32 v{d+5}, v{d+7}
    v_permlane32_swap_b32 v{d+8}, v{d+10}
    v_permlane32_swap_b32 v{d+9}, v{d+11}''')
    for t in range(3):
        d = D0_ + 4*t
        A(f'v_add_f32 v{d}, v{d+2}, v{d} row_ror:8 {DPPF}\nv_add_f32 v{d+1}, v{d+3}, v{d+1} row_ror:8 {DPPF}')
    A('s_mov_b64 exec, s[62:63]')
    for t in range(3): A(f'ds_write_b64 v56, {vr(D0_+4*t,2)} offset:{L_OS - 4*768 + 256*t}')
    A(f'''s_lshl_b64 exec, 1, 48
    ds_write2_b32 v59, v133, {VL} offset0:{(L_ST2 - 32)//4} offset1:{(L_ST2 - 32)//4 + 1}
    ds_add_rtn_u32 v6, v0, v1 offset:{L_CO}
    s_mov_b64 exec, -1
    ds_read_b64 v[144:145], v60 offset:{L_ST2}''')
    for w in range(8): A(f'ds_read_b128 {vr(64+4*w,4)}, v58 offset:{L_OS + 768*w}')
    A(f'''s_waitcnt lgkmcnt({0 if stamps == 1 else 8})
    v_readlane_b32 s3, v6, 48
    v_max_f32 v108, v144, v144 quad_perm:[1,0,3,2] {DPPF}
    s_cmp_eq_u32 s3, 7
    s_cbranch_scc0 L_fin
    v_max_f32 v108, v108, v108 quad_perm:[2,3,0,1] {DPPF}
    v_max_f32 v108, v108, v108 row_half_mirror {DPPF}
    v_sub_f32 v144, v144, v108
    v_mul_f32 v144, {H(LOG2E)}, v144
    v_exp_f32 v144, v144
    v_mul_f32 v109, v144, v145''')
    lch = [f'v_add_f32 v109, v109, v109 quad_perm:[1,0,3,2] {DPPF}', f'v_add_f32 v109, v109, v109 quad_perm:[2,3,0,1] {DPPF}', f'v_add_f32 v109, v109, v109 row_half_mirror {DPPF}']
    for w in range(8):
        A(f'v_mov_b32 v{100+w}, v144 row_newbcast:{w} {DPPF}')
        if w in (1, 4, 7): A(lch.pop(0))
    A('s_mov_b32 exec_hi, 0xffff\ns_waitcnt lgkmcnt(0)')
    def fsel(w): return f'{vr(100+(w&~1),2)}', (w & 1)
    for w in (0, 4):
        fr, hi = fsel(w)
        for h2 in (0, 2): A(f'v_pk_mul_f32 {vr(64+4*w+h2,2)}, {vr(64+4*w+h2,2)}, {fr} op_sel:[0,{hi}] op_sel_hi:[1,{hi}]')
    for k in (1, 2, 3):
        for base in (0, 4):
            fr, hi = fsel(base+k)
            for h2 in (0, 2): A(f'v_pk_fma_f32 {vr(64+4*base+h2,2)}, {vr(64+4*(base+k)+h2,2)}, {fr}, {vr(64+4*base+h2,2)} op_sel:[0,{hi},0] op_sel_hi:[1,{hi},1]')
    A('v_pk_add_f32 v[64:65], v[64:65], v[80:81]\nv_pk_add_f32 v[66:67], v[66:67], v[82:83]')
    A('v_cvt_pk_bf16_f32 v64, v64, v65\nv_cvt_pk_bf16_f32 v66, v66, v67\nv_lshl_or_b32 v108, v64, 16, s9\nv_bfi_b32 v109, v62, s9, v64\nv_lshl_or_b32 v110, v66, 16, s9\nv_bfi_b32 v111, v62, s9, v66')
    A('s_mov_b32 exec_hi, 0x1ffff')
    A(f'global_store_dwordx4 v57, v[108:111], s[42:43] sc1\ns_mov_b64 exec, 1\nds_add_u32 v0, v1 offset:{L_CO}')
    stamp(7)
    A('s_branch L_fin')
    if SG < 5:
        import re as _re
        for _k in range(_e0, len(A.L)):
            A.L[_k] = _re.sub(r'\bv(5[6-9]|6[0-3])\b', lambda m: 'v%d' % (int(m.group(1)) + 56), A.L[_k])

    A('L_ctrl:')
    A('L_rest:\ns_cmp_ge_u32 s10, 120\ns_cselect_b32 s12, 1, 0\ns_cselect_b32 s7, 40, 0\ns_sub_u32 s13, s10, 60\ns_sub_u32 s13, s13, s7\ns_lshl2_add_u32 s8, s12, s4\ns_branch L_rest2')
    def calc_t(dst):
        A(f's_and_b32 s3, s2, 7\ns_mul_i32 s3, s3, 3\ns_lshr_b32 s7, s2, 5\ns_add_u32 s3, s3, s7\ns_lshl_b32 s3, s3, 2\ns_bfe_u32 s7, s2, 0x20003\ns_add_u32 {dst}, s3, s7')
    def cstart(bar=True):
        Lk = lab('ci')
        A(f'''v_mov_b32 v0, 0
        v_lshlrev_b32 v75, 4, v2
        v_lshlrev_b32 v80, 2, v2
        v_mov_b32 v79, 1
        s_cmp_eq_u32 s4, 0
        s_cbranch_scc0 {Lk}
        ds_write_b32 v80, v0 offset:1024
        {Lk}:
        s_waitcnt lgkmcnt(0)''')
        if bar: A('s_barrier')
        A(f's_load_dwordx2 s[14:15], s[42:43], {R_E}')
    A('L_cN:')
    cstart()
    A(f'''s_getpc_b64 s[8:9]
    L_pc1:
    s_sub_u32 s8, s8, L_pc1-L_base
    s_subb_u32 s9, s9, 0
    s_lshr_b32 s3, s2, 3
    s_lshl1_add_u32 s3, s3, s4
    s_and_b32 s3, s3, 15
    s_lshl_b32 s3, s3, 10
    v_add_u32 v76, s3, v75
    v_min_u32 v76, L_end-L_base-12, v76
    global_load_dwordx4 v[160:163], v76, s[8:9] {PFF}
    s_waitcnt vmcnt(0) lgkmcnt(0)''')
    tags()
    A('s_branch L_hopB')
    A('L_cA:')
    cstart()
    masks(['v4', 'v5', 'v6', 'v7'], 'v2', 'v60', 'v61')
    A(f'''s_mul_i32 s11, s12, 5120
    s_lshl_b32 s7, s13, 8
    s_add_u32 s11, s11, s7
    s_add_u32 s11, s11, {R_MA}
    s_mov_b32 s54, 1
    s_cmp_lt_u32 s10, 80
    s_cbranch_scc1 L_cA1
    s_mul_i32 s11, s12, 15360
    s_add_u32 s11, s11, s7
    s_add_u32 s11, s11, {R_MOD}
    s_mov_b32 s54, 3
    s_setprio 0
    s_waitcnt vmcnt(0)
    s_call_b64 s[60:61], L_load10
    L_cA1:
    s_waitcnt vmcnt(10)''')
    C = [v(88+i) for i in range(10)]; E = [v(100+i) for i in range(10)]
    for i in range(5): A(f'v_lshlrev_b32 {C[2*i]}, 16, v{82+i}\nv_and_b32 {C[2*i+1]}, 0xffff0000, v{82+i}')
    for i in range(10): A(f'v_mul_f32 {E[i]}, {H(-LOG2E)}, {C[i]}')
    for i in range(10): A(f'v_exp_f32 {E[i]}, {E[i]}')
    for i in range(10): A(f'v_add_f32 {E[i]}, 1.0, {E[i]}')
    RC = [v(112+i) for i in range(10)]; QQ = [v(124+i) for i in range(10)]; RR = [v(136+i) for i in range(10)]
    for i in range(10): A(f'v_rcp_f32 {RC[i]}, {E[i]}')
    for i in range(10): A(f'v_mul_f32 {QQ[i]}, {RC[i]}, {C[i]}')
    for i in range(10): A(f'v_fma_f32 {RR[i]}, -{QQ[i]}, {E[i]}, {C[i]}')
    for i in range(10): A(f'v_fmac_f32 {QQ[i]}, {RR[i]}, {RC[i]}')
    for i in range(10): A(f'v_div_fixup_f32 {QQ[i]}, {QQ[i]}, {E[i]}, {C[i]}')
    for i in range(10): A(f'v_cvt_pk_bf16_f32 v{X0+i}, {QQ[i]}, {QQ[i]}')
    for i in range(4): A(f'v_mov_b32 v{D0+i}, 0')
    A('s_waitcnt lgkmcnt(0)')
    tags()
    stamp(1)
    A('s_waitcnt vmcnt(0)\ns_branch L_mm10')
    W1 = 88; X1r = 128
    A('L_cB:')
    A(f'''v_mul_u32_u24 v72, {10*12288}, v3
    s_mul_i32 s3, s4, {160*12288}
    s_mul_i32 s7, s5, 384
    s_add_u32 s3, s3, s7
    s_lshr_b32 s12, s2, 5
    s_lshl_b32 s7, s12, 7
    s_add_u32 s3, s3, s7
    v_add_u32 v72, v72, v1
    s_mov_b32 s46, {160*12288}
    s_movk_i32 s57, 12288
    v_mul_u32_u24 v73, 20, v2
    v_min_u32 v74, 39, v2
    s_mul_i32 s13, s4, 320
    v_lshl_add_u32 v74, v74, 3, s13''')
    cstart(FB < 2)
    A(f'''s_add_u32 s44, s22, s3
    s_addc_u32 s45, s23, 0
    global_load_dwordx4 v[140:143], v73, s[16:17]
    global_load_dword v144, v73, s[16:17] offset:16
    global_load_dwordx2 v[146:147], v74, s[16:17]
    s_call_b64 s[60:61], L_load10
    s_mov_b32 s56, {80*12288}''')
    for k in range(10):
        A(f'buffer_load_dwordx4 {vr(W1+4*k,4)}, v72, s[44:47], s56 offen nt')
        if k < 9: A('s_add_u32 s56, s56, s57')
    if FB == 2: A('s_barrier')
    A(f'''s_or_b32 s3, s12, s4
    s_cbranch_scc1 L_notk
    s_lshl_b32 s3, s5, 7
    v_mov_b32 v60, s3
    s_mov_b64 exec, 1
    global_store_dword v60, v0, s[42:43] offset:{R_TK} sc1
    s_mov_b64 exec, -1
    L_notk:''')
    masks(['v4', 'v5', 'v6', 'v7'], 'v2', 'v64', 'v65')
    A(f'''s_mul_i32 s11, s5, 768
    s_lshl_b32 s7, s12, 8
    s_add_u32 s11, s11, s7
    s_add_u32 s11, s11, {R_Q}
    v_lshlrev_b32 v74, 1, v74
    s_mov_b32 s54, 3
    v_add_u32 v76, {R_MA}, v74
    v_add_u32 v77, {R_MA + 5120}, v74
    v_add_u32 v78, {R_MA + 10240}, v74
    v_add_u32 v81, {R_MA + 15360}, v74
    v_mul_u32_u24 v73, 40, v3
    s_lshl_b32 s3, s13, 1
    v_add_u32 v73, s3, v73
    s_waitcnt vmcnt(20) lgkmcnt(0)''')
    tags()
    XA = [v(150+i) for i in range(10)]
    for i in range(5):
        A(f'v_lshlrev_b32 {XA[2*i]}, 16, v{140+i}\nv_and_b32 {XA[2*i+1]}, 0xffff0000, v{140+i}')
    XN = ['v160', 'v161', 'v162', 'v163']
    A('v_lshlrev_b32 v160, 16, v146\nv_and_b32 v161, 0xffff0000, v146\nv_lshlrev_b32 v162, 16, v147\nv_and_b32 v163, 0xffff0000, v147')
    A(f'v_add_f32 v60, {XA[0]}, {XA[1]}')
    for i in range(2, 10): A(f'v_add_f32 v60, v60, {XA[i]}')
    allred8(['v60']); red_hi(['v60'])
    A(f'v_mul_f32 v60, {H(1/640)}, v60\nv_readlane_b32 s8, v60, 63')
    for i in range(10): A(f'v_subrev_f32 {XA[i]}, s8, {XA[i]}')
    A(f'v_mul_f32 v61, {XA[0]}, {XA[0]}')
    for i in range(1, 10): A(f'v_fmac_f32 v61, {XA[i]}, {XA[i]}')
    allred8(['v61']); red_hi(['v61'])
    A(f'v_mul_f32 v61, {H(1/640)}, v61')
    round_list(['v60', 'v61'], ['v62'])
    A(f'v_add_f32 v61, {H(1e-5)}, v61')
    round_list(['v61'], ['v62'])
    A('v_sqrt_f32 v61, v61')
    round_list(['v61'], ['v62'])
    A('v_rcp_f32 v61, v61\nv_readlane_b32 s8, v60, 63\nv_readlane_b32 s9, v61, 63')
    for r in XN: A(f'v_subrev_f32 {r}, s8, {r}')
    round_list(XN, ['v62', 'v63'])
    for r in XN: A(f'v_mul_f32 {r}, s9, {r}')
    round_list(XN, ['v62', 'v63'])
    set_exec(0xffffffff, 0xff)
    stamp(1)
    A(f's_waitcnt vmcnt({HAW})')
    stamp(2)
    G = 128
    L = lab('ha')
    A(f'{L}:')
    for k in range(8): A(f'global_load_dwordx4 {vr(G+4*k,4)}, {["v76","v77","v78","v81"][k%4]}, s[42:43] offset:{2560*(k//4)} sc1')
    if FB == 3: A('s_cmp_eq_u32 s56, 0\ns_cbranch_scc1 L_nb3\ns_mov_b32 s56, 0\ns_barrier\nL_nb3:')
    A('s_waitcnt vmcnt(0)')
    untag(G, 32)
    ortree([v(G+i) for i in range(32)], 'v60')
    tag_end('v60', L, SLA)
    stamp(3)
    for a, b in ((0,1),(2,3),(0,2)):
        for base in (0, 4):
            for h2 in (0, 2): A(f'v_pk_add_f32 {vr(G+4*(base+a)+h2,2)}, {vr(G+4*(base+a)+h2,2)}, {vr(G+4*(base+b)+h2,2)}')
    SA = [v(G+i) for i in range(4)]; CA = [v(G+16+i) for i in range(4)]
    TT = ['v60', 'v61', 'v62', 'v63']
    round_list(CA + SA, TT)
    for r in CA: A(f'v_add_f32 {r}, 1.0, {r}')
    round_list(CA, TT)
    for a, b in zip(CA, XN): A(f'v_mul_f32 {a}, {a}, {b}')
    round_list(CA, TT)
    for a, b in zip(CA, SA): A(f'v_add_f32 {a}, {a}, {b}')
    for r in CA: A(f'v_cvt_pk_bf16_f32 {r}, {r}, {r}')
    A(f'ds_write_b128 v74, v[144:147] offset:{L_HB}\ns_mov_b64 exec, -1')
    for k in range(5): A(f'ds_read_b64 {vr(X1r+2*k,2)}, v73 offset:{L_HB + 320 + 8*k}')
    for k in range(5): A(f'ds_read_b64 {vr(X0+2*k,2)}, v73 offset:{L_HB + 8*k}')
    A('s_waitcnt lgkmcnt(0)')
    for s in range(10):
        F = F0 + 4*(s & 1)
        for t in range(4): A(f'v_and_b32 v{F+t}, v{X1r+s}, v{4+t}')
        c = '0' if s == 0 else vr(D0, 4)
        A(f'v_mfma_f32_16x16x32_bf16 {vr(D0,4)}, {vr(F,4)}, {vr(W1+4*s,4)}, {c}')
    A('L_mm10:')
    for s in range(10):
        F = F0 + 4*(s & 1)
        for t in range(4): A(f'v_and_b32 v{F+t}, v{X0+s}, v{4+t}')
        A(f'v_mfma_f32_16x16x32_bf16 {vr(D0,4)}, {vr(F,4)}, {vr(W0+4*s,4)}, {vr(D0,4)}')
    A('''v_and_b32 v65, 16, v2
    v_lshrrev_b32 v66, 5, v2
    v_lshl_add_u32 v64, v1, 1, v65
    v_lshl_add_u32 v64, v66, 3, v64
    s_lshl_b32 s3, s4, 8
    v_add_u32 v64, s3, v64
    v_add_u32 v67, s11, v80
    s_and_b32 s9, s14, 0xffff''')
    A(f'v_permlane32_swap_b32 v60, v62\nv_permlane32_swap_b32 v61, v63')
    A(f'v_add_f32 v60, v62, v60 row_ror:8 {DPPF}\nv_add_f32 v61, v63, v61 row_ror:8 {DPPF}')
    set_exec(0x00ff00ff, 0x00ff00ff)
    A(f'''ds_write_b64 v64, v[60:61] offset:{L_MS}
    s_mov_b64 exec, 1
    ds_add_rtn_u32 v66, v0, v79 offset:{L_CM}
    s_mov_b64 exec, -1
    ds_read2st64_b32 v[68:69], v80 offset0:{L_MS//256} offset1:{L_MS//256+1}
    ds_read2st64_b32 v[70:71], v80 offset0:{L_MS//256+2} offset1:{L_MS//256+3}
    s_waitcnt lgkmcnt(0)
    v_readfirstlane_b32 s3, v66
    s_cmp_eq_u32 s54, 1
    s_cbranch_scc1 L_two
    v_pk_add_f32 v[68:69], v[68:69], v[70:71]
    L_two:
    v_add_f32 v68, v68, v69
    v_cvt_pk_bf16_f32 v69, v68, v68
    v_bfi_b32 v68, 15, s14, v68
    v_lshl_or_b32 v69, v69, 16, s9
    s_cmp_lt_u32 s2, 96
    s_cselect_b64 vcc, -1, 0
    v_cndmask_b32 v68, v68, v69, vcc
    s_cmp_eq_u32 s3, s54
    s_cbranch_scc0 L_nopub
    global_store_dword v67, v68, s[42:43] sc1
    L_nopub:
    s_setprio 3''')
    stamp(4)
    A('L_hopB:\ns_cmp_eq_u32 s4, 1\ns_cbranch_scc0 L_tail')
    A(f'''s_mul_i32 s3, s5, 768
    s_add_u32 s3, s3, {R_Q}
    v_add_u32 v73, s3, v75
    s_add_u32 s52, s42, s3
    s_addc_u32 s53, s43, 0
    v_mov_b32 v64, s14
    v_mov_b32 v65, s15
    ds_write_b64 v0, v[64:65] offset:{L_TB}
    v_mov_b32 v76, 0x07060302
    v_lshlrev_b32 v74, 3, v2
    s_lshl_b32 s7, s6, 4
    s_add_u32 s52, s52, s7
    s_addc_u32 s53, s53, 0''')
    set_exec(0xffffffff, 0xffff)
    L = lab('hb'); D = lab('hbh')
    A(f'{L}:')
    for k in range(3): A(f's_load_dword s{62+k}, s[52:53], {256*k} glc')
    A(f's_waitcnt lgkmcnt(0)\ns_xor_b32 s62, s62, s14\ns_xor_b32 s63, s63, s14\ns_xor_b32 s64, s64, s14\ns_or_b32 s62, s62, s63\ns_or_b32 s62, s62, s64\ns_and_b32 s62, s62, 0xffff\ns_cbranch_scc0 {D}')
    spin_tail(L, SLB)
    A(f'{D}:')
    stamp(12)
    D = lab('hbd')
    A(f'''global_load_dwordx4 v[84:87], v73, s[42:43] sc1
    s_waitcnt vmcnt(0)
    v_bitop3_b32 v60, v84, v85, s14 bitop3:0x7e
    v_bitop3_b32 v61, v86, v87, s14 bitop3:0x7e
    v_or_b32 v60, v60, v61
    v_lshlrev_b32 v60, 16, v60
    v_cmp_ne_u32 vcc, 0, v60
    s_cbranch_vccz {D}''')
    spin_tail(L, SLB)
    A(f'''{D}:
    v_perm_b32 v84, v85, v84, v76
    v_perm_b32 v85, v87, v86, v76
    ds_write_b64 v74, v[84:85] offset:{L_Q}
    s_mov_b64 exec, 1
    ds_add_u32 v0, v79 offset:{L_CQ}
    s_mov_b64 exec, -1''')
    stamp(5)

    def trig_wait(val, L_TRIG=L_TRIG):
        if val <= 0: return
        L = lab('tg'); D = lab('tgd'); W = lab('tgw')
        A(f's_cmp_eq_u32 s4, 3\ns_cbranch_scc0 {W}\ns_lshl_b32 s8, s5, 7\ns_add_u32 s8, s8, {R_TK}\nds_read_b32 v90, v0 offset:{L_TB}\ns_waitcnt lgkmcnt(0)\nv_readfirstlane_b32 s9, v90')
        A(f'{L}:\ns_load_dword s3, s[42:43], s8 glc\ns_waitcnt lgkmcnt(0)\ns_sub_u32 s3, s3, s9\ns_cmp_ge_u32 s3, {val}\ns_cbranch_scc1 {D}')
        spin_tail(L, 4)
        A(f'{D}:\nv_mov_b32 v90, 1\nds_write_b32 v0, v90 offset:{L_TRIG}\n{W}:')
        lds_wait_ge(L_TRIG, 1, 'v0', 'v90', sleep=2)
    def sgate(base, offs, regs, mask):
        L = lab('sg'); D = lab('sgd')
        A(f'{L}:')
        for o, r in zip(offs, regs): A(f's_load_dword s{r}, {base}, {o} glc')
        A('s_waitcnt lgkmcnt(0)')
        A(f's_xor_b32 s3, s{regs[0]}, s14')
        for r in regs[1:len(offs)]: A(f's_xor_b32 s{r}, s{r}, s14\ns_or_b32 s3, s3, s{r}')
        if mask != -1: A(f's_and_b32 s3, s3, {mask}')
        A(f's_cbranch_scc0 {D}')
        spin_tail(L, 0)
        A(f'{D}:')
    def ffn_prefetch():
        if not PFC: return
        Lk = lab('pf')
        A(f'''s_lshr_b32 s8, s2, 3
        s_lshl2_add_u32 s8, s8, s4
        s_cmp_ge_u32 s8, 120
        s_cbranch_scc1 {Lk}
        s_cmp_lt_u32 s8, 40
        s_cselect_b32 s64, s28, s30
        s_cselect_b32 s65, s29, s31
        s_cselect_b32 s9, 0, 40
        s_cmp_lt_u32 s8, 80
        s_cselect_b32 s64, s64, s32
        s_cselect_b32 s65, s65, s33
        s_cselect_b32 s9, s9, 80
        s_movk_i32 s66, 384
        s_cselect_b32 s67, 3072, s66
        s_cselect_b32 s66, s66, 245760
        s_sub_u32 s8, s8, s9
        s_mul_i32 s8, s8, s67
        s_lshl_b32 s8, s8, 4
        s_mul_i32 s9, s6, s66
        s_add_u32 s8, s8, s9
        v_lshrrev_b32 v165, 2, v2
        v_mul_u32_u24 v165, s67, v165
        v_lshl_add_u32 v165, v7, 4, v165
        s_mov_b32 s66, 1966080
        s_mov_b32 s67, 0x20000''')
        lds_wait_ge(L_CSTAT, PFC, 'v0', 'v90', sleep=1)
        set_exec(0x77777777, 0x77777777)
        A(f'buffer_load_dword v166, v165, s[64:67], s8 offen {PFP}\ns_mov_b64 exec, -1\n{Lk}:')
    A('L_tail:')
    A('v_lshrrev_b32 v4, 4, v2\nv_and_b32 v5, 15, v2\nv_lshrrev_b32 v6, 2, v5\nv_and_b32 v7, 3, v2\nv_lshlrev_b32 v7, 3, v7')
    A('s_cmp_ge_u32 s2, 96\ns_cbranch_scc0 L_tailB')
    A('''s_lshr_b32 s13, s10, 3
    s_and_b32 s12, s2, 7
    s_lshl_b32 s12, s12, 1
    s_cmp_ge_u32 s13, 10
    s_cselect_b32 s3, 10, 0
    s_addc_u32 s12, s12, 0
    s_sub_u32 s13, s13, s3''')
    A(f'''s_lshr_b32 s23, s10, 3
    s_lshr_b32 s3, s10, 5
    s_cmp_eq_u32 s4, 2
    s_cselect_b32 s7, 2, 0
    s_add_u32 s3, s3, s7
    s_lshl3_add_u32 s3, s3, s6
    s_bfe_u32 s7, s10, 0x20003
    s_lshl2_add_u32 s10, s3, s7
    s_cmp_lt_u32 s10, 80
    s_cselect_b32 s57, 1, 0
    s_sub_u32 s3, s4, 1
    s_cmp_lt_u32 s3, 2
    s_cselect_b32 s57, s57, 0
    s_cmp_ge_u32 s23, 8
    s_cselect_b32 s57, 2, s57
    s_mul_i32 s3, s6, 12
    s_add_u32 s23, s23, s3
    s_sub_u32 s23, s23, 8
    s_lshl2_add_u32 s3, s57, s4
    s_cmp_eq_u32 s3, 11
    s_cbranch_scc0 L_noxc
    s_getreg_b32 s3, hwreg(HW_REG_XCC_ID, 0, 4)
    s_andn2_b32 s7, s14, 15
    s_or_b32 s3, s3, s7
    v_mov_b32 v101, s3
    s_lshl_b32 s3, s23, 2
    v_mov_b32 v100, s3
    s_mov_b64 exec, 1
    global_store_dword v100, v101, s[42:43] offset:{R_XC} sc1
    s_mov_b64 exec, -1
    L_noxc:''')
    A(f'''v_and_b32 v100, 1, v2
    v_lshl_add_u32 v100, v100, 2, v4
    s_lshl_b32 s3, s10, 3
    v_add_u32 v100, s3, v100
    v_lshlrev_b32 v101, 2, v100
    v_lshlrev_b32 v100, 1, v100
    v_add_u32 v102, {R_MOD + 5*2560}, v101
    v_add_u32 v101, {R_X1}, v101
    v_lshrrev_b32 v103, 1, v2
    v_mul_u32_u24 v103, 2560, v103
    v_and_b32 v104, 1, v2
    v_lshl_add_u32 v103, v104, 4, v103
    s_lshl_b32 s3, s10, 5
    s_add_u32 s3, s3, {R_DN}
    v_add_u32 v103, s3, v103
    v_add_u32 v104, {32*2560}, v103
    v_add_u32 v105, {64*2560}, v103''')
    B0 = 8; AA = 56; DD = 68
    A(f'''v_lshl_add_u32 v84, v4, 3, v6
    s_mul_i32 s3, s4, 96
    v_add_u32 v84, s3, v84
    v_lshl_add_u32 v84, v84, 7, v7
    v_mul_u32_u24 v91, 896, v3
    v_add_u32 v85, v91, v1
    v_mov_b32 v118, 0x07060302
    s_mul_i32 s3, s4, 2048
    s_add_u32 s3, s3, {L_W + 49152}
    v_lshl_add_u32 v119, v2, 3, s3
    v_lshl_add_u32 v133, v1, 2, s3
    v_lshl_add_u32 v133, v4, 4, v133
    v_lshl_add_u32 v134, v3, 3, s3
    v_lshrrev_b32 v135, 1, v1
    v_add_u32 v135, s3, v135
    s_lshr_b32 s3, s4, 1
    s_lshl1_add_u32 s3, s12, s3
    s_mul_i32 s3, s3, {8*896}
    s_add_u32 s3, s3, {R_O + 768}
    v_add_u32 v91, s3, v91
    s_and_b32 s7, s4, 1
    s_mul_i32 s7, s7, 384
    s_add_u32 s3, s3, s7
    s_sub_u32 s3, s3, 768
    v_add_u32 v85, s3, v85
    v_lshrrev_b32 v86, 5, v2
    v_lshl_add_u32 v86, v86, 4, v5
    v_lshlrev_b32 v86, 5, v86
    v_and_b32 v87, 1, v4
    v_lshl_add_u32 v86, v87, 2, v86
    s_lshl_b32 s3, s4, 3
    v_add_u32 v86, s3, v86
    v_lshlrev_b32 v87, 5, v2
    s_mul_i32 s3, s12, 2560
    s_lshl_b32 s7, s13, 8
    s_add_u32 s3, s3, s7
    s_add_u32 s3, s3, {R_P}
    v_lshl_add_u32 v88, v2, 2, s3
    v_mov_b32 v89, 1
    s_lshl_b32 s3, s10, 5
    s_add_u32 s3, s3, {R_DN}
    s_add_u32 s54, s42, s3
    s_addc_u32 s55, s43, 0
    v_mov_b32 v98, 0xffff''')
    A(f'''s_mul_i32 s3, s12, {384*1280}
    s_lshl_b32 s7, s13, 7
    s_add_u32 s3, s3, s7
    s_add_u32 s44, s24, s3
    s_addc_u32 s45, s25, 0
    s_mov_b32 s46, {384*1280}
    v_mul_u32_u24 v72, 1280, v3
    v_add_u32 v72, v72, v1''')
    SE = 3 - WDEF
    def trread(s):
        for ct in range(4):
            for hf in range(2):
                A(f'ds_read_b64_tr_b16 {vr(B0+(s*4+ct)*4+2*hf,2)}, v84 offset:{L_W + (32*s+4*hf)*128 + 32*ct}')
    if SE:
        A(f's_cmp_eq_u32 s4, 0\ns_cbranch_scc0 L_nodma\ns_movk_i32 s7, {L_W}\ns_setprio {DPRIO}')
        stamp(6)
        L = lab('dma'); L2 = lab('dmo')
        A(f's_mov_b32 s56, 0\n{L2}:\ns_mov_b32 s8, 0\n{L}:\ns_mov_b32 m0, s7\ns_add_u32 s7, s7, 1024\nbuffer_load_dwordx4 v72, s[44:47], s56 offen nt lds\ns_add_u32 s56, s56, 10240\ns_waitcnt vmcnt({TWA})')
        A(f's_add_u32 s8, s8, 1\ns_cmp_lt_u32 s8, {4*SE}\ns_cbranch_scc1 {L}')
        A(f's_add_u32 s7, s7, {4096*WDEF}\ns_add_u32 s56, s56, {40960*WDEF}\ns_cmp_lt_u32 s56, {384*1280}\ns_cbranch_scc1 {L2}')
        A(f's_waitcnt vmcnt(0)\nds_write_b32 v0, v89 offset:{L_WRDY}')
        stamp(7)
        A('L_nodma:')
    A('s_setprio 3')
    if SE:
        lds_wait_ge(L_WRDY, 1, 'v0', 'v90', sleep=8)
        for s in range(SE):
            trread(s)
            A('s_waitcnt lgkmcnt(0)')
    if not WDEF: stamp(8)
    A('s_cmp_eq_u32 s57, 1\ns_cbranch_scc0 L_nofin')
    if not SE: lds_wait_ge(L_CQ, 1, 'v0', 'v90', sleep=8)
    A('global_load_ushort v107, v100, s[38:39]')
    A('v_add_u32 v132, 15360, v102')
    L = lab('gb')
    A(f'{L}:\nglobal_load_dword v120, v102, s[42:43] sc1\nglobal_load_dword v121, v132, s[42:43] sc1\ns_waitcnt vmcnt(0)')
    untag(120, 2)
    ortree(['v120', 'v121'], 'v90')
    tag_end('v90', L, 16)
    A('v_add_f32 v106, v120, v121')
    round_list(['v106'], ['v90'])
    A('L_nofin:')
    tailtags()
    def act_dma():
        for n in range(5):
            A(f's_add_u32 m0, s13, {1024*n}\ns_nop 0\nbuffer_load_dwordx4 v{148+n}, s[48:51], 0 offen nt lds')
        A(f's_mov_b64 exec, 31\nglobal_load_dword v167, v153, s[42:43] sc1\nv_add_u32 v153, {R_GU - R_DN}, v153\nglobal_load_dword v167, v153, s[42:43] sc1\ns_mov_b64 exec, -1')
    for n in range(5):
        A(f'v_add_u32 v90, {64*n}, v2\nv_mul_u32_u24 v92, 3277, v90\nv_lshrrev_b32 v92, 16, v92\nv_mul_u32_u24 v92, 960, v92\nv_lshl_add_u32 v{148+n}, v90, 4, v92')
    A(f'''s_min_u32 s23, s23, 95
    s_mul_i32 s3, s23, 20480
    s_mul_i32 s7, s4, 320
    s_add_u32 s3, s3, s7
    s_add_u32 s48, s32, s3
    s_addc_u32 s49, s33, 0
    s_movk_i32 s50, {15*1280 + 320}
    s_mul_i32 s13, s4, 5120
    s_add_u32 s13, s13, {L_DN}
    s_lshl2_add_u32 s3, s23, s4
    s_mul_i32 s12, s3, 640
    s_add_u32 s12, s12, {R_DN}
    v_lshl_add_u32 v153, v2, 7, s12
    v_and_b32 v132, 1, v4
    v_lshl_add_u32 v132, v132, 3, v6
    v_mul_u32_u24 v132, 320, v132
    v_lshrrev_b32 v90, 1, v4
    v_lshl_add_u32 v90, v90, 5, v7
    v_add3_u32 v132, v132, v90, s13
    v_and_b32 v165, 16, v2
    v_lshl_add_u32 v165, v165, 3, v1
    v_lshrrev_b32 v90, 5, v2
    v_mul_u32_u24 v90, 384, v90
    v_add_u32 v165, v165, v90
    v_cmp_eq_u32 vcc, 8, v2
    v_mov_b32 v90, 256
    v_cndmask_b32 v165, v165, v90, vcc
    s_mul_i32 s3, s23, 2560
    s_add_u32 s3, s3, {R_GU}
    v_add_u32 v165, s3, v165
    v_lshlrev_b32 v166, 6, v5
    v_lshl_add_u32 v166, v4, 4, v166
    v_add_u32 v166, s12, v166
    v_lshrrev_b32 v90, 1, v4
    v_and_b32 v92, 1, v2
    v_cmp_eq_u32 s[62:63], v90, v92
    v_lshrrev_b32 v90, 1, v5''')
    for m in range(5):
        A(f'v_cmp_eq_u32 vcc, {m}, v90\ns_and_b64 vcc, vcc, s[62:63]\nv_cndmask_b32 v{160+m}, 0, -1, vcc')
    if TLB:
        A('s_cmp_eq_u32 s4, 2\ns_cbranch_scc0 L_nowarm')
        if TLB == 1: lds_wait_ge(L_CSTAT, 1, 'v0', 'v90', sleep=2)
        A(f's_mul_i32 s3, s59, 896\ns_add_u32 s3, s3, {R_O}\nv_lshl_add_u32 v90, v2, 7, s3\ns_mov_b64 exec, 0x7f\nglobal_load_dword v167, v90, s[42:43] sc1')
        set_exec(1, 1)
        A('global_load_dword v167, v88, s[42:43] sc1\ns_mov_b64 exec, -1\nL_nowarm:')
    if WDEF:
        A(f's_mul_i32 s7, s4, 12288\ns_add_u32 s7, s7, {L_W + 4096*SE}\ns_mul_i32 s56, s4, 122880\ns_add_u32 s56, s56, {40960*SE}')
    ffn_prefetch()
    if ADM:
        A('s_cmp_eq_u32 s57, 2\ns_cbranch_scc0 L_noad')
        if ADM < 9: lds_wait_ge(L_CSTAT, ADM, 'v0', 'v90', sleep=1)
        elif ADM == 9: lds_wait_ge(L_CO, 9, 'v0', 'v90', sleep=1)
        act_dma()
        A('L_noad:')
    for c in range(1, PREP): A(f's_mov_b32 s{15+c}, {c*40960}')
    if CS and not WDEF: lds_wait_ge(L_CSTAT, CS, 'v0', 'v90', sleep=1)
    else: lds_wait_ge(L_CO, 9, 'v0', 'v90', sleep=1)
    if WDEF:
        for k in range(4*WDEF):
            A('s_mov_b32 m0, s7\ns_add_u32 s7, s7, 1024\nbuffer_load_dwordx4 v72, s[44:47], s56 offen nt lds\ns_add_u32 s56, s56, 10240')
        OX = 120
        for s in range(SE, 2):
            A(f's_waitcnt vmcnt({4*(2-s)}) lgkmcnt(0)')
            trread(s)
        if OEARLY < 4: A(f's_waitcnt vmcnt({OEARLY})')
        for s in range(3): A(f'global_load_dwordx4 {vr(OX+4*s,4)}, v85, s[42:43] offset:{128*s} sc1')
        A('global_load_dwordx4 v[108:111], v91, s[42:43] sc1')
        A(f's_waitcnt vmcnt(4) lgkmcnt(0)')
        trread(2)
        stamp(8)
        stamp(9)
        A('s_waitcnt lgkmcnt(0)\ns_branch L_wochk')
    else: stamp(9)
    OX = 120
    if G1:
        L = lab('sw'); D = lab('swd')
        A(f'{L}:\ns_load_dwordx16 s[16:31], s[52:53], 0 glc\ns_load_dwordx4 s[32:35], s[52:53], 64 glc\ns_load_dwordx4 s[44:47], s[52:53], 80 glc\ns_load_dwordx8 s[60:67], s[52:53], 96 glc\ns_waitcnt lgkmcnt(0)')
        A('s_add_u32 s3, s18, s22\ns_add_u32 s7, s26, s30\ns_add_u32 s3, s3, s34\ns_add_u32 s7, s7, s46\ns_add_u32 s3, s3, s62\ns_add_u32 s7, s7, s66\ns_add_u32 s3, s3, s7\ns_lshl_b32 s7, s14, 3')
        A(f's_cmp_eq_u32 s3, s7\ns_cbranch_scc1 {D}')
        spin_tail(L, 0)
        A(f'{D}:')
    else:
        L = lab('wg'); D = lab('wgd')
        set_exec(0x01010101, 0x01010101)
        A(f'{L}:\nglobal_load_dwordx4 v[108:111], v91, s[42:43] sc1\ns_waitcnt vmcnt(0)\nv_cmp_ne_u64 vcc, s[14:15], v[110:111]\ns_bcnt1_i32_b64 s3, vcc\ns_cmp_le_u32 s3, {GATE}\ns_cbranch_scc1 {D}')
        spin_tail(L, 1)
        A(f'{D}:')
    stamp(3)
    if stamps == 1: A('s_mov_b32 s82, s58')
    L = lab('wo'); L2 = lab('wp'); D = lab('woq')
    A(f'{L}:\ns_mov_b64 exec, -1')
    A(f'{L2}:')
    for s in range(3): A(f'global_load_dwordx4 {vr(OX+4*s,4)}, v85, s[42:43] offset:{128*s} sc1')
    A('global_load_dwordx4 v[108:111], v91, s[42:43] sc1')
    A('L_wochk:')
    bt = lambda d, a: f'v_bitop3_b32 {d}, v{OX+a}, v{OX+a+1}, s14 bitop3:0x7e'
    for s in range(3):
        A(f's_waitcnt vmcnt({3-s})\nv_perm_b32 v{136+2*s}, v{OX+4*s+1}, v{OX+4*s}, v118\nv_perm_b32 v{137+2*s}, v{OX+4*s+3}, v{OX+4*s+2}, v118\nds_write_b64 v119, {vr(136+2*s,2)} offset:{512*s}')
        A(bt(f'v{92+2*s}', 4*s) + '\n' + bt(f'v{93+2*s}', 4*s+2))
    A(f'''s_waitcnt vmcnt(0)
    ds_write_b64 v134, v[108:109] offset:1536
    s_mov_b64 s[8:9], exec
    s_mov_b64 exec, -1''')
    for s in range(3): A(f'ds_read_b128 {vr(AA+4*s,4)}, v133 offset:{512*s}')
    A(f'''ds_read_b64 v[142:143], v135 offset:1536
    s_mov_b64 exec, s[8:9]
    v_or3_b32 v90, v92, v93, v94
    v_or3_b32 v95, v95, v96, v97
    v_cmp_ne_u64 s[8:9], v[110:111], s[14:15]
    v_bitop3_b32 v90, v90, v95, v98 bitop3:0xa8
    v_cmp_ne_u32 vcc, 0, v90
    s_or_b64 exec, vcc, s[8:9]
    s_cbranch_scc0 {D}''')
    spin_tail(L2, 0)
    A(f'{D}:\ns_mov_b64 exec, -1\ns_waitcnt lgkmcnt(0)')
    stamp(2)
    if stamps == 1: A('s_sub_u32 s82, s82, s58')
    fac = [f'v_max_f32 v116, v142, v142 quad_perm:[1,0,3,2] {DPPF}',
           f'v_max_f32 v116, v116, v116 quad_perm:[2,3,0,1] {DPPF}',
           f'v_max_f32 v116, v116, v116 row_half_mirror {DPPF}\nv_sub_f32 v116, v142, v116',
           f'v_mul_f32 v116, {H(LOG2E)}, v116\nv_exp_f32 v116, v116',
           f'v_mul_f32 v117, v116, v143',
           f'v_add_f32 v117, v117, v117 quad_perm:[1,0,3,2] {DPPF}',
           f'v_add_f32 v117, v117, v117 quad_perm:[2,3,0,1] {DPPF}',
           f'v_add_f32 v117, v117, v117 row_half_mirror {DPPF}\nv_rcp_f32 v117, v117',
           f'v_mul_f32 v116, v116, v117',
           '\n'.join(f'v_mov_b32 v{112+r}, v116 row_newbcast:{r} row_mask:0x5 bank_mask:0xf' for r in range(2)),
           '\n'.join(f'v_mov_b32 v{112+r}, v116 row_newbcast:{r} row_mask:0x5 bank_mask:0xf' for r in range(2, 4)),
           '\n'.join(f'v_mov_b32 v{112+r}, v116 row_newbcast:{4+r} row_mask:0xa bank_mask:0xf' for r in range(4))]
    k = 0
    for s in range(3):
        for ct in range(4):
            c = '0' if s == 0 else vr(DD+4*ct, 4)
            A(f'v_mfma_f32_16x16x32_bf16 {vr(DD+4*ct,4)}, {vr(AA+4*s,4)}, {vr(B0+(s*4+ct)*4,4)}, {c}')
            A(fac[k]); k += 1
    stamp(10)
    A('s_mov_b32 exec_lo, 0')
    for ct in (0, 2):
        A(f'v_pk_mul_f32 {vr(144+ct,2)}, {vr(DD+4*ct+4,2)}, v[112:113]\nv_pk_fma_f32 {vr(144+ct,2)}, {vr(DD+4*ct+6,2)}, v[114:115], {vr(144+ct,2)}')
    A('s_not_b64 exec, exec')
    for ct in (0, 2):
        A(f'v_pk_mul_f32 {vr(144+ct,2)}, {vr(DD+4*ct,2)}, v[112:113]\nv_pk_fma_f32 {vr(144+ct,2)}, {vr(DD+4*ct+2,2)}, v[114:115], {vr(144+ct,2)}')
    A(f's_mov_b64 exec, -1\nv_add_f32 v{DD}, v144, v145\nv_add_f32 v{DD+8}, v146, v147')
    A(f'ds_write_b32 v86, v{DD} offset:{L_PACC}\nds_write_b32 v86, v{DD+8} offset:{L_PACC + 1024}')
    A(f's_mov_b64 exec, 1\nds_add_rtn_u32 v90, v0, v89 offset:{L_CWO}\ns_mov_b64 exec, -1\nds_read_b128 v[92:95], v87 offset:{L_PACC}\nds_read_b128 v[96:99], v87 offset:{L_PACC+16}')
    A('s_waitcnt lgkmcnt(0)\nv_readfirstlane_b32 s3, v90')
    A('v_pk_add_f32 v[92:93], v[92:93], v[94:95]\nv_pk_add_f32 v[96:97], v[96:97], v[98:99]\nv_pk_add_f32 v[92:93], v[92:93], v[96:97]\nv_add_f32 v92, v92, v93\nv_bfi_b32 v92, 63, s14, v92')
    A('s_cmp_eq_u32 s3, 3\ns_cbranch_scc0 L_wonost\nglobal_store_dword v88, v92, s[42:43] sc1')
    for c in range(1, PREP): A(f'buffer_store_dword v92, v88, s[40:43], s{15+c} offen sc1')
    A('L_wonost:')
    stamp(11)
    A('s_cmp_eq_u32 s57, 2\ns_cbranch_scc1 L_act\ns_cmp_eq_u32 s57, 0\ns_cbranch_scc1 L_fin')
    L = lab('fx'); D = lab('fxd')
    A(f'{L}:\nglobal_load_dword v20, v101, s[42:43] sc1\ns_waitcnt vmcnt(0)\nv_xor_b32 v21, s14, v20\nv_lshlrev_b32 v21, 16, v21\nv_cmp_ne_u32 vcc, 0, v21\ns_cbranch_vccz {D}')
    spin_tail(L, 1)
    A(f'{D}:')
    def pend_poll(loads, regs, init, tmp, pre_sleep=0):
        n = len(loads)
        M = [f's[{62+2*k}:{63+2*k}]' for k in range(n)]
        for k in range(n): A(f's_mov_b64 {M[k]}, {init}')
        if FREE:
            for k in range(n): A(f'v_not_b32 v{regs[k]}, s14')
        L = lab('pl'); D = lab('pld')
        A(f'{L}:')
        for k in range(n): A(f's_mov_b64 exec, {M[k]}\n{loads[k]}')
        A(f's_mov_b64 exec, {init}')
        for k in range(n):
            r = regs[k]
            if not FREE: A(f's_waitcnt vmcnt({n-1-k})')
            elif k == 0: A(f's_waitcnt vmcnt({CAP*n})' + (f'\ns_sleep {FS}' if FS else ''))
            A(f'v_bitop3_b32 v{tmp}, v{r}, v{r+1}, s14 bitop3:0x7e\nv_bitop3_b32 v{tmp+1}, v{r+2}, v{r+3}, s14 bitop3:0x7e\nv_bitop3_b32 v{tmp}, v{tmp}, v{tmp+1}, 15 bitop3:0xa8\nv_cmp_ne_u32 {M[k]}, 0, v{tmp}')
        A(f's_or_b64 s[8:9], {M[0]}, {M[1]}')
        for k in range(2, n): A(f's_or_b64 s[8:9], s[8:9], {M[k]}')
        A(f's_cbranch_scc0 {D}')
        spin_tail(L, 0)
        A(f'{D}:')
    if G4: sgate('s[54:55]', [2560*((k*96)//G4 + (k*5) % (96//G4)) for k in range(G4)], list(range(16, 32)), 15)
    elif FG:
        L = lab('fg'); D = lab('fgd')
        set_exec(FG & 0xffffffff, FG >> 32)
        A(f'{L}:\nglobal_load_dwordx4 v[8:11], v104, s[42:43] sc1\ns_waitcnt vmcnt(0)\nv_bitop3_b32 v90, v8, v9, s14 bitop3:0x7e\nv_bitop3_b32 v91, v10, v11, s14 bitop3:0x7e\nv_bitop3_b32 v90, v90, v91, 63 bitop3:0xa8\nv_cmp_eq_u32 vcc, 0, v90\ns_cbranch_vccnz {D}')
        A(f's_sub_u32 s58, s58, 1\ns_cbranch_scc0 {L}\ns_branch L_fin\n{D}:\ns_mov_b64 exec, -1')
    elif FSL: A(f's_sleep {FSL}')
    L = lab('fi'); D = lab('fid')
    A(f'{L}:')
    for k in range(3): A(f'global_load_dwordx4 {vr(8+4*k,4)}, v{103+k}, s[42:43] sc1')
    A('s_waitcnt vmcnt(1)')
    untag(8, 8)
    A('v_pk_add_f32 v[22:23], v[8:9], v[12:13]\nv_pk_add_f32 v[24:25], v[10:11], v[14:15]\nv_or3_b32 v90, v8, v9, v10\nv_or3_b32 v91, v11, v12, v13\ns_waitcnt vmcnt(0)')
    untag(16, 4)
    A(f'''v_pk_add_f32 v[22:23], v[22:23], v[16:17]
    v_pk_add_f32 v[24:25], v[24:25], v[18:19]
    v_or3_b32 v90, v90, v14, v15
    v_or3_b32 v91, v91, v16, v17
    v_permlane32_swap_b32 v22, v24
    v_permlane32_swap_b32 v23, v25
    v_pk_add_f32 v[22:23], v[22:23], v[24:25]
    v_or3_b32 v90, v90, v18, v19
    v_bitop3_b32 v90, v90, v91, 63 bitop3:0xa8
    v_permlane16_swap_b32 v22, v23
    v_add_f32 v26, v22, v23
    v_cmp_ne_u32 vcc, 0, v90
    s_cbranch_vccz {D}''')
    spin_tail(L, 0)
    A(f'{D}:')
    A(f'v_add_f32 v26, v26, v26 row_ror:2 {DPPF}')
    stamp(12)
    A(f'v_add_f32 v26, v26, v26 row_ror:4 {DPPF}\nv_and_b32 v20, 0xffff0000, v20\nv_add_f32 v26, v26, v26 row_ror:8 {DPPF}')
    A('v_cvt_pk_bf16_f32 v26, v26, v26\nv_and_b32 v26, 0xffff0000, v26\nv_mul_f32 v26, v26, v106\nv_cvt_pk_bf16_f32 v26, v26, v26\nv_and_b32 v26, 0xffff0000, v26')
    A('v_add_f32 v26, v26, v20\nv_cvt_pk_bf16_f32 v26, v26, v26')
    set_exec(0x00030003, 0x00030003)
    A('global_store_short v100, v26, s[38:39]')
    stamp(13)
    A(f's_cmp_eq_u32 s10, 0\ns_cbranch_scc0 L_fin\ns_mov_b64 exec, 1\nv_mov_b32 v40, {R_E}\nv_mov_b32 v42, s14\nv_mov_b32 v43, s15\nglobal_store_dwordx2 v40, v[42:43], s[42:43] sc1')
    A('s_branch L_fin')

    A('L_tailB:')
    lds_wait_ge(L_CQ, 1, 'v0', 'v90', sleep=8)
    calc_t('s12')
    G0 = 8; U0 = 28; WD = 48
    P0 = 100; HA = 100
    A(f'''s_and_b32 s57, s12, 3
    s_mul_i32 s13, s57, 160
    s_mul_i32 s3, s4, 40
    v_lshl_add_u32 v80, v5, 2, s3
    v_add_u32 v81, v80, v4
    v_lshlrev_b32 v85, 1, v81
    v_add_u32 v81, s13, v81
    v_lshlrev_b32 v82, 1, v81
    v_lshlrev_b32 v86, 2, v81
    v_add_u32 v80, s13, v80
    s_add_u32 s44, s42, {R_MOD + 5120}
    s_addc_u32 s45, s43, 0
    s_mov_b32 s46, {2*15360}
    s_movk_i32 s20, 5120
    s_movk_i32 s21, 15360
    s_movk_i32 s22, {15360 + 5120}
    v_mul_u32_u24 v84, 2560, v4
    v_lshl_add_u32 v84, v80, 2, v84
    s_and_b32 s3, s6, {PREP-1}
    s_mul_i32 s3, s3, 40960
    s_add_u32 s3, s3, {R_P}
    s_add_u32 s48, s42, s3
    s_addc_u32 s49, s43, 0
    s_mov_b32 s50, {16*2560}''')
    set_exec(0x03ff03ff, 0x03ff03ff)
    A('global_load_ushort v71, v82, s[16:17]')
    A('s_andn2_b32 s3, s12, 3\ns_add_u32 s3, s3, s4\ns_lshl_b32 s3, s3, 2\nv_mov_b32 v112, s3')
    L = lab('mf')
    A(f'{L}:')
    A(f'global_load_dword v108, v112, s[42:43] offset:{R_XC} sc1')
    for k, (so, off) in enumerate((('0', 0), ('s21', 0), ('0', 2560), ('s21', 2560), ('s20', 0), ('s22', 0))):
        A(f'buffer_load_dword v{100+k}, v86, s[44:47], {so} offen offset:{off} sc1')
    A('s_waitcnt vmcnt(0)')
    untag(100, 6)
    ortree([v(100+i) for i in range(6)], 'v90')
    A('''v_xor_b32 v113, s14, v108
    v_and_b32 v113, -16, v113
    v_min_u32 v113, 1, v113
    v_or_b32 v90, v90, v113''')
    tag_end('v90', L, 16)
    A('v_readfirstlane_b32 s16, v108\ns_getreg_b32 s3, hwreg(HW_REG_XCC_ID, 0, 4)\ns_xor_b32 s16, s16, s3\ns_and_b32 s16, s16, 15')
    for k in range(3): A(f'v_add_f32 v{68+k}, v{100+2*k}, v{101+2*k}')
    round_list(['v68', 'v69', 'v70'], ['v90', 'v91'])
    A('v_lshlrev_b32 v71, 16, v71\nv_add_f32 v70, 1.0, v70')
    round_list(['v70'], ['v90'])
    A(f'''v_mov_b32 v90, 1.0
    ds_write_b16_d16_hi v85, v70 offset:{L_A}
    ds_write_b16_d16_hi v85, v69 offset:{L_A + LAP}
    ds_write_b16_d16_hi v85, v90 offset:{L_A + 5*LAP}
    s_mov_b64 exec, -1
    v_add_u32 v86, {R_X1}, v86''')
    A(f'''v_mul_u32_u24 v72, 3072, v3
    v_and_b32 v73, 16, v2
    v_lshlrev_b32 v73, {1 if SWZ else 8}, v73
    v_and_b32 v73, 32, v73
    s_and_b32 s3, s4, {1 if SWZ else 0}
    s_lshl_b32 s3, s3, 6
    v_or_b32 v73, s3, v73
    v_xor_b32 v73, v73, v1
    v_add_u32 v72, v72, v73
    s_lshr_b32 s3, s12, 2
    s_lshl_b32 s3, s3, 7
    s_lshl_b32 s7, s57, 2
    s_add_u32 s7, s7, s4
    s_mul_i32 s7, s7, {40*3072}
    s_add_u32 s3, s3, s7
    s_add_u32 s44, s28, s3
    s_addc_u32 s45, s29, 0
    s_mov_b32 s46, {40*3072}
    s_add_u32 s52, s30, s3
    s_addc_u32 s53, s31, 0
    s_mov_b32 s54, {40*3072}
    s_mov_b32 s55, 0x20000
    s_mul_i32 s11, s4, 5120
    s_add_u32 s7, s11, {L_W}''')
    A(f'''v_lshl_add_u32 v87, v4, 3, v6
    v_lshl_add_u32 v87, v87, 7, v7
    v_and_b32 v88, 1, v4
    v_lshrrev_b32 v89, 1, v6
    v_lshl_or_b32 v89, v88, 1, v89
    v_and_b32 v89, {3 if SWZ else 0}, v89
    v_xor_b32 v89, s4, v89
    v_lshl_add_u32 v87, v89, 5, v87
    v_mov_b32 v79, 1''')
    if TLB:
        if TLB == 1: lds_wait_ge(L_CSTAT, 1, 'v0', 'v90', sleep=2)
        A(f's_cmp_eq_u32 s4, 2\ns_cbranch_scc0 L_nowarmB\ns_mul_i32 s3, s59, 896\ns_add_u32 s3, s3, {R_O}\nv_lshl_add_u32 v90, v2, 7, s3\ns_mov_b64 exec, 0x7f\nglobal_load_dword v167, v90, s[42:43] sc1\ns_mov_b64 exec, -1\nL_nowarmB:')
    A(f'''v_min_u32 v76, 5, v5
    v_mul_u32_u24 v76, {LAP}, v76
    v_lshl_add_u32 v76, v4, 4, v76
    s_andn2_b32 s3, s12, 3
    s_add_u32 s3, s3, s4
    s_lshl_b32 s3, s3, 2
    s_add_u32 s3, s3, s57
    s_mul_i32 s3, s3, 640
    s_add_u32 s3, s3, {R_GU}
    v_min_u32 v77, 16, v2
    v_lshl_add_u32 v77, v77, 4, s3
    s_movk_i32 s20, 10240
    s_movk_i32 s21, 20480
    s_movk_i32 s22, 30720
    v_cmp_eq_u32 s[34:35], 20, v2
    s_mov_b32 s18, 0x03ff03ff
    s_mov_b32 s19, 0x03ff03ff
    s_and_b32 s17, s14, 0xffff''')
    tailtags()
    lds_wait_ge(L_CO, 9, 'v0', 'v90', sleep=1)
    stamp(6)
    L = lab('dmb')
    A(f'''s_mov_b32 s56, 0
    {L}:
    s_mov_b32 m0, s7
    s_add_u32 s3, s7, 20480
    buffer_load_dwordx4 v72, s[44:47], s56 offen nt lds
    s_mov_b32 m0, s3
    s_add_u32 s7, s7, 1024
    buffer_load_dwordx4 v72, s[52:55], s56 offen nt lds
    v_xor_b32 v72, {64 if SWZ else 0}, v72
    s_add_u32 s56, s56, {8*3072}
    s_cmp_lt_u32 s56, {40*3072}
    s_cbranch_scc1 {L}''')
    def p_loads():
        for i in range(4): A(f'buffer_load_dwordx4 {vr(P0+4*i,4)}, v84, s[48:51], {["0","s20","s21","s22"][i]} offen sc1')
    A(f's_waitcnt vmcnt({PE})\ns_mov_b64 exec, s[18:19]')
    p_loads()
    A(f's_waitcnt vmcnt(4)\ns_mov_b64 exec, 1\nds_add_u32 v0, v79 offset:{L_WRDY}\ns_mov_b64 exec, -1')
    stamp(7)
    lds_wait_ge(L_WRDY, 4, 'v0', 'v90', sleep=0)
    for s in range(5):
        for hf in range(2):
            A(f'ds_read_b64_tr_b16 {vr(G0+4*s+2*hf,2)}, v87 offset:{L_W + (32*s+4*hf)*128}')
            A(f'ds_read_b64_tr_b16 {vr(U0+4*s+2*hf,2)}, v87 offset:{L_W + 20480 + (32*s+4*hf)*128}')
    stamp(8)
    stamp(9)
    A('s_mov_b64 exec, s[18:19]\ns_branch L_pchk')
    L = lab('pp'); D = lab('ppd')
    A(f'{L}:')
    p_loads()
    A('L_pchk:')
    A('s_waitcnt vmcnt(2)')
    untag(P0, 8)
    A(f'v_pk_add_f32 v[96:97], {vr(P0,2)}, {vr(P0+4,2)}\nv_pk_add_f32 v[98:99], {vr(P0+2,2)}, {vr(P0+6,2)}\nv_or3_b32 v90, v100, v101, v102\nv_or3_b32 v91, v103, v104, v105\nv_or3_b32 v90, v90, v106, v107')
    A('s_waitcnt vmcnt(1)')
    untag(P0+8, 4)
    A(f'v_pk_add_f32 v[96:97], v[96:97], {vr(P0+8,2)}\nv_pk_add_f32 v[98:99], v[98:99], {vr(P0+10,2)}\nv_or3_b32 v91, v91, v108, v109\nv_or3_b32 v90, v90, v110, v111')
    A('s_waitcnt vmcnt(0)')
    untag(P0+12, 4)
    A(f'''v_pk_add_f32 v[96:97], v[96:97], {vr(P0+12,2)}
    v_pk_add_f32 v[98:99], v[98:99], {vr(P0+14,2)}
    v_or3_b32 v91, v91, v112, v113
    v_or3_b32 v90, v90, v114, v115
    v_permlane32_swap_b32 v96, v98
    v_permlane32_swap_b32 v97, v99
    v_pk_add_f32 v[96:97], v[96:97], v[98:99]
    v_bitop3_b32 v90, v90, v91, 63 bitop3:0xa8
    v_cmp_ne_u32 vcc, 0, v90
    v_permlane16_swap_b32 v96, v97
    v_add_f32 v96, v96, v97
    v_cvt_pk_bf16_f32 v96, v96, v96
    s_cbranch_vccz {D}''')
    spin_tail(L, PSL)
    A(f'{D}:')
    stamp(10)
    A('''v_and_b32 v96, 0xffff0000, v96
    v_mul_f32 v96, v96, v68
    v_cvt_pk_bf16_f32 v96, v96, v96
    v_and_b32 v96, 0xffff0000, v96
    v_add_f32 v96, v96, v71
    v_cvt_pk_bf16_f32 v96, v96, v96
    v_and_b32 v96, 0xffff0000, v96
    v_mul_f32 v97, v96, v70''')
    A(f'ds_write_b16_d16_hi v85, v96 offset:{L_A + 4*LAP}\nv_and_b32 v98, 0xffff0000, v97\nds_write_b16_d16_hi v85, v97 offset:{L_A + 2*LAP}\nv_sub_f32 v98, v97, v98\nds_write_b16_d16_hi v85, v98 offset:{L_A + 3*LAP}')
    A(f's_mov_b64 exec, 1\nds_add_u32 v0, v79 offset:{L_CA}\ns_mov_b64 exec, -1')
    L = lab('h2'); D = lab('h2d')
    A(f'{L}:\nds_read_b32 v90, v0 offset:{L_CA}')
    for s in range(5): A(f'ds_read_b128 {vr(HA+4*s,4)}, v76 offset:{L_A + 64*s}')
    A(f'L_h2w:\ns_waitcnt lgkmcnt(0)\nv_cmp_gt_u32 vcc, 4, v90\ns_cbranch_vccz {D}')
    spin_tail(L, 0)
    A(f'{D}:')
    for s in range(5):
        A(f'v_mfma_f32_16x16x32_bf16 v[128:131], {vr(HA+4*s,4)}, {vr(HA+4*s,4)}, {"0" if s==0 else "v[128:131]"}')
        A(f'v_mfma_f32_16x16x32_bf16 v[120:123], {vr(HA+4*s,4)}, {vr(G0+4*s,4)}, {"0" if s==0 else "v[120:123]"}')
    for s in range(5):
        A(f'v_mfma_f32_16x16x32_bf16 v[124:127], {vr(HA+4*s,4)}, {vr(U0+4*s,4)}, {"0" if s==0 else "v[124:127]"}')
    A('''v_or_b32 v96, s17, v96
    s_cmp_eq_u32 s16, 0
    s_mov_b64 exec, 0x10ffff
    v_add_f32 v122, v122, v123
    v_mov_b32 v123, s14
    v_cndmask_b32 v120, v120, v128, s[34:35]
    v_cndmask_b32 v121, v121, v129, s[34:35]
    s_cbranch_scc0 L_guslow
    global_store_dwordx4 v77, v[120:123], s[42:43]
    v_add_f32 v126, v126, v127
    v_mov_b32 v127, s14
    s_mov_b64 exec, 0xffff
    global_store_dwordx4 v77, v[124:127], s[42:43] offset:384
    L_gust:''')
    stamp(11)
    A('''s_cmp_lt_u32 s12, 4
    s_cbranch_scc0 L_fin
    s_mov_b64 exec, s[18:19]
    global_store_dword v86, v96, s[42:43] sc1
    s_branch L_fin
    L_guslow:
    global_store_dwordx4 v77, v[120:123], s[42:43] sc1
    v_add_f32 v126, v126, v127
    v_mov_b32 v127, s14
    s_mov_b64 exec, 0xffff
    global_store_dwordx4 v77, v[124:127], s[42:43] offset:384 sc1
    s_branch L_gust''')

    A('L_act:')
    if ADM == 0:
        lds_wait_ge(L_CWO, 4, 'v0', 'v90', sleep=0)
        act_dma()
    def gu_loads():
        for k in range(4): A(f'global_load_dwordx4 {vr(100+4*k,4)}, v165, s[42:43] offset:{640*k} sc1')
    A(f's_mov_b32 s38, 0xff01ff\ns_mov_b32 s39, 0xff00ff\ns_lshl_b32 s11, s14, 2\nv_mov_b32 v93, {H(1/640)}')
    A('s_mov_b64 exec, s[38:39]')
    gu_loads()
    A('s_mov_b64 exec, -1')
    if ADM == 0: A('s_waitcnt vmcnt(4)')
    for s in range(5):
        for hf in range(2):
            A(f'ds_read_b64_tr_b16 {vr(WD+4*s+2*hf,2)}, v132 offset:{4*hf*320 + 64*s}')
    stamp(7)
    A('s_mov_b64 exec, s[38:39]\ns_branch L_guw')
    L = lab('gu'); D = lab('gud')
    A(f'{L}:')
    gu_loads()
    A(f'''L_guw:
    s_waitcnt vmcnt(0)
    v_pk_add_f32 v[140:141], v[100:101], v[104:105]
    v_pk_add_f32 v[142:143], v[108:109], v[112:113]
    v_add3_u32 v90, v103, v107, v111
    v_pk_add_f32 v[140:141], v[140:141], v[142:143]
    v_add_u32 v90, v90, v115
    v_readlane_b32 s8, v140, 8
    v_readlane_b32 s9, v141, 8
    v_cmp_ne_u32 vcc, s11, v90
    s_cbranch_vccz {D}''')
    spin_tail(L, 0)
    A(f'{D}:')
    stamp(13)
    K0 = -2.0 * LOG2E * 0.7978845608028654
    A(f'''v_mul_f32 v94, s9, v93
    v_mul_f32 v95, s8, v93
    v_add_f32 v148, v102, v106
    v_fma_f32 v95, -v94, v94, v95
    v_add_f32 v149, v110, v114
    v_max_f32 v95, 0, v95
    v_cvt_pk_bf16_f32 v90, v94, v95
    v_add_f32 v148, v148, v149
    v_and_b32 v95, 0xffff0000, v90
    v_lshlrev_b32 v94, 16, v90
    v_add_f32 v95, {H(1e-5)}, v95
    v_cvt_pk_bf16_f32 v95, v95, v95
    v_fma_f32 v148, -v94, v140, v148
    v_and_b32 v95, 0xffff0000, v95
    v_sqrt_f32 v95, v95
    v_cvt_pk_bf16_f32 v95, v95, v95
    v_and_b32 v95, 0xffff0000, v95
    v_rcp_f32 v95, v95
    s_mov_b64 exec, -1
    v_fma_f32 v152, v148, v95, v141
    v_cvt_pk_bf16_f32 v152, v152, v152
    v_and_b32 v154, 0xffff0000, v152
    v_and_b32 v152, 0xffff0000, v152
    v_mov_b32 v155, {H(K0)}
    v_permlane32_swap_b32 v152, v154
    v_mul_f32 v153, v152, v152
    v_fmac_f32 v155, {H(K0*0.044715)}, v153
    v_mul_f32 v155, v155, v152
    v_exp_f32 v155, v155
    v_add_f32 v155, 1.0, v155
    v_rcp_f32 v155, v155
    v_mul_f32 v152, v152, v155
    v_cvt_pk_bf16_f32 v152, v152, v152
    v_and_b32 v152, 0xffff0000, v152
    v_mul_f32 v152, v152, v154
    s_waitcnt lgkmcnt(0)''')
    A(f'v_mov_b32 v153, v152 quad_perm:[1,0,3,2] {DPPF}\nv_cvt_pk_bf16_f32 v152, v152, v153')
    for m in range(5):
        F = 100 + 4*m
        for d in range(4): A(f'v_and_b32 v{F+d}, v152, v{160+m} row_newbcast:{2*d} {DPPF}')
        if m >= 1: A(f'v_mfma_f32_16x16x32_bf16 v[156:159], {vr(WD+4*(m-1),4)}, {vr(F-4,4)}, {"0" if m==1 else "v[156:159]"}')
    A(f'v_mfma_f32_16x16x32_bf16 v[156:159], {vr(WD+16,4)}, v[116:119], v[156:159]')
    set_exec(0x03ff03ff, 0x03ff03ff)
    for i in range(4): A(f'v_bfi_b32 v{156+i}, 63, s14, v{156+i}')
    A('global_store_dwordx4 v166, v[156:159], s[42:43] sc1')
    stamp(12)

    A('L_fin:')
    if stamps == 3:
        A('s_cmp_lt_u32 s4, 4\ns_cbranch_scc0 L_end\ns_cmp_ge_u32 s2, 96\ns_cbranch_scc0 L_end\ns_cmp_eq_u32 s57, 1\ns_cbranch_scc0 L_end')
    if stamps:
        A('s_memrealtime s[98:99]\ns_waitcnt vmcnt(0) lgkmcnt(0)\ns_mov_b64 exec, 1')
        A(f's_mul_i32 s3, s2, 12\ns_add_u32 s3, s3, s4\ns_lshl_b32 s3, s3, 6\ns_add_u32 s3, s3, {R_STAMP}\nv_mov_b32 v0, s3')
        for i in range(15): A(f'v_mov_b32 v{8+i}, s{70+2*i}')
        A('v_mov_b32 v23, s58')
        for i in range(4): A(f'global_store_dwordx4 v0, {vr(8+4*i,4)}, s[42:43] offset:{16*i}')
    A('L_end:\ns_endpgm')
    inv = {'s_cbranch_vccz': 's_cbranch_vccnz', 's_cbranch_vccnz': 's_cbranch_vccz', 's_cbranch_scc0': 's_cbranch_scc1', 's_cbranch_scc1': 's_cbranch_scc0'}
    cold = []
    k = 0
    end_i = A.L.index('L_fin:')
    while k < len(A.L):
        p = A.L[k].split()
        if p[0] in inv and len(p) == 2:
            labl = p[1] + ':'
            if labl in A.L[k:k+24]:
                e = A.L.index(labl, k)
                body = A.L[k+1:e]
                if body and body[-1].startswith('s_branch') and 's_branch L_fin' in body:
                    R = lab('rt')
                    cold += [R + ':'] + body
                    A.L[k:e] = [f'{inv[p[0]]} {R}']
        k += 1
    k = A.L.index('L_end:')
    assert A.L[k+1] == 's_endpgm'
    A.L[k+2:k+2] = cold
    A.L.append('L_last:')
    A.L = [l.replace('L_end-L_base-12', 'L_last-L_base-16') for l in A.L]
    import re as _re
    for k, l in enumerate(A.L):
        if l.startswith('s_load_dwordx4 s[40:43], s[0:1], 96'):
            A.L[k] = 's_load_dwordx2 s[40:41], s[0:1], 104'; continue
        m = _re.match(r'global_load_(\w+) (\S+), (v\d+), s\[(42:43|52:53)\](.*)', l)
        if m:
            A.L[k] = f'buffer_load_{m.group(1)} {m.group(2)}, {m.group(3)}, s[40:43], {"0" if m.group(4)=="42:43" else "s52"} offen{m.group(5)}'; continue
        m = _re.match(r'global_store_(\w+) (v\d+), (\S+), s\[(42:43|52:53)\](.*)', l)
        if m:
            A.L[k] = f'buffer_store_{m.group(1)} {m.group(3)}, {m.group(2)}, s[40:43], {"0" if m.group(4)=="42:43" else "s52"} offen{m.group(5)}'; continue
        A.L[k] = _re.sub(r'\bs43\b', 's41', _re.sub(r'\bs42\b', 's40', l.replace('s[42:43]', 's[40:41]')))
    k = A.L.index('s_mov_b32 s47, 0x20000')
    A.L[k:k] = ['s_mov_b32 s42, 0x200000', 's_mov_b32 s43, 0x20000']
    npad = A.pad()
    hdr = open('cdna_kernels/' + NAME + '.s.ref').read().split('; Override launch')[0]
    pre = ''
    if stamps:
        pre = ''.join(f'  s_mov_b32 s{70+2*i}, 0\n' for i in range(15))
    txt = hdr + f'''; @launch grid=(256,1,1) block=(768,1,1) lds={LDS_BYTES}
.amdgcn_target "amdgcn-amd-amdhsa--gfx950"
.text
.globl {NAME}_kernel
.p2align 8
.type {NAME}_kernel,@function
{NAME}_kernel:
''' + pre + A.text() + f'''.section .rodata,"a"
.p2align 6
.amdhsa_kernel {NAME}_kernel
  .amdhsa_next_free_vgpr 168
  .amdhsa_next_free_sgpr 102
  .amdhsa_accum_offset 168
  .amdhsa_group_segment_fixed_size 0
  .amdhsa_kernarg_size 112
  .amdhsa_user_sgpr_count 2
  .amdhsa_user_sgpr_kernarg_segment_ptr 1
  .amdhsa_system_sgpr_workgroup_id_x 1
.end_amdhsa_kernel
'''
    return txt, npad

if __name__ == '__main__':
    kw = {}
    outp = sys.argv[1]
    for a in sys.argv[2:]:
        k, val = a.split('=')
        kw[k] = int(val) if val.lstrip('-').isdigit() else val
    txt, npad = gen(**kw)
    open(outp, 'w').write(txt)
    print('nops inserted', npad)
```

```python
import sys, struct
from asmlib import Asm
NAME = 'adaLN_cond__sliding_block_cached__geglu_ffn__decode'
def f2u(x): return struct.unpack('<I', struct.pack('<f', x))[0]
def H(x): return '0x%08x' % f2u(x)
LOG2E = 1.4426950408889634

R_E = 0
R_XC = 512
R_TK = 1024
R_MOD = R_TK + 32*128
R_MA = R_MOD + 2*15360
R_Q = R_MA + 4*5120
R_O = R_Q + 32*768
R_P = R_O + 256*896
R_X1 = R_P + 8*16*2560
R_DN = R_X1 + 2560
R_GU = R_DN + 96*2560
GU2 = 0x180000 - R_GU
assert R_GU + 96*2560 <= 0x140000
R_STAMP = 0x140000
L_ML = 0; L_H = 128; L_ST2 = 512
L_CSTAT = 1024; L_CO = 1028; L_TRIG = 1032; L_WRDY = 1036; L_CWO = 1040; L_CQ = 1044; L_OK = 1048; L_CA = 1052; L_TRIGB = 1056
L_Q = 1280
L_ST = 1792
L_A = 3072; LAP = 336
L_PACC = 3072
L_OS = 5120
L_TB = 1664
L_F = 1920
L_W = 11264
L_CM = 1060; L_MS = 2048
L_HB = L_W
L_DN = L_W + 57344
LDS_BYTES = L_DN + 20480

DPPF = 'row_mask:0xf bank_mask:0xf'

def gen(T=3, SG=5, TD=2, TKW=4, XB=40, DEARLY=0, DNW=1, IL=1, NF0=3, NOZ=0, GSL=1, SWZ=1, DPOS=0, DW=2, WT=0, FB=0, XAT=0, PSL=0, PE=2, ADM=0, FG=1, FM=3, PREP=2, PFC=0, PFP='nt', CS=4, XA=40, HAW=3, PRIO=1, TN=8, PFF='', GATE=6, FSL=14, FREE=0, CAP=2, DUAL=1, G1=0, G2=0, G4=0, DR=24, FS=0, TLB=2, WDEF=1, WP=4, WPC=7, BP=2, TCH=0, BPC=8, WSL=1, OEARLY=1, DPRIO=1, TRIGM=60, TWA=12, ACK=1, PT=1, stamps=False, TIMEOUT=1 << 20, SLA=8, SLB=4):
    A = Asm()
    uid = [0]
    def lab(p):
        uid[0] += 1
        return f'L_{p}{uid[0]}'
    def stamp(i):
        if stamps == 1 or (stamps and i == 0): A(f's_memrealtime s[{70+2*i}:{71+2*i}]')
    def spin_tail(L, sleep):
        if sleep: A(f's_sleep {sleep}')
        A(f's_sub_u32 s58, s58, 1\ns_cbranch_scc0 {L}\ns_branch L_fin')
    def lds_wait_ge(off, val, vz, vt, sleep=1):
        L = lab('w'); D = lab('d')
        A(f'{L}:\nds_read_b32 {vt}, {vz} offset:{off}\ns_waitcnt lgkmcnt(0)\nv_readfirstlane_b32 s3, {vt}\ns_cmp_ge_u32 s3, {val}\ns_cbranch_scc1 {D}')
        spin_tail(L, sleep)
        A(f'{D}:')
    def maxtree(regs, dst):
        regs = list(regs)
        if len(regs) == 2:
            A(f'v_max_u32 {dst}, {regs[0]}, {regs[1]}'); return
        A(f'v_max3_u32 {dst}, {regs[0]}, {regs[1]}, {regs[2]}')
        rest = regs[3:]
        while len(rest) >= 2:
            A(f'v_max3_u32 {dst}, {dst}, {rest[0]}, {rest[1]}'); rest = rest[2:]
        if rest: A(f'v_max_u32 {dst}, {dst}, {rest[0]}')
    def poll_end(regs, tmp, L, sleep):
        D = lab('ok')
        if len(regs) > 1: maxtree(regs, tmp)
        else: tmp = regs[0]
        A(f'v_cmp_eq_u32 vcc, -1, {tmp}\ns_cbranch_vccz {D}')
        spin_tail(L, sleep)
        A(f'{D}:')
    def allred8(regs, op='v_add_f32'):
        for pat in ('quad_perm:[1,0,3,2]', 'quad_perm:[2,3,0,1]', 'row_half_mirror'):
            for r in regs: A(f'{op} {r}, {r}, {r} {pat} {DPPF}')
    def red_hi(regs, op='v_add_f32'):
        for r in regs: A(f'{op} {r}, {r}, {r} row_ror:8 {DPPF}')
        for r in regs: A(f'{op} {r}, {r}, {r} row_bcast:15 row_mask:0xa bank_mask:0xf')
        for r in regs: A(f'{op} {r}, {r}, {r} row_bcast:31 row_mask:0xc bank_mask:0xf')
    def round_list(regs, tmps):
        regs = list(regs)
        prs = [(regs[i], regs[i+1] if i+1 < len(regs) else None) for i in range(0, len(regs), 2)]
        for k0 in range(0, len(prs), len(tmps)):
            blk = prs[k0:k0+len(tmps)]
            for (a, b), t in zip(blk, tmps): A(f'v_cvt_pk_bf16_f32 {t}, {a}, {b if b else a}')
            for (a, b), t in zip(blk, tmps):
                A(f'v_lshlrev_b32 {a}, 16, {t}')
                if b: A(f'v_and_b32 {b}, 0xffff0000, {t}')
    def masks(dst4, vl, t0, t1):
        A(f'v_and_b32 {t0}, 1, {vl}\nv_lshlrev_b32 {t0}, 4, {t0}\nv_mov_b32 {t1}, 0xffff\nv_lshlrev_b32 {t0}, {t0}, {t1}\nv_bfe_u32 {t1}, {vl}, 1, 2')
        for t in range(4):
            A(f'v_cmp_eq_u32 vcc, {t}, {t1}\nv_cndmask_b32 {dst4[t]}, 0, {t0}, vcc')
    def v(i): return f'v{i}'
    def vr(i, n): return f'v[{i}:{i+n-1}]'
    def set_exec(lo, hi):
        if lo == 0xffffffff and hi == 0xffffffff: A('s_mov_b64 exec, -1')
        elif hi == 0 and lo <= 64: A(f's_mov_b64 exec, {lo}')
        else: A(f's_mov_b32 exec_lo, 0x{lo:x}\ns_mov_b32 exec_hi, 0x{hi:x}')
    def tags():
        A('s_mul_i32 s14, s14, 0x9e3779b1\ns_add_u32 s14, s14, 0x7f4a7c15\ns_mul_i32 s15, s15, 0x85ebca6b\ns_add_u32 s15, s15, 0xc2b2ae35')
        A('s_and_b32 s3, s14, 15\ns_sub_u32 s36, 0, s3\ns_subb_u32 s37, 0, s3')
    def tailtags():
        A('s_and_b32 s3, s14, 63\ns_sub_u32 s36, 0, s3\ns_subb_u32 s37, 0, s3')
    def untag(base, n, dst=None):
        if dst is None: dst = base
        for i in range(0, n, 2): A(f'v_lshl_add_u64 {vr(dst+i,2)}, {vr(base+i,2)}, 0, s[36:37]')
    def ortree(regs, dst):
        regs = list(regs)
        if len(regs) == 2:
            A(f'v_or_b32 {dst}, {regs[0]}, {regs[1]}'); return
        A(f'v_or3_b32 {dst}, {regs[0]}, {regs[1]}, {regs[2]}')
        rest = regs[3:]
        while len(rest) >= 2:
            A(f'v_or3_b32 {dst}, {dst}, {rest[0]}, {rest[1]}'); rest = rest[2:]
        if rest: A(f'v_or_b32 {dst}, {dst}, {rest[0]}')
    def tag_end(tmp, L, sleep, mask=15):
        D = lab('ok')
        A(f'v_and_b32 {tmp}, {mask}, {tmp}\nv_cmp_ne_u32 vcc, 0, {tmp}\ns_cbranch_vccz {D}')
        spin_tail(L, sleep)
        A(f'{D}:')

    A('L_base:')
    stamp(0)
    A(f'''s_load_dwordx16 s[16:31], s[0:1], 0
    s_cmpk_ge_u32 s2, 256
    s_cbranch_scc1 L_end
    v_readfirstlane_b32 s4, v0
    s_lshr_b32 s5, s2, 3
    s_and_b32 s6, s2, 7
    s_lshl2_add_u32 s5, s6, s5
    s_and_b32 s5, s5, 31
    v_lshrrev_b32 v3, 3, v0
    v_and_b32 v1, 7, v0
    v_lshlrev_b32 v1, 4, v1
    s_cmpk_lt_u32 s4, 256
    s_cbranch_scc1 L_pro2
    s_lshl_b32 s3, s5, 9
    s_add_u32 s3, s3, s6
    s_mulk_i32 s3, 24576
    v_mul_u32_u24 v4, 384, v3
    s_add_u32 s7, s3, {28672*384 - 4*3072}
    v_add3_u32 v4, v4, v1, s7
    s_waitcnt lgkmcnt(0)''')
    for t in range(NF0): A(f'global_load_dwordx4 {vr(8+4*t,4)}, v4, s[18:19] offset:{128*t} nt')
    stamp(5)
    A('''L_pro2:
    s_load_dwordx8 s[32:39], s[0:1], 64
    s_load_dwordx4 s[40:43], s[0:1], 96
    v_and_b32 v2, 63, v0
    s_lshr_b32 s4, s4, 6
    v_and_b32 v3, 7, v3
    s_mov_b32 s47, 0x20000
    s_mov_b32 s51, 0x20000''')
    A(f's_mov_b32 s58, {TIMEOUT}')
    if stamps == 1 and not NOZ:
        for i in range(1, 15):
            if i != 5: A(f's_mov_b32 s{70+2*i}, 0')
    A('s_lshl3_add_u32 s59, s5, s6')
    W0 = 8; X0 = 48; D0 = 60; F0 = 64
    A('s_cmp_lt_u32 s4, 4\ns_cbranch_scc0 L_strm')
    A('s_setprio 3\ns_sub_u32 s10, s2, 96\ns_cbranch_scc1 L_cB\ns_cmp_ge_u32 s10, 80\ns_cbranch_scc1 L_rest\ns_cmp_ge_u32 s4, 2\ns_cbranch_scc1 L_cN')
    A(f'''s_mul_i32 s12, s10, 3277
    s_lshr_b32 s12, s12, 16
    s_mul_i32 s7, s12, 20
    s_sub_u32 s13, s10, s7
    s_lshl1_add_u32 s8, s12, s4
    L_rest2:
    v_mul_u32_u24 v72, {10*7680}, v3
    v_add_u32 v72, v72, v1
    s_mul_i32 s3, s8, {80*7680}
    s_lshl_b32 s7, s13, 7
    s_add_u32 s3, s3, s7
    s_mov_b32 s46, {80*7680}
    s_movk_i32 s57, 7680
    v_mul_u32_u24 v74, 20, v3
    s_mul_i32 s7, s8, 160
    v_add_u32 v74, s7, v74
    s_getpc_b64 s[60:61]
    L_pc0:
    s_add_u32 s60, s60, L_cA-L_pc0
    s_addc_u32 s61, s61, 0
    s_waitcnt lgkmcnt(0)
    s_add_u32 s44, s36, s3
    s_addc_u32 s45, s37, 0
    global_load_dwordx4 v[82:85], v74, s[34:35]
    global_load_dword v86, v74, s[34:35] offset:16
    s_cmp_lt_u32 s10, 80
    s_cbranch_scc0 L_cA''')
    A('L_load10:\ns_mov_b32 s56, 0')
    for s in range(10):
        A(f'buffer_load_dwordx4 {vr(W0+4*s,4)}, v72, s[44:47], s56 offen nt')
        if s < 9: A('s_add_u32 s56, s56, s57')
    A('s_setpc_b64 s[60:61]')
    A('L_strm:')

    NPOOL = 512 - 64*SG
    SL = lambda i, t: 8 + (i*3 + t)*4
    G0_ = 128; Q0 = 140; D0_ = 152; F = 164
    S = [v(G0_+g) for g in range(SG)]
    VL = 'v134'; X0_ = 'v135'; X1_ = 'v136'; X2_ = 'v137'; X3_ = 'v138'; X4_ = 'v139'
    if PRIO: A('s_setprio 1')
    A(f'''v_mul_u32_u24 v4, 384, v3
    s_mul_i32 s3, s5, 12582912
    s_add_u32 s3, s3, {28672*384}
    s_lshl3_add_u32 s7, s6, s4
    s_mul_i32 s57, s7, {3072 if IL else SG*3072}
    s_sub_u32 s57, s57, {4*(3072 if IL else SG*3072)}
    s_mov_b32 s56, s57
    v_add_u32 v3, v1, v4
    s_mov_b32 s46, 1572864
    s_mov_b32 s50, 1572864''')
    A(f'''s_add_u32 s44, s18, s3
    s_addc_u32 s45, s19, 0
    s_add_u32 s48, s20, s3
    s_addc_u32 s49, s21, 0''')
    def ld(reg, srd, so, t, throttle=True):
        A(f'buffer_load_dwordx4 {vr(reg,4)}, v3, {srd}, {so} offen offset:{t*128} nt')
        if throttle: A(f's_waitcnt vmcnt({T})')
    KS = 's[44:47]'; VS = 's[48:51]'
    if FB:
        A('s_sub_u32 s13, s2, 96')
        if FB >= 2: A('s_cselect_b32 s13, 0, s13')
        A('s_cmp_lt_u32 s13, 80\ns_cbranch_scc0 L_nb0\ns_barrier\nL_nb0:')
    n = 0
    for g in range(SG):
        for t in range(3):
            n += 1
            if n > NF0: ld(SL(g, t), KS, 's56', t, throttle=(n > T+1))
            if n == T+2: stamp(8)
            if n == T+1:
                for r in S: A(f'v_mov_b32 {r}, 0')
                masks(['v4', 'v5', 'v6', 'v7'], 'v2', X0_, X1_)
                A(f's_lshl_b32 s3, s5, 7\ns_add_u32 s3, s3, {R_TK}\ns_waitcnt lgkmcnt(0)\ns_add_u32 s52, s42, s3\ns_addc_u32 s53, s43, 0')
                A(f's_cmp_lt_u32 s2, 96\ns_movk_i32 s10, {XA}\ns_cselect_b32 s10, {XB}, s10\ns_sub_u32 s10, {NPOOL}, s10')
                if FB: A(f'v_mov_b32 v0, 0\ns_cmp_lt_u32 s13, 80\ns_cbranch_scc1 L_nb1\ns_barrier\nL_nb1:\ns_waitcnt vmcnt({T})')
                else: A(f'v_mov_b32 v0, 0\ns_barrier\ns_waitcnt vmcnt({T})')
        if g < SG-1: A(f's_add_u32 s56, s56, {196608 if IL else 3072}')
    for g in range(SG):
        for t in range(3): ld(SL(SG+g, t), VS, 's57', t, throttle=not (g == SG-1 and t == 2))
        if g < SG-1: A(f's_add_u32 s57, s57, {196608 if IL else 3072}')
    stamp(1)
    if PRIO: A('s_setprio 0')
    lds_wait_ge(L_CQ, 1, 'v0', X0_, sleep=2)
    A(f'ds_read_b64 v[136:137], v0 offset:{L_TB}')
    tick = 's_mov_b32 s12, 1\ns_atomic_add s12, s[52:53], 0 glc'
    if XAT: tick += '\ns_mov_b32 s62, 1\ns_atomic_add s62, s[52:53], 0x80000 glc\ns_mov_b32 s63, 1\ns_atomic_add s63, s[52:53], 0x88000 glc'
    for t in range(3): A(f'ds_read_b128 {vr(Q0+4*t,4)}, v1 offset:{L_Q + 128*t}')
    stamp(2)
    A(f's_waitcnt vmcnt({3*SG}) lgkmcnt(0)\nv_mov_b32 v1, 1\nv_readfirstlane_b32 s14, v136\nv_readfirstlane_b32 s15, v137')
    A(tick)
    for t in range(3):
        for d in range(4):
            for g in range(SG):
                A(f'v_dot2c_f32_bf16 {S[g]}, v{SL(g,t)+d}, v{Q0+4*t+d}')
    allred8(S)
    round_list(S, [X0_, X1_, X2_])
    for r in S: A(f'v_mul_f32 {r}, 0x3d93cd3a, {r}')
    round_list(S, [X0_, X1_, X2_])
    A(f'v_max3_f32 {X0_}, {S[0]}, {S[1]}, {S[2]}')
    for g in range(3, SG): A(f'v_max_f32 {X0_}, {X0_}, {S[g]}')
    red_hi([X0_], 'v_max_f32')
    A(f'v_readlane_b32 s8, {X0_}, 63')
    def take(X, last):
        A(f's_waitcnt lgkmcnt(0)\ns_mov_b32 s11, s12\ns_cmp_lt_u32 s11, {NPOOL}\ns_cbranch_scc0 {last}')
        A(f's_mul_i32 s54, s11, 3072\ns_add_u32 s54, s54, {64*SG*3072}')
        if TD < 3: A(f's_waitcnt vmcnt({TD})')
        for t in range(3): ld(SL(X, t), KS, 's54', t, throttle=False)
        for t in range(3): ld(SL(X+1, t), VS, 's54', t, throttle=False)
        A(f's_waitcnt vmcnt(6)')
    def nexttick():
        Lk = lab('nt')
        A(f's_movk_i32 s12, {NPOOL}\ns_cmp_lt_u32 s11, s10\ns_cbranch_scc0 {Lk}\n{tick}\n{Lk}:')
    for r in S: A(f'v_subrev_f32 {r}, s8, {r}')
    for r in S: A(f'v_mul_f32 {r}, {H(LOG2E)}, {r}')
    for r in S: A(f'v_exp_f32 {r}, {r}')
    A(f'v_add_f32 {VL}, {S[0]}, {S[1]}')
    for g in range(2, SG): A(f'v_add_f32 {VL}, {VL}, {S[g]}')
    for r in S: A(f'v_cvt_pk_bf16_f32 {r}, {r}, {r}')
    stamp(3)
    _e0 = len(A.L)
    A(f'''v_and_b32 v61, 7, v2
    v_lshlrev_b32 v60, 3, v61
    v_lshlrev_b32 v62, 5, v61
    v_and_b32 v63, 16, v2
    s_mul_i32 s3, s4, 768
    v_add3_u32 v56, v62, v63, s3
    v_lshrrev_b32 v62, 5, v2
    v_lshl_add_u32 v56, v62, 3, v56
    s_mul_i32 s3, s59, 896
    s_add_u32 s3, s3, {R_O}
    v_lshl_add_u32 v57, v2, 4, s3
    s_and_b32 s9, s14, 0xffff
    v_mov_b32 v62, 0xffff
    v_lshlrev_b32 v58, 4, v2
    v_lshlrev_b32 v61, 2, v61
    s_lshl_b32 s3, s4, 3
    v_mov_b32 v59, s3
    s_mov_b32 s62, 0x00ff00ff
    s_mov_b32 s63, 0x00ff00ff
    s_waitcnt vmcnt(3)''')
    def mf(slot, first=False, waits=False):
        for t in range(3):
            if waits: A(f's_waitcnt vmcnt({2-t})')
            c = '0' if first else vr(D0_+4*t, 4)
            A(f'v_mfma_f32_16x16x32_bf16 {vr(D0_+4*t,4)}, {vr(F,4)}, {vr(SL(slot,t),4)}, {c}')
    for g in range(SG):
        for t in range(4): A(f'v_and_b32 v{F+t}, {S[g]}, v{4+t}')
        if g < SG-1: mf(SG+g, first=(g == 0))
    take(0, 'L_lastS')
    mf(2*SG-1)
    A('s_branch L_loopA')
    A('L_loop:')
    for X, Y, nm, pv in ((0, 2, 'A', 'B'), (2, 0, 'B', 'A')):
        take(X, f'L_last{pv}')
        mf(Y+1)
        A(f'L_loop{nm}:')
        if TKW >= 3:
            if TKW < 6: A(f's_waitcnt vmcnt({TKW})')
            nexttick()
        A(f'v_mov_b32 {X0_}, 0\nv_mov_b32 {X1_}, 0\ns_waitcnt vmcnt(3)')
        for t in range(3):
            for d in range(0, 4, 2):
                A(f'v_dot2c_f32_bf16 {X0_}, v{SL(X,t)+d}, v{Q0+4*t+d}\nv_dot2c_f32_bf16 {X1_}, v{SL(X,t)+d+1}, v{Q0+4*t+d+1}')
        A(f'v_add_f32 {X0_}, {X0_}, {X1_}')
        allred8([X0_])
        A(f'''v_cvt_pk_bf16_f32 {X0_}, {X0_}, {X0_}
        v_and_b32 {X0_}, 0xffff0000, {X0_}
        v_mul_f32 {X0_}, 0x3d93cd3a, {X0_}
        v_cvt_pk_bf16_f32 {X0_}, {X0_}, {X0_}
        v_and_b32 {X0_}, 0xffff0000, {X0_}
        v_cmp_lt_f32 vcc, s8, {X0_}
        s_cbranch_vccz L_nm{nm}
        s_call_b64 s[60:61], L_newmax
        L_nm{nm}:
        v_subrev_f32 {X0_}, s8, {X0_}
        v_mul_f32 {X0_}, {H(LOG2E)}, {X0_}
        v_exp_f32 {X0_}, {X0_}
        v_add_f32 {VL}, {VL}, {X0_}
        v_cvt_pk_bf16_f32 {X0_}, {X0_}, {X0_}''')
        for t in range(4): A(f'v_and_b32 v{F+t}, {X0_}, v{4+t}')
        if TKW < 3:
            A(f's_waitcnt vmcnt({TKW})')
            nexttick()
    A('s_branch L_loop')
    A('L_newmax:')
    A(f'v_mov_b32 {X1_}, {X0_}')
    red_hi([X1_], 'v_max_f32')
    A(f'v_mov_b32 {X2_}, s8\nv_readlane_b32 s8, {X1_}, 63\nv_subrev_f32 {X2_}, s8, {X2_}\nv_mul_f32 {X2_}, {H(LOG2E)}, {X2_}\nv_exp_f32 {X2_}, {X2_}')
    A(f'v_mul_f32 {VL}, {VL}, {X2_}')
    for i in range(12): A(f'v_mul_f32 v{D0_+i}, v{D0_+i}, {X2_}')
    A('s_setpc_b64 s[60:61]')
    for nm, slot in (('S', 2*SG-1), ('A', 1), ('B', 3)):
        A(f'L_last{nm}:')
        stamp(4)
        A(f's_mov_b64 exec, 1\nds_add_u32 v0, v1 offset:{L_CSTAT}\ns_mov_b64 exec, -1')
        mf(slot, waits=True)
        if nm != 'B': A('s_branch L_epi')
    A('L_epi:')
    stamp(6)
    d = D0_
    A(f'''v_add_f32 {VL}, {VL}, {VL} row_ror:8 {DPPF}
    v_mov_b32 v133, s8
    v_mov_b32 v110, s14
    v_add_f32 {VL}, {VL}, {VL} row_bcast:15 row_mask:0xa bank_mask:0xf
    v_mov_b32 v111, s15
    v_permlane32_swap_b32 v{d}, v{d+2}
    v_add_f32 {VL}, {VL}, {VL} row_bcast:31 row_mask:0xc bank_mask:0xf
    v_permlane32_swap_b32 v{d+1}, v{d+3}
    v_permlane32_swap_b32 v{d+4}, v{d+6}
    v_permlane32_swap_b32 v{d+5}, v{d+7}
    v_permlane32_swap_b32 v{d+8}, v{d+10}
    v_permlane32_swap_b32 v{d+9}, v{d+11}''')
    for t in range(3):
        d = D0_ + 4*t
        A(f'v_add_f32 v{d}, v{d+2}, v{d} row_ror:8 {DPPF}\nv_add_f32 v{d+1}, v{d+3}, v{d+1} row_ror:8 {DPPF}')
    A('s_mov_b64 exec, s[62:63]')
    for t in range(3): A(f'ds_write_b64 v56, {vr(D0_+4*t,2)} offset:{L_OS - 4*768 + 256*t}')
    A(f'''s_lshl_b64 exec, 1, 48
    ds_write2_b32 v59, v133, {VL} offset0:{(L_ST2 - 32)//4} offset1:{(L_ST2 - 32)//4 + 1}
    ds_add_rtn_u32 v6, v0, v1 offset:{L_CO}
    s_mov_b64 exec, -1
    ds_read_b64 v[144:145], v60 offset:{L_ST2}''')
    for w in range(8): A(f'ds_read_b128 {vr(64+4*w,4)}, v58 offset:{L_OS + 768*w}')
    A(f'''s_waitcnt lgkmcnt({0 if stamps == 1 else 8})
    v_readlane_b32 s3, v6, 48
    v_max_f32 v108, v144, v144 quad_perm:[1,0,3,2] {DPPF}
    s_cmp_eq_u32 s3, 7
    s_cbranch_scc0 L_fin
    v_max_f32 v108, v108, v108 quad_perm:[2,3,0,1] {DPPF}
    v_max_f32 v108, v108, v108 row_half_mirror {DPPF}
    v_sub_f32 v144, v144, v108
    v_mul_f32 v144, {H(LOG2E)}, v144
    v_exp_f32 v144, v144
    v_mul_f32 v109, v144, v145''')
    lch = [f'v_add_f32 v109, v109, v109 quad_perm:[1,0,3,2] {DPPF}', f'v_add_f32 v109, v109, v109 quad_perm:[2,3,0,1] {DPPF}', f'v_add_f32 v109, v109, v109 row_half_mirror {DPPF}']
    for w in range(8):
        A(f'v_mov_b32 v{100+w}, v144 row_newbcast:{w} {DPPF}')
        if w in (1, 4, 7): A(lch.pop(0))
    A('s_mov_b32 exec_hi, 0xffff\ns_waitcnt lgkmcnt(0)')
    def fsel(w): return f'{vr(100+(w&~1),2)}', (w & 1)
    for w in (0, 4):
        fr, hi = fsel(w)
        for h2 in (0, 2): A(f'v_pk_mul_f32 {vr(64+4*w+h2,2)}, {vr(64+4*w+h2,2)}, {fr} op_sel:[0,{hi}] op_sel_hi:[1,{hi}]')
    for k in (1, 2, 3):
        for base in (0, 4):
            fr, hi = fsel(base+k)
            for h2 in (0, 2): A(f'v_pk_fma_f32 {vr(64+4*base+h2,2)}, {vr(64+4*(base+k)+h2,2)}, {fr}, {vr(64+4*base+h2,2)} op_sel:[0,{hi},0] op_sel_hi:[1,{hi},1]')
    A('v_pk_add_f32 v[64:65], v[64:65], v[80:81]\nv_pk_add_f32 v[66:67], v[66:67], v[82:83]')
    A('v_cvt_pk_bf16_f32 v64, v64, v65\nv_cvt_pk_bf16_f32 v66, v66, v67\nv_lshl_or_b32 v108, v64, 16, s9\nv_bfi_b32 v109, v62, s9, v64\nv_lshl_or_b32 v110, v66, 16, s9\nv_bfi_b32 v111, v62, s9, v66')
    A('s_mov_b32 exec_hi, 0x1ffff')
    A(f'global_store_dwordx4 v57, v[108:111], s[42:43] sc1\ns_mov_b64 exec, 1\nds_add_u32 v0, v1 offset:{L_CO}')
    stamp(7)
    A('s_branch L_fin')
    if SG < 5:
        import re as _re
        for _k in range(_e0, len(A.L)):
            A.L[_k] = _re.sub(r'\bv(5[6-9]|6[0-3])\b', lambda m: 'v%d' % (int(m.group(1)) + 56), A.L[_k])

    A('L_ctrl:')
    A('L_rest:\ns_cmp_ge_u32 s10, 120\ns_cselect_b32 s12, 1, 0\ns_cselect_b32 s7, 40, 0\ns_sub_u32 s13, s10, 60\ns_sub_u32 s13, s13, s7\ns_lshl2_add_u32 s8, s12, s4\ns_branch L_rest2')
    def calc_t(dst):
        A(f's_and_b32 s3, s2, 7\ns_mul_i32 s3, s3, 3\ns_lshr_b32 s7, s2, 5\ns_add_u32 s3, s3, s7\ns_lshl_b32 s3, s3, 2\ns_bfe_u32 s7, s2, 0x20003\ns_add_u32 {dst}, s3, s7')
    def cstart(bar=True):
        Lk = lab('ci')
        A(f'''v_mov_b32 v0, 0
        v_lshlrev_b32 v75, 4, v2
        v_lshlrev_b32 v80, 2, v2
        v_mov_b32 v79, 1
        s_cmp_eq_u32 s4, 0
        s_cbranch_scc0 {Lk}
        ds_write_b32 v80, v0 offset:1024
        {Lk}:
        s_waitcnt lgkmcnt(0)''')
        if bar: A('s_barrier')
        A(f's_load_dwordx2 s[14:15], s[42:43], {R_E}')
    A('L_cN:')
    cstart()
    A(f'''s_getpc_b64 s[8:9]
    L_pc1:
    s_sub_u32 s8, s8, L_pc1-L_base
    s_subb_u32 s9, s9, 0
    s_lshr_b32 s3, s2, 3
    s_lshl1_add_u32 s3, s3, s4
    s_and_b32 s3, s3, 15
    s_lshl_b32 s3, s3, 10
    v_add_u32 v76, s3, v75
    v_min_u32 v76, L_end-L_base-12, v76
    global_load_dwordx4 v[160:163], v76, s[8:9] {PFF}
    s_waitcnt vmcnt(0) lgkmcnt(0)''')
    tags()
    A('s_branch L_hopB')
    A('L_cA:')
    cstart()
    masks(['v4', 'v5', 'v6', 'v7'], 'v2', 'v60', 'v61')
    A(f'''s_mul_i32 s11, s12, 5120
    s_lshl_b32 s7, s13, 8
    s_add_u32 s11, s11, s7
    s_add_u32 s11, s11, {R_MA}
    s_mov_b32 s54, 1
    s_cmp_lt_u32 s10, 80
    s_cbranch_scc1 L_cA1
    s_mul_i32 s11, s12, 15360
    s_add_u32 s11, s11, s7
    s_add_u32 s11, s11, {R_MOD}
    s_mov_b32 s54, 3
    s_setprio 0
    s_waitcnt vmcnt(0)
    s_call_b64 s[60:61], L_load10
    L_cA1:
    s_waitcnt vmcnt(10)''')
    C = [v(88+i) for i in range(10)]; E = [v(100+i) for i in range(10)]
    for i in range(5): A(f'v_lshlrev_b32 {C[2*i]}, 16, v{82+i}\nv_and_b32 {C[2*i+1]}, 0xffff0000, v{82+i}')
    for i in range(10): A(f'v_mul_f32 {E[i]}, {H(-LOG2E)}, {C[i]}')
    for i in range(10): A(f'v_exp_f32 {E[i]}, {E[i]}')
    for i in range(10): A(f'v_add_f32 {E[i]}, 1.0, {E[i]}')
    RC = [v(112+i) for i in range(10)]; QQ = [v(124+i) for i in range(10)]; RR = [v(136+i) for i in range(10)]
    for i in range(10): A(f'v_rcp_f32 {RC[i]}, {E[i]}')
    for i in range(10): A(f'v_mul_f32 {QQ[i]}, {RC[i]}, {C[i]}')
    for i in range(10): A(f'v_fma_f32 {RR[i]}, -{QQ[i]}, {E[i]}, {C[i]}')
    for i in range(10): A(f'v_fmac_f32 {QQ[i]}, {RR[i]}, {RC[i]}')
    for i in range(10): A(f'v_div_fixup_f32 {QQ[i]}, {QQ[i]}, {E[i]}, {C[i]}')
    for i in range(10): A(f'v_cvt_pk_bf16_f32 v{X0+i}, {QQ[i]}, {QQ[i]}')
    for i in range(4): A(f'v_mov_b32 v{D0+i}, 0')
    A('s_waitcnt lgkmcnt(0)')
    tags()
    stamp(1)
    A('s_waitcnt vmcnt(0)\ns_branch L_mm10')
    W1 = 88; X1r = 128
    A('L_cB:')
    A(f'''v_mul_u32_u24 v72, {10*12288}, v3
    s_mul_i32 s3, s4, {160*12288}
    s_mul_i32 s7, s5, 384
    s_add_u32 s3, s3, s7
    s_lshr_b32 s12, s2, 5
    s_lshl_b32 s7, s12, 7
    s_add_u32 s3, s3, s7
    v_add_u32 v72, v72, v1
    s_mov_b32 s46, {160*12288}
    s_movk_i32 s57, 12288
    v_mul_u32_u24 v73, 20, v2
    v_min_u32 v74, 39, v2
    s_mul_i32 s13, s4, 320
    v_lshl_add_u32 v74, v74, 3, s13''')
    cstart(FB < 2)
    A(f'''s_add_u32 s44, s22, s3
    s_addc_u32 s45, s23, 0
    global_load_dwordx4 v[140:143], v73, s[16:17]
    global_load_dword v144, v73, s[16:17] offset:16
    global_load_dwordx2 v[146:147], v74, s[16:17]''')
    stamp(13)
    A(f'''s_call_b64 s[60:61], L_load10
    s_mov_b32 s56, {80*12288}''')
    for k in range(10):
        A(f'buffer_load_dwordx4 {vr(W1+4*k,4)}, v72, s[44:47], s56 offen nt')
        if k < 9: A('s_add_u32 s56, s56, s57')
    if FB == 2: A('s_barrier')
    A(f'''s_or_b32 s3, s12, s4
    s_cbranch_scc1 L_notk
    s_lshl_b32 s3, s5, 7
    v_mov_b32 v60, s3
    s_mov_b64 exec, 1
    global_store_dword v60, v0, s[42:43] offset:{R_TK} sc1
    s_mov_b64 exec, -1
    L_notk:''')
    masks(['v4', 'v5', 'v6', 'v7'], 'v2', 'v64', 'v65')
    A(f'''s_mul_i32 s11, s5, 768
    s_lshl_b32 s7, s12, 8
    s_add_u32 s11, s11, s7
    s_add_u32 s11, s11, {R_Q}
    v_lshlrev_b32 v74, 1, v74
    s_mov_b32 s54, 3
    v_add_u32 v76, {R_MA}, v74
    v_add_u32 v77, {R_MA + 5120}, v74
    v_add_u32 v78, {R_MA + 10240}, v74
    v_add_u32 v81, {R_MA + 15360}, v74
    v_mul_u32_u24 v73, 40, v3
    s_lshl_b32 s3, s13, 1
    v_add_u32 v73, s3, v73
    s_waitcnt vmcnt(20) lgkmcnt(0)''')
    tags()
    XA = [v(150+i) for i in range(10)]
    for i in range(5):
        A(f'v_lshlrev_b32 {XA[2*i]}, 16, v{140+i}\nv_and_b32 {XA[2*i+1]}, 0xffff0000, v{140+i}')
    XN = ['v160', 'v161', 'v162', 'v163']
    A('v_lshlrev_b32 v160, 16, v146\nv_and_b32 v161, 0xffff0000, v146\nv_lshlrev_b32 v162, 16, v147\nv_and_b32 v163, 0xffff0000, v147')
    A(f'v_add_f32 v60, {XA[0]}, {XA[1]}')
    for i in range(2, 10): A(f'v_add_f32 v60, v60, {XA[i]}')
    allred8(['v60']); red_hi(['v60'])
    A(f'v_mul_f32 v60, {H(1/640)}, v60\nv_readlane_b32 s8, v60, 63')
    for i in range(10): A(f'v_subrev_f32 {XA[i]}, s8, {XA[i]}')
    A(f'v_mul_f32 v61, {XA[0]}, {XA[0]}')
    for i in range(1, 10): A(f'v_fmac_f32 v61, {XA[i]}, {XA[i]}')
    allred8(['v61']); red_hi(['v61'])
    A(f'v_mul_f32 v61, {H(1/640)}, v61')
    round_list(['v60', 'v61'], ['v62'])
    A(f'v_add_f32 v61, {H(1e-5)}, v61')
    round_list(['v61'], ['v62'])
    A('v_sqrt_f32 v61, v61')
    round_list(['v61'], ['v62'])
    A('v_rcp_f32 v61, v61\nv_readlane_b32 s8, v60, 63\nv_readlane_b32 s9, v61, 63')
    for r in XN: A(f'v_subrev_f32 {r}, s8, {r}')
    round_list(XN, ['v62', 'v63'])
    for r in XN: A(f'v_mul_f32 {r}, s9, {r}')
    round_list(XN, ['v62', 'v63'])
    set_exec(0xffffffff, 0xff)
    stamp(1)
    A(f's_waitcnt vmcnt({HAW})')
    stamp(2)
    G = 128
    A(f's_and_b32 s3, s14, {FM}\ns_sub_u32 s36, 0, s3\ns_subb_u32 s37, 0, s3')
    L = lab('ha')
    A(f'{L}:')
    for k in range(8): A(f'global_load_dwordx4 {vr(G+4*k,4)}, {["v76","v77","v78","v81"][k%4]}, s[42:43] offset:{2560*(k//4)} sc1')
    if FB == 3: A('s_cmp_eq_u32 s56, 0\ns_cbranch_scc1 L_nb3\ns_mov_b32 s56, 0\ns_barrier\nL_nb3:')
    A('s_waitcnt vmcnt(0)')
    untag(G, 32)
    ortree([v(G+i) for i in range(32)], 'v60')
    tag_end('v60', L, SLA, FM)
    A('s_and_b32 s3, s14, 15\ns_sub_u32 s36, 0, s3\ns_subb_u32 s37, 0, s3')
    stamp(3)
    for a, b in ((0,1),(2,3),(0,2)):
        for base in (0, 4):
            for h2 in (0, 2): A(f'v_pk_add_f32 {vr(G+4*(base+a)+h2,2)}, {vr(G+4*(base+a)+h2,2)}, {vr(G+4*(base+b)+h2,2)}')
    SA = [v(G+i) for i in range(4)]; CA = [v(G+16+i) for i in range(4)]
    TT = ['v60', 'v61', 'v62', 'v63']
    round_list(CA + SA, TT)
    for r in CA: A(f'v_add_f32 {r}, 1.0, {r}')
    round_list(CA, TT)
    for a, b in zip(CA, XN): A(f'v_mul_f32 {a}, {a}, {b}')
    round_list(CA, TT)
    for a, b in zip(CA, SA): A(f'v_add_f32 {a}, {a}, {b}')
    for r in CA: A(f'v_cvt_pk_bf16_f32 {r}, {r}, {r}')
    A(f'ds_write_b128 v74, v[144:147] offset:{L_HB}\ns_mov_b64 exec, -1')
    for k in range(5): A(f'ds_read_b64 {vr(X1r+2*k,2)}, v73 offset:{L_HB + 320 + 8*k}')
    for k in range(5): A(f'ds_read_b64 {vr(X0+2*k,2)}, v73 offset:{L_HB + 8*k}')
    A('s_waitcnt lgkmcnt(0)')
    for s in range(10):
        F = F0 + 4*(s & 1)
        for t in range(4): A(f'v_and_b32 v{F+t}, v{X1r+s}, v{4+t}')
        c = '0' if s == 0 else vr(D0, 4)
        A(f'v_mfma_f32_16x16x32_bf16 {vr(D0,4)}, {vr(F,4)}, {vr(W1+4*s,4)}, {c}')
    A('L_mm10:')
    for s in range(10):
        F = F0 + 4*(s & 1)
        for t in range(4): A(f'v_and_b32 v{F+t}, v{X0+s}, v{4+t}')
        A(f'v_mfma_f32_16x16x32_bf16 {vr(D0,4)}, {vr(F,4)}, {vr(W0+4*s,4)}, {vr(D0,4)}')
    A('''v_and_b32 v65, 16, v2
    v_lshrrev_b32 v66, 5, v2
    v_lshl_add_u32 v64, v1, 1, v65
    v_lshl_add_u32 v64, v66, 3, v64
    s_lshl_b32 s3, s4, 8
    v_add_u32 v64, s3, v64
    v_add_u32 v67, s11, v80
    s_and_b32 s9, s14, 0xffff''')
    A(f'v_permlane32_swap_b32 v60, v62\nv_permlane32_swap_b32 v61, v63')
    A(f'v_add_f32 v60, v62, v60 row_ror:8 {DPPF}\nv_add_f32 v61, v63, v61 row_ror:8 {DPPF}')
    set_exec(0x00ff00ff, 0x00ff00ff)
    A(f'''ds_write_b64 v64, v[60:61] offset:{L_MS}
    s_mov_b64 exec, 1
    ds_add_rtn_u32 v66, v0, v79 offset:{L_CM}
    s_mov_b64 exec, -1
    ds_read2st64_b32 v[68:69], v80 offset0:{L_MS//256} offset1:{L_MS//256+1}
    ds_read2st64_b32 v[70:71], v80 offset0:{L_MS//256+2} offset1:{L_MS//256+3}
    s_waitcnt lgkmcnt(0)
    v_readfirstlane_b32 s3, v66
    s_cmp_eq_u32 s54, 1
    s_cselect_b32 s7, {FM}, 15
    v_mov_b32 v65, s7
    s_cbranch_scc1 L_two
    v_pk_add_f32 v[68:69], v[68:69], v[70:71]
    L_two:
    v_add_f32 v68, v68, v69
    v_cvt_pk_bf16_f32 v69, v68, v68
    v_bfi_b32 v68, v65, s14, v68
    v_lshl_or_b32 v69, v69, 16, s9
    s_cmp_lt_u32 s2, 96
    s_cselect_b64 vcc, -1, 0
    v_cndmask_b32 v68, v68, v69, vcc
    s_cmp_eq_u32 s3, s54
    s_cbranch_scc0 L_nopub
    global_store_dword v67, v68, s[42:43] sc1
    L_nopub:
    s_setprio 3''')
    stamp(4)
    A('L_hopB:\ns_cmp_eq_u32 s4, 1\ns_cbranch_scc0 L_tail')
    A(f'''s_mul_i32 s3, s5, 768
    s_add_u32 s3, s3, {R_Q}
    v_add_u32 v73, s3, v75
    s_add_u32 s52, s42, s3
    s_addc_u32 s53, s43, 0
    v_mov_b32 v64, s14
    v_mov_b32 v65, s15
    ds_write_b64 v0, v[64:65] offset:{L_TB}
    v_mov_b32 v76, 0x07060302
    v_lshlrev_b32 v74, 3, v2
    s_lshl_b32 s7, s6, 4
    s_add_u32 s52, s52, s7
    s_addc_u32 s53, s53, 0''')
    set_exec(0xffffffff, 0xffff)
    L = lab('hb'); D = lab('hbh')
    A(f'{L}:')
    for k in range(3): A(f's_load_dword s{62+k}, s[52:53], {256*k} glc')
    A(f's_waitcnt lgkmcnt(0)\ns_xor_b32 s62, s62, s14\ns_xor_b32 s63, s63, s14\ns_xor_b32 s64, s64, s14\ns_or_b32 s62, s62, s63\ns_or_b32 s62, s62, s64\ns_and_b32 s62, s62, 0xffff\ns_cbranch_scc0 {D}')
    spin_tail(L, SLB)
    A(f'{D}:')
    stamp(12)
    D = lab('hbd')
    A(f'''global_load_dwordx4 v[84:87], v73, s[42:43] sc1
    s_waitcnt vmcnt(0)
    v_bitop3_b32 v60, v84, v85, s14 bitop3:0x7e
    v_bitop3_b32 v61, v86, v87, s14 bitop3:0x7e
    v_or_b32 v60, v60, v61
    v_lshlrev_b32 v60, 16, v60
    v_cmp_ne_u32 vcc, 0, v60
    s_cbranch_vccz {D}''')
    spin_tail(L, SLB)
    A(f'''{D}:
    v_perm_b32 v84, v85, v84, v76
    v_perm_b32 v85, v87, v86, v76
    ds_write_b64 v74, v[84:85] offset:{L_Q}
    s_mov_b64 exec, 1
    ds_add_u32 v0, v79 offset:{L_CQ}
    s_mov_b64 exec, -1''')
    stamp(5)

    def trig_wait(val, L_TRIG=L_TRIG):
        if val <= 0: return
        L = lab('tg'); D = lab('tgd'); W = lab('tgw')
        A(f's_cmp_eq_u32 s4, 3\ns_cbranch_scc0 {W}\ns_lshl_b32 s8, s5, 7\ns_add_u32 s8, s8, {R_TK}\nds_read_b32 v90, v0 offset:{L_TB}\ns_waitcnt lgkmcnt(0)\nv_readfirstlane_b32 s9, v90')
        A(f'{L}:\ns_load_dword s3, s[42:43], s8 glc\ns_waitcnt lgkmcnt(0)\ns_sub_u32 s3, s3, s9\ns_cmp_ge_u32 s3, {val}\ns_cbranch_scc1 {D}')
        spin_tail(L, 4)
        A(f'{D}:\nv_mov_b32 v90, 1\nds_write_b32 v0, v90 offset:{L_TRIG}\n{W}:')
        lds_wait_ge(L_TRIG, 1, 'v0', 'v90', sleep=2)
    def sgate(base, offs, regs, mask):
        L = lab('sg'); D = lab('sgd')
        A(f'{L}:')
        for o, r in zip(offs, regs): A(f's_load_dword s{r}, {base}, {o} glc')
        A('s_waitcnt lgkmcnt(0)')
        A(f's_xor_b32 s3, s{regs[0]}, s14')
        for r in regs[1:len(offs)]: A(f's_xor_b32 s{r}, s{r}, s14\ns_or_b32 s3, s3, s{r}')
        if mask != -1: A(f's_and_b32 s3, s3, {mask}')
        A(f's_cbranch_scc0 {D}')
        spin_tail(L, 0)
        A(f'{D}:')
    def ffn_prefetch():
        if not PFC: return
        Lk = lab('pf')
        A(f'''s_lshr_b32 s8, s2, 3
        s_lshl2_add_u32 s8, s8, s4
        s_cmp_ge_u32 s8, 120
        s_cbranch_scc1 {Lk}
        s_cmp_lt_u32 s8, 40
        s_cselect_b32 s64, s28, s30
        s_cselect_b32 s65, s29, s31
        s_cselect_b32 s9, 0, 40
        s_cmp_lt_u32 s8, 80
        s_cselect_b32 s64, s64, s32
        s_cselect_b32 s65, s65, s33
        s_cselect_b32 s9, s9, 80
        s_movk_i32 s66, 384
        s_cselect_b32 s67, 3072, s66
        s_cselect_b32 s66, s66, 245760
        s_sub_u32 s8, s8, s9
        s_mul_i32 s8, s8, s67
        s_lshl_b32 s8, s8, 4
        s_mul_i32 s9, s6, s66
        s_add_u32 s8, s8, s9
        v_lshrrev_b32 v165, 2, v2
        v_mul_u32_u24 v165, s67, v165
        v_lshl_add_u32 v165, v7, 4, v165
        s_mov_b32 s66, 1966080
        s_mov_b32 s67, 0x20000''')
        lds_wait_ge(L_CSTAT, PFC, 'v0', 'v90', sleep=1)
        set_exec(0x77777777, 0x77777777)
        A(f'buffer_load_dword v166, v165, s[64:67], s8 offen {PFP}\ns_mov_b64 exec, -1\n{Lk}:')
    A('L_tail:')
    A('v_lshrrev_b32 v4, 4, v2\nv_and_b32 v5, 15, v2\nv_lshrrev_b32 v6, 2, v5\nv_and_b32 v7, 3, v2\nv_lshlrev_b32 v7, 3, v7')
    A('s_cmp_ge_u32 s2, 96\ns_cbranch_scc0 L_tailB')
    A('''s_lshr_b32 s13, s10, 3
    s_and_b32 s12, s2, 7
    s_lshl_b32 s12, s12, 1
    s_cmp_ge_u32 s13, 10
    s_cselect_b32 s3, 10, 0
    s_addc_u32 s12, s12, 0
    s_sub_u32 s13, s13, s3''')
    A(f'''s_lshr_b32 s23, s10, 3
    s_lshr_b32 s3, s10, 5
    s_cmp_eq_u32 s4, 2
    s_cselect_b32 s7, 2, 0
    s_add_u32 s3, s3, s7
    s_lshl3_add_u32 s3, s3, s6
    s_bfe_u32 s7, s10, 0x20003
    s_lshl2_add_u32 s10, s3, s7
    s_cmp_lt_u32 s10, 80
    s_cselect_b32 s57, 1, 0
    s_sub_u32 s3, s4, 1
    s_cmp_lt_u32 s3, 2
    s_cselect_b32 s57, s57, 0
    s_cmp_ge_u32 s23, 8
    s_cselect_b32 s57, 2, s57
    s_mul_i32 s3, s6, 12
    s_add_u32 s23, s23, s3
    s_sub_u32 s23, s23, 8
    s_lshl2_add_u32 s3, s57, s4
    s_cmp_eq_u32 s3, 11
    s_cbranch_scc0 L_noxc
    s_getreg_b32 s3, hwreg(HW_REG_XCC_ID, 0, 4)
    s_andn2_b32 s7, s14, 15
    s_or_b32 s3, s3, s7
    v_mov_b32 v101, s3
    s_lshl_b32 s3, s23, 2
    v_mov_b32 v100, s3
    s_mov_b64 exec, 1
    global_store_dword v100, v101, s[42:43] offset:{R_XC} sc1
    s_mov_b64 exec, -1
    L_noxc:''')
    A(f'''v_and_b32 v100, 1, v2
    v_lshl_add_u32 v100, v100, 2, v4
    s_lshl_b32 s3, s10, 3
    v_add_u32 v100, s3, v100
    v_lshlrev_b32 v101, 2, v100
    v_lshlrev_b32 v100, 1, v100
    v_add_u32 v102, {R_MOD + 5*2560}, v101
    v_add_u32 v101, {R_X1}, v101
    v_lshrrev_b32 v103, 1, v2
    v_mul_u32_u24 v103, 2560, v103
    v_and_b32 v104, 1, v2
    v_lshl_add_u32 v103, v104, 4, v103
    s_lshl_b32 s3, s10, 5
    s_add_u32 s3, s3, {R_DN}
    v_add_u32 v103, s3, v103
    v_add_u32 v104, {32*2560}, v103
    v_add_u32 v105, {64*2560}, v103''')
    B0 = 8; AA = 56; DD = 68
    A(f'''v_lshl_add_u32 v84, v4, 3, v6
    s_mul_i32 s3, s4, 96
    v_add_u32 v84, s3, v84
    v_lshl_add_u32 v84, v84, 7, v7
    v_mul_u32_u24 v91, 896, v3
    v_add_u32 v85, v91, v1
    v_mov_b32 v118, 0x07060302
    s_mul_i32 s3, s4, 2048
    s_add_u32 s3, s3, {L_W + 49152}
    v_lshl_add_u32 v119, v2, 3, s3
    v_lshl_add_u32 v133, v1, 2, s3
    v_lshl_add_u32 v133, v4, 4, v133
    v_lshl_add_u32 v134, v3, 3, s3
    v_lshrrev_b32 v135, 1, v1
    v_add_u32 v135, s3, v135
    s_lshr_b32 s3, s4, 1
    s_lshl1_add_u32 s3, s12, s3
    s_mul_i32 s3, s3, {8*896}
    s_add_u32 s3, s3, {R_O + 768}
    v_add_u32 v91, s3, v91
    s_and_b32 s7, s4, 1
    s_mul_i32 s7, s7, 384
    s_add_u32 s3, s3, s7
    s_sub_u32 s3, s3, 768
    v_add_u32 v85, s3, v85
    v_lshrrev_b32 v86, 5, v2
    v_lshl_add_u32 v86, v86, 4, v5
    v_lshlrev_b32 v86, 5, v86
    v_and_b32 v87, 1, v4
    v_lshl_add_u32 v86, v87, 2, v86
    s_lshl_b32 s3, s4, 3
    v_add_u32 v86, s3, v86
    v_lshlrev_b32 v87, 5, v2
    s_mul_i32 s3, s12, 2560
    s_lshl_b32 s7, s13, 8
    s_add_u32 s3, s3, s7
    s_add_u32 s3, s3, {R_P}
    v_lshl_add_u32 v88, v2, 2, s3
    v_mov_b32 v89, 1
    s_lshl_b32 s3, s10, 5
    s_add_u32 s3, s3, {R_DN}
    s_add_u32 s54, s42, s3
    s_addc_u32 s55, s43, 0
    v_mov_b32 v98, 0xffff''')
    A(f'''s_mul_i32 s3, s12, {384*1280}
    s_lshl_b32 s7, s13, 7
    s_add_u32 s3, s3, s7
    s_add_u32 s44, s24, s3
    s_addc_u32 s45, s25, 0
    s_mov_b32 s46, {384*1280}
    v_mul_u32_u24 v72, 1280, v3
    v_and_b32 v90, 16, v2
    v_lshlrev_b32 v90, 1, v90
    v_xor_b32 v90, v90, v1
    v_add_u32 v72, v72, v90
    v_and_b32 v90, 1, v4
    v_lshrrev_b32 v92, 1, v6
    v_lshl_or_b32 v90, v90, 1, v92
    v_lshlrev_b32 v90, 5, v90
    v_add_u32 v84, v84, v90
    v_xor_b32 v154, 32, v84
    v_xor_b32 v155, 64, v84
    v_xor_b32 v156, 0x60, v84''')
    SE = 3 - WDEF
    def trread(s):
        for ct in range(4):
            for hf in range(2):
                A(f'ds_read_b64_tr_b16 {vr(B0+(s*4+ct)*4+2*hf,2)}, {["v84","v154","v155","v156"][ct]} offset:{L_W + (32*s+4*hf)*128}')
    if SE:
        A(f's_cmp_eq_u32 s4, 0\ns_cbranch_scc0 L_nodma\ns_movk_i32 s7, {L_W}\ns_setprio {DPRIO}')
        stamp(6)
        L = lab('dma'); L2 = lab('dmo')
        A(f's_mov_b32 s56, 0\n{L2}:\ns_mov_b32 s8, 0\n{L}:\ns_mov_b32 m0, s7\ns_add_u32 s7, s7, 1024\nbuffer_load_dwordx4 v72, s[44:47], s56 offen nt lds\nv_xor_b32 v72, 64, v72\ns_add_u32 s56, s56, 10240\ns_waitcnt vmcnt({TWA})')
        A(f's_add_u32 s8, s8, 1\ns_cmp_lt_u32 s8, {4*SE}\ns_cbranch_scc1 {L}')
        A(f's_add_u32 s7, s7, {4096*WDEF}\ns_add_u32 s56, s56, {40960*WDEF}\ns_cmp_lt_u32 s56, {384*1280}\ns_cbranch_scc1 {L2}')
        A(f's_waitcnt vmcnt(0)\nds_write_b32 v0, v89 offset:{L_WRDY}')
        stamp(7)
        A('L_nodma:')
    A('s_setprio 3')
    if SE:
        lds_wait_ge(L_WRDY, 1, 'v0', 'v90', sleep=8)
        for s in range(SE):
            trread(s)
            A('s_waitcnt lgkmcnt(0)')
    if not WDEF: stamp(8)
    A('s_cmp_eq_u32 s57, 1\ns_cbranch_scc0 L_nofin')
    if not SE: lds_wait_ge(L_CQ, 1, 'v0', 'v90', sleep=8)
    A('global_load_ushort v107, v100, s[38:39]')
    A('v_add_u32 v132, 15360, v102')
    L = lab('gb')
    A(f'{L}:\nglobal_load_dword v120, v102, s[42:43] sc1\nglobal_load_dword v121, v132, s[42:43] sc1\ns_waitcnt vmcnt(0)')
    untag(120, 2)
    ortree(['v120', 'v121'], 'v90')
    tag_end('v90', L, 16)
    A('v_add_f32 v106, v120, v121')
    round_list(['v106'], ['v90'])
    A('L_nofin:')
    tailtags()
    def act_dma():
        for n in range(5):
            A(f's_add_u32 m0, s13, {1024*n}\ns_nop 0\nbuffer_load_dwordx4 v{148+n}, s[48:51], 0 offen nt lds')
        if TCH == 0: act_touch()
    def act_touch():
        A(f's_mov_b64 exec, 31\nglobal_load_dword v167, v153, s[42:43] sc1\nv_add_u32 v153, {R_GU - R_DN}, v153\nglobal_load_dword v167, v153, s[42:43] sc1\ns_mov_b64 exec, -1')
    for n in range(5):
        A(f'v_add_u32 v90, {64*n}, v2\nv_mul_u32_u24 v92, 3277, v90\nv_lshrrev_b32 v92, 16, v92\nv_mul_u32_u24 v92, 960, v92\nv_lshl_add_u32 v{148+n}, v90, 4, v92')
    A(f'''s_min_u32 s23, s23, 95
    s_mul_i32 s3, s23, 20480
    s_mul_i32 s7, s4, 320
    s_add_u32 s3, s3, s7
    s_add_u32 s48, s32, s3
    s_addc_u32 s49, s33, 0
    s_movk_i32 s50, {15*1280 + 320}
    s_mul_i32 s13, s4, 5120
    s_add_u32 s13, s13, {L_DN}
    s_lshl2_add_u32 s3, s23, s4
    s_mul_i32 s12, s3, 640
    s_add_u32 s12, s12, {R_DN}
    v_lshl_add_u32 v153, v2, 7, s12
    v_and_b32 v132, 1, v4
    v_lshl_add_u32 v132, v132, 3, v6
    v_mul_u32_u24 v132, 320, v132
    v_lshrrev_b32 v90, 1, v4
    v_lshl_add_u32 v90, v90, 5, v7
    v_add3_u32 v132, v132, v90, s13
    v_and_b32 v165, 16, v2
    v_lshl_add_u32 v165, v165, 3, v1
    v_lshrrev_b32 v90, 5, v2
    v_mul_u32_u24 v90, 384, v90
    v_add_u32 v165, v165, v90
    v_cmp_eq_u32 vcc, 8, v2
    v_mov_b32 v90, 256
    v_cndmask_b32 v165, v165, v90, vcc
    s_mul_i32 s3, s23, 2560
    s_add_u32 s3, s3, {R_GU}
    v_add_u32 v165, s3, v165
    v_lshlrev_b32 v166, 6, v5
    v_lshl_add_u32 v166, v4, 4, v166
    v_add_u32 v166, s12, v166
    v_lshrrev_b32 v90, 1, v4
    v_and_b32 v92, 1, v2
    v_cmp_eq_u32 s[62:63], v90, v92
    v_lshrrev_b32 v90, 1, v5''')
    for m in range(5):
        A(f'v_cmp_eq_u32 vcc, {m}, v90\ns_and_b64 vcc, vcc, s[62:63]\nv_cndmask_b32 v{160+m}, 0, -1, vcc')
    if TLB:
        A('s_cmp_eq_u32 s4, 2\ns_cbranch_scc0 L_nowarm')
        if TLB == 1: lds_wait_ge(L_CSTAT, 1, 'v0', 'v90', sleep=2)
        A(f's_mul_i32 s3, s59, 896\ns_add_u32 s3, s3, {R_O}\nv_lshl_add_u32 v90, v2, 7, s3\ns_mov_b64 exec, 0x7f\nglobal_load_dword v167, v90, s[42:43] sc1')
        set_exec(1, 1)
        A('global_load_dword v167, v88, s[42:43] sc1\ns_mov_b64 exec, -1\nL_nowarm:')
    if WDEF:
        A(f's_mul_i32 s7, s4, 12288\ns_add_u32 s7, s7, {L_W + 4096*SE}\ns_mul_i32 s56, s4, 122880\ns_add_u32 s56, s56, {40960*SE}')
    ffn_prefetch()
    if ADM:
        A('s_cmp_eq_u32 s57, 2\ns_cbranch_scc0 L_noad')
        if ADM < 9: lds_wait_ge(L_CSTAT, ADM, 'v0', 'v90', sleep=1)
        elif ADM == 9: lds_wait_ge(L_CO, 9, 'v0', 'v90', sleep=1)
        act_dma()
        A('L_noad:')
    if TCH:
        A('s_cmp_eq_u32 s57, 2\ns_cbranch_scc0 L_notch')
        if TCH < 9: lds_wait_ge(L_CSTAT, TCH, 'v0', 'v90', sleep=1)
        act_touch()
        A('L_notch:')
    for c in range(1, PREP): A(f's_mov_b32 s{15+c}, {c*40960}')
    if CS and not WDEF: lds_wait_ge(L_CSTAT, CS, 'v0', 'v90', sleep=1)
    elif WP: lds_wait_ge(L_CSTAT, WPC, 'v0', 'v90', sleep=1)
    if WDEF:
        for k in range(4*WDEF):
            if k == WP: lds_wait_ge(L_CO, 9, 'v0', 'v90', sleep=WSL)
            A('s_mov_b32 m0, s7\ns_add_u32 s7, s7, 1024\nbuffer_load_dwordx4 v72, s[44:47], s56 offen nt lds\nv_xor_b32 v72, 64, v72\ns_add_u32 s56, s56, 10240')
        OX = 120
        for s in range(SE, 2):
            A(f's_waitcnt vmcnt({4*(2-s)}) lgkmcnt(0)')
            trread(s)
        if OEARLY < 4: A(f's_waitcnt vmcnt({OEARLY})')
        for s in range(3): A(f'global_load_dwordx4 {vr(OX+4*s,4)}, v85, s[42:43] offset:{128*s} sc1')
        A('global_load_dwordx4 v[108:111], v91, s[42:43] sc1')
        A(f's_waitcnt vmcnt(4) lgkmcnt(0)')
        trread(2)
        stamp(8)
        stamp(9)
        A('s_waitcnt lgkmcnt(0)\ns_branch L_wochk')
    else: stamp(9)
    OX = 120
    if G1:
        L = lab('sw'); D = lab('swd')
        A(f'{L}:\ns_load_dwordx16 s[16:31], s[52:53], 0 glc\ns_load_dwordx4 s[32:35], s[52:53], 64 glc\ns_load_dwordx4 s[44:47], s[52:53], 80 glc\ns_load_dwordx8 s[60:67], s[52:53], 96 glc\ns_waitcnt lgkmcnt(0)')
        A('s_add_u32 s3, s18, s22\ns_add_u32 s7, s26, s30\ns_add_u32 s3, s3, s34\ns_add_u32 s7, s7, s46\ns_add_u32 s3, s3, s62\ns_add_u32 s7, s7, s66\ns_add_u32 s3, s3, s7\ns_lshl_b32 s7, s14, 3')
        A(f's_cmp_eq_u32 s3, s7\ns_cbranch_scc1 {D}')
        spin_tail(L, 0)
        A(f'{D}:')
    else:
        L = lab('wg'); D = lab('wgd')
        set_exec(0x01010101, 0x01010101)
        A(f'{L}:\nglobal_load_dwordx4 v[108:111], v91, s[42:43] sc1\ns_waitcnt vmcnt(0)\nv_cmp_ne_u64 vcc, s[14:15], v[110:111]\ns_bcnt1_i32_b64 s3, vcc\ns_cmp_le_u32 s3, {GATE}\ns_cbranch_scc1 {D}')
        spin_tail(L, GSL)
        A(f'{D}:')
    stamp(3)
    if stamps == 1: A('s_mov_b32 s82, s58')
    L = lab('wo'); L2 = lab('wp'); D = lab('woq')
    A(f'{L}:\ns_mov_b64 exec, -1')
    A(f'{L2}:')
    for s in range(3): A(f'global_load_dwordx4 {vr(OX+4*s,4)}, v85, s[42:43] offset:{128*s} sc1')
    A('global_load_dwordx4 v[108:111], v91, s[42:43] sc1')
    A('L_wochk:')
    bt = lambda d, a: f'v_bitop3_b32 {d}, v{OX+a}, v{OX+a+1}, s14 bitop3:0x7e'
    for s in range(3):
        A(f's_waitcnt vmcnt({3-s})\nv_perm_b32 v{136+2*s}, v{OX+4*s+1}, v{OX+4*s}, v118\nv_perm_b32 v{137+2*s}, v{OX+4*s+3}, v{OX+4*s+2}, v118\nds_write_b64 v119, {vr(136+2*s,2)} offset:{512*s}')
        A(bt(f'v{92+2*s}', 4*s) + '\n' + bt(f'v{93+2*s}', 4*s+2))
    A(f'''s_waitcnt vmcnt(0)
    ds_write_b64 v134, v[108:109] offset:1536
    s_mov_b64 s[8:9], exec
    s_mov_b64 exec, -1''')
    for s in range(3): A(f'ds_read_b128 {vr(AA+4*s,4)}, v133 offset:{512*s}')
    A(f'''ds_read_b64 v[142:143], v135 offset:1536
    s_mov_b64 exec, s[8:9]
    v_or3_b32 v90, v92, v93, v94
    v_or3_b32 v95, v95, v96, v97
    v_cmp_ne_u64 s[8:9], v[110:111], s[14:15]
    v_bitop3_b32 v90, v90, v95, v98 bitop3:0xa8
    v_cmp_ne_u32 vcc, 0, v90
    s_or_b64 exec, vcc, s[8:9]
    s_cbranch_scc0 {D}''')
    spin_tail(L2, 0)
    A(f'{D}:\ns_mov_b64 exec, -1\ns_waitcnt lgkmcnt(0)')
    stamp(2)
    if stamps == 1: A('s_sub_u32 s82, s82, s58')
    fac = [f'v_max_f32 v116, v142, v142 quad_perm:[1,0,3,2] {DPPF}',
           f'v_max_f32 v116, v116, v116 quad_perm:[2,3,0,1] {DPPF}',
           f'v_max_f32 v116, v116, v116 row_half_mirror {DPPF}\nv_sub_f32 v116, v142, v116',
           f'v_mul_f32 v116, {H(LOG2E)}, v116\nv_exp_f32 v116, v116',
           f'v_mul_f32 v117, v116, v143',
           f'v_add_f32 v117, v117, v117 quad_perm:[1,0,3,2] {DPPF}',
           f'v_add_f32 v117, v117, v117 quad_perm:[2,3,0,1] {DPPF}',
           f'v_add_f32 v117, v117, v117 row_half_mirror {DPPF}\nv_rcp_f32 v117, v117',
           f'v_mul_f32 v116, v116, v117',
           '\n'.join(f'v_mov_b32 v{112+r}, v116 row_newbcast:{r} row_mask:0x5 bank_mask:0xf' for r in range(2)),
           '\n'.join(f'v_mov_b32 v{112+r}, v116 row_newbcast:{r} row_mask:0x5 bank_mask:0xf' for r in range(2, 4)),
           '\n'.join(f'v_mov_b32 v{112+r}, v116 row_newbcast:{4+r} row_mask:0xa bank_mask:0xf' for r in range(4))]
    k = 0
    for s in range(3):
        for ct in range(4):
            c = '0' if s == 0 else vr(DD+4*ct, 4)
            A(f'v_mfma_f32_16x16x32_bf16 {vr(DD+4*ct,4)}, {vr(AA+4*s,4)}, {vr(B0+(s*4+ct)*4,4)}, {c}')
            A(fac[k]); k += 1
    stamp(10)
    A('s_mov_b32 exec_lo, 0')
    for ct in (0, 2):
        A(f'v_pk_mul_f32 {vr(144+ct,2)}, {vr(DD+4*ct+4,2)}, v[112:113]\nv_pk_fma_f32 {vr(144+ct,2)}, {vr(DD+4*ct+6,2)}, v[114:115], {vr(144+ct,2)}')
    A('s_not_b64 exec, exec')
    for ct in (0, 2):
        A(f'v_pk_mul_f32 {vr(144+ct,2)}, {vr(DD+4*ct,2)}, v[112:113]\nv_pk_fma_f32 {vr(144+ct,2)}, {vr(DD+4*ct+2,2)}, v[114:115], {vr(144+ct,2)}')
    A(f's_mov_b64 exec, -1\nv_add_f32 v{DD}, v144, v145\nv_add_f32 v{DD+8}, v146, v147')
    A(f'ds_write_b32 v86, v{DD} offset:{L_PACC}\nds_write_b32 v86, v{DD+8} offset:{L_PACC + 1024}')
    A(f's_mov_b64 exec, 1\nds_add_rtn_u32 v90, v0, v89 offset:{L_CWO}\ns_mov_b64 exec, -1\nds_read_b128 v[92:95], v87 offset:{L_PACC}\nds_read_b128 v[96:99], v87 offset:{L_PACC+16}')
    A('s_waitcnt lgkmcnt(0)\nv_readfirstlane_b32 s3, v90')
    A('v_pk_add_f32 v[92:93], v[92:93], v[94:95]\nv_pk_add_f32 v[96:97], v[96:97], v[98:99]\nv_pk_add_f32 v[92:93], v[92:93], v[96:97]\nv_add_f32 v92, v92, v93\nv_bfi_b32 v92, 63, s14, v92')
    A('s_cmp_eq_u32 s3, 3\ns_cbranch_scc0 L_wonost\nglobal_store_dword v88, v92, s[42:43] sc1')
    for c in range(1, PREP): A(f'buffer_store_dword v92, v88, s[40:43], s{15+c} offen sc1')
    A('L_wonost:')
    stamp(11)
    A('s_cmp_eq_u32 s57, 2\ns_cbranch_scc1 L_act\ns_cmp_eq_u32 s57, 0\ns_cbranch_scc1 L_fin')
    L = lab('fx'); D = lab('fxd')
    A(f'{L}:\nglobal_load_dword v20, v101, s[42:43] sc1\ns_waitcnt vmcnt(0)\nv_xor_b32 v21, s14, v20\nv_lshlrev_b32 v21, 16, v21\nv_cmp_ne_u32 vcc, 0, v21\ns_cbranch_vccz {D}')
    spin_tail(L, 1)
    A(f'{D}:')
    def pend_poll(loads, regs, init, tmp, pre_sleep=0):
        n = len(loads)
        M = [f's[{62+2*k}:{63+2*k}]' for k in range(n)]
        for k in range(n): A(f's_mov_b64 {M[k]}, {init}')
        if FREE:
            for k in range(n): A(f'v_not_b32 v{regs[k]}, s14')
        L = lab('pl'); D = lab('pld')
        A(f'{L}:')
        for k in range(n): A(f's_mov_b64 exec, {M[k]}\n{loads[k]}')
        A(f's_mov_b64 exec, {init}')
        for k in range(n):
            r = regs[k]
            if not FREE: A(f's_waitcnt vmcnt({n-1-k})')
            elif k == 0: A(f's_waitcnt vmcnt({CAP*n})' + (f'\ns_sleep {FS}' if FS else ''))
            A(f'v_bitop3_b32 v{tmp}, v{r}, v{r+1}, s14 bitop3:0x7e\nv_bitop3_b32 v{tmp+1}, v{r+2}, v{r+3}, s14 bitop3:0x7e\nv_bitop3_b32 v{tmp}, v{tmp}, v{tmp+1}, 15 bitop3:0xa8\nv_cmp_ne_u32 {M[k]}, 0, v{tmp}')
        A(f's_or_b64 s[8:9], {M[0]}, {M[1]}')
        for k in range(2, n): A(f's_or_b64 s[8:9], s[8:9], {M[k]}')
        A(f's_cbranch_scc0 {D}')
        spin_tail(L, 0)
        A(f'{D}:')
    if G4: sgate('s[54:55]', [2560*((k*96)//G4 + (k*5) % (96//G4)) for k in range(G4)], list(range(16, 32)), 15)
    elif FG:
        L = lab('fg'); D = lab('fgd')
        set_exec(FG & 0xffffffff, FG >> 32)
        A(f'{L}:\nglobal_load_dwordx4 v[8:11], v104, s[42:43] sc1\ns_waitcnt vmcnt(0)\nv_bitop3_b32 v90, v8, v9, s14 bitop3:0x7e\nv_bitop3_b32 v91, v10, v11, s14 bitop3:0x7e\nv_bitop3_b32 v90, v90, v91, 63 bitop3:0xa8\nv_cmp_eq_u32 vcc, 0, v90\ns_cbranch_vccnz {D}')
        A(f's_sub_u32 s58, s58, 1\ns_cbranch_scc0 {L}\ns_branch L_fin\n{D}:\ns_mov_b64 exec, -1')
    elif FSL: A(f's_sleep {FSL}')
    L = lab('fi'); D = lab('fid')
    A(f'{L}:')
    for k in range(3): A(f'global_load_dwordx4 {vr(8+4*k,4)}, v{103+k}, s[42:43] sc1')
    A('s_waitcnt vmcnt(1)')
    untag(8, 8)
    A('v_pk_add_f32 v[22:23], v[8:9], v[12:13]\nv_pk_add_f32 v[24:25], v[10:11], v[14:15]\nv_or3_b32 v90, v8, v9, v10\nv_or3_b32 v91, v11, v12, v13\ns_waitcnt vmcnt(0)')
    untag(16, 4)
    A(f'''v_pk_add_f32 v[22:23], v[22:23], v[16:17]
    v_pk_add_f32 v[24:25], v[24:25], v[18:19]
    v_or3_b32 v90, v90, v14, v15
    v_or3_b32 v91, v91, v16, v17
    v_permlane32_swap_b32 v22, v24
    v_permlane32_swap_b32 v23, v25
    v_pk_add_f32 v[22:23], v[22:23], v[24:25]
    v_or3_b32 v90, v90, v18, v19
    v_bitop3_b32 v90, v90, v91, 63 bitop3:0xa8
    v_permlane16_swap_b32 v22, v23
    v_add_f32 v26, v22, v23
    v_cmp_ne_u32 vcc, 0, v90
    s_cbranch_vccz {D}''')
    spin_tail(L, 0)
    A(f'{D}:')
    A(f'v_add_f32 v26, v26, v26 row_ror:2 {DPPF}')
    stamp(12)
    A(f'v_add_f32 v26, v26, v26 row_ror:4 {DPPF}\nv_and_b32 v20, 0xffff0000, v20\nv_add_f32 v26, v26, v26 row_ror:8 {DPPF}')
    A('v_cvt_pk_bf16_f32 v26, v26, v26\nv_and_b32 v26, 0xffff0000, v26\nv_mul_f32 v26, v26, v106\nv_cvt_pk_bf16_f32 v26, v26, v26\nv_and_b32 v26, 0xffff0000, v26')
    A('v_add_f32 v26, v26, v20\nv_cvt_pk_bf16_f32 v26, v26, v26')
    set_exec(0x00030003, 0x00030003)
    A('global_store_short v100, v26, s[38:39]')
    stamp(13)
    A(f's_cmp_eq_u32 s10, 0\ns_cbranch_scc0 L_fin\ns_mov_b64 exec, 1\nv_mov_b32 v40, {R_E}\nv_mov_b32 v42, s14\nv_mov_b32 v43, s15\nglobal_store_dwordx2 v40, v[42:43], s[42:43] sc1')
    A('s_branch L_fin')

    A('L_tailB:')
    lds_wait_ge(L_CQ, 1, 'v0', 'v90', sleep=8)
    calc_t('s12')
    G0 = 8; U0 = 28; WD = 48
    P0 = 100; HA = 100
    A(f'''s_and_b32 s57, s12, 3
    s_mul_i32 s13, s57, 160
    s_mul_i32 s3, s4, 40
    v_lshl_add_u32 v80, v5, 2, s3
    v_add_u32 v81, v80, v4
    v_lshlrev_b32 v85, 1, v81
    v_add_u32 v81, s13, v81
    v_lshlrev_b32 v82, 1, v81
    v_lshlrev_b32 v86, 2, v81
    v_add_u32 v80, s13, v80
    s_add_u32 s44, s42, {R_MOD + 5120}
    s_addc_u32 s45, s43, 0
    s_mov_b32 s46, {2*15360}
    s_movk_i32 s20, 5120
    s_movk_i32 s21, 15360
    s_movk_i32 s22, {15360 + 5120}
    v_mul_u32_u24 v84, 2560, v4
    v_lshl_add_u32 v84, v80, 2, v84
    s_and_b32 s3, s6, {PREP-1}
    s_mul_i32 s3, s3, 40960
    s_add_u32 s3, s3, {R_P}
    s_add_u32 s48, s42, s3
    s_addc_u32 s49, s43, 0
    s_mov_b32 s50, {16*2560}''')
    set_exec(0x03ff03ff, 0x03ff03ff)
    A('global_load_ushort v71, v82, s[16:17]')
    A('s_andn2_b32 s3, s12, 3\ns_add_u32 s3, s3, s4\ns_lshl_b32 s3, s3, 2\nv_mov_b32 v112, s3')
    L = lab('mf')
    A(f'{L}:')
    A(f'global_load_dword v108, v112, s[42:43] offset:{R_XC} sc1')
    for k, (so, off) in enumerate((('0', 0), ('s21', 0), ('0', 2560), ('s21', 2560), ('s20', 0), ('s22', 0))):
        A(f'buffer_load_dword v{100+k}, v86, s[44:47], {so} offen offset:{off} sc1')
    A('s_waitcnt vmcnt(0)')
    untag(100, 6)
    ortree([v(100+i) for i in range(6)], 'v90')
    A('''v_xor_b32 v113, s14, v108
    v_and_b32 v113, -16, v113
    v_min_u32 v113, 1, v113
    v_or_b32 v90, v90, v113''')
    tag_end('v90', L, 16)
    A('v_readfirstlane_b32 s16, v108\ns_getreg_b32 s3, hwreg(HW_REG_XCC_ID, 0, 4)\ns_xor_b32 s16, s16, s3\ns_and_b32 s16, s16, 15')
    for k in range(3): A(f'v_add_f32 v{68+k}, v{100+2*k}, v{101+2*k}')
    round_list(['v68', 'v69', 'v70'], ['v90', 'v91'])
    A('v_lshlrev_b32 v71, 16, v71\nv_add_f32 v70, 1.0, v70')
    round_list(['v70'], ['v90'])
    A(f'''v_mov_b32 v90, 1.0
    ds_write_b16_d16_hi v85, v70 offset:{L_A}
    ds_write_b16_d16_hi v85, v69 offset:{L_A + LAP}
    ds_write_b16_d16_hi v85, v90 offset:{L_A + 5*LAP}
    s_mov_b64 exec, -1
    v_add_u32 v86, {R_X1}, v86''')
    A(f'''v_mul_u32_u24 v72, 3072, v3
    v_and_b32 v73, 16, v2
    v_lshlrev_b32 v73, {1 if SWZ else 8}, v73
    v_and_b32 v73, 32, v73
    s_and_b32 s3, s4, {1 if SWZ else 0}
    s_lshl_b32 s3, s3, 6
    v_or_b32 v73, s3, v73
    v_xor_b32 v73, v73, v1
    v_add_u32 v72, v72, v73
    s_lshr_b32 s3, s12, 2
    s_lshl_b32 s3, s3, 7
    s_lshl_b32 s7, s57, 2
    s_add_u32 s7, s7, s4
    s_mul_i32 s7, s7, {40*3072}
    s_add_u32 s3, s3, s7
    s_add_u32 s44, s28, s3
    s_addc_u32 s45, s29, 0
    s_mov_b32 s46, {40*3072}
    s_add_u32 s52, s30, s3
    s_addc_u32 s53, s31, 0
    s_mov_b32 s54, {40*3072}
    s_mov_b32 s55, 0x20000
    s_mul_i32 s11, s4, 5120
    s_add_u32 s7, s11, {L_W}''')
    A(f'''v_lshl_add_u32 v87, v4, 3, v6
    v_lshl_add_u32 v87, v87, 7, v7
    v_and_b32 v88, 1, v4
    v_lshrrev_b32 v89, 1, v6
    v_lshl_or_b32 v89, v88, 1, v89
    v_and_b32 v89, {3 if SWZ else 0}, v89
    v_xor_b32 v89, s4, v89
    v_lshl_add_u32 v87, v89, 5, v87
    v_mov_b32 v79, 1''')
    if TLB:
        if TLB == 1: lds_wait_ge(L_CSTAT, 1, 'v0', 'v90', sleep=2)
        A(f's_cmp_eq_u32 s4, 2\ns_cbranch_scc0 L_nowarmB\ns_mul_i32 s3, s59, 896\ns_add_u32 s3, s3, {R_O}\nv_lshl_add_u32 v90, v2, 7, s3\ns_mov_b64 exec, 0x7f\nglobal_load_dword v167, v90, s[42:43] sc1\ns_mov_b64 exec, -1\nL_nowarmB:')
    A(f'''v_min_u32 v76, 5, v5
    v_mul_u32_u24 v76, {LAP}, v76
    v_lshl_add_u32 v76, v4, 4, v76
    s_andn2_b32 s3, s12, 3
    s_add_u32 s3, s3, s4
    s_lshl_b32 s3, s3, 2
    s_add_u32 s3, s3, s57
    s_mul_i32 s3, s3, 640
    s_add_u32 s3, s3, {R_GU}
    v_min_u32 v77, 16, v2
    v_lshl_add_u32 v77, v77, 4, s3
    s_movk_i32 s20, 10240
    s_movk_i32 s21, 20480
    s_movk_i32 s22, 30720
    v_cmp_eq_u32 s[34:35], 20, v2
    s_mov_b32 s18, 0x03ff03ff
    s_mov_b32 s19, 0x03ff03ff
    s_and_b32 s17, s14, 0xffff''')
    tailtags()
    A('s_mov_b32 s56, 0')
    if BP: lds_wait_ge(L_CSTAT, BPC, 'v0', 'v90', sleep=1)
    for n in range(5):
        if n == BP:
            lds_wait_ge(L_CO, 9, 'v0', 'v90', sleep=1)
            stamp(6)
        A(f'''s_mov_b32 m0, s7
        s_add_u32 s3, s7, 20480
        buffer_load_dwordx4 v72, s[44:47], s56 offen nt lds
        s_mov_b32 m0, s3
        s_add_u32 s7, s7, 1024
        buffer_load_dwordx4 v72, s[52:55], s56 offen nt lds''')
        if n < 4: A(f'v_xor_b32 v72, {64 if SWZ else 0}, v72\ns_add_u32 s56, s56, {8*3072}')
    def p_loads():
        for i in range(4): A(f'buffer_load_dwordx4 {vr(P0+4*i,4)}, v84, s[48:51], {["0","s20","s21","s22"][i]} offen sc1')
    A(f's_waitcnt vmcnt({PE})\ns_mov_b64 exec, s[18:19]')
    p_loads()
    A(f's_waitcnt vmcnt(4)\ns_mov_b64 exec, 1\nds_add_u32 v0, v79 offset:{L_WRDY}\ns_mov_b64 exec, -1')
    stamp(7)
    lds_wait_ge(L_WRDY, 4, 'v0', 'v90', sleep=0)
    for s in range(5):
        for hf in range(2):
            A(f'ds_read_b64_tr_b16 {vr(G0+4*s+2*hf,2)}, v87 offset:{L_W + (32*s+4*hf)*128}')
            A(f'ds_read_b64_tr_b16 {vr(U0+4*s+2*hf,2)}, v87 offset:{L_W + 20480 + (32*s+4*hf)*128}')
    stamp(8)
    stamp(9)
    A('s_mov_b64 exec, s[18:19]\ns_branch L_pchk')
    L = lab('pp'); D = lab('ppd')
    A(f'{L}:')
    p_loads()
    A('L_pchk:')
    A('s_waitcnt vmcnt(2)')
    untag(P0, 8)
    A(f'v_pk_add_f32 v[96:97], {vr(P0,2)}, {vr(P0+4,2)}\nv_pk_add_f32 v[98:99], {vr(P0+2,2)}, {vr(P0+6,2)}\nv_or3_b32 v90, v100, v101, v102\nv_or3_b32 v91, v103, v104, v105\nv_or3_b32 v90, v90, v106, v107')
    A('s_waitcnt vmcnt(1)')
    untag(P0+8, 4)
    A(f'v_pk_add_f32 v[96:97], v[96:97], {vr(P0+8,2)}\nv_pk_add_f32 v[98:99], v[98:99], {vr(P0+10,2)}\nv_or3_b32 v91, v91, v108, v109\nv_or3_b32 v90, v90, v110, v111')
    A('s_waitcnt vmcnt(0)')
    untag(P0+12, 4)
    A(f'''v_pk_add_f32 v[96:97], v[96:97], {vr(P0+12,2)}
    v_pk_add_f32 v[98:99], v[98:99], {vr(P0+14,2)}
    v_or3_b32 v91, v91, v112, v113
    v_or3_b32 v90, v90, v114, v115
    v_permlane32_swap_b32 v96, v98
    v_permlane32_swap_b32 v97, v99
    v_pk_add_f32 v[96:97], v[96:97], v[98:99]
    v_bitop3_b32 v90, v90, v91, 63 bitop3:0xa8
    v_cmp_ne_u32 vcc, 0, v90
    v_permlane16_swap_b32 v96, v97
    v_add_f32 v96, v96, v97
    v_cvt_pk_bf16_f32 v96, v96, v96
    s_cbranch_vccz {D}''')
    spin_tail(L, PSL)
    A(f'{D}:')
    stamp(10)
    A('''v_and_b32 v96, 0xffff0000, v96
    v_mul_f32 v96, v96, v68
    v_cvt_pk_bf16_f32 v96, v96, v96
    v_and_b32 v96, 0xffff0000, v96
    v_add_f32 v96, v96, v71
    v_cvt_pk_bf16_f32 v96, v96, v96
    v_and_b32 v96, 0xffff0000, v96
    v_mul_f32 v97, v96, v70''')
    A(f'ds_write_b16_d16_hi v85, v96 offset:{L_A + 4*LAP}\nv_and_b32 v98, 0xffff0000, v97\nds_write_b16_d16_hi v85, v97 offset:{L_A + 2*LAP}\nv_sub_f32 v98, v97, v98\nds_write_b16_d16_hi v85, v98 offset:{L_A + 3*LAP}')
    A(f's_mov_b64 exec, 1\nds_add_u32 v0, v79 offset:{L_CA}\ns_mov_b64 exec, -1')
    L = lab('h2'); D = lab('h2d')
    A(f'{L}:\nds_read_b32 v90, v0 offset:{L_CA}')
    for s in range(5): A(f'ds_read_b128 {vr(HA+4*s,4)}, v76 offset:{L_A + 64*s}')
    A(f'L_h2w:\ns_waitcnt lgkmcnt(0)\nv_cmp_gt_u32 vcc, 4, v90\ns_cbranch_vccz {D}')
    spin_tail(L, 0)
    A(f'{D}:')
    for s in range(5):
        A(f'v_mfma_f32_16x16x32_bf16 v[128:131], {vr(HA+4*s,4)}, {vr(HA+4*s,4)}, {"0" if s==0 else "v[128:131]"}')
        A(f'v_mfma_f32_16x16x32_bf16 v[120:123], {vr(HA+4*s,4)}, {vr(G0+4*s,4)}, {"0" if s==0 else "v[120:123]"}')
    for s in range(5):
        A(f'v_mfma_f32_16x16x32_bf16 v[124:127], {vr(HA+4*s,4)}, {vr(U0+4*s,4)}, {"0" if s==0 else "v[124:127]"}')
    A('''v_or_b32 v96, s17, v96
    s_cmp_eq_u32 s16, 0
    s_mov_b64 exec, 0x10ffff
    v_add_f32 v122, v122, v123
    v_mov_b32 v123, s14
    v_cndmask_b32 v120, v120, v128, s[34:35]
    v_cndmask_b32 v121, v121, v129, s[34:35]
    s_cbranch_scc0 L_guslow
    global_store_dwordx4 v77, v[120:123], s[42:43]
    v_add_f32 v126, v126, v127
    v_mov_b32 v127, s14
    s_mov_b64 exec, 0xffff
    global_store_dwordx4 v77, v[124:127], s[42:43] offset:384
    L_gust:''')
    stamp(11)
    A('''s_cmp_lt_u32 s12, 4
    s_cbranch_scc0 L_fin
    s_mov_b64 exec, s[18:19]
    global_store_dword v86, v96, s[42:43] sc1
    s_branch L_fin
    L_guslow:
    global_store_dwordx4 v77, v[120:123], s[42:43] sc1
    v_add_f32 v126, v126, v127
    v_mov_b32 v127, s14
    s_mov_b64 exec, 0xffff
    global_store_dwordx4 v77, v[124:127], s[42:43] offset:384 sc1
    s_branch L_gust''')

    A('L_act:')
    if ADM == 0:
        lds_wait_ge(L_CWO, 4, 'v0', 'v90', sleep=0)
        act_dma()
    def gu_loads():
        for k in range(4): A(f'global_load_dwordx4 {vr(100+4*k,4)}, v165, s[42:43] offset:{640*k} sc1')
    A(f's_mov_b32 s38, 0xff01ff\ns_mov_b32 s39, 0xff00ff\ns_lshl_b32 s11, s14, 2\nv_mov_b32 v93, {H(1/640)}')
    A('s_mov_b64 exec, s[38:39]')
    gu_loads()
    A('s_mov_b64 exec, -1')
    if ADM == 0: A('s_waitcnt vmcnt(4)')
    for s in range(5):
        for hf in range(2):
            A(f'ds_read_b64_tr_b16 {vr(WD+4*s+2*hf,2)}, v132 offset:{4*hf*320 + 64*s}')
    stamp(7)
    A('s_mov_b64 exec, s[38:39]\ns_branch L_guw')
    L = lab('gu'); D = lab('gud')
    A(f'{L}:')
    gu_loads()
    A(f'''L_guw:
    s_waitcnt vmcnt(0)
    v_pk_add_f32 v[140:141], v[100:101], v[104:105]
    v_pk_add_f32 v[142:143], v[108:109], v[112:113]
    v_add3_u32 v90, v103, v107, v111
    v_pk_add_f32 v[140:141], v[140:141], v[142:143]
    v_add_u32 v90, v90, v115
    v_readlane_b32 s8, v140, 8
    v_readlane_b32 s9, v141, 8
    v_cmp_ne_u32 vcc, s11, v90
    s_cbranch_vccz {D}''')
    spin_tail(L, 0)
    A(f'{D}:')
    stamp(13)
    K0 = -2.0 * LOG2E * 0.7978845608028654
    A(f'''v_mul_f32 v94, s9, v93
    v_mul_f32 v95, s8, v93
    v_add_f32 v148, v102, v106
    v_fma_f32 v95, -v94, v94, v95
    v_add_f32 v149, v110, v114
    v_max_f32 v95, 0, v95
    v_cvt_pk_bf16_f32 v90, v94, v95
    v_add_f32 v148, v148, v149
    v_and_b32 v95, 0xffff0000, v90
    v_lshlrev_b32 v94, 16, v90
    v_add_f32 v95, {H(1e-5)}, v95
    v_cvt_pk_bf16_f32 v95, v95, v95
    v_fma_f32 v148, -v94, v140, v148
    v_and_b32 v95, 0xffff0000, v95
    v_sqrt_f32 v95, v95
    v_cvt_pk_bf16_f32 v95, v95, v95
    v_and_b32 v95, 0xffff0000, v95
    v_rcp_f32 v95, v95
    s_mov_b64 exec, -1
    v_fma_f32 v152, v148, v95, v141
    v_cvt_pk_bf16_f32 v152, v152, v152
    v_and_b32 v154, 0xffff0000, v152
    v_and_b32 v152, 0xffff0000, v152
    v_mov_b32 v155, {H(K0)}
    v_permlane32_swap_b32 v152, v154
    v_mul_f32 v153, v152, v152
    v_fmac_f32 v155, {H(K0*0.044715)}, v153
    v_mul_f32 v155, v155, v152
    v_exp_f32 v155, v155
    v_add_f32 v155, 1.0, v155
    v_rcp_f32 v155, v155
    v_mul_f32 v152, v152, v155
    v_cvt_pk_bf16_f32 v152, v152, v152
    v_and_b32 v152, 0xffff0000, v152
    v_mul_f32 v152, v152, v154
    s_waitcnt lgkmcnt(0)''')
    A(f'v_mov_b32 v153, v152 quad_perm:[1,0,3,2] {DPPF}\nv_cvt_pk_bf16_f32 v152, v152, v153')
    for m in range(5):
        F = 100 + 4*m
        for d in range(4): A(f'v_and_b32 v{F+d}, v152, v{160+m} row_newbcast:{2*d} {DPPF}')
        if m >= 1: A(f'v_mfma_f32_16x16x32_bf16 v[156:159], {vr(WD+4*(m-1),4)}, {vr(F-4,4)}, {"0" if m==1 else "v[156:159]"}')
    A(f'v_mfma_f32_16x16x32_bf16 v[156:159], {vr(WD+16,4)}, v[116:119], v[156:159]')
    set_exec(0x03ff03ff, 0x03ff03ff)
    for i in range(4): A(f'v_bfi_b32 v{156+i}, 63, s14, v{156+i}')
    A('global_store_dwordx4 v166, v[156:159], s[42:43] sc1')
    stamp(12)

    A('L_fin:')
    if stamps == 3:
        A('s_cmp_lt_u32 s4, 4\ns_cbranch_scc0 L_end\ns_cmp_ge_u32 s2, 96\ns_cbranch_scc0 L_end\ns_cmp_eq_u32 s57, 1\ns_cbranch_scc0 L_end')
    if stamps:
        A('s_memrealtime s[98:99]\ns_waitcnt vmcnt(0) lgkmcnt(0)\ns_mov_b64 exec, 1')
        A(f's_mul_i32 s3, s2, 12\ns_add_u32 s3, s3, s4\ns_lshl_b32 s3, s3, 6\ns_add_u32 s3, s3, {R_STAMP}\nv_mov_b32 v0, s3')
        for i in range(15): A(f'v_mov_b32 v{8+i}, s{70+2*i}')
        A('v_mov_b32 v23, s58')
        for i in range(4): A(f'global_store_dwordx4 v0, {vr(8+4*i,4)}, s[42:43] offset:{16*i}')
    A('L_end:\ns_endpgm')
    inv = {'s_cbranch_vccz': 's_cbranch_vccnz', 's_cbranch_vccnz': 's_cbranch_vccz', 's_cbranch_scc0': 's_cbranch_scc1', 's_cbranch_scc1': 's_cbranch_scc0'}
    cold = []
    k = 0
    end_i = A.L.index('L_fin:')
    while k < len(A.L):
        p = A.L[k].split()
        if p[0] in inv and len(p) == 2:
            labl = p[1] + ':'
            if labl in A.L[k:k+24]:
                e = A.L.index(labl, k)
                body = A.L[k+1:e]
                if body and body[-1].startswith('s_branch') and 's_branch L_fin' in body:
                    R = lab('rt')
                    cold += [R + ':'] + body
                    A.L[k:e] = [f'{inv[p[0]]} {R}']
        k += 1
    k = A.L.index('L_end:')
    assert A.L[k+1] == 's_endpgm'
    A.L[k+2:k+2] = cold
    A.L.append('L_last:')
    A.L = [l.replace('L_end-L_base-12', 'L_last-L_base-16') for l in A.L]
    import re as _re
    for k, l in enumerate(A.L):
        if l.startswith('s_load_dwordx4 s[40:43], s[0:1], 96'):
            A.L[k] = 's_load_dwordx2 s[40:41], s[0:1], 104'; continue
        m = _re.match(r'global_load_(\w+) (\S+), (v\d+), s\[(42:43|52:53)\](.*)', l)
        if m:
            A.L[k] = f'buffer_load_{m.group(1)} {m.group(2)}, {m.group(3)}, s[40:43], {"0" if m.group(4)=="42:43" else "s52"} offen{m.group(5)}'; continue
        m = _re.match(r'global_store_(\w+) (v\d+), (\S+), s\[(42:43|52:53)\](.*)', l)
        if m:
            A.L[k] = f'buffer_store_{m.group(1)} {m.group(3)}, {m.group(2)}, s[40:43], {"0" if m.group(4)=="42:43" else "s52"} offen{m.group(5)}'; continue
        A.L[k] = _re.sub(r'\bs43\b', 's41', _re.sub(r'\bs42\b', 's40', l.replace('s[42:43]', 's[40:41]')))
    k = A.L.index('s_mov_b32 s47, 0x20000')
    A.L[k:k] = ['s_mov_b32 s42, 0x200000', 's_mov_b32 s43, 0x20000']
    npad = A.pad()
    hdr = open('cdna_kernels/' + NAME + '.s.ref').read().split('; Override launch')[0]
    pre = ''
    if stamps:
        pre = ''
    txt = hdr + f'''; @launch grid=(256,1,1) block=(768,1,1) lds={LDS_BYTES}
.amdgcn_target "amdgcn-amd-amdhsa--gfx950"
.text
.globl {NAME}_kernel
.p2align 8
.type {NAME}_kernel,@function
{NAME}_kernel:
''' + pre + A.text() + f'''.section .rodata,"a"
.p2align 6
.amdhsa_kernel {NAME}_kernel
  .amdhsa_next_free_vgpr 168
  .amdhsa_next_free_sgpr 102
  .amdhsa_accum_offset 168
  .amdhsa_group_segment_fixed_size 0
  .amdhsa_kernarg_size 112
  .amdhsa_user_sgpr_count 2
  .amdhsa_user_sgpr_kernarg_segment_ptr 1
  .amdhsa_system_sgpr_workgroup_id_x 1
.end_amdhsa_kernel
'''
    return txt, npad

if __name__ == '__main__':
    kw = {}
    outp = sys.argv[1]
    for a in sys.argv[2:]:
        k, val = a.split('=')
        kw[k] = int(val) if val.lstrip('-').isdigit() else val
    txt, npad = gen(**kw)
    open(outp, 'w').write(txt)
    print('nops inserted', npad)
```

```python
import re

TRANS = re.compile(r'v_(exp|log|rcp|rsq|sqrt|sin|cos)_f32')
def regs_of(tok):
    tok = tok.strip()
    tok = tok.lstrip('-')
    if tok.startswith('abs(') or tok.startswith('|'):
        tok = tok.replace('abs(', '').replace(')', '').replace('|', '')
    m = re.fullmatch(r'([vsa])(\d+)', tok)
    if m: return {m.group(1) + m.group(2)}
    m = re.fullmatch(r'([vsa])\[(\d+):(\d+)\]', tok)
    if m: return {m.group(1) + str(i) for i in range(int(m.group(2)), int(m.group(3)) + 1)}
    if tok in ('vcc', 'vcc_lo', 'vcc_hi'): return {'vcc'}
    if tok in ('exec', 'exec_lo', 'exec_hi'): return {'exec'}
    if tok == 'm0': return {'m0'}
    return set()

class Ins:
    def __init__(self, text):
        self.text = text
        t = text.split(';')[0].strip()
        self.label = None
        if t.endswith(':'):
            self.label = t[:-1]; self.mn = None; return
        parts = t.split(None, 1)
        self.mn = parts[0]
        rest = parts[1] if len(parts) > 1 else ''
        ops = []; depth = 0; cur = ''
        for ch in rest:
            if ch == '[': depth += 1
            if ch == ']': depth -= 1
            if ch == ',' and depth == 0:
                ops.append(cur.strip()); cur = ''
            else: cur += ch
        if cur.strip(): ops.append(cur.strip())
        mods = ''
        if ops:
            sp = ops[-1].split(None, 1)
            if len(sp) > 1 and not ops[-1].startswith('hwreg'):
                ops[-1] = sp[0]; mods = sp[1]
        self.ops = ops; self.mods = mods
        mn = self.mn
        self.valu = mn.startswith('v_')
        self.mfma = mn.startswith('v_mfma')
        self.dot = mn.startswith('v_dot')
        self.trans = bool(TRANS.match(mn))
        self.dpp = bool(re.search(r'quad_perm|row_|wave_', mods))
        self.perml = mn.startswith('v_permlane')
        self.lane_read = mn in ('v_readlane_b32', 'v_readfirstlane_b32')
        self.vmem = mn.startswith(('buffer_', 'global_', 'flat_'))
        self.ds = mn.startswith('ds_')
        self.salu = mn.startswith('s_')
        self.branch = mn.startswith(('s_branch', 's_cbranch', 's_call'))
        self.ldsdma = self.vmem and (' lds' in ' ' + mods or 'load_lds' in mn)
        R = [regs_of(o) for o in ops]
        W = set(); Rd = set()
        if self.valu:
            if self.perml:
                W = R[0] | R[1]; Rd = R[0] | R[1]
            elif mn.startswith('v_cmp'):
                W = set(R[0]); Rd = set().union(*R[1:])
            elif mn.startswith(('v_add_co', 'v_sub_co', 'v_addc_co', 'v_subb_co', 'v_div_scale')):
                W = R[0] | R[1]; Rd = set().union(*R[2:])
            else:
                W = set(R[0]); Rd = set().union(*R[1:]) if len(R) > 1 else set()
                if mn.startswith(('v_fmac', 'v_dot2c', 'v_writelane')) or (self.dpp):
                    Rd |= R[0]
            if mn.startswith('v_cndmask') and len(ops) == 3: Rd |= {'vcc'}
        elif self.vmem:
            store = 'store' in mn
            atomic = 'atomic' in mn
            if self.ldsdma:
                Rd = set().union(*R) | {'m0'}
            elif store or (atomic and 'sc0' not in mods):
                Rd = set().union(*R)
            else:
                W = set(R[0]); Rd = set().union(*R[1:])
            self.store_data = set()
            if store and ('x3' in mn or 'x4' in mn):
                self.store_data = R[0] if mn.startswith('buffer') else R[1]
        elif self.ds:
            if 'read' in mn or 'rtn' in mn or 'permute' in mn or 'swizzle' in mn:
                W = set(R[0]); Rd = set().union(*R[1:])
            else:
                Rd = set().union(*R)
        elif self.salu:
            if mn.startswith(('s_cmp', 's_bitcmp', 's_waitcnt', 's_nop', 's_sleep', 's_barrier', 's_setprio', 's_endpgm', 's_branch', 's_cbranch', 's_setpc')):
                Rd = set().union(*R) if R else set()
            else:
                W = set(R[0]) if R else set(); Rd = set().union(*R[1:]) if len(R) > 1 else set()
                if 'saveexec' in mn: W |= {'exec'}
        self.W = W; self.Rd = Rd
        if self.mfma:
            self.A = R[1]; self.B = R[2]; self.C = R[3]; self.D = R[0]
    def states(self):
        if self.label is not None or self.mn is None: return 0
        if self.mn.startswith('.'): return 0
        if self.mn == 's_nop': return int(self.ops[0], 0) + 1
        return 1

def isv(s): return {r for r in s if r[0] in 'va' and r not in ('vcc',)}
def iss(s): return {r for r in s if (r[0] == 's') or r == 'vcc'}

def need(p, c):
    n = 0
    if p.valu and not p.mfma:
        vw = isv(p.W); sw = iss(p.W)
        if c.valu:
            hit = vw & c.Rd
            if c.dpp and hit: n = max(n, 2)
            if c.lane_read and hit: n = max(n, 1)
            if c.perml and hit: n = max(n, 2)
            if c.mfma and hit: n = max(n, 3 if p.dot else 2)
            if p.trans and hit and not c.trans: n = max(n, 1)
            if sw & c.Rd:
                n = max(n, 2)
                if c.mn in ('v_readlane_b32', 'v_writelane_b32') and sw & regs_of(c.ops[2]): n = max(n, 4)
            if p.dot:
                if c.mn == p.mn:
                    ab = regs_of(c.ops[1]) | regs_of(c.ops[2])
                    if vw & ab: n = max(n, 3)
                elif vw & (c.Rd | c.W): n = max(n, 3)
            if 'exec' in p.W: n = max(n, 5)
        if (c.vmem or c.ds):
            if c.vmem and sw & c.Rd: n = max(n, 5)
            if p.dot and vw & (c.Rd | c.W): n = max(n, 3)
    if p.mfma:
        passes = 8 if '32x32' in p.mn else 4
        big = {4: 8, 8: 12}[passes]
        if c.mfma:
            if p.D & (c.A | c.B): n = max(n, big)
            if p.D & c.C and p.D != c.C: n = max(n, big - 2)
            if p.D & c.D and p.D != c.C and not (p.D & c.C): n = max(n, big)
        elif c.valu:
            if p.D & (c.Rd | c.W): n = max(n, big)
            if p.C & c.W: n = max(n, passes - 1)
        elif c.vmem or c.ds:
            if p.D & (c.Rd | c.W): n = max(n, big)
            if p.C & c.W: n = max(n, passes - 1)
    if p.salu and 'm0' in p.W and c.vmem and c.ldsdma: n = max(n, 1)
    if p.vmem and getattr(p, 'store_data', None):
        if p.store_data & c.W: n = max(n, 2 if c.valu else 1)
    return n

class Asm:
    def __init__(self):
        self.L = []
    def __call__(self, text):
        for line in text.split('\n'):
            line = line.strip()
            if line: self.L.append(line)
    def pad(self):
        ins = [Ins(t) if not t.startswith(('.', ';')) else None for t in self.L]
        n = len(ins)
        labels = {i.label: k for k, i in enumerate(ins) if i is not None and i.label}
        rets = [k for k, i in enumerate(ins) if i is not None and i.mn == 's_setpc_b64']
        preds = [[] for _ in range(n)]
        for k, i in enumerate(ins):
            if k > 0:
                pi = ins[k - 1]
                iscall = pi is not None and pi.mn and pi.mn.startswith('s_call')
                if not (pi is not None and pi.mn in ('s_branch', 's_endpgm', 's_setpc_b64')) and not iscall:
                    preds[k].append(k - 1)
                if iscall: preds[k] += rets
            if i is not None and i.mn and i.branch and i.ops[-1] in labels:
                preds[labels[i.ops[-1]]].append(k)
        for name in getattr(self, 'ret_labels', ()): preds[labels[name]] += rets
        extra = [0] * n
        for k, c in enumerate(ins):
            if c is None or c.mn is None: continue
            worst = 0
            stack = [(p, 0) for p in preds[k]]
            seen = set()
            while stack:
                q, dist = stack.pop()
                if (q, dist) in seen or dist >= 12: continue
                seen.add((q, dist))
                pi = ins[q]
                st = 0
                if pi is not None and pi.mn is not None:
                    nd = need(pi, c)
                    if nd - dist > worst: worst = nd - dist
                    st = pi.states() + extra[q]
                for p in preds[q]: stack.append((p, dist + st))
            extra[k] = worst
        out = []
        for k, t in enumerate(self.L):
            if extra[k]: out.append(f's_nop {extra[k] - 1}')
            out.append(t)
        self.L = out
        return sum(1 for e in extra if e)
    def text(self):
        return '\n'.join(('  ' + l if not (l.endswith(':') or l.startswith(('.', ';'))) else l) for l in self.L) + '\n'
```

```python
import sys, struct
from asmlib import Asm
NAME = 'adaLN_cond__sliding_block_cached__geglu_ffn__decode'
def f2u(x): return struct.unpack('<I', struct.pack('<f', x))[0]
def H(x): return '0x%08x' % f2u(x)
LOG2E = 1.4426950408889634

R_E = 0
R_XC = 512
R_TK = 1024
R_MOD = R_TK + 32*128
R_MA = R_MOD + 2*15360
R_Q = R_MA + 4*5120
R_O = R_Q + 32*768
R_P = R_O + 256*896
R_X1 = R_P + 8*16*2560
R_DN = R_X1 + 2560
R_GU = R_DN + 96*2560
GU2 = 0x180000 - R_GU
assert R_GU + 96*2560 <= 0x140000
R_STAMP = 0x140000
R_TK2 = 0x118000; TKS = 4352
L_ML = 0; L_H = 128; L_ST2 = 512
L_CSTAT = 1024; L_CO = 1028; L_TRIG = 1032; L_WRDY = 1036; L_CWO = 1040; L_CQ = 1044; L_OK = 1048; L_CA = 1052; L_TRIGB = 1056
L_Q = 1280
L_ST = 1792
L_A = 3072; LAP = 336
L_PACC = 3072
L_OS = 5120
L_TB = 1664
L_F = 1920
L_W = 11264
L_LK = 1064; L_BT = 1152; L_CM = 1060; L_MS = 2048
L_HB = L_W
L_DN = L_W + 57344
LDS_BYTES = L_DN + 20480

DPPF = 'row_mask:0xf bank_mask:0xf'

def gen(T=3, SG=5, TD=2, TKW=4, XB=40, DEARLY=0, DNW=1, IL=1, NF0=3, NOZ=0, GSL=1, SWZ=1, DPOS=0, DW=2, WT=0, FB=0, XAT=0, PSL=1, PE=0, ADM=0, FG=1, FM=3, PREP=4, PFC=0, PFP='nt', CS=4, XA=40, HAW=8, PRIO=0, TN=8, PFF='', GATE=6, FSL=14, FREE=0, CAP=2, DUAL=1, G1=0, G2=0, G4=0, DR=24, FS=0, TLB=2, WDEF=1, WP=4, WPC=7, BP=0, TCH=0, EP=0, CP=3, BG=7, EB=0, BS=0, PFS=4, YI=64, FK=0, BARE=0, EQ=0, NS=0, AFF=0, LS=16, QS=2, BDL=0, HB=0, OSL=1, GUS=0, NGT=0, PW=1, BPC=8, WSL=1, OEARLY=1, DPRIO=1, TRIGM=60, TWA=8, ACK=1, PT=1, stamps=False, TIMEOUT=1 << 20, SLA=8, SLB=4):
    A = Asm()
    LBS = {0: 0, 2: 1, 4: 2, 8: 3}[BS]
    uid = [0]
    def lab(p):
        uid[0] += 1
        return f'L_{p}{uid[0]}'
    def stamp(i):
        if stamps == 1 or (stamps and i == 0): A(f's_memrealtime s[{70+2*i}:{71+2*i}]')
    def spin_tail(L, sleep):
        if sleep: A(f's_sleep {sleep}')
        A(f's_sub_u32 s58, s58, 1\ns_cbranch_scc0 {L}\ns_branch L_fin')
    def lds_wait_ge(off, val, vz, vt, sleep=1):
        L = lab('w'); D = lab('d')
        A(f'{L}:\nds_read_b32 {vt}, {vz} offset:{off}\ns_waitcnt lgkmcnt(0)\nv_readfirstlane_b32 s3, {vt}\ns_cmp_ge_u32 s3, {val}\ns_cbranch_scc1 {D}')
        spin_tail(L, sleep)
        A(f'{D}:')
    def maxtree(regs, dst):
        regs = list(regs)
        if len(regs) == 2:
            A(f'v_max_u32 {dst}, {regs[0]}, {regs[1]}'); return
        A(f'v_max3_u32 {dst}, {regs[0]}, {regs[1]}, {regs[2]}')
        rest = regs[3:]
        while len(rest) >= 2:
            A(f'v_max3_u32 {dst}, {dst}, {rest[0]}, {rest[1]}'); rest = rest[2:]
        if rest: A(f'v_max_u32 {dst}, {dst}, {rest[0]}')
    def poll_end(regs, tmp, L, sleep):
        D = lab('ok')
        if len(regs) > 1: maxtree(regs, tmp)
        else: tmp = regs[0]
        A(f'v_cmp_eq_u32 vcc, -1, {tmp}\ns_cbranch_vccz {D}')
        spin_tail(L, sleep)
        A(f'{D}:')
    def allred8(regs, op='v_add_f32'):
        for pat in ('quad_perm:[1,0,3,2]', 'quad_perm:[2,3,0,1]', 'row_half_mirror'):
            for r in regs: A(f'{op} {r}, {r}, {r} {pat} {DPPF}')
    def red_hi(regs, op='v_add_f32'):
        for r in regs: A(f'{op} {r}, {r}, {r} row_ror:8 {DPPF}')
        for r in regs: A(f'{op} {r}, {r}, {r} row_bcast:15 row_mask:0xa bank_mask:0xf')
        for r in regs: A(f'{op} {r}, {r}, {r} row_bcast:31 row_mask:0xc bank_mask:0xf')
    def round_list(regs, tmps):
        regs = list(regs)
        prs = [(regs[i], regs[i+1] if i+1 < len(regs) else None) for i in range(0, len(regs), 2)]
        for k0 in range(0, len(prs), len(tmps)):
            blk = prs[k0:k0+len(tmps)]
            for (a, b), t in zip(blk, tmps): A(f'v_cvt_pk_bf16_f32 {t}, {a}, {b if b else a}')
            for (a, b), t in zip(blk, tmps):
                A(f'v_lshlrev_b32 {a}, 16, {t}')
                if b: A(f'v_and_b32 {b}, 0xffff0000, {t}')
    def masks(dst4, vl, t0, t1):
        A(f'v_and_b32 {t0}, 1, {vl}\nv_lshlrev_b32 {t0}, 4, {t0}\nv_mov_b32 {t1}, 0xffff\nv_lshlrev_b32 {t0}, {t0}, {t1}\nv_bfe_u32 {t1}, {vl}, 1, 2')
        for t in range(4):
            A(f'v_cmp_eq_u32 vcc, {t}, {t1}\nv_cndmask_b32 {dst4[t]}, 0, {t0}, vcc')
    def v(i): return f'v{i}'
    def vr(i, n): return f'v[{i}:{i+n-1}]'
    def set_exec(lo, hi):
        if lo == 0xffffffff and hi == 0xffffffff: A('s_mov_b64 exec, -1')
        elif hi == 0 and lo <= 64: A(f's_mov_b64 exec, {lo}')
        else: A(f's_mov_b32 exec_lo, 0x{lo:x}\ns_mov_b32 exec_hi, 0x{hi:x}')
    def tags():
        A('s_mul_i32 s14, s14, 0x9e3779b1\ns_add_u32 s14, s14, 0x7f4a7c15\ns_mul_i32 s15, s15, 0x85ebca6b\ns_add_u32 s15, s15, 0xc2b2ae35')
        A('s_and_b32 s3, s14, 15\ns_sub_u32 s36, 0, s3\ns_subb_u32 s37, 0, s3')
        A(f's_mov_b64 exec, 1\nds_add_u32 v0, v79 offset:{L_CQ}\ns_mov_b64 exec, -1')
    def tailtags():
        A('s_and_b32 s3, s14, 63\ns_sub_u32 s36, 0, s3\ns_subb_u32 s37, 0, s3')
    def untag(base, n, dst=None):
        if dst is None: dst = base
        for i in range(0, n, 2): A(f'v_lshl_add_u64 {vr(dst+i,2)}, {vr(base+i,2)}, 0, s[36:37]')
    def ortree(regs, dst):
        regs = list(regs)
        if len(regs) == 2:
            A(f'v_or_b32 {dst}, {regs[0]}, {regs[1]}'); return
        A(f'v_or3_b32 {dst}, {regs[0]}, {regs[1]}, {regs[2]}')
        rest = regs[3:]
        while len(rest) >= 2:
            A(f'v_or3_b32 {dst}, {dst}, {rest[0]}, {rest[1]}'); rest = rest[2:]
        if rest: A(f'v_or_b32 {dst}, {dst}, {rest[0]}')
    def tag_end(tmp, L, sleep, mask=15):
        D = lab('ok')
        A(f'v_and_b32 {tmp}, {mask}, {tmp}\nv_cmp_ne_u32 vcc, 0, {tmp}\ns_cbranch_vccz {D}')
        spin_tail(L, sleep)
        A(f'{D}:')

    A('L_base:')
    stamp(0)
    A(f'''s_load_dwordx16 s[16:31], s[0:1], 0
    s_cmpk_ge_u32 s2, 256
    s_cbranch_scc1 L_end
    v_readfirstlane_b32 s4, v0
    {'s_bfe_u32 s5, s2, 0x20003' if AFF else 's_lshr_b32 s5, s2, 3'}
    s_and_b32 s6, s2, 7
    s_lshl2_add_u32 s5, s6, s5
    {'s_lshr_b32 s6, s2, 5' if AFF else 's_and_b32 s5, s5, 31'}
    v_lshrrev_b32 v3, 3, v0
    v_and_b32 v1, 7, v0
    v_lshlrev_b32 v1, 4, v1
    s_cmpk_lt_u32 s4, 256
    s_cbranch_scc1 L_pro2
    s_lshl_b32 s3, s5, 9
    s_add_u32 s3, s3, s6
    s_mulk_i32 s3, 24576
    v_mul_u32_u24 v4, 384, v3
    s_add_u32 s7, s3, {28672*384 - 4*3072}
    v_add3_u32 v4, v4, v1, s7
    s_waitcnt lgkmcnt(0)''')
    for t in range(NF0):
        if t == 3: A('v_add_u32 v4, 196608, v4')
        A(f'global_load_dwordx4 {vr(8+4*t,4)}, v4, s[18:19] offset:{128*(t%3)} nt')
    stamp(5)
    A('''L_pro2:
    s_load_dwordx8 s[32:39], s[0:1], 64
    s_load_dwordx4 s[40:43], s[0:1], 96
    v_and_b32 v2, 63, v0
    s_lshr_b32 s4, s4, 6
    v_and_b32 v3, 7, v3
    s_mov_b32 s47, 0x20000
    s_mov_b32 s51, 0x20000''')
    A(f's_mov_b32 s58, {TIMEOUT}')
    if stamps == 1 and not NOZ:
        for i in range(1, 15):
            if i != 5: A(f's_mov_b32 s{70+2*i}, 0')
    A('s_lshl3_add_u32 s59, s5, s6')
    W0 = 8; X0 = 48; D0 = 60; F0 = 64
    if EB:
        assert FB == 0 and not EQ
        A('v_mov_b32 v0, 0\nv_lshlrev_b32 v5, 2, v2\ns_cmp_eq_u32 s4, 3\ns_cbranch_scc0 L_eb\nds_write_b32 v5, v0 offset:1024\ns_waitcnt lgkmcnt(0)\nL_eb:\ns_barrier')
    A('s_cmp_lt_u32 s4, 4\ns_cbranch_scc0 L_strm')
    if BARE:
        A(f'''v_mov_b32 v0, 0
        v_lshlrev_b32 v80, 2, v2
        ds_write_b32 v80, v0 offset:1024
        s_waitcnt lgkmcnt(0)
        s_barrier
        v_mov_b32 v79, 9
        ds_write_b32 v0, v79 offset:{L_CQ}
        s_lshl_b32 s3, s6, {LBS}
        s_add_u32 s3, s3, 1
        v_mov_b32 v60, s3
        ds_write_b32 v0, v60 offset:{L_BT}
        s_mul_i32 s3, s5, {TKS}
        s_add_u32 s3, s3, {R_TK2}
        v_mov_b32 v60, s3
        v_mov_b32 v61, {8*BS if BS else 64*NS}
        s_mov_b64 exec, 1
        s_or_b32 s3, s4, s6
        s_cbranch_scc1 L_end
        global_store_dword v60, v61, s[42:43] sc1
        s_endpgm''')
    A('s_setprio 3\ns_sub_u32 s10, s2, 96\ns_cbranch_scc1 L_cB\ns_cmp_ge_u32 s10, 80\ns_cbranch_scc1 L_rest\ns_cmp_ge_u32 s4, 2\ns_cbranch_scc1 L_cN')
    A(f'''s_mul_i32 s12, s10, 3277
    s_lshr_b32 s12, s12, 16
    s_mul_i32 s7, s12, 20
    s_sub_u32 s13, s10, s7
    s_lshl1_add_u32 s8, s12, s4
    L_rest2:
    v_mul_u32_u24 v72, 7680, v3
    v_add_u32 v72, v72, v1
    s_mul_i32 s3, s8, {80*7680}
    s_lshl_b32 s7, s13, 7
    s_add_u32 s3, s3, s7
    s_mov_b32 s46, {80*7680}
    s_mov_b32 s57, {8*7680}
    v_min_u32 v74, 39, v2
    s_mul_i32 s7, s8, 160
    v_lshl_add_u32 v74, v74, 2, s7
    s_getpc_b64 s[60:61]
    L_pc0:
    s_add_u32 s60, s60, L_cA-L_pc0
    s_addc_u32 s61, s61, 0
    s_waitcnt lgkmcnt(0)
    s_add_u32 s44, s36, s3
    s_addc_u32 s45, s37, 0
    global_load_dword v82, v74, s[34:35]
    s_cmp_lt_u32 s10, {160 if EQ else 80}
    s_cbranch_scc0 L_cA''')
    A('L_load10:\ns_mov_b32 s56, 0')
    for s in range(10):
        A(f'buffer_load_dwordx4 {vr(W0+4*s,4)}, v72, s[44:47], s56 offen nt')
        if s < 9: A('s_add_u32 s56, s56, s57')
    A('s_setpc_b64 s[60:61]')
    A('L_strm:')

    NPOOL = 512 - 64*SG
    SL = lambda i, t: 8 + (i*3 + t)*4
    G0_ = 128; Q0 = 140; D0_ = 152; F = 164
    S = [v(G0_+g) for g in range(SG)]
    NV0 = min(SG, 5)
    KSL = lambda g, t: SL(g, t) if g < 5 else D0_ + 4*t
    VI = lambda g: (NV0 + g) if g < 5 else 3
    VL = 'v134'; X0_ = 'v135'; X1_ = 'v136'; X2_ = 'v137'; X3_ = 'v138'; X4_ = 'v139'
    if PRIO: A('s_setprio 1')
    A(f'''v_mul_u32_u24 v4, 384, v3
    s_mul_i32 s3, s5, 12582912
    s_add_u32 s3, s3, {28672*384}
    s_lshl3_add_u32 s7, s6, s4
    s_mul_i32 s57, s7, {3072 if IL else SG*3072}
    s_sub_u32 s57, s57, {4*(3072 if IL else SG*3072)}
    s_mov_b32 s56, s57
    v_add_u32 v3, v1, v4
    s_mov_b32 s46, 1572864
    s_mov_b32 s50, 1572864''')
    A(f'''s_add_u32 s44, s18, s3
    s_addc_u32 s45, s19, 0
    s_add_u32 s48, s20, s3
    s_addc_u32 s49, s21, 0''')
    def ld(reg, srd, so, t, throttle=True):
        A(f'buffer_load_dwordx4 {vr(reg,4)}, v3, {srd}, {so} offen offset:{t*128} nt')
        if throttle: A(f's_waitcnt vmcnt({T})')
    KS = 's[44:47]'; VS = 's[48:51]'
    if FB:
        A('s_sub_u32 s13, s2, 96')
        if FB >= 2: A('s_cselect_b32 s13, 0, s13')
        if EQ == 2: A('s_mov_b32 s13, 0')
        A('s_cmp_lt_u32 s13, 80\ns_cbranch_scc0 L_nb0\ns_barrier\nL_nb0:')
    n = 0
    for g in range(SG):
        for t in range(3):
            n += 1
            if n > NF0: ld(KSL(g, t), KS, 's56', t, throttle=(n > T+1))
            if n == T+2: stamp(8)
            if n == T+1:
                for r in S: A(f'v_mov_b32 {r}, 0')
                masks(['v4', 'v5', 'v6', 'v7'], 'v2', X0_, X1_)
                A(f's_mul_i32 s3, s5, {TKS}\ns_add_u32 s3, s3, {R_TK2}\ns_mov_b32 s65, 0\ns_mov_b32 s67, 0\ns_waitcnt lgkmcnt(0)\ns_add_u32 s52, s42, s3\ns_addc_u32 s53, s43, 0')
                A(f's_cmp_lt_u32 s2, 96\ns_movk_i32 s10, {XA}\ns_cselect_b32 s10, {XB}, s10\ns_sub_u32 s10, {NPOOL}, s10')
                if FB: A(f'v_mov_b32 v0, 0\ns_cmp_lt_u32 s13, 80\ns_cbranch_scc1 L_nb1\ns_barrier\nL_nb1:\ns_waitcnt vmcnt({T})')
                elif EB: A(f's_waitcnt vmcnt({T})')
                else: A(f'v_mov_b32 v0, 0\ns_barrier\ns_waitcnt vmcnt({T})')
        if g < SG-1: A(f's_add_u32 s56, s56, {196608 if IL else 3072}')
    for g in range(NV0):
        for t in range(3): ld(SL(VI(g), t), VS, 's57', t, throttle=not (g == NV0-1 and t == 2))
        if g < SG-1: A(f's_add_u32 s57, s57, {196608 if IL else 3072}')
    stamp(1)
    if PRIO: A('s_setprio 0')
    lds_wait_ge(L_CQ, 7 if HB else 5, 'v0', X0_, sleep=QS)
    A(f'ds_read_b64 v[136:137], v0 offset:{L_TB}')
    tick = 's_mov_b32 s12, 1\ns_atomic_add s12, s[52:53], 0 glc'
    if XAT: tick += '\ns_mov_b32 s62, 1\ns_atomic_add s62, s[52:53], 0x80000 glc\ns_mov_b32 s63, 1\ns_atomic_add s63, s[52:53], 0x88000 glc'
    for t in range(3): A(f'ds_read_b128 {vr(Q0+4*t,4)}, v1 offset:{L_Q + 128*t}')
    stamp(2)
    A(f's_waitcnt vmcnt({3*NV0}) lgkmcnt(0)\nv_mov_b32 v1, 1\nv_readfirstlane_b32 s14, v136\nv_readfirstlane_b32 s15, v137')
    dt = 's_mov_b32 s64, 1\ns_atomic_add s64, s[52:53], 0 glc'
    if BS: A('s_call_b64 s[60:61], L_next')
    elif FK == 1: A(dt)
    if BS: pass
    elif FK == 2: A('s_lshl3_add_u32 s12, s4, s6\ns_sub_u32 s12, s12, 32')
    elif NS: A('s_lshl3_add_u32 s12, s6, s4\ns_sub_u32 s12, s12, 4')
    else: A(tick)
    for t in range(3):
        for d in range(4):
            for g in range(SG):
                A(f'v_dot2c_f32_bf16 {S[g]}, v{KSL(g,t)+d}, v{Q0+4*t+d}')
    if SG == 6:
        for t in range(3): ld(SL(3, t), VS, 's57', t, throttle=False)
    allred8(S)
    round_list(S, [X0_, X1_, X2_])
    for r in S: A(f'v_mul_f32 {r}, 0x3d93cd3a, {r}')
    round_list(S, [X0_, X1_, X2_])
    A(f'v_max3_f32 {X0_}, {S[0]}, {S[1]}, {S[2]}')
    for g in range(3, SG): A(f'v_max_f32 {X0_}, {X0_}, {S[g]}')
    red_hi([X0_], 'v_max_f32')
    A(f'v_readlane_b32 s8, {X0_}, 63')
    def take(X, last):
        A('s_waitcnt lgkmcnt(0)')
        if BS:
            Lp = lab('pb')
            A(f's_cmp_eq_u32 s67, 0\ns_cbranch_scc1 {Lp}\ns_add_u32 s66, s66, 1\nv_mov_b32 {X2_}, s67\nv_mov_b32 {X3_}, s66\nds_write_b32 {X2_}, {X3_}\ns_mov_b32 s67, 0\n{Lp}:')
        A(f's_mov_b32 s11, s12\ns_cmp_lt_u32 s11, {NPOOL}\ns_cbranch_scc0 {last}')
        A(f's_mul_i32 s54, s11, 3072\ns_add_u32 s54, s54, {64*SG*3072}')
        if EP == 2: A('s_setprio 0')
        if TD < 3: A(f's_waitcnt vmcnt({TD})')
        for t in range(3): ld(SL(X, t), KS, 's54', t, throttle=False)
        for t in range(3): ld(SL(X+1, t), VS, 's54', t, throttle=False)
        A(f's_waitcnt vmcnt(6)')
    def nexttick():
        Lk = lab('nt')
        if BS:
            A('s_call_b64 s[60:61], L_next'); return
        if FK == 1: A(f's_cmp_lt_u32 s11, 128\ns_cbranch_scc0 {Lk}x\n{dt}\n{Lk}x:')
        if NS > 1 or 64*NS >= NPOOL: A(f's_add_u32 s12, s11, 64\ns_cmp_lt_u32 s12, {64*NS if 64*NS < NPOOL else 4096}\ns_cbranch_scc1 {Lk}')
        A(f's_movk_i32 s12, {NPOOL}\ns_cmp_lt_u32 s11, s10\ns_cbranch_scc0 {Lk}\n{tick}\n{Lk}:')
    for r in S: A(f'v_subrev_f32 {r}, s8, {r}')
    for r in S: A(f'v_mul_f32 {r}, {H(LOG2E)}, {r}')
    for r in S: A(f'v_exp_f32 {r}, {r}')
    A(f'v_add_f32 {VL}, {S[0]}, {S[1]}')
    for g in range(2, SG): A(f'v_add_f32 {VL}, {VL}, {S[g]}')
    for r in S: A(f'v_cvt_pk_bf16_f32 {r}, {r}, {r}')
    stamp(3)
    _e0 = len(A.L)
    A(f'''v_and_b32 v61, 7, v2
    v_lshlrev_b32 v60, 3, v61
    v_lshlrev_b32 v62, 5, v61
    v_and_b32 v63, 16, v2
    s_mul_i32 s3, s4, 768
    v_add3_u32 v56, v62, v63, s3
    v_lshrrev_b32 v62, 5, v2
    v_lshl_add_u32 v56, v62, 3, v56
    s_mul_i32 s3, s59, 896
    s_add_u32 s3, s3, {R_O}
    v_lshl_add_u32 v57, v2, 4, s3
    s_and_b32 s9, s14, 0xffff
    v_mov_b32 v62, 0xffff
    v_lshlrev_b32 v58, 4, v2
    v_lshlrev_b32 v61, 2, v61
    s_lshl_b32 s3, s4, 3
    v_mov_b32 v59, s3
    s_mov_b32 s62, 0x00ff00ff
    s_mov_b32 s63, 0x00ff00ff
    s_waitcnt vmcnt(3)''')
    def mf(slot, first=False, waits=False):
        for t in range(3):
            if waits: A(f's_waitcnt vmcnt({2-t})')
            c = '0' if first else vr(D0_+4*t, 4)
            A(f'v_mfma_f32_16x16x32_bf16 {vr(D0_+4*t,4)}, {vr(F,4)}, {vr(SL(slot,t),4)}, {c}')
    for g in range(SG):
        for t in range(4): A(f'v_and_b32 v{F+t}, {S[g]}, v{4+t}')
        if g < SG-1: mf(VI(g), first=(g == 0))
    take(0, 'L_lastS')
    mf(VI(SG-1))
    A('s_branch L_loopA')
    A('L_loop:')
    for X, Y, nm, pv in ((0, 2, 'A', 'B'), (2, 0, 'B', 'A')):
        take(X, f'L_last{pv}')
        mf(Y+1)
        A(f'L_loop{nm}:')
        if TKW >= 3:
            if TKW < 6: A(f's_waitcnt vmcnt({TKW})')
            nexttick()
        A(f'v_mov_b32 {X0_}, 0\nv_mov_b32 {X1_}, 0\ns_waitcnt vmcnt(3)')
        if EP == 2: A('s_setprio 3')
        for t in range(3):
            for d in range(0, 4, 2):
                A(f'v_dot2c_f32_bf16 {X0_}, v{SL(X,t)+d}, v{Q0+4*t+d}\nv_dot2c_f32_bf16 {X1_}, v{SL(X,t)+d+1}, v{Q0+4*t+d+1}')
        A(f'v_add_f32 {X0_}, {X0_}, {X1_}')
        allred8([X0_])
        A(f'''v_cvt_pk_bf16_f32 {X0_}, {X0_}, {X0_}
        v_and_b32 {X0_}, 0xffff0000, {X0_}
        v_mul_f32 {X0_}, 0x3d93cd3a, {X0_}
        v_cvt_pk_bf16_f32 {X0_}, {X0_}, {X0_}
        v_and_b32 {X0_}, 0xffff0000, {X0_}
        v_cmp_lt_f32 vcc, s8, {X0_}
        s_cbranch_vccz L_nm{nm}
        s_call_b64 s[60:61], L_newmax
        L_nm{nm}:
        v_subrev_f32 {X0_}, s8, {X0_}
        v_mul_f32 {X0_}, {H(LOG2E)}, {X0_}
        v_exp_f32 {X0_}, {X0_}
        v_add_f32 {VL}, {VL}, {X0_}
        v_cvt_pk_bf16_f32 {X0_}, {X0_}, {X0_}''')
        for t in range(4): A(f'v_and_b32 v{F+t}, {X0_}, v{4+t}')
        if TKW < 3:
            A(f's_waitcnt vmcnt({TKW})')
            nexttick()
    A('s_branch L_loop')
    if BS:
        L = lab('bt'); D = lab('btd')
        A(f'''L_next:
        s_cmp_eq_u32 s65, 0
        s_cbranch_scc0 L_ind
        s_mov_b64 exec, 1
        ds_add_rtn_u32 {X2_}, v0, v1 offset:{L_LK}
        s_waitcnt lgkmcnt(0)
        v_readfirstlane_b32 s64, {X2_}
        v_lshrrev_b32 {X2_}, {LBS}, {X2_}
        v_lshlrev_b32 {X2_}, 2, {X2_}
        {L}:
        ds_read_b32 {X3_}, {X2_} offset:{L_BT}
        s_waitcnt lgkmcnt(0)
        v_readfirstlane_b32 s12, {X3_}
        s_cmp_lg_u32 s12, 0
        s_cbranch_scc1 {D}''')
        spin_tail(L, 1)
        A(f'''{D}:
        s_cmp_eq_u32 s12, -1
        s_cbranch_scc1 L_ind1
        s_and_b32 s3, s64, {BS-1}
        s_cmp_eq_u32 s3, {PFS}
        s_cbranch_scc0 L_nof
        s_cmp_gt_u32 s12, {NPOOL - YI}
        s_cbranch_scc1 L_wind
        v_readfirstlane_b32 s67, {X2_}
        s_mov_b32 s66, {BS}
        s_atomic_add s66, s[52:53], 0 glc
        s_add_u32 s67, s67, {L_BT + 4}
        L_nof:
        s_add_u32 s12, s12, s3
        s_sub_u32 s12, s12, 1
        s_mov_b64 exec, -1
        s_setpc_b64 s[60:61]
        L_wind:
        v_mov_b32 {X3_}, -1''')
        for k in range(1, 8 // BS + 1): A(f'ds_write_b32 {X2_}, {X3_} offset:{L_BT + 4*k}')
        A(f'''s_branch L_nof
        L_ind1:
        s_mov_b64 exec, -1
        s_mov_b32 s65, 1
        s_mov_b32 s11, 0
        L_ind:
        s_movk_i32 s12, {NPOOL}
        s_cmp_lt_u32 s11, s10
        s_cbranch_scc0 L_ind2
        {tick}
        L_ind2:
        s_setpc_b64 s[60:61]''')
    A('L_newmax:')
    A(f'v_mov_b32 {X1_}, {X0_}')
    red_hi([X1_], 'v_max_f32')
    A(f'v_mov_b32 {X2_}, s8\nv_readlane_b32 s8, {X1_}, 63\nv_subrev_f32 {X2_}, s8, {X2_}\nv_mul_f32 {X2_}, {H(LOG2E)}, {X2_}\nv_exp_f32 {X2_}, {X2_}')
    A(f'v_mul_f32 {VL}, {VL}, {X2_}')
    for i in range(12): A(f'v_mul_f32 v{D0_+i}, v{D0_+i}, {X2_}')
    A('s_setpc_b64 s[60:61]')
    for nm, slot in (('S', VI(SG-1)), ('A', 1), ('B', 3)):
        A(f'L_last{nm}:')
        if EP: A('s_setprio 3')
        stamp(4)
        A(f's_mov_b64 exec, 1\nds_add_u32 v0, v1 offset:{L_CSTAT}\ns_mov_b64 exec, -1')
        mf(slot, waits=True)
        if nm != 'B': A('s_branch L_epi')
    A('L_epi:')
    stamp(6)
    d = D0_
    A(f'''v_add_f32 {VL}, {VL}, {VL} row_ror:8 {DPPF}
    v_mov_b32 v133, s8
    v_mov_b32 v110, s14
    v_add_f32 {VL}, {VL}, {VL} row_bcast:15 row_mask:0xa bank_mask:0xf
    v_mov_b32 v111, s15
    v_permlane32_swap_b32 v{d}, v{d+2}
    v_add_f32 {VL}, {VL}, {VL} row_bcast:31 row_mask:0xc bank_mask:0xf
    v_permlane32_swap_b32 v{d+1}, v{d+3}
    v_permlane32_swap_b32 v{d+4}, v{d+6}
    v_permlane32_swap_b32 v{d+5}, v{d+7}
    v_permlane32_swap_b32 v{d+8}, v{d+10}
    v_permlane32_swap_b32 v{d+9}, v{d+11}''')
    for t in range(3):
        d = D0_ + 4*t
        A(f'v_add_f32 v{d}, v{d+2}, v{d} row_ror:8 {DPPF}\nv_add_f32 v{d+1}, v{d+3}, v{d+1} row_ror:8 {DPPF}')
    A('s_mov_b64 exec, s[62:63]')
    for t in range(3): A(f'ds_write_b64 v56, {vr(D0_+4*t,2)} offset:{L_OS - 4*768 + 256*t}')
    A(f'''s_lshl_b64 exec, 1, 48
    ds_write2_b32 v59, v133, {VL} offset0:{(L_ST2 - 32)//4} offset1:{(L_ST2 - 32)//4 + 1}
    ds_add_rtn_u32 v6, v0, v1 offset:{L_CO}
    s_mov_b64 exec, -1
    ds_read_b64 v[144:145], v60 offset:{L_ST2}''')
    for w in range(8): A(f'ds_read_b128 {vr(64+4*w,4)}, v58 offset:{L_OS + 768*w}')
    A(f'''s_waitcnt lgkmcnt({0 if stamps == 1 else 8})
    v_readlane_b32 s3, v6, 48
    v_max_f32 v108, v144, v144 quad_perm:[1,0,3,2] {DPPF}
    s_cmp_eq_u32 s3, 7
    s_cbranch_scc0 L_fin
    v_max_f32 v108, v108, v108 quad_perm:[2,3,0,1] {DPPF}
    v_max_f32 v108, v108, v108 row_half_mirror {DPPF}
    v_sub_f32 v144, v144, v108
    v_mul_f32 v144, {H(LOG2E)}, v144
    v_exp_f32 v144, v144
    v_mul_f32 v109, v144, v145''')
    lch = [f'v_add_f32 v109, v109, v109 quad_perm:[1,0,3,2] {DPPF}', f'v_add_f32 v109, v109, v109 quad_perm:[2,3,0,1] {DPPF}', f'v_add_f32 v109, v109, v109 row_half_mirror {DPPF}']
    for w in range(8):
        A(f'v_mov_b32 v{100+w}, v144 row_newbcast:{w} {DPPF}')
        if w in (1, 4, 7): A(lch.pop(0))
    A('s_mov_b32 exec_hi, 0xffff\ns_waitcnt lgkmcnt(0)')
    def fsel(w): return f'{vr(100+(w&~1),2)}', (w & 1)
    for w in (0, 4):
        fr, hi = fsel(w)
        for h2 in (0, 2): A(f'v_pk_mul_f32 {vr(64+4*w+h2,2)}, {vr(64+4*w+h2,2)}, {fr} op_sel:[0,{hi}] op_sel_hi:[1,{hi}]')
    for k in (1, 2, 3):
        for base in (0, 4):
            fr, hi = fsel(base+k)
            for h2 in (0, 2): A(f'v_pk_fma_f32 {vr(64+4*base+h2,2)}, {vr(64+4*(base+k)+h2,2)}, {fr}, {vr(64+4*base+h2,2)} op_sel:[0,{hi},0] op_sel_hi:[1,{hi},1]')
    A('v_pk_add_f32 v[64:65], v[64:65], v[80:81]\nv_pk_add_f32 v[66:67], v[66:67], v[82:83]')
    A('v_cvt_pk_bf16_f32 v64, v64, v65\nv_cvt_pk_bf16_f32 v66, v66, v67\nv_lshl_or_b32 v108, v64, 16, s9\nv_bfi_b32 v109, v62, s9, v64\nv_lshl_or_b32 v110, v66, 16, s9\nv_bfi_b32 v111, v62, s9, v66')
    A('s_mov_b32 exec_hi, 0x1ffff')
    A(f'global_store_dwordx4 v57, v[108:111], s[42:43] {"" if AFF == 2 else "sc1"}\ns_mov_b64 exec, 1\nds_add_u32 v0, v1 offset:{L_CO}')
    if BG: A('s_mov_b32 s12, 1\ns_atomic_add s12, s[52:53], 4 glc')
    stamp(7)
    A('s_branch L_fin')
    if SG < 5:
        import re as _re
        for _k in range(_e0, len(A.L)):
            A.L[_k] = _re.sub(r'\bv(5[6-9]|6[0-3])\b', lambda m: 'v%d' % (int(m.group(1)) + 56), A.L[_k])

    A('L_ctrl:')
    A('L_rest:\ns_cmp_ge_u32 s10, 120\ns_cselect_b32 s12, 1, 0\ns_cselect_b32 s7, 40, 0\ns_sub_u32 s13, s10, 60\ns_sub_u32 s13, s13, s7\ns_lshl2_add_u32 s8, s12, s4\ns_branch L_rest2')
    def calc_t(dst):
        A(f's_and_b32 s3, s2, 7\ns_mul_i32 s3, s3, 3\ns_lshr_b32 s7, s2, 5\ns_add_u32 s3, s3, s7\ns_lshl_b32 s3, s3, 2\ns_bfe_u32 s7, s2, 0x20003\ns_add_u32 {dst}, s3, s7')
    def cstart(bar=True):
        Lk = lab('ci')
        A(f'''v_mov_b32 v0, 0
        v_lshlrev_b32 v75, 4, v2
        v_lshlrev_b32 v80, 2, v2
        v_mov_b32 v79, 1''')
        if not EB: A(f's_cmp_eq_u32 s4, 0\ns_cbranch_scc0 {Lk}\nds_write_b32 v80, v0 offset:1024\n{Lk}:')
        A('s_waitcnt lgkmcnt(0)')
        if bar and not EB: A('s_barrier')
        A(f's_load_dwordx2 s[14:15], s[42:43], {R_E}')
    NE = 4*(3 - WDEF) if EQ else 0
    if EQ:
        L = lab('eq')
        A(f'''L_eqdma:
        s_lshr_b32 s8, s10, 3
        s_and_b32 s9, s2, 7
        s_lshl_b32 s9, s9, 1
        s_cmp_ge_u32 s8, 10
        s_cselect_b32 s3, 10, 0
        s_addc_u32 s9, s9, 0
        s_sub_u32 s8, s8, s3
        s_lshl2_add_u32 s9, s9, s4
        s_mul_i32 s3, s9, {96*1280}
        s_lshl_b32 s8, s8, 7
        s_add_u32 s3, s3, s8
        s_add_u32 s48, s24, s3
        s_addc_u32 s49, s25, 0
        s_mov_b32 s50, {96*1280}
        v_mul_u32_u24 v73, 1280, v3
        v_and_b32 v76, 16, v2
        v_lshlrev_b32 v76, 1, v76
        v_xor_b32 v76, v76, v1
        v_add_u32 v73, v73, v76
        s_mul_i32 s8, s4, 12288
        s_add_u32 s8, s8, {L_W}
        s_mov_b32 s9, 0
        {L}:
        s_mov_b32 m0, s8
        s_add_u32 s8, s8, 1024
        buffer_load_dwordx4 v73, s[48:51], s9 offen nt lds
        v_xor_b32 v73, 64, v73
        s_add_u32 s9, s9, 10240
        s_cmp_lt_u32 s9, {NE*10240}
        s_cbranch_scc1 {L}
        s_setpc_b64 s[62:63]''')
    A('L_cN:')
    cstart(not EQ)
    A(f'''s_getpc_b64 s[8:9]
    L_pc1:
    s_sub_u32 s8, s8, L_pc1-L_base
    s_subb_u32 s9, s9, 0
    s_lshr_b32 s3, s2, 3
    s_lshl1_add_u32 s3, s3, s4
    s_and_b32 s3, s3, 15
    s_lshl_b32 s3, s3, 10
    v_add_u32 v76, s3, v75
    v_min_u32 v76, L_end-L_base-12, v76
    global_load_dwordx4 v[160:163], v76, s[8:9] {PFF}''')
    if EQ: A('s_call_b64 s[62:63], L_eqdma\ns_barrier')
    A('s_waitcnt vmcnt(0) lgkmcnt(0)')
    tags()
    A('s_branch L_hopB')
    A('L_cA:')
    if EQ: A('s_call_b64 s[62:63], L_eqdma')
    cstart()
    masks(['v4', 'v5', 'v6', 'v7'], 'v2', 'v60', 'v61')
    A(f'''s_mul_i32 s11, s12, 5120
    s_lshl_b32 s7, s13, 8
    s_add_u32 s11, s11, s7
    s_add_u32 s11, s11, {R_MA}
    s_mov_b32 s54, 1
    s_cmp_lt_u32 s10, 80
    s_cbranch_scc1 L_cA1
    s_mul_i32 s11, s12, 15360
    s_add_u32 s11, s11, s7
    s_add_u32 s11, s11, {R_MOD}
    s_mov_b32 s54, 3''')
    if not EQ: A('s_setprio 0\ns_waitcnt vmcnt(0)\ns_call_b64 s[60:61], L_load10')
    A(f'L_cA1:\ns_waitcnt vmcnt({10+NE})')
    C = ['v88', 'v89']; E = ['v90', 'v91']; RC = ['v92', 'v93']; QQ = ['v94', 'v95']; RR = ['v96', 'v97']
    A('v_lshlrev_b32 v88, 16, v82\nv_and_b32 v89, 0xffff0000, v82')
    for i in range(2): A(f'v_mul_f32 {E[i]}, {H(-LOG2E)}, {C[i]}')
    for i in range(2): A(f'v_exp_f32 {E[i]}, {E[i]}')
    A(f's_lshl_b32 s3, s4, 9\ns_add_u32 s3, s3, {L_OS}')
    for i in range(2): A(f'v_add_f32 {E[i]}, 1.0, {E[i]}')
    for i in range(2): A(f'v_rcp_f32 {RC[i]}, {E[i]}')
    A('v_lshl_add_u32 v98, v2, 3, s3\nv_lshl_add_u32 v99, v3, 2, s3')
    for i in range(2): A(f'v_mul_f32 {QQ[i]}, {RC[i]}, {C[i]}')
    for i in range(2): A(f'v_fma_f32 {RR[i]}, -{QQ[i]}, {E[i]}, {C[i]}')
    for i in range(2): A(f'v_fmac_f32 {QQ[i]}, {RR[i]}, {RC[i]}')
    for i in range(2): A(f'v_div_fixup_f32 {QQ[i]}, {QQ[i]}, {E[i]}, {C[i]}')
    for i in range(2): A(f'v_cvt_pk_bf16_f32 {QQ[i]}, {QQ[i]}, {QQ[i]}')
    A('ds_write_b64 v98, v[94:95]')
    for k in range(5): A(f'ds_read2_b32 {vr(X0+2*k,2)}, v99 offset0:{16*k} offset1:{16*k+8}')
    for i in range(4): A(f'v_mov_b32 v{D0+i}, 0')
    A('s_waitcnt lgkmcnt(0)')
    tags()
    stamp(1)
    A(f's_waitcnt vmcnt({NE})\ns_branch L_mm10')
    W1 = 88; X1r = 128
    A('L_cB:')
    A(f'''v_mul_u32_u24 v72, 12288, v3
    s_mul_i32 s3, s4, {160*12288}
    s_mul_i32 s7, s5, 384
    s_add_u32 s3, s3, s7
    s_lshr_b32 s12, s2, 5
    s_lshl_b32 s7, s12, 7
    s_add_u32 s3, s3, s7
    v_add_u32 v72, v72, v1
    s_mov_b32 s46, {160*12288}
    s_mov_b32 s57, {8*12288}
    v_mul_u32_u24 v73, 20, v2
    v_min_u32 v74, 39, v2
    s_mul_i32 s13, s4, 320
    v_lshl_add_u32 v74, v74, 3, s13''')
    cstart(FB < 2)
    A(f'''s_add_u32 s44, s22, s3
    s_addc_u32 s45, s23, 0
    global_load_dwordx4 v[140:143], v73, s[16:17]
    global_load_dword v144, v73, s[16:17] offset:16
    global_load_dwordx2 v[146:147], v74, s[16:17]''')
    stamp(13)
    A(f'''s_call_b64 s[60:61], L_load10
    s_mov_b32 s56, {80*12288}''')
    for k in range(10):
        A(f'buffer_load_dwordx4 {vr(W1+4*k,4)}, v72, s[44:47], s56 offen nt')
        if k < 9: A('s_add_u32 s56, s56, s57')
    if FB == 2: A('s_barrier')
    A(f'''s_or_b32 s3, s12, s4
    s_cbranch_scc1 L_notk
    s_mul_i32 s3, s5, {TKS}
    s_add_u32 s3, s3, {R_TK2}
    v_mov_b32 v60, s3
    s_mov_b64 exec, 1
    v_mov_b32 v62, {8*BS if BS else 64*NS}
    v_mov_b32 v63, 0
    global_store_dwordx2 v60, v[62:63], s[42:43] sc1
    s_mov_b64 exec, -1
    L_notk:''')
    masks(['v4', 'v5', 'v6', 'v7'], 'v2', 'v64', 'v65')
    A(f'''s_mul_i32 s11, s5, 768
    s_lshl_b32 s7, s12, 8
    s_add_u32 s11, s11, s7
    s_add_u32 s11, s11, {R_Q}
    v_lshlrev_b32 v74, 1, v74
    s_mov_b32 s54, 3
    v_add_u32 v76, {R_MA}, v74
    v_add_u32 v77, {R_MA + 5120}, v74
    v_add_u32 v78, {R_MA + 10240}, v74
    v_add_u32 v81, {R_MA + 15360}, v74
    s_lshl_b32 s3, s13, 1
    s_add_u32 s3, s3, {L_HB}
    v_lshl_add_u32 v73, v3, 2, s3
    s_waitcnt vmcnt(20) lgkmcnt(0)''')
    tags()
    XA = [v(150+i) for i in range(10)]
    for i in range(5):
        A(f'v_lshlrev_b32 {XA[2*i]}, 16, v{140+i}\nv_and_b32 {XA[2*i+1]}, 0xffff0000, v{140+i}')
    XN = ['v160', 'v161', 'v162', 'v163']
    A('v_lshlrev_b32 v160, 16, v146\nv_and_b32 v161, 0xffff0000, v146\nv_lshlrev_b32 v162, 16, v147\nv_and_b32 v163, 0xffff0000, v147')
    A(f'v_add_f32 v60, {XA[0]}, {XA[1]}')
    for i in range(2, 10): A(f'v_add_f32 v60, v60, {XA[i]}')
    allred8(['v60']); red_hi(['v60'])
    A(f'v_mul_f32 v60, {H(1/640)}, v60\nv_readlane_b32 s8, v60, 63')
    for i in range(10): A(f'v_subrev_f32 {XA[i]}, s8, {XA[i]}')
    A(f'v_mul_f32 v61, {XA[0]}, {XA[0]}')
    for i in range(1, 10): A(f'v_fmac_f32 v61, {XA[i]}, {XA[i]}')
    allred8(['v61']); red_hi(['v61'])
    A(f'v_mul_f32 v61, {H(1/640)}, v61')
    round_list(['v60', 'v61'], ['v62'])
    A(f'v_add_f32 v61, {H(1e-5)}, v61')
    round_list(['v61'], ['v62'])
    A('v_sqrt_f32 v61, v61')
    round_list(['v61'], ['v62'])
    A('v_rcp_f32 v61, v61\nv_readlane_b32 s8, v60, 63\nv_readlane_b32 s9, v61, 63')
    for r in XN: A(f'v_subrev_f32 {r}, s8, {r}')
    round_list(XN, ['v62', 'v63'])
    for r in XN: A(f'v_mul_f32 {r}, s9, {r}')
    round_list(XN, ['v62', 'v63'])
    set_exec(0xffffffff, 0xff)
    stamp(1)
    A(f's_waitcnt vmcnt({HAW})')
    stamp(2)
    G = 128
    A(f's_and_b32 s3, s14, {FM}\ns_sub_u32 s36, 0, s3\ns_subb_u32 s37, 0, s3')
    L = lab('ha')
    A(f'{L}:')
    for k in range(8): A(f'global_load_dwordx4 {vr(G+4*k,4)}, {["v76","v77","v78","v81"][k%4]}, s[42:43] offset:{2560*(k//4)} sc1')
    if FB == 3: A('s_cmp_eq_u32 s56, 0\ns_cbranch_scc1 L_nb3\ns_mov_b32 s56, 0\ns_barrier\nL_nb3:')
    A('s_waitcnt vmcnt(0)')
    untag(G, 32)
    ortree([v(G+i) for i in range(32)], 'v60')
    tag_end('v60', L, SLA, FM)
    A('s_and_b32 s3, s14, 15\ns_sub_u32 s36, 0, s3\ns_subb_u32 s37, 0, s3')
    stamp(3)
    for a, b in ((0,1),(2,3),(0,2)):
        for base in (0, 4):
            for h2 in (0, 2): A(f'v_pk_add_f32 {vr(G+4*(base+a)+h2,2)}, {vr(G+4*(base+a)+h2,2)}, {vr(G+4*(base+b)+h2,2)}')
    SA = [v(G+i) for i in range(4)]; CA = [v(G+16+i) for i in range(4)]
    TT = ['v60', 'v61', 'v62', 'v63']
    round_list(CA + SA, TT)
    for r in CA: A(f'v_add_f32 {r}, 1.0, {r}')
    round_list(CA, TT)
    for a, b in zip(CA, XN): A(f'v_mul_f32 {a}, {a}, {b}')
    round_list(CA, TT)
    for a, b in zip(CA, SA): A(f'v_add_f32 {a}, {a}, {b}')
    for r in CA: A(f'v_cvt_pk_bf16_f32 {r}, {r}, {r}')
    A(f'ds_write_b128 v74, v[144:147] offset:{L_HB}\ns_mov_b64 exec, -1')
    for k in range(5): A(f'ds_read2_b32 {vr(X1r+2*k,2)}, v73 offset0:{80 + 16*k} offset1:{80 + 16*k + 8}')
    for k in range(5): A(f'ds_read2_b32 {vr(X0+2*k,2)}, v73 offset0:{16*k} offset1:{16*k + 8}')
    A('s_waitcnt lgkmcnt(0)')
    for s in range(10):
        F = F0 + 4*(s & 1)
        for t in range(4): A(f'v_and_b32 v{F+t}, v{X1r+s}, v{4+t}')
        c = '0' if s == 0 else vr(D0, 4)
        A(f'v_mfma_f32_16x16x32_bf16 {vr(D0,4)}, {vr(F,4)}, {vr(W1+4*s,4)}, {c}')
    A('L_mm10:')
    for s in range(10):
        F = F0 + 4*(s & 1)
        for t in range(4): A(f'v_and_b32 v{F+t}, v{X0+s}, v{4+t}')
        A(f'v_mfma_f32_16x16x32_bf16 {vr(D0,4)}, {vr(F,4)}, {vr(W0+4*s,4)}, {vr(D0,4)}')
    A('''v_and_b32 v65, 16, v2
    v_lshrrev_b32 v66, 5, v2
    v_lshl_add_u32 v64, v1, 1, v65
    v_lshl_add_u32 v64, v66, 3, v64
    s_lshl_b32 s3, s4, 8
    v_add_u32 v64, s3, v64
    v_add_u32 v67, s11, v80
    s_and_b32 s9, s14, 0xffff''')
    A(f'v_permlane32_swap_b32 v60, v62\nv_permlane32_swap_b32 v61, v63')
    A(f'v_add_f32 v60, v62, v60 row_ror:8 {DPPF}\nv_add_f32 v61, v63, v61 row_ror:8 {DPPF}')
    set_exec(0x00ff00ff, 0x00ff00ff)
    A(f'''ds_write_b64 v64, v[60:61] offset:{L_MS}
    s_mov_b64 exec, 1
    ds_add_rtn_u32 v66, v0, v79 offset:{L_CM}
    s_mov_b64 exec, -1
    ds_read2st64_b32 v[68:69], v80 offset0:{L_MS//256} offset1:{L_MS//256+1}
    ds_read2st64_b32 v[70:71], v80 offset0:{L_MS//256+2} offset1:{L_MS//256+3}
    s_waitcnt lgkmcnt(0)
    v_readfirstlane_b32 s3, v66
    s_cmp_eq_u32 s54, 1
    s_cselect_b32 s7, {FM}, 15
    v_mov_b32 v65, s7
    s_cbranch_scc1 L_two
    v_pk_add_f32 v[68:69], v[68:69], v[70:71]
    L_two:
    v_add_f32 v68, v68, v69
    v_cvt_pk_bf16_f32 v69, v68, v68
    v_bfi_b32 v68, v65, s14, v68
    v_lshl_or_b32 v69, v69, 16, s9
    s_cmp_lt_u32 s2, 96
    s_cselect_b64 vcc, -1, 0
    v_cndmask_b32 v68, v68, v69, vcc
    s_cmp_eq_u32 s3, s54
    s_cbranch_scc0 L_nopub
    global_store_dword v67, v68, s[42:43] sc1
    L_nopub:
    s_setprio 3''')
    stamp(4)
    if HB:
        A('L_hopB:\ns_cmp_eq_u32 s4, 0\ns_cbranch_scc1 L_tail')
        if stamps == 1:
            A('s_waitcnt lgkmcnt(0)')
            for i in range(13): A(f'v_writelane_b32 v159, s{70+2*i}, {i}')
        elif stamps: A('s_waitcnt lgkmcnt(0)\nv_writelane_b32 v159, s70, 0')
        A(f'''s_mul_i32 s3, s5, 768
        s_lshl_b32 s7, s4, 8
        s_add_u32 s3, s3, s7
        s_add_u32 s3, s3, {R_Q - 256}
        s_add_u32 s52, s42, s3
        s_addc_u32 s53, s43, 0
        v_mov_b32 v64, s14
        v_mov_b32 v65, s15
        ds_write_b64 v0, v[64:65] offset:{L_TB}
        s_lshl_b32 s7, s6, {LBS}
        s_add_u32 s7, s7, 1
        v_mov_b32 v66, s7
        ds_write_b32 v0, v66 offset:{L_BT}
        s_lshl_b32 s3, s4, 7
        v_lshl_add_u32 v74, v2, 1, s3''')
        L = lab('hb')
        for half in range(2):
            Lh = L if half == 0 else lab('hc'); D = lab('hbh')
            A(f'{Lh}:\ns_load_dwordx16 s[64:79], s[52:53], {128*half} glc\ns_load_dwordx16 s[80:95], s[52:53], {128*half+64} glc\ns_waitcnt lgkmcnt(0)')
            A(f's_xor_b32 s3, s64, s14\ns_xor_b32 s7, s95, s14\ns_or_b32 s3, s3, s7\ns_and_b32 s3, s3, 0xffff\ns_cbranch_scc0 {D}')
            spin_tail(Lh, SLB if half == 0 else 1)
            A(f'{D}:')
            for k in range(32): A(f'v_writelane_b32 v84, s{64+k}, {32*half+k}')
        D = lab('hbd')
        A(f'''v_xor_b32 v60, s14, v84
        v_lshlrev_b32 v60, 16, v60
        v_cmp_ne_u32 vcc, 0, v60
        s_cbranch_vccz {D}''')
        spin_tail(L, SLB)
        A(f'''{D}:
        ds_write_b16_d16_hi v74, v84 offset:{L_Q - 128}
        s_mov_b64 exec, 1
        ds_add_u32 v0, v79 offset:{L_CQ}
        s_mov_b64 exec, -1''')
        if stamps == 1:
            for i in range(13): A(f'v_readlane_b32 s{70+2*i}, v159, {i}')
        elif stamps: A('v_readlane_b32 s70, v159, 0')
        stamp(5)
    else:
        A('L_hopB:\ns_cmp_eq_u32 s4, 1\ns_cbranch_scc0 L_tail')
        A(f'''s_mul_i32 s3, s5, 768
        s_add_u32 s3, s3, {R_Q}
        v_add_u32 v73, s3, v75
        s_add_u32 s52, s42, s3
        s_addc_u32 s53, s43, 0
        v_mov_b32 v64, s14
        v_mov_b32 v65, s15
        ds_write_b64 v0, v[64:65] offset:{L_TB}
        s_lshl_b32 s7, s6, {LBS}
        s_add_u32 s7, s7, 1
        v_mov_b32 v66, s7
        ds_write_b32 v0, v66 offset:{L_BT}
        v_mov_b32 v76, 0x07060302
        v_lshlrev_b32 v74, 3, v2
        s_lshl_b32 s7, s6, 4
        s_add_u32 s52, s52, s7
        s_addc_u32 s53, s53, 0''')
        set_exec(0xffffffff, 0xffff)
        L = lab('hb'); D = lab('hbh')
        A(f'{L}:')
        for k in range(3): A(f's_load_dword s{62+k}, s[52:53], {256*k} glc')
        A(f's_waitcnt lgkmcnt(0)\ns_xor_b32 s62, s62, s14\ns_xor_b32 s63, s63, s14\ns_xor_b32 s64, s64, s14\ns_or_b32 s62, s62, s63\ns_or_b32 s62, s62, s64\ns_and_b32 s62, s62, 0xffff\ns_cbranch_scc0 {D}')
        spin_tail(L, SLB)
        A(f'{D}:')
        stamp(12)
        D = lab('hbd')
        A(f'''global_load_dwordx4 v[84:87], v73, s[42:43] sc1
        s_waitcnt vmcnt(0)
        v_bitop3_b32 v60, v84, v85, s14 bitop3:0x7e
        v_bitop3_b32 v61, v86, v87, s14 bitop3:0x7e
        v_or_b32 v60, v60, v61
        v_lshlrev_b32 v60, 16, v60
        v_cmp_ne_u32 vcc, 0, v60
        s_cbranch_vccz {D}''')
        spin_tail(L, SLB)
        A(f'''{D}:
        v_perm_b32 v84, v85, v84, v76
        v_perm_b32 v85, v87, v86, v76
        ds_write_b64 v74, v[84:85] offset:{L_Q}
        s_mov_b64 exec, 1
        ds_add_u32 v0, v79 offset:{L_CQ}
        s_mov_b64 exec, -1''')
        stamp(5)

    def trig_wait(val, L_TRIG=L_TRIG):
        if val <= 0: return
        L = lab('tg'); D = lab('tgd'); W = lab('tgw')
        A(f's_cmp_eq_u32 s4, 3\ns_cbranch_scc0 {W}\ns_lshl_b32 s8, s5, 7\ns_add_u32 s8, s8, {R_TK}\nds_read_b32 v90, v0 offset:{L_TB}\ns_waitcnt lgkmcnt(0)\nv_readfirstlane_b32 s9, v90')
        A(f'{L}:\ns_load_dword s3, s[42:43], s8 glc\ns_waitcnt lgkmcnt(0)\ns_sub_u32 s3, s3, s9\ns_cmp_ge_u32 s3, {val}\ns_cbranch_scc1 {D}')
        spin_tail(L, 4)
        A(f'{D}:\nv_mov_b32 v90, 1\nds_write_b32 v0, v90 offset:{L_TRIG}\n{W}:')
        lds_wait_ge(L_TRIG, 1, 'v0', 'v90', sleep=2)
    def sgate(base, offs, regs, mask):
        L = lab('sg'); D = lab('sgd')
        A(f'{L}:')
        for o, r in zip(offs, regs): A(f's_load_dword s{r}, {base}, {o} glc')
        A('s_waitcnt lgkmcnt(0)')
        A(f's_xor_b32 s3, s{regs[0]}, s14')
        for r in regs[1:len(offs)]: A(f's_xor_b32 s{r}, s{r}, s14\ns_or_b32 s3, s3, s{r}')
        if mask != -1: A(f's_and_b32 s3, s3, {mask}')
        A(f's_cbranch_scc0 {D}')
        spin_tail(L, 0)
        A(f'{D}:')
    def ffn_prefetch():
        if not PFC: return
        Lk = lab('pf')
        A(f'''s_lshr_b32 s8, s2, 3
        s_lshl2_add_u32 s8, s8, s4
        s_cmp_ge_u32 s8, 120
        s_cbranch_scc1 {Lk}
        s_cmp_lt_u32 s8, 40
        s_cselect_b32 s64, s28, s30
        s_cselect_b32 s65, s29, s31
        s_cselect_b32 s9, 0, 40
        s_cmp_lt_u32 s8, 80
        s_cselect_b32 s64, s64, s32
        s_cselect_b32 s65, s65, s33
        s_cselect_b32 s9, s9, 80
        s_movk_i32 s66, 384
        s_cselect_b32 s67, 3072, s66
        s_cselect_b32 s66, s66, 245760
        s_sub_u32 s8, s8, s9
        s_mul_i32 s8, s8, s67
        s_lshl_b32 s8, s8, 4
        s_mul_i32 s9, s6, s66
        s_add_u32 s8, s8, s9
        v_lshrrev_b32 v165, 2, v2
        v_mul_u32_u24 v165, s67, v165
        v_lshl_add_u32 v165, v7, 4, v165
        s_mov_b32 s66, 1966080
        s_mov_b32 s67, 0x20000''')
        lds_wait_ge(L_CSTAT, PFC, 'v0', 'v90', sleep=1)
        set_exec(0x77777777, 0x77777777)
        A(f'buffer_load_dword v166, v165, s[64:67], s8 offen {PFP}\ns_mov_b64 exec, -1\n{Lk}:')
    A('L_tail:')
    if AFF: A('s_and_b32 s6, s2, 7')
    A('v_lshrrev_b32 v4, 4, v2\nv_and_b32 v5, 15, v2\nv_lshrrev_b32 v6, 2, v5\nv_and_b32 v7, 3, v2\nv_lshlrev_b32 v7, 3, v7')
    A('s_cmp_ge_u32 s2, 96\ns_cbranch_scc0 L_tailB')
    A('''s_lshr_b32 s13, s10, 3
    s_and_b32 s12, s2, 7
    s_lshl_b32 s12, s12, 1
    s_cmp_ge_u32 s13, 10
    s_cselect_b32 s3, 10, 0
    s_addc_u32 s12, s12, 0
    s_sub_u32 s13, s13, s3''')
    A(f'''s_lshr_b32 s23, s10, 3
    s_lshr_b32 s3, s10, 5
    s_cmp_eq_u32 s4, 2
    s_cselect_b32 s7, 2, 0
    s_add_u32 s3, s3, s7
    s_lshl3_add_u32 s3, s3, s6
    s_bfe_u32 s7, s10, 0x20003
    s_lshl2_add_u32 s10, s3, s7
    s_cmp_lt_u32 s10, 80
    s_cselect_b32 s57, 1, 0
    s_sub_u32 s3, s4, 1
    s_cmp_lt_u32 s3, 2
    s_cselect_b32 s57, s57, 0
    s_cmp_ge_u32 s23, 8
    s_cselect_b32 s57, 2, s57
    s_mul_i32 s3, s6, 12
    s_add_u32 s23, s23, s3
    s_sub_u32 s23, s23, 8
    s_lshl2_add_u32 s3, s57, s4
    s_cmp_eq_u32 s3, 8
    s_cbranch_scc0 L_noxc
    s_getreg_b32 s3, hwreg(HW_REG_XCC_ID, 0, 4)
    s_andn2_b32 s7, s14, 15
    s_or_b32 s3, s3, s7
    v_mov_b32 v101, s3
    s_lshl_b32 s3, s23, 2
    v_mov_b32 v100, s3
    s_mov_b64 exec, 1
    global_store_dword v100, v101, s[42:43] offset:{R_XC} sc1
    s_mov_b64 exec, -1
    L_noxc:''')
    A(f'''v_and_b32 v100, 1, v2
    v_lshl_add_u32 v100, v100, 2, v4
    s_lshl_b32 s3, s10, 3
    v_add_u32 v100, s3, v100
    v_lshlrev_b32 v101, 2, v100
    v_lshlrev_b32 v100, 1, v100
    v_add_u32 v102, {R_MOD + 5*2560}, v101
    v_add_u32 v101, {R_X1}, v101
    v_lshrrev_b32 v103, 1, v2
    v_mul_u32_u24 v103, 2560, v103
    v_and_b32 v104, 1, v2
    v_lshl_add_u32 v103, v104, 4, v103
    s_lshl_b32 s3, s10, 5
    s_add_u32 s3, s3, {R_DN}
    v_add_u32 v103, s3, v103
    v_add_u32 v104, {32*2560}, v103
    v_add_u32 v105, {64*2560}, v103''')
    B0 = 8; AA = 56; DD = 68
    A(f'''v_lshl_add_u32 v84, v4, 3, v6
    s_mul_i32 s3, s4, 96
    v_add_u32 v84, s3, v84
    v_lshl_add_u32 v84, v84, 7, v7
    v_mul_u32_u24 v91, 896, v3
    v_add_u32 v85, v91, v1
    v_mov_b32 v118, 0x07060302
    s_mul_i32 s3, s4, 2048
    s_add_u32 s3, s3, {L_W + 49152}
    v_lshl_add_u32 v119, v2, 3, s3
    v_lshl_add_u32 v133, v1, 2, s3
    v_lshl_add_u32 v133, v4, 4, v133
    v_lshl_add_u32 v134, v3, 3, s3
    v_lshrrev_b32 v135, 1, v1
    v_add_u32 v135, s3, v135
    s_lshr_b32 s3, s4, 1
    s_lshl1_add_u32 s3, s12, s3
    s_mul_i32 s3, s3, {8*896}
    s_add_u32 s3, s3, {R_O + 768}
    v_add_u32 v91, s3, v91
    s_and_b32 s7, s4, 1
    s_mul_i32 s7, s7, 384
    s_add_u32 s3, s3, s7
    s_sub_u32 s3, s3, 768
    v_add_u32 v85, s3, v85
    v_lshrrev_b32 v86, 5, v2
    v_lshl_add_u32 v86, v86, 4, v5
    v_lshlrev_b32 v86, 5, v86
    v_and_b32 v87, 1, v4
    v_lshl_add_u32 v86, v87, 2, v86
    s_lshl_b32 s3, s4, 3
    v_add_u32 v86, s3, v86
    v_lshlrev_b32 v87, 5, v2
    s_mul_i32 s3, s12, 2560
    s_lshl_b32 s7, s13, 8
    s_add_u32 s3, s3, s7
    s_add_u32 s3, s3, {R_P}
    v_lshl_add_u32 v88, v2, 2, s3
    v_mov_b32 v89, 1
    s_lshl_b32 s3, s10, 5
    s_add_u32 s3, s3, {R_DN}
    s_add_u32 s54, s42, s3
    s_addc_u32 s55, s43, 0
    v_mov_b32 v98, 0xffff''')
    A(f'''s_mul_i32 s3, s12, {384*1280}
    s_lshl_b32 s7, s13, 7
    s_add_u32 s3, s3, s7
    s_add_u32 s44, s24, s3
    s_addc_u32 s45, s25, 0
    s_mov_b32 s46, {384*1280}
    v_mul_u32_u24 v72, 1280, v3
    v_and_b32 v90, 16, v2
    v_lshlrev_b32 v90, 1, v90
    v_xor_b32 v90, v90, v1
    v_add_u32 v72, v72, v90
    v_and_b32 v90, 1, v4
    v_lshrrev_b32 v92, 1, v6
    v_lshl_or_b32 v90, v90, 1, v92
    v_lshlrev_b32 v90, 5, v90
    v_add_u32 v84, v84, v90
    v_xor_b32 v154, 32, v84
    v_xor_b32 v155, 64, v84
    v_xor_b32 v156, 0x60, v84''')
    SE = 3 - WDEF
    def trread(s):
        for ct in range(4):
            for hf in range(2):
                A(f'ds_read_b64_tr_b16 {vr(B0+(s*4+ct)*4+2*hf,2)}, {["v84","v154","v155","v156"][ct]} offset:{L_W + (32*s+4*hf)*128}')
    if SE and not EQ:
        A(f's_cmp_eq_u32 s4, 0\ns_cbranch_scc0 L_nodma\ns_movk_i32 s7, {L_W}\ns_setprio {DPRIO}')
        stamp(6)
        L = lab('dma'); L2 = lab('dmo')
        A(f's_mov_b32 s56, 0\n{L2}:\ns_mov_b32 s8, 0\n{L}:\ns_mov_b32 m0, s7\ns_add_u32 s7, s7, 1024\nbuffer_load_dwordx4 v72, s[44:47], s56 offen nt lds\nv_xor_b32 v72, 64, v72\ns_add_u32 s56, s56, 10240\ns_waitcnt vmcnt({TWA})')
        A(f's_add_u32 s8, s8, 1\ns_cmp_lt_u32 s8, {4*SE}\ns_cbranch_scc1 {L}')
        A(f's_add_u32 s7, s7, {4096*WDEF}\ns_add_u32 s56, s56, {40960*WDEF}\ns_cmp_lt_u32 s56, {384*1280}\ns_cbranch_scc1 {L2}')
        A(f's_waitcnt vmcnt(0)\nds_write_b32 v0, v89 offset:{L_WRDY}')
        stamp(7)
        A('L_nodma:')
    A(f's_setprio {CP}')
    if SE:
        if EQ: A('s_waitcnt vmcnt(0)')
        else: lds_wait_ge(L_WRDY, 1, 'v0', 'v90', sleep=8)
        for s in range(SE):
            trread(s)
            A('s_waitcnt lgkmcnt(0)')
    if not WDEF: stamp(8)
    A('s_cmp_eq_u32 s57, 1\ns_cbranch_scc0 L_nofin')
    if not SE or EQ: lds_wait_ge(L_CQ, 5, 'v0', 'v90', sleep=8)
    A('global_load_ushort v107, v100, s[38:39]')
    A('v_add_u32 v132, 15360, v102')
    L = lab('gb')
    A(f'{L}:\nglobal_load_dword v120, v102, s[42:43] sc1\nglobal_load_dword v121, v132, s[42:43] sc1\ns_waitcnt vmcnt(0)')
    untag(120, 2)
    ortree(['v120', 'v121'], 'v90')
    tag_end('v90', L, 16)
    A('v_add_f32 v106, v120, v121')
    round_list(['v106'], ['v90'])
    A('L_nofin:')
    tailtags()
    def act_dma():
        for n in range(5):
            A(f's_add_u32 m0, s13, {1024*n}\ns_nop 0\nbuffer_load_dwordx4 v{148+n}, s[48:51], 0 offen nt lds')
        if TCH == 0: act_touch()
    def act_touch():
        A('s_mov_b64 exec, 31')
        if NGT < 2: A('global_load_dword v167, v153, s[42:43] sc1')
        if NGT < 1: A(f'v_add_u32 v153, {R_GU - R_DN}, v153\nglobal_load_dword v167, v153, s[42:43] sc1')
        A('s_mov_b64 exec, -1')
    for n in range(5):
        A(f'v_add_u32 v90, {64*n}, v2\nv_mul_u32_u24 v92, 3277, v90\nv_lshrrev_b32 v92, 16, v92\nv_mul_u32_u24 v92, 960, v92\nv_lshl_add_u32 v{148+n}, v90, 4, v92')
    A(f'''s_min_u32 s23, s23, 95
    s_mul_i32 s3, s23, 20480
    s_mul_i32 s7, s4, 320
    s_add_u32 s3, s3, s7
    s_add_u32 s48, s32, s3
    s_addc_u32 s49, s33, 0
    s_movk_i32 s50, {15*1280 + 320}
    s_mul_i32 s13, s4, 5120
    s_add_u32 s13, s13, {L_DN}
    s_lshl2_add_u32 s3, s23, s4
    s_mul_i32 s12, s3, 640
    s_add_u32 s12, s12, {R_DN}
    v_lshl_add_u32 v153, v2, 7, s12
    v_and_b32 v132, 1, v4
    v_lshl_add_u32 v132, v132, 3, v6
    v_mul_u32_u24 v132, 320, v132
    v_lshrrev_b32 v90, 1, v4
    v_lshl_add_u32 v90, v90, 5, v7
    v_add3_u32 v132, v132, v90, s13
    v_and_b32 v165, 16, v2
    v_lshl_add_u32 v165, v165, 3, v1
    v_lshrrev_b32 v90, 5, v2
    v_mul_u32_u24 v90, 384, v90
    v_add_u32 v165, v165, v90
    v_cmp_eq_u32 vcc, 8, v2
    v_mov_b32 v90, 256
    v_cndmask_b32 v165, v165, v90, vcc
    s_mul_i32 s3, s23, 2560
    s_add_u32 s3, s3, {R_GU}
    v_add_u32 v165, s3, v165
    v_lshlrev_b32 v166, 6, v5
    v_lshl_add_u32 v166, v4, 4, v166
    v_add_u32 v166, s12, v166
    v_lshrrev_b32 v90, 1, v4
    v_and_b32 v92, 1, v2
    v_cmp_eq_u32 s[62:63], v90, v92
    v_lshrrev_b32 v90, 1, v5''')
    for m in range(5):
        A(f'v_cmp_eq_u32 vcc, {m}, v90\ns_and_b64 vcc, vcc, s[62:63]\nv_cndmask_b32 v{160+m}, 0, -1, vcc')
    if TLB:
        A('s_cmp_eq_u32 s4, 2\ns_cbranch_scc0 L_nowarm')
        if TLB == 1: lds_wait_ge(L_CSTAT, 1, 'v0', 'v90', sleep=2)
        A(f's_mul_i32 s3, s59, 896\ns_add_u32 s3, s3, {R_O}\nv_lshl_add_u32 v90, v2, 7, s3\ns_mov_b64 exec, 0x7f\nglobal_load_dword v167, v90, s[42:43] sc1')
        set_exec(1, 1)
        if PW >= 1: A('global_load_dword v167, v88, s[42:43] sc1')
        if PW >= 2: A('v_add_u32 v90, 40960, v88\nglobal_load_dword v167, v90, s[42:43] sc1')
        A('s_mov_b64 exec, -1\nL_nowarm:')
    if WDEF:
        A(f's_mul_i32 s7, s4, 12288\ns_add_u32 s7, s7, {L_W + 4096*SE}\ns_mul_i32 s56, s4, 122880\ns_add_u32 s56, s56, {40960*SE}')
    ffn_prefetch()
    if ADM:
        A('s_cmp_eq_u32 s57, 2\ns_cbranch_scc0 L_noad')
        if ADM < 9: lds_wait_ge(L_CSTAT, ADM, 'v0', 'v90', sleep=1)
        elif ADM == 9: lds_wait_ge(L_CO, 9, 'v0', 'v90', sleep=1)
        act_dma()
        A('L_noad:')
    if TCH:
        A('s_cmp_eq_u32 s57, 2\ns_cbranch_scc0 L_notch')
        if TCH < 9: lds_wait_ge(L_CSTAT, TCH, 'v0', 'v90', sleep=1)
        act_touch()
        A('L_notch:')
    for c in range(1, PREP): A(f's_mov_b32 s{15+c}, {c*40960}')
    if CS and not WDEF: lds_wait_ge(L_CSTAT, CS, 'v0', 'v90', sleep=1)
    elif WP:
        if LS: lds_wait_ge(L_CSTAT, 1, 'v0', 'v90', sleep=LS)
        lds_wait_ge(L_CSTAT, WPC, 'v0', 'v90', sleep=1)
    if WDEF:
        for k in range(4*WDEF):
            if k == WP: lds_wait_ge(L_CO, 9, 'v0', 'v90', sleep=WSL)
            A('s_mov_b32 m0, s7\ns_add_u32 s7, s7, 1024\nbuffer_load_dwordx4 v72, s[44:47], s56 offen nt lds\nv_xor_b32 v72, 64, v72\ns_add_u32 s56, s56, 10240')
        OX = 120
        for s in range(SE, 2):
            A(f's_waitcnt vmcnt({4*(2-s)}) lgkmcnt(0)')
            trread(s)
        if OEARLY < 4: A(f's_waitcnt vmcnt({OEARLY})')
        for s in range(3): A(f'global_load_dwordx4 {vr(OX+4*s,4)}, v85, s[42:43] offset:{128*s} sc1')
        A('global_load_dwordx4 v[108:111], v91, s[42:43] sc1')
        A(f's_waitcnt vmcnt(4) lgkmcnt(0)')
        trread(2)
        stamp(8)
        stamp(9)
        A('s_waitcnt lgkmcnt(0)\ns_branch L_wochk')
    else: stamp(9)
    OX = 120
    if G1:
        L = lab('sw'); D = lab('swd')
        A(f'{L}:\ns_load_dwordx16 s[16:31], s[52:53], 0 glc\ns_load_dwordx4 s[32:35], s[52:53], 64 glc\ns_load_dwordx4 s[44:47], s[52:53], 80 glc\ns_load_dwordx8 s[60:67], s[52:53], 96 glc\ns_waitcnt lgkmcnt(0)')
        A('s_add_u32 s3, s18, s22\ns_add_u32 s7, s26, s30\ns_add_u32 s3, s3, s34\ns_add_u32 s7, s7, s46\ns_add_u32 s3, s3, s62\ns_add_u32 s7, s7, s66\ns_add_u32 s3, s3, s7\ns_lshl_b32 s7, s14, 3')
        A(f's_cmp_eq_u32 s3, s7\ns_cbranch_scc1 {D}')
        spin_tail(L, 0)
        A(f'{D}:')
    else:
        L = lab('wg'); D = lab('wgd')
        set_exec(0x01010101, 0x01010101)
        A(f'{L}:\nglobal_load_dwordx4 v[108:111], v91, s[42:43] sc1\ns_waitcnt vmcnt(0)\nv_cmp_ne_u64 vcc, s[14:15], v[110:111]\ns_bcnt1_i32_b64 s3, vcc\ns_cmp_le_u32 s3, {GATE}\ns_cbranch_scc1 {D}')
        spin_tail(L, GSL)
        A(f'{D}:')
    stamp(3)
    if stamps == 1: A('s_mov_b32 s82, s58')
    L = lab('wo'); L2 = lab('wp'); D = lab('woq')
    A(f'{L}:\ns_mov_b64 exec, -1')
    A(f'{L2}:')
    for s in range(3): A(f'global_load_dwordx4 {vr(OX+4*s,4)}, v85, s[42:43] offset:{128*s} sc1')
    A('global_load_dwordx4 v[108:111], v91, s[42:43] sc1')
    A('L_wochk:')
    bt = lambda d, a: f'v_bitop3_b32 {d}, v{OX+a}, v{OX+a+1}, s14 bitop3:0x7e'
    for s in range(3):
        A(f's_waitcnt vmcnt({3-s})\nv_perm_b32 v{136+2*s}, v{OX+4*s+1}, v{OX+4*s}, v118\nv_perm_b32 v{137+2*s}, v{OX+4*s+3}, v{OX+4*s+2}, v118\nds_write_b64 v119, {vr(136+2*s,2)} offset:{512*s}')
        A(bt(f'v{92+2*s}', 4*s) + '\n' + bt(f'v{93+2*s}', 4*s+2))
    A(f'''s_waitcnt vmcnt(0)
    ds_write_b64 v134, v[108:109] offset:1536
    s_mov_b64 s[8:9], exec
    s_mov_b64 exec, -1''')
    for s in range(3): A(f'ds_read_b128 {vr(AA+4*s,4)}, v133 offset:{512*s}')
    A(f'''ds_read_b64 v[142:143], v135 offset:1536
    s_mov_b64 exec, s[8:9]
    v_or3_b32 v90, v92, v93, v94
    v_or3_b32 v95, v95, v96, v97
    v_cmp_ne_u64 s[8:9], v[110:111], s[14:15]
    v_bitop3_b32 v90, v90, v95, v98 bitop3:0xa8
    v_cmp_ne_u32 vcc, 0, v90
    s_or_b64 exec, vcc, s[8:9]
    s_cbranch_scc0 {D}''')
    spin_tail(L2, OSL)
    A(f'{D}:\ns_mov_b64 exec, -1\ns_waitcnt lgkmcnt(0)')
    stamp(2)
    if stamps == 1: A('s_sub_u32 s82, s82, s58')
    fac = [f'v_max_f32 v116, v142, v142 quad_perm:[1,0,3,2] {DPPF}',
           f'v_max_f32 v116, v116, v116 quad_perm:[2,3,0,1] {DPPF}',
           f'v_max_f32 v116, v116, v116 row_half_mirror {DPPF}\nv_sub_f32 v116, v142, v116',
           f'v_mul_f32 v116, {H(LOG2E)}, v116\nv_exp_f32 v116, v116',
           f'v_mul_f32 v117, v116, v143',
           f'v_add_f32 v117, v117, v117 quad_perm:[1,0,3,2] {DPPF}',
           f'v_add_f32 v117, v117, v117 quad_perm:[2,3,0,1] {DPPF}',
           f'v_add_f32 v117, v117, v117 row_half_mirror {DPPF}\nv_rcp_f32 v117, v117',
           f'v_mul_f32 v116, v116, v117',
           '\n'.join(f'v_mov_b32 v{112+r}, v116 row_newbcast:{r} row_mask:0x5 bank_mask:0xf' for r in range(2)),
           '\n'.join(f'v_mov_b32 v{112+r}, v116 row_newbcast:{r} row_mask:0x5 bank_mask:0xf' for r in range(2, 4)),
           '\n'.join(f'v_mov_b32 v{112+r}, v116 row_newbcast:{4+r} row_mask:0xa bank_mask:0xf' for r in range(4))]
    k = 0
    for s in range(3):
        for ct in range(4):
            c = '0' if s == 0 else vr(DD+4*ct, 4)
            A(f'v_mfma_f32_16x16x32_bf16 {vr(DD+4*ct,4)}, {vr(AA+4*s,4)}, {vr(B0+(s*4+ct)*4,4)}, {c}')
            A(fac[k]); k += 1
    stamp(10)
    A('s_mov_b32 exec_lo, 0')
    for ct in (0, 2):
        A(f'v_pk_mul_f32 {vr(144+ct,2)}, {vr(DD+4*ct+4,2)}, v[112:113]\nv_pk_fma_f32 {vr(144+ct,2)}, {vr(DD+4*ct+6,2)}, v[114:115], {vr(144+ct,2)}')
    A('s_not_b64 exec, exec')
    for ct in (0, 2):
        A(f'v_pk_mul_f32 {vr(144+ct,2)}, {vr(DD+4*ct,2)}, v[112:113]\nv_pk_fma_f32 {vr(144+ct,2)}, {vr(DD+4*ct+2,2)}, v[114:115], {vr(144+ct,2)}')
    A(f's_mov_b64 exec, -1\nv_add_f32 v{DD}, v144, v145\nv_add_f32 v{DD+8}, v146, v147')
    A(f'ds_write_b32 v86, v{DD} offset:{L_PACC}\nds_write_b32 v86, v{DD+8} offset:{L_PACC + 1024}')
    A(f's_mov_b64 exec, 1\nds_add_rtn_u32 v90, v0, v89 offset:{L_CWO}\ns_mov_b64 exec, -1\nds_read_b128 v[92:95], v87 offset:{L_PACC}\nds_read_b128 v[96:99], v87 offset:{L_PACC+16}')
    A('s_waitcnt lgkmcnt(0)\nv_readfirstlane_b32 s3, v90')
    A('v_pk_add_f32 v[92:93], v[92:93], v[94:95]\nv_pk_add_f32 v[96:97], v[96:97], v[98:99]\nv_pk_add_f32 v[92:93], v[92:93], v[96:97]\nv_add_f32 v92, v92, v93\nv_bfi_b32 v92, 63, s14, v92')
    A('s_cmp_eq_u32 s3, 3\ns_cbranch_scc0 L_wonost\nglobal_store_dword v88, v92, s[42:43] sc1')
    for c in range(1, PREP): A(f'buffer_store_dword v92, v88, s[40:43], s{15+c} offen sc1')
    A('L_wonost:')
    stamp(11)
    A('s_cmp_eq_u32 s57, 2\ns_cbranch_scc1 L_act\ns_cmp_eq_u32 s57, 0\ns_cbranch_scc1 L_fin')
    L = lab('fx'); D = lab('fxd')
    A(f'{L}:\nglobal_load_dword v20, v101, s[42:43] sc1\ns_waitcnt vmcnt(0)\nv_xor_b32 v21, s14, v20\nv_lshlrev_b32 v21, 16, v21\nv_cmp_ne_u32 vcc, 0, v21\ns_cbranch_vccz {D}')
    spin_tail(L, 1)
    A(f'{D}:')
    def pend_poll(loads, regs, init, tmp, pre_sleep=0):
        n = len(loads)
        M = [f's[{62+2*k}:{63+2*k}]' for k in range(n)]
        for k in range(n): A(f's_mov_b64 {M[k]}, {init}')
        if FREE:
            for k in range(n): A(f'v_not_b32 v{regs[k]}, s14')
        L = lab('pl'); D = lab('pld')
        A(f'{L}:')
        for k in range(n): A(f's_mov_b64 exec, {M[k]}\n{loads[k]}')
        A(f's_mov_b64 exec, {init}')
        for k in range(n):
            r = regs[k]
            if not FREE: A(f's_waitcnt vmcnt({n-1-k})')
            elif k == 0: A(f's_waitcnt vmcnt({CAP*n})' + (f'\ns_sleep {FS}' if FS else ''))
            A(f'v_bitop3_b32 v{tmp}, v{r}, v{r+1}, s14 bitop3:0x7e\nv_bitop3_b32 v{tmp+1}, v{r+2}, v{r+3}, s14 bitop3:0x7e\nv_bitop3_b32 v{tmp}, v{tmp}, v{tmp+1}, 15 bitop3:0xa8\nv_cmp_ne_u32 {M[k]}, 0, v{tmp}')
        A(f's_or_b64 s[8:9], {M[0]}, {M[1]}')
        for k in range(2, n): A(f's_or_b64 s[8:9], s[8:9], {M[k]}')
        A(f's_cbranch_scc0 {D}')
        spin_tail(L, 0)
        A(f'{D}:')
    if G4: sgate('s[54:55]', [2560*((k*96)//G4 + (k*5) % (96//G4)) for k in range(G4)], list(range(16, 32)), 15)
    elif FG:
        L = lab('fg'); D = lab('fgd')
        set_exec(FG & 0xffffffff, FG >> 32)
        A(f'{L}:\nglobal_load_dwordx4 v[8:11], v104, s[42:43] sc1\ns_waitcnt vmcnt(0)\nv_bitop3_b32 v90, v8, v9, s14 bitop3:0x7e\nv_bitop3_b32 v91, v10, v11, s14 bitop3:0x7e\nv_bitop3_b32 v90, v90, v91, 63 bitop3:0xa8\nv_cmp_eq_u32 vcc, 0, v90\ns_cbranch_vccnz {D}')
        A(f's_sub_u32 s58, s58, 1\ns_cbranch_scc0 {L}\ns_branch L_fin\n{D}:\ns_mov_b64 exec, -1')
    elif FSL: A(f's_sleep {FSL}')
    L = lab('fi'); D = lab('fid')
    A(f'{L}:')
    for k in range(3): A(f'global_load_dwordx4 {vr(8+4*k,4)}, v{103+k}, s[42:43] sc1')
    A('s_waitcnt vmcnt(1)')
    untag(8, 8)
    A('v_pk_add_f32 v[22:23], v[8:9], v[12:13]\nv_pk_add_f32 v[24:25], v[10:11], v[14:15]\nv_or3_b32 v90, v8, v9, v10\nv_or3_b32 v91, v11, v12, v13\ns_waitcnt vmcnt(0)')
    untag(16, 4)
    A(f'''v_pk_add_f32 v[22:23], v[22:23], v[16:17]
    v_pk_add_f32 v[24:25], v[24:25], v[18:19]
    v_or3_b32 v90, v90, v14, v15
    v_or3_b32 v91, v91, v16, v17
    v_permlane32_swap_b32 v22, v24
    v_permlane32_swap_b32 v23, v25
    v_pk_add_f32 v[22:23], v[22:23], v[24:25]
    v_or3_b32 v90, v90, v18, v19
    v_bitop3_b32 v90, v90, v91, 63 bitop3:0xa8
    v_permlane16_swap_b32 v22, v23
    v_add_f32 v26, v22, v23
    v_cmp_ne_u32 vcc, 0, v90
    s_cbranch_vccz {D}''')
    spin_tail(L, 0)
    A(f'{D}:')
    A(f'v_add_f32 v26, v26, v26 row_ror:2 {DPPF}')
    stamp(12)
    A(f'v_add_f32 v26, v26, v26 row_ror:4 {DPPF}\nv_and_b32 v20, 0xffff0000, v20\nv_add_f32 v26, v26, v26 row_ror:8 {DPPF}')
    A('v_cvt_pk_bf16_f32 v26, v26, v26\nv_and_b32 v26, 0xffff0000, v26\nv_mul_f32 v26, v26, v106\nv_cvt_pk_bf16_f32 v26, v26, v26\nv_and_b32 v26, 0xffff0000, v26')
    A('v_add_f32 v26, v26, v20\nv_cvt_pk_bf16_f32 v26, v26, v26')
    set_exec(0x00030003, 0x00030003)
    A('global_store_short v100, v26, s[38:39]')
    stamp(13)
    A('s_branch L_fin' if stamps else 's_endpgm')

    A('L_tailB:')
    A(f's_setprio {CP}')
    lds_wait_ge(L_CQ, 5, 'v0', 'v90', sleep=8)
    calc_t('s12')
    G0 = 8; U0 = 28; WD = 48
    P0 = 100; HA = 100
    A(f'''s_and_b32 s57, s12, 3
    s_mul_i32 s13, s57, 160
    s_mul_i32 s3, s4, 40
    v_lshl_add_u32 v80, v5, 2, s3
    v_add_u32 v81, v80, v4
    v_lshlrev_b32 v85, 1, v81
    v_add_u32 v81, s13, v81
    v_lshlrev_b32 v82, 1, v81
    v_lshlrev_b32 v86, 2, v81
    v_add_u32 v80, s13, v80
    s_add_u32 s44, s42, {R_MOD + 5120}
    s_addc_u32 s45, s43, 0
    s_mov_b32 s46, {2*15360}
    s_movk_i32 s20, 5120
    s_movk_i32 s21, 15360
    s_movk_i32 s22, {15360 + 5120}
    v_mul_u32_u24 v84, 2560, v4
    v_lshl_add_u32 v84, v80, 2, v84
    s_and_b32 s3, s6, {PREP-1}
    s_mul_i32 s3, s3, 40960
    s_add_u32 s3, s3, {R_P}
    s_add_u32 s48, s42, s3
    s_addc_u32 s49, s43, 0
    s_mov_b32 s50, {16*2560}''')
    set_exec(0x03ff03ff, 0x03ff03ff)
    A('global_load_ushort v71, v82, s[16:17]')
    A('s_andn2_b32 s3, s12, 3\ns_add_u32 s3, s3, s4\ns_lshl_b32 s3, s3, 2\nv_mov_b32 v112, s3')
    L = lab('mf')
    A(f'{L}:')
    A(f'global_load_dword v108, v112, s[42:43] offset:{R_XC} sc1')
    for k, (so, off) in enumerate((('0', 0), ('s21', 0), ('0', 2560), ('s21', 2560), ('s20', 0), ('s22', 0))):
        A(f'buffer_load_dword v{100+k}, v86, s[44:47], {so} offen offset:{off} sc1')
    A('s_waitcnt vmcnt(0)')
    untag(100, 6)
    ortree([v(100+i) for i in range(6)], 'v90')
    A('''v_xor_b32 v113, s14, v108
    v_and_b32 v113, -16, v113
    v_min_u32 v113, 1, v113
    v_or_b32 v90, v90, v113''')
    tag_end('v90', L, 16)
    A('v_readfirstlane_b32 s16, v108\ns_getreg_b32 s3, hwreg(HW_REG_XCC_ID, 0, 4)\ns_xor_b32 s16, s16, s3\ns_and_b32 s16, s16, 15')
    for k in range(3): A(f'v_add_f32 v{68+k}, v{100+2*k}, v{101+2*k}')
    round_list(['v68', 'v69', 'v70'], ['v90', 'v91'])
    A('v_lshlrev_b32 v71, 16, v71\nv_add_f32 v70, 1.0, v70')
    round_list(['v70'], ['v90'])
    A(f'''v_mov_b32 v90, 1.0
    ds_write_b16_d16_hi v85, v70 offset:{L_A}
    ds_write_b16_d16_hi v85, v69 offset:{L_A + LAP}
    ds_write_b16_d16_hi v85, v90 offset:{L_A + 5*LAP}
    s_mov_b64 exec, -1
    v_add_u32 v86, {R_X1}, v86''')
    A(f'''v_mul_u32_u24 v72, 3072, v3
    v_and_b32 v73, 16, v2
    v_lshlrev_b32 v73, {1 if SWZ else 8}, v73
    v_and_b32 v73, 32, v73
    s_and_b32 s3, s4, {1 if SWZ else 0}
    s_lshl_b32 s3, s3, 6
    v_or_b32 v73, s3, v73
    v_xor_b32 v73, v73, v1
    v_add_u32 v72, v72, v73
    s_lshr_b32 s3, s12, 2
    s_lshl_b32 s3, s3, 7
    s_lshl_b32 s7, s57, 2
    s_add_u32 s7, s7, s4
    s_mul_i32 s7, s7, {40*3072}
    s_add_u32 s3, s3, s7
    s_add_u32 s44, s28, s3
    s_addc_u32 s45, s29, 0
    s_mov_b32 s46, {40*3072}
    s_add_u32 s52, s30, s3
    s_addc_u32 s53, s31, 0
    s_mov_b32 s54, {40*3072}
    s_mov_b32 s55, 0x20000
    s_mul_i32 s11, s4, 5120
    s_add_u32 s7, s11, {L_W}''')
    A(f'''v_lshl_add_u32 v87, v4, 3, v6
    v_lshl_add_u32 v87, v87, 7, v7
    v_and_b32 v88, 1, v4
    v_lshrrev_b32 v89, 1, v6
    v_lshl_or_b32 v89, v88, 1, v89
    v_and_b32 v89, {3 if SWZ else 0}, v89
    v_xor_b32 v89, s4, v89
    v_lshl_add_u32 v87, v89, 5, v87
    v_mov_b32 v79, 1''')
    if TLB:
        if TLB == 1: lds_wait_ge(L_CSTAT, 1, 'v0', 'v90', sleep=2)
        A(f's_cmp_eq_u32 s4, 2\ns_cbranch_scc0 L_nowarmB\ns_mul_i32 s3, s59, 896\ns_add_u32 s3, s3, {R_O}\nv_lshl_add_u32 v90, v2, 7, s3\ns_mov_b64 exec, 0x7f\nglobal_load_dword v167, v90, s[42:43] sc1\ns_mov_b64 exec, -1\nL_nowarmB:')
    A(f'''v_min_u32 v76, 5, v5
    v_mul_u32_u24 v76, {LAP}, v76
    v_lshl_add_u32 v76, v4, 4, v76
    s_andn2_b32 s3, s12, 3
    s_add_u32 s3, s3, s4
    s_lshl_b32 s3, s3, 2
    s_add_u32 s3, s3, s57
    s_mul_i32 s3, s3, 640
    s_add_u32 s3, s3, {R_GU}
    v_min_u32 v77, 16, v2
    v_lshl_add_u32 v77, v77, 4, s3
    s_movk_i32 s20, 10240
    s_movk_i32 s21, 20480
    s_movk_i32 s22, 30720
    v_cmp_eq_u32 s[34:35], 20, v2
    s_mov_b32 s18, 0x03ff03ff
    s_mov_b32 s19, 0x03ff03ff
    s_and_b32 s17, s14, 0xffff''')
    tailtags()
    A('s_mov_b32 s56, 0')
    if LS: lds_wait_ge(L_CSTAT, 1, 'v0', 'v90', sleep=LS)
    if BP: lds_wait_ge(L_CSTAT, BPC, 'v0', 'v90', sleep=1)
    for n in range(5):
        if n == BP:
            lds_wait_ge(L_CO, 9, 'v0', 'v90', sleep=1)
            stamp(6)
            if BDL: A(f's_sleep {BDL}')
            if BG:
                L = lab('bg'); D = lab('bgd'); W = lab('bgw')
                A(f's_cmp_eq_u32 s4, 0\ns_cbranch_scc0 {W}\ns_mul_i32 s8, s5, {TKS}\ns_add_u32 s8, s8, {R_TK2 + 4}')
                A(f'{L}:\ns_load_dword s3, s[42:43], s8 glc\ns_waitcnt lgkmcnt(0)\ns_cmp_ge_u32 s3, {BG}\ns_cbranch_scc1 {D}')
                spin_tail(L, 1)
                A(f'{D}:\nds_write_b32 v0, v79 offset:{L_TRIG}\n{W}:')
                lds_wait_ge(L_TRIG, 1, 'v0', 'v90', sleep=0)
        A(f'''s_mov_b32 m0, s7
        s_add_u32 s3, s7, 20480
        buffer_load_dwordx4 v72, s[44:47], s56 offen nt lds
        s_mov_b32 m0, s3
        s_add_u32 s7, s7, 1024
        buffer_load_dwordx4 v72, s[52:55], s56 offen nt lds''')
        if n < 4: A(f'v_xor_b32 v72, {64 if SWZ else 0}, v72\ns_add_u32 s56, s56, {8*3072}')
    def p_loads():
        for i in range(4): A(f'buffer_load_dwordx4 {vr(P0+4*i,4)}, v84, s[48:51], {["0","s20","s21","s22"][i]} offen sc1')
    A(f's_waitcnt vmcnt({PE})\ns_mov_b64 exec, s[18:19]')
    p_loads()
    A(f's_waitcnt vmcnt(4)\ns_mov_b64 exec, 1\nds_add_u32 v0, v79 offset:{L_WRDY}\ns_mov_b64 exec, -1')
    stamp(7)
    lds_wait_ge(L_WRDY, 4, 'v0', 'v90', sleep=0)
    for s in range(5):
        for hf in range(2):
            A(f'ds_read_b64_tr_b16 {vr(G0+4*s+2*hf,2)}, v87 offset:{L_W + (32*s+4*hf)*128}')
            A(f'ds_read_b64_tr_b16 {vr(U0+4*s+2*hf,2)}, v87 offset:{L_W + 20480 + (32*s+4*hf)*128}')
    stamp(8)
    stamp(9)
    A('s_mov_b64 exec, s[18:19]\ns_branch L_pchk')
    L = lab('pp'); D = lab('ppd')
    A(f'{L}:')
    p_loads()
    A('L_pchk:')
    A('s_waitcnt vmcnt(2)')
    untag(P0, 8)
    A(f'v_pk_add_f32 v[96:97], {vr(P0,2)}, {vr(P0+4,2)}\nv_pk_add_f32 v[98:99], {vr(P0+2,2)}, {vr(P0+6,2)}\nv_or3_b32 v90, v100, v101, v102\nv_or3_b32 v91, v103, v104, v105\nv_or3_b32 v90, v90, v106, v107')
    A('s_waitcnt vmcnt(1)')
    untag(P0+8, 4)
    A(f'v_pk_add_f32 v[96:97], v[96:97], {vr(P0+8,2)}\nv_pk_add_f32 v[98:99], v[98:99], {vr(P0+10,2)}\nv_or3_b32 v91, v91, v108, v109\nv_or3_b32 v90, v90, v110, v111')
    A('s_waitcnt vmcnt(0)')
    untag(P0+12, 4)
    A(f'''v_pk_add_f32 v[96:97], v[96:97], {vr(P0+12,2)}
    v_pk_add_f32 v[98:99], v[98:99], {vr(P0+14,2)}
    v_or3_b32 v91, v91, v112, v113
    v_or3_b32 v90, v90, v114, v115
    v_permlane32_swap_b32 v96, v98
    v_permlane32_swap_b32 v97, v99
    v_pk_add_f32 v[96:97], v[96:97], v[98:99]
    v_bitop3_b32 v90, v90, v91, 63 bitop3:0xa8
    v_cmp_ne_u32 vcc, 0, v90
    v_permlane16_swap_b32 v96, v97
    v_add_f32 v96, v96, v97
    v_cvt_pk_bf16_f32 v96, v96, v96
    s_cbranch_vccz {D}''')
    spin_tail(L, PSL)
    A(f'{D}:')
    stamp(10)
    A('''v_and_b32 v96, 0xffff0000, v96
    v_mul_f32 v96, v96, v68
    v_cvt_pk_bf16_f32 v96, v96, v96
    v_and_b32 v96, 0xffff0000, v96
    v_add_f32 v96, v96, v71
    v_cvt_pk_bf16_f32 v96, v96, v96
    v_and_b32 v96, 0xffff0000, v96
    v_mul_f32 v97, v96, v70''')
    A(f'ds_write_b16_d16_hi v85, v96 offset:{L_A + 4*LAP}\nv_and_b32 v98, 0xffff0000, v97\nds_write_b16_d16_hi v85, v97 offset:{L_A + 2*LAP}\nv_sub_f32 v98, v97, v98\nds_write_b16_d16_hi v85, v98 offset:{L_A + 3*LAP}')
    A(f's_mov_b64 exec, 1\nds_add_u32 v0, v79 offset:{L_CA}\ns_mov_b64 exec, -1')
    L = lab('h2'); D = lab('h2d')
    A(f'{L}:\nds_read_b32 v90, v0 offset:{L_CA}')
    for s in range(5): A(f'ds_read_b128 {vr(HA+4*s,4)}, v76 offset:{L_A + 64*s}')
    A(f'L_h2w:\ns_waitcnt lgkmcnt(0)\nv_cmp_gt_u32 vcc, 4, v90\ns_cbranch_vccz {D}')
    spin_tail(L, 0)
    A(f'{D}:')
    for s in range(5):
        A(f'v_mfma_f32_16x16x32_bf16 v[128:131], {vr(HA+4*s,4)}, {vr(HA+4*s,4)}, {"0" if s==0 else "v[128:131]"}')
        A(f'v_mfma_f32_16x16x32_bf16 v[120:123], {vr(HA+4*s,4)}, {vr(G0+4*s,4)}, {"0" if s==0 else "v[120:123]"}')
    for s in range(5):
        A(f'v_mfma_f32_16x16x32_bf16 v[124:127], {vr(HA+4*s,4)}, {vr(U0+4*s,4)}, {"0" if s==0 else "v[124:127]"}')
    A('''v_or_b32 v96, s17, v96
    s_cmp_eq_u32 s16, 0
    s_mov_b64 exec, 0x10ffff
    v_add_f32 v122, v122, v123
    v_mov_b32 v123, s14
    v_cndmask_b32 v120, v120, v128, s[34:35]
    v_cndmask_b32 v121, v121, v129, s[34:35]
    s_cbranch_scc0 L_guslow
    global_store_dwordx4 v77, v[120:123], s[42:43]
    v_add_f32 v126, v126, v127
    v_mov_b32 v127, s14
    s_mov_b64 exec, 0xffff
    global_store_dwordx4 v77, v[124:127], s[42:43] offset:384
    L_gust:''')
    stamp(11)
    A(f'''s_lshl2_add_u32 s3, s12, s4
    s_cmp_eq_u32 s3, 32
    s_cbranch_scc0 L_noep
    s_mov_b64 exec, 1
    v_mov_b32 v90, s14
    v_mov_b32 v91, s15
    global_store_dwordx2 v0, v[90:91], s[42:43] offset:{R_E} sc1
    L_noep:''')
    A('''s_cmp_lt_u32 s12, 4
    s_cbranch_scc0 L_fin
    s_mov_b64 exec, s[18:19]
    global_store_dword v86, v96, s[42:43] sc1
    s_branch L_fin
    L_guslow:
    global_store_dwordx4 v77, v[120:123], s[42:43] sc1
    v_add_f32 v126, v126, v127
    v_mov_b32 v127, s14
    s_mov_b64 exec, 0xffff
    global_store_dwordx4 v77, v[124:127], s[42:43] offset:384 sc1
    s_branch L_gust''')

    A('L_act:')
    if ADM == 0:
        lds_wait_ge(L_CWO, 4, 'v0', 'v90', sleep=0)
        act_dma()
    def gu_loads():
        for k in range(4): A(f'global_load_dwordx4 {vr(100+4*k,4)}, v165, s[42:43] offset:{640*k} sc1')
    A(f's_mov_b32 s38, 0xff01ff\ns_mov_b32 s39, 0xff00ff\ns_lshl_b32 s11, s14, 2\nv_mov_b32 v93, {H(1/640)}')
    A('s_mov_b64 exec, s[38:39]')
    gu_loads()
    A('s_mov_b64 exec, -1')
    if ADM == 0: A('s_waitcnt vmcnt(4)')
    for s in range(5):
        for hf in range(2):
            A(f'ds_read_b64_tr_b16 {vr(WD+4*s+2*hf,2)}, v132 offset:{4*hf*320 + 64*s}')
    stamp(7)
    A('s_mov_b64 exec, s[38:39]\ns_branch L_guw')
    L = lab('gu'); D = lab('gud')
    A(f'{L}:')
    gu_loads()
    A(f'''L_guw:
    s_waitcnt vmcnt(0)
    v_pk_add_f32 v[140:141], v[100:101], v[104:105]
    v_pk_add_f32 v[142:143], v[108:109], v[112:113]
    v_add3_u32 v90, v103, v107, v111
    v_pk_add_f32 v[140:141], v[140:141], v[142:143]
    v_add_u32 v90, v90, v115
    v_readlane_b32 s8, v140, 8
    v_readlane_b32 s9, v141, 8
    v_cmp_ne_u32 vcc, s11, v90
    s_cbranch_vccz {D}''')
    spin_tail(L, GUS)
    A(f'{D}:')
    stamp(13)
    K0 = -2.0 * LOG2E * 0.7978845608028654
    A(f'''v_mul_f32 v94, s9, v93
    v_mul_f32 v95, s8, v93
    v_add_f32 v148, v102, v106
    v_fma_f32 v95, -v94, v94, v95
    v_add_f32 v149, v110, v114
    v_max_f32 v95, 0, v95
    v_cvt_pk_bf16_f32 v90, v94, v95
    v_add_f32 v148, v148, v149
    v_and_b32 v95, 0xffff0000, v90
    v_lshlrev_b32 v94, 16, v90
    v_add_f32 v95, {H(1e-5)}, v95
    v_cvt_pk_bf16_f32 v95, v95, v95
    v_fma_f32 v148, -v94, v140, v148
    v_and_b32 v95, 0xffff0000, v95
    v_sqrt_f32 v95, v95
    v_cvt_pk_bf16_f32 v95, v95, v95
    v_and_b32 v95, 0xffff0000, v95
    v_rcp_f32 v95, v95
    s_mov_b64 exec, -1
    v_fma_f32 v152, v148, v95, v141
    v_cvt_pk_bf16_f32 v152, v152, v152
    v_and_b32 v154, 0xffff0000, v152
    v_and_b32 v152, 0xffff0000, v152
    v_mov_b32 v155, {H(K0)}
    v_permlane32_swap_b32 v152, v154
    v_mul_f32 v153, v152, v152
    v_fmac_f32 v155, {H(K0*0.044715)}, v153
    v_mul_f32 v155, v155, v152
    v_exp_f32 v155, v155
    v_add_f32 v155, 1.0, v155
    v_rcp_f32 v155, v155
    v_mul_f32 v152, v152, v155
    v_cvt_pk_bf16_f32 v152, v152, v152
    v_and_b32 v152, 0xffff0000, v152
    v_mul_f32 v152, v152, v154
    s_waitcnt lgkmcnt(0)''')
    A(f'v_mov_b32 v153, v152 quad_perm:[1,0,3,2] {DPPF}\nv_cvt_pk_bf16_f32 v152, v152, v153')
    for m in range(5):
        F = 100 + 4*m
        for d in range(4): A(f'v_and_b32 v{F+d}, v152, v{160+m} row_newbcast:{2*d} {DPPF}')
        if m >= 1: A(f'v_mfma_f32_16x16x32_bf16 v[156:159], {vr(WD+4*(m-1),4)}, {vr(F-4,4)}, {"0" if m==1 else "v[156:159]"}')
    A(f'v_mfma_f32_16x16x32_bf16 v[156:159], {vr(WD+16,4)}, v[116:119], v[156:159]')
    set_exec(0x03ff03ff, 0x03ff03ff)
    for i in range(4): A(f'v_bfi_b32 v{156+i}, 63, s14, v{156+i}')
    A('global_store_dwordx4 v166, v[156:159], s[42:43] sc1')
    stamp(12)

    A('L_fin:')
    if stamps == 3:
        A('s_cmp_lt_u32 s4, 4\ns_cbranch_scc0 L_end\ns_cmp_ge_u32 s2, 96\ns_cbranch_scc0 L_end\ns_cmp_eq_u32 s57, 1\ns_cbranch_scc0 L_end')
    if stamps:
        A('s_memrealtime s[98:99]\ns_waitcnt vmcnt(0) lgkmcnt(0)\ns_mov_b64 exec, 1')
        A(f's_mul_i32 s3, s2, 12\ns_add_u32 s3, s3, s4\ns_lshl_b32 s3, s3, 6\ns_add_u32 s3, s3, {R_STAMP}\nv_mov_b32 v0, s3')
        for i in range(15): A(f'v_mov_b32 v{8+i}, s{70+2*i}')
        A('v_mov_b32 v23, s58')
        for i in range(4): A(f'global_store_dwordx4 v0, {vr(8+4*i,4)}, s[42:43] offset:{16*i}')
    A('L_end:\ns_endpgm')
    inv = {'s_cbranch_vccz': 's_cbranch_vccnz', 's_cbranch_vccnz': 's_cbranch_vccz', 's_cbranch_scc0': 's_cbranch_scc1', 's_cbranch_scc1': 's_cbranch_scc0'}
    cold = []
    k = 0
    end_i = A.L.index('L_fin:')
    while k < len(A.L):
        p = A.L[k].split()
        if p[0] in inv and len(p) == 2:
            labl = p[1] + ':'
            if labl in A.L[k:k+24]:
                e = A.L.index(labl, k)
                body = A.L[k+1:e]
                if body and body[-1] == 's_branch L_fin' and 's_sub_u32 s58, s58, 1' in body and len(body) <= 5:
                    R = lab('rt')
                    cold += [R + ':'] + body
                    A.L[k:e] = [f'{inv[p[0]]} {R}']
        k += 1
    k = A.L.index('L_end:')
    assert A.L[k+1] == 's_endpgm'
    A.L[k+2:k+2] = cold
    A.L.append('L_last:')
    A.L = [l.replace('L_end-L_base-12', 'L_last-L_base-16') for l in A.L]
    import re as _re
    for k, l in enumerate(A.L):
        if l.startswith('s_load_dwordx4 s[40:43], s[0:1], 96'):
            A.L[k] = 's_load_dwordx2 s[40:41], s[0:1], 104'; continue
        m = _re.match(r'global_load_(\w+) (\S+), (v\d+), s\[(42:43|52:53)\](.*)', l)
        if m:
            A.L[k] = f'buffer_load_{m.group(1)} {m.group(2)}, {m.group(3)}, s[40:43], {"0" if m.group(4)=="42:43" else "s52"} offen{m.group(5)}'; continue
        m = _re.match(r'global_store_(\w+) (v\d+), (\S+), s\[(42:43|52:53)\](.*)', l)
        if m:
            A.L[k] = f'buffer_store_{m.group(1)} {m.group(3)}, {m.group(2)}, s[40:43], {"0" if m.group(4)=="42:43" else "s52"} offen{m.group(5)}'; continue
        A.L[k] = _re.sub(r'\bs43\b', 's41', _re.sub(r'\bs42\b', 's40', l.replace('s[42:43]', 's[40:41]')))
    k = A.L.index('s_mov_b32 s47, 0x20000')
    A.L[k:k] = ['s_mov_b32 s42, 0x200000', 's_mov_b32 s43, 0x20000']
    npad = A.pad()
    hdr = open('cdna_kernels/' + NAME + '.s.ref').read().split('; Override launch')[0]
    pre = ''
    if stamps:
        pre = ''
    txt = hdr + f'''; @launch grid=(256,1,1) block=(768,1,1) lds={LDS_BYTES}
.amdgcn_target "amdgcn-amd-amdhsa--gfx950"
.text
.globl {NAME}_kernel
.p2align 8
.type {NAME}_kernel,@function
{NAME}_kernel:
''' + pre + A.text() + f'''.section .rodata,"a"
.p2align 6
.amdhsa_kernel {NAME}_kernel
  .amdhsa_next_free_vgpr 168
  .amdhsa_next_free_sgpr 102
  .amdhsa_accum_offset 168
  .amdhsa_group_segment_fixed_size 0
  .amdhsa_kernarg_size 112
  .amdhsa_user_sgpr_count 2
  .amdhsa_user_sgpr_kernarg_segment_ptr 1
  .amdhsa_system_sgpr_workgroup_id_x 1
.end_amdhsa_kernel
'''
    return txt, npad

if __name__ == '__main__':
    kw = {}
    outp = sys.argv[1]
    for a in sys.argv[2:]:
        k, val = a.split('=')
        kw[k] = int(val) if val.lstrip('-').isdigit() else val
    txt, npad = gen(**kw)
    open(outp, 'w').write(txt)
    print('nops inserted', npad)
```

```python
import sys, struct
from asmlib import Asm
NAME = 'adaLN_cond__sliding_block_cached__geglu_ffn__decode'
def f2u(x): return struct.unpack('<I', struct.pack('<f', x))[0]
def H(x): return '0x%08x' % f2u(x)
LOG2E = 1.4426950408889634

R_E = 0
R_XC = 512
R_TK = 1024
R_MOD = R_TK + 32*128
R_MA = R_MOD + 2*15360
R_Q = R_MA + 4*5120
R_O = R_Q + 32*768
R_P = R_O + 256*896
R_X1 = R_P + 8*16*2560
R_DN = R_X1 + 2560
R_GU = R_DN + 96*2560
GU2 = 0x180000 - R_GU
assert R_GU + 96*2560 <= 0x140000
R_STAMP = 0x140000
R_TK2 = 0x118000; TKS = 4352
L_ML = 0; L_H = 128; L_ST2 = 512
L_CSTAT = 1024; L_CO = 1028; L_TRIG = 1032; L_WRDY = 1036; L_CWO = 1040; L_CQ = 1044; L_OK = 1048; L_CA = 1052; L_TRIGB = 1056
L_Q = 1280
L_ST = 1792
L_A = 3072; LAP = 336
L_PACC = 3072
L_OS = 5120
L_TB = 1664
L_F = 1920
L_W = 11264
L_LK = 1064; L_BT = 1152; L_CM = 1060; L_MS = 2048
L_HB = L_W
L_DN = L_W + 57344
LDS_BYTES = L_DN + 20480

DPPF = 'row_mask:0xf bank_mask:0xf'

def gen(T=3, SG=5, TD=2, TKW=4, XB=40, DEARLY=0, DNW=1, IL=1, NF0=3, NOZ=0, GSL=1, SWZ=1, DPOS=0, DW=2, WT=0, FB=0, XAT=0, PSL=1, PE=0, ADM=0, FG=1, FM=3, PREP=4, PFC=0, PFP='nt', CS=4, XA=40, HAW=8, PRIO=0, TN=8, PFF='', GATE=6, FSL=14, FREE=0, CAP=2, DUAL=1, G1=0, G2=0, G4=0, DR=24, FS=0, TLB=0, WDEF=1, WP=4, WPC=7, BP=0, TCH=0, PCM=0, MAP=0, CLN=0, OF='', EP=0, CP=3, BG=7, EB=0, BS=0, PFS=4, YI=64, FK=0, BARE=0, EQ=0, NS=0, AFF=0, LS=16, QS=2, BDL=0, HB=0, OSL=1, GUS=0, NGT=1, PW=1, BPC=8, WSL=1, OEARLY=1, DPRIO=1, TRIGM=60, TWA=8, ACK=1, PT=1, stamps=False, TIMEOUT=1 << 20, SLA=8, SLB=4):
    A = Asm()
    LBS = {0: 0, 2: 1, 4: 2, 8: 3}[BS]
    uid = [0]
    def lab(p):
        uid[0] += 1
        return f'L_{p}{uid[0]}'
    def stamp(i):
        if stamps == 1 or (stamps and i == 0): A(f's_memrealtime s[{70+2*i}:{71+2*i}]')
    def spin_tail(L, sleep):
        if sleep: A(f's_sleep {sleep}')
        A(f's_sub_u32 s58, s58, 1\ns_cbranch_scc0 {L}\ns_branch L_fin')
    def lds_wait_ge(off, val, vz, vt, sleep=1):
        L = lab('w'); D = lab('d')
        A(f'{L}:\nds_read_b32 {vt}, {vz} offset:{off}\ns_waitcnt lgkmcnt(0)\nv_readfirstlane_b32 s3, {vt}\ns_cmp_ge_u32 s3, {val}\ns_cbranch_scc1 {D}')
        spin_tail(L, sleep)
        A(f'{D}:')
    def maxtree(regs, dst):
        regs = list(regs)
        if len(regs) == 2:
            A(f'v_max_u32 {dst}, {regs[0]}, {regs[1]}'); return
        A(f'v_max3_u32 {dst}, {regs[0]}, {regs[1]}, {regs[2]}')
        rest = regs[3:]
        while len(rest) >= 2:
            A(f'v_max3_u32 {dst}, {dst}, {rest[0]}, {rest[1]}'); rest = rest[2:]
        if rest: A(f'v_max_u32 {dst}, {dst}, {rest[0]}')
    def poll_end(regs, tmp, L, sleep):
        D = lab('ok')
        if len(regs) > 1: maxtree(regs, tmp)
        else: tmp = regs[0]
        A(f'v_cmp_eq_u32 vcc, -1, {tmp}\ns_cbranch_vccz {D}')
        spin_tail(L, sleep)
        A(f'{D}:')
    def allred8(regs, op='v_add_f32'):
        for pat in ('quad_perm:[1,0,3,2]', 'quad_perm:[2,3,0,1]', 'row_half_mirror'):
            for r in regs: A(f'{op} {r}, {r}, {r} {pat} {DPPF}')
    def red_hi(regs, op='v_add_f32'):
        for r in regs: A(f'{op} {r}, {r}, {r} row_ror:8 {DPPF}')
        for r in regs: A(f'{op} {r}, {r}, {r} row_bcast:15 row_mask:0xa bank_mask:0xf')
        for r in regs: A(f'{op} {r}, {r}, {r} row_bcast:31 row_mask:0xc bank_mask:0xf')
    def round_list(regs, tmps):
        regs = list(regs)
        prs = [(regs[i], regs[i+1] if i+1 < len(regs) else None) for i in range(0, len(regs), 2)]
        for k0 in range(0, len(prs), len(tmps)):
            blk = prs[k0:k0+len(tmps)]
            for (a, b), t in zip(blk, tmps): A(f'v_cvt_pk_bf16_f32 {t}, {a}, {b if b else a}')
            for (a, b), t in zip(blk, tmps):
                A(f'v_lshlrev_b32 {a}, 16, {t}')
                if b: A(f'v_and_b32 {b}, 0xffff0000, {t}')
    def masks(dst4, vl, t0, t1):
        A(f'v_and_b32 {t0}, 1, {vl}\nv_lshlrev_b32 {t0}, 4, {t0}\nv_mov_b32 {t1}, 0xffff\nv_lshlrev_b32 {t0}, {t0}, {t1}\nv_bfe_u32 {t1}, {vl}, 1, 2')
        for t in range(4):
            A(f'v_cmp_eq_u32 vcc, {t}, {t1}\nv_cndmask_b32 {dst4[t]}, 0, {t0}, vcc')
    def v(i): return f'v{i}'
    def vr(i, n): return f'v[{i}:{i+n-1}]'
    def set_exec(lo, hi):
        if lo == 0xffffffff and hi == 0xffffffff: A('s_mov_b64 exec, -1')
        elif hi == 0 and lo <= 64: A(f's_mov_b64 exec, {lo}')
        else: A(f's_mov_b32 exec_lo, 0x{lo:x}\ns_mov_b32 exec_hi, 0x{hi:x}')
    def tags():
        A('s_mul_i32 s14, s14, 0x9e3779b1\ns_add_u32 s14, s14, 0x7f4a7c15\ns_mul_i32 s15, s15, 0x85ebca6b\ns_add_u32 s15, s15, 0xc2b2ae35')
        A('s_and_b32 s3, s14, 15\ns_sub_u32 s36, 0, s3\ns_subb_u32 s37, 0, s3')
        A(f's_mov_b64 exec, 1\nds_add_u32 v0, v79 offset:{L_CQ}\ns_mov_b64 exec, -1')
    def tailtags():
        A('s_and_b32 s3, s14, 63\ns_sub_u32 s36, 0, s3\ns_subb_u32 s37, 0, s3')
    def untag(base, n, dst=None):
        if dst is None: dst = base
        for i in range(0, n, 2): A(f'v_lshl_add_u64 {vr(dst+i,2)}, {vr(base+i,2)}, 0, s[36:37]')
    def ortree(regs, dst):
        regs = list(regs)
        if len(regs) == 2:
            A(f'v_or_b32 {dst}, {regs[0]}, {regs[1]}'); return
        A(f'v_or3_b32 {dst}, {regs[0]}, {regs[1]}, {regs[2]}')
        rest = regs[3:]
        while len(rest) >= 2:
            A(f'v_or3_b32 {dst}, {dst}, {rest[0]}, {rest[1]}'); rest = rest[2:]
        if rest: A(f'v_or_b32 {dst}, {dst}, {rest[0]}')
    def tag_end(tmp, L, sleep, mask=15):
        D = lab('ok')
        A(f'v_and_b32 {tmp}, {mask}, {tmp}\nv_cmp_ne_u32 vcc, 0, {tmp}\ns_cbranch_vccz {D}')
        spin_tail(L, sleep)
        A(f'{D}:')

    A('L_base:')
    stamp(0)
    A(f'''s_load_dwordx16 s[16:31], s[0:1], 0
    s_cmpk_ge_u32 s2, 256
    s_cbranch_scc1 L_end
    v_readfirstlane_b32 s4, v0
    {'s_bfe_u32 s5, s2, 0x20003' if AFF else 's_lshr_b32 s5, s2, 3'}
    s_and_b32 s6, s2, 7
    s_lshl2_add_u32 s5, s6, s5
    {'s_lshr_b32 s6, s2, 5' if AFF else 's_and_b32 s5, s5, 31'}
    v_lshrrev_b32 v3, 3, v0
    v_and_b32 v1, 7, v0
    v_lshlrev_b32 v1, 4, v1
    s_cmpk_lt_u32 s4, 256
    s_cbranch_scc1 L_pro2
    s_lshl_b32 s3, s5, 9''')
    SJ = 's6' if MAP == 0 else 's9'
    if MAP: A('s_lshr_b32 s9, s2, 5')
    if MAP == 2: A(f's_cmpk_lt_u32 s2, 96\ns_cselect_b32 s7, 0, {3*SG-3}\ns_add_u32 s9, s9, s7')
    A(f'''s_add_u32 s3, s3, {SJ}
    s_mulk_i32 s3, 24576
    v_mul_u32_u24 v4, 384, v3
    s_add_u32 s7, s3, {28672*384 - 4*3072}
    v_add3_u32 v4, v4, v1, s7
    s_waitcnt lgkmcnt(0)''')
    for t in range(NF0):
        if t == 3: A('v_add_u32 v4, 196608, v4')
        A(f'global_load_dwordx4 {vr(8+4*t,4)}, v4, s[18:19] offset:{128*(t%3)} nt')
    stamp(5)
    A('''L_pro2:
    s_load_dwordx8 s[32:39], s[0:1], 64
    s_load_dwordx4 s[40:43], s[0:1], 96
    v_and_b32 v2, 63, v0
    s_lshr_b32 s4, s4, 6
    v_and_b32 v3, 7, v3
    s_mov_b32 s47, 0x20000
    s_mov_b32 s51, 0x20000''')
    A(f's_mov_b32 s58, {TIMEOUT}')
    if stamps == 1 and not NOZ:
        for i in range(1, 15):
            if i != 5: A(f's_mov_b32 s{70+2*i}, 0')
    A('s_lshl3_add_u32 s59, s5, s6')
    W0 = 8; X0 = 48; D0 = 60; F0 = 64
    if EB:
        assert FB == 0 and not EQ
        A('v_mov_b32 v0, 0\nv_lshlrev_b32 v5, 2, v2\ns_cmp_eq_u32 s4, 3\ns_cbranch_scc0 L_eb\nds_write_b32 v5, v0 offset:1024\ns_waitcnt lgkmcnt(0)\nL_eb:\ns_barrier')
    A('s_cmp_lt_u32 s4, 4\ns_cbranch_scc0 L_strm')
    if BARE:
        A(f'''v_mov_b32 v0, 0
        v_lshlrev_b32 v80, 2, v2
        ds_write_b32 v80, v0 offset:1024
        s_waitcnt lgkmcnt(0)
        s_barrier
        v_mov_b32 v79, 9
        ds_write_b32 v0, v79 offset:{L_CQ}
        s_lshl_b32 s3, s6, {LBS}
        s_add_u32 s3, s3, 1
        v_mov_b32 v60, s3
        ds_write_b32 v0, v60 offset:{L_BT}
        s_mul_i32 s3, s5, {TKS}
        s_add_u32 s3, s3, {R_TK2}
        v_mov_b32 v60, s3
        v_mov_b32 v61, {8*BS if BS else 64*NS}
        s_mov_b64 exec, 1
        s_or_b32 s3, s4, s6
        s_cbranch_scc1 L_end
        global_store_dword v60, v61, s[42:43] sc1
        s_endpgm''')
    A('s_setprio 3\ns_sub_u32 s10, s2, 96\ns_cbranch_scc1 L_cB\ns_cmp_ge_u32 s10, 80\ns_cbranch_scc1 L_rest\ns_cmp_ge_u32 s4, 2\ns_cbranch_scc1 L_cN')
    A(f'''s_mul_i32 s12, s10, 3277
    s_lshr_b32 s12, s12, 16
    s_mul_i32 s7, s12, 20
    s_sub_u32 s13, s10, s7
    s_lshl1_add_u32 s8, s12, s4
    L_rest2:
    v_mul_u32_u24 v72, 7680, v3
    v_add_u32 v72, v72, v1
    s_mul_i32 s3, s8, {80*7680}
    s_lshl_b32 s7, s13, 7
    s_add_u32 s3, s3, s7
    s_mov_b32 s46, {80*7680}
    s_mov_b32 s57, {8*7680}
    v_min_u32 v74, 39, v2
    s_mul_i32 s7, s8, 160
    v_lshl_add_u32 v74, v74, 2, s7
    s_getpc_b64 s[60:61]
    L_pc0:
    s_add_u32 s60, s60, L_cA-L_pc0
    s_addc_u32 s61, s61, 0
    s_waitcnt lgkmcnt(0)
    s_add_u32 s44, s36, s3
    s_addc_u32 s45, s37, 0
    global_load_dword v82, v74, s[34:35]
    s_cmp_lt_u32 s10, {160 if EQ else 80}
    s_cbranch_scc0 L_cA''')
    A('L_load10:\ns_mov_b32 s56, 0')
    for s in range(10):
        A(f'buffer_load_dwordx4 {vr(W0+4*s,4)}, v72, s[44:47], s56 offen nt')
        if s < 9: A('s_add_u32 s56, s56, s57')
    A('s_setpc_b64 s[60:61]')
    A('L_strm:')

    NPOOL = 512 - 64*SG
    SL = lambda i, t: 8 + (i*3 + t)*4
    G0_ = 128; Q0 = 140; D0_ = 152; F = 164
    S = [v(G0_+g) for g in range(SG)]
    NV0 = min(SG, 5)
    KSL = lambda g, t: SL(g, t) if g < 5 else D0_ + 4*t
    VI = lambda g: (NV0 + g) if g < 5 else 3
    VL = 'v134'; X0_ = 'v135'; X1_ = 'v136'; X2_ = 'v137'; X3_ = 'v138'; X4_ = 'v139'
    if PRIO: A('s_setprio 1')
    A(f'''v_mul_u32_u24 v4, 384, v3
    s_mul_i32 s3, s5, 12582912
    s_add_u32 s3, s3, {28672*384}
    s_lshl3_add_u32 s7, {SJ}, s4
    s_cmpk_lt_u32 s2, 96
    s_cselect_b32 s55, {3 if MAP == 2 else 8}, {5 if MAP == 2 else 8}
    s_mulk_i32 s55, 24576
    s_mul_i32 s57, s7, {3072 if IL else SG*3072}
    s_sub_u32 s57, s57, {4*(3072 if IL else SG*3072)}
    s_mov_b32 s56, s57
    v_add_u32 v3, v1, v4
    s_mov_b32 s46, 1572864
    s_mov_b32 s50, 1572864''')
    A(f'''s_add_u32 s44, s18, s3
    s_addc_u32 s45, s19, 0
    s_add_u32 s48, s20, s3
    s_addc_u32 s49, s21, 0''')
    def ld(reg, srd, so, t, throttle=True):
        A(f'buffer_load_dwordx4 {vr(reg,4)}, v3, {srd}, {so} offen offset:{t*128} nt')
        if throttle: A(f's_waitcnt vmcnt({T})')
    KS = 's[44:47]'; VS = 's[48:51]'
    if FB:
        A('s_sub_u32 s13, s2, 96')
        if FB >= 2: A('s_cselect_b32 s13, 0, s13')
        if EQ == 2: A('s_mov_b32 s13, 0')
        A('s_cmp_lt_u32 s13, 80\ns_cbranch_scc0 L_nb0\ns_barrier\nL_nb0:')
    n = 0
    for g in range(SG):
        for t in range(3):
            n += 1
            if n > NF0: ld(KSL(g, t), KS, 's56', t, throttle=(n > T+1))
            if n == T+2: stamp(8)
            if n == T+1:
                for r in S: A(f'v_mov_b32 {r}, 0')
                masks(['v4', 'v5', 'v6', 'v7'], 'v2', X0_, X1_)
                A(f's_mul_i32 s3, s5, {TKS}\ns_add_u32 s3, s3, {R_TK2}\ns_mov_b32 s65, 0\ns_mov_b32 s67, 0\ns_waitcnt lgkmcnt(0)\ns_add_u32 s52, s42, s3\ns_addc_u32 s53, s43, 0')
                A(f's_cmp_lt_u32 s2, 96\ns_movk_i32 s10, {XA}\ns_cselect_b32 s10, {XB}, s10\ns_sub_u32 s10, {NPOOL}, s10')
                if FB: A(f'v_mov_b32 v0, 0\ns_cmp_lt_u32 s13, 80\ns_cbranch_scc1 L_nb1\ns_barrier\nL_nb1:\ns_waitcnt vmcnt({T})')
                elif EB: A(f's_waitcnt vmcnt({T})')
                else: A(f'v_mov_b32 v0, 0\ns_barrier\ns_waitcnt vmcnt({T})')
        if g < SG-1: A('s_add_u32 s56, s56, s55')
    for g in range(NV0):
        for t in range(3): ld(SL(VI(g), t), VS, 's57', t, throttle=not (g == NV0-1 and t == 2))
        if g < SG-1: A('s_add_u32 s57, s57, s55')
    stamp(1)
    if PRIO: A('s_setprio 0')
    lds_wait_ge(L_CQ, 7 if HB else 5, 'v0', X0_, sleep=QS)
    A(f'ds_read_b64 v[136:137], v0 offset:{L_TB}')
    tick = 's_mov_b32 s12, 1\ns_atomic_add s12, s[52:53], 0 glc'
    if XAT: tick += '\ns_mov_b32 s62, 1\ns_atomic_add s62, s[52:53], 0x80000 glc\ns_mov_b32 s63, 1\ns_atomic_add s63, s[52:53], 0x88000 glc'
    for t in range(3): A(f'ds_read_b128 {vr(Q0+4*t,4)}, v1 offset:{L_Q + 128*t}')
    stamp(2)
    A(f's_waitcnt vmcnt({3*NV0}) lgkmcnt(0)\nv_mov_b32 v1, 1\nv_readfirstlane_b32 s14, v136\nv_readfirstlane_b32 s15, v137')
    dt = 's_mov_b32 s64, 1\ns_atomic_add s64, s[52:53], 0 glc'
    if BS: A('s_call_b64 s[60:61], L_next')
    elif FK == 1: A(dt)
    if BS: pass
    elif FK == 2: A('s_lshl3_add_u32 s12, s4, s6\ns_sub_u32 s12, s12, 32')
    elif NS: A('s_lshl3_add_u32 s12, s6, s4\ns_sub_u32 s12, s12, 4')
    else: A(tick)
    for t in range(3):
        for d in range(4):
            for g in range(SG):
                A(f'v_dot2c_f32_bf16 {S[g]}, v{KSL(g,t)+d}, v{Q0+4*t+d}')
    if SG == 6:
        for t in range(3): ld(SL(3, t), VS, 's57', t, throttle=False)
    allred8(S)
    round_list(S, [X0_, X1_, X2_])
    for r in S: A(f'v_mul_f32 {r}, 0x3d93cd3a, {r}')
    round_list(S, [X0_, X1_, X2_])
    A(f'v_max3_f32 {X0_}, {S[0]}, {S[1]}, {S[2]}')
    for g in range(3, SG): A(f'v_max_f32 {X0_}, {X0_}, {S[g]}')
    red_hi([X0_], 'v_max_f32')
    A(f'v_readlane_b32 s8, {X0_}, 63')
    def take(X, last):
        A('s_waitcnt lgkmcnt(0)')
        if BS:
            Lp = lab('pb')
            A(f's_cmp_eq_u32 s67, 0\ns_cbranch_scc1 {Lp}\ns_add_u32 s66, s66, 1\nv_mov_b32 {X2_}, s67\nv_mov_b32 {X3_}, s66\nds_write_b32 {X2_}, {X3_}\ns_mov_b32 s67, 0\n{Lp}:')
        A(f's_mov_b32 s11, s12\ns_cmp_lt_u32 s11, {NPOOL}\ns_cbranch_scc0 {last}')
        A(f's_mul_i32 s54, s11, 3072\ns_add_u32 s54, s54, {64*SG*3072}')
        if EP == 2: A('s_setprio 0')
        if TD < 3: A(f's_waitcnt vmcnt({TD})')
        for t in range(3): ld(SL(X, t), KS, 's54', t, throttle=False)
        for t in range(3): ld(SL(X+1, t), VS, 's54', t, throttle=False)
        A(f's_waitcnt vmcnt(6)')
    def nexttick():
        Lk = lab('nt')
        if BS:
            A('s_call_b64 s[60:61], L_next'); return
        if FK == 1: A(f's_cmp_lt_u32 s11, 128\ns_cbranch_scc0 {Lk}x\n{dt}\n{Lk}x:')
        if NS > 1 or 64*NS >= NPOOL: A(f's_add_u32 s12, s11, 64\ns_cmp_lt_u32 s12, {64*NS if 64*NS < NPOOL else 4096}\ns_cbranch_scc1 {Lk}')
        A(f's_movk_i32 s12, {NPOOL}\ns_cmp_lt_u32 s11, s10\ns_cbranch_scc0 {Lk}\n{tick}\n{Lk}:')
    for r in S: A(f'v_subrev_f32 {r}, s8, {r}')
    for r in S: A(f'v_mul_f32 {r}, {H(LOG2E)}, {r}')
    for r in S: A(f'v_exp_f32 {r}, {r}')
    A(f'v_add_f32 {VL}, {S[0]}, {S[1]}')
    for g in range(2, SG): A(f'v_add_f32 {VL}, {VL}, {S[g]}')
    for r in S: A(f'v_cvt_pk_bf16_f32 {r}, {r}, {r}')
    stamp(3)
    _e0 = len(A.L)
    A(f'''v_and_b32 v61, 7, v2
    v_lshrrev_b32 v65, 5, v2
    v_lshlrev_b32 v60, 3, v61
    v_and_b32 v62, 32, v2
    v_xor_b32 v60, v60, v62
    v_lshlrev_b32 v62, 5, v61
    v_and_b32 v63, 16, v2
    s_mul_i32 s3, s4, 768
    v_add3_u32 v56, v62, v63, s3
    v_lshl_add_u32 v56, v65, 3, v56
    v_and_b32 v66, 31, v2
    s_lshl_b32 s3, s59, 9
    s_add_u32 s3, s3, {R_O}
    v_lshl_add_u32 v57, v66, 4, s3
    v_lshl_add_u32 v57, v65, 3, v57
    v_mul_u32_u24 v58, 24, v66
    v_mul_u32_u24 v65, 3072, v65
    s_movk_i32 s3, {L_OS}
    v_add3_u32 v58, v58, v65, s3
    v_add_u32 v61, 1536, v58
    v_mov_b32 v62, 0xffff
    v_and_b32 v66, 47, v2
    v_subrev_u32 v66, 32, v66
    v_cmp_gt_u32 vcc, 6, v66
    v_add_u32 v66, 2, v66
    v_cndmask_b32 v66, 12, v66, vcc
    s_mov_b32 s3, 0x0c000c0c
    v_lshl_or_b32 v63, v66, 16, s3
    v_cndmask_b32 v66, 16, 24, vcc
    v_lshlrev_b32 v64, v66, s14
    s_lshl_b32 s3, s4, 3
    v_mov_b32 v59, s3
    s_mov_b32 s62, 0x00ff00ff
    s_mov_b32 s63, 0x00ff00ff
    s_waitcnt vmcnt(3)''')
    def mf(slot, first=False, waits=False):
        for t in range(3):
            if waits: A(f's_waitcnt vmcnt({2-t})')
            c = '0' if first else vr(D0_+4*t, 4)
            A(f'v_mfma_f32_16x16x32_bf16 {vr(D0_+4*t,4)}, {vr(F,4)}, {vr(SL(slot,t),4)}, {c}')
    for g in range(SG):
        for t in range(4): A(f'v_and_b32 v{F+t}, {S[g]}, v{4+t}')
        if g < SG-1: mf(VI(g), first=(g == 0))
    take(0, 'L_lastS')
    mf(VI(SG-1))
    A('s_branch L_loopA')
    A('L_loop:')
    for X, Y, nm, pv in ((0, 2, 'A', 'B'), (2, 0, 'B', 'A')):
        take(X, f'L_last{pv}')
        mf(Y+1)
        A(f'L_loop{nm}:')
        if TKW >= 3:
            if TKW < 6: A(f's_waitcnt vmcnt({TKW})')
            nexttick()
        A(f'v_mov_b32 {X0_}, 0\nv_mov_b32 {X1_}, 0\ns_waitcnt vmcnt(3)')
        if EP == 2: A('s_setprio 3')
        for t in range(3):
            for d in range(0, 4, 2):
                A(f'v_dot2c_f32_bf16 {X0_}, v{SL(X,t)+d}, v{Q0+4*t+d}\nv_dot2c_f32_bf16 {X1_}, v{SL(X,t)+d+1}, v{Q0+4*t+d+1}')
        A(f'v_add_f32 {X0_}, {X0_}, {X1_}')
        allred8([X0_])
        A(f'''v_cvt_pk_bf16_f32 {X0_}, {X0_}, {X0_}
        v_and_b32 {X0_}, 0xffff0000, {X0_}
        v_mul_f32 {X0_}, 0x3d93cd3a, {X0_}
        v_cvt_pk_bf16_f32 {X0_}, {X0_}, {X0_}
        v_and_b32 {X0_}, 0xffff0000, {X0_}
        v_cmp_lt_f32 vcc, s8, {X0_}
        s_cbranch_vccz L_nm{nm}
        s_call_b64 s[60:61], L_newmax
        L_nm{nm}:
        v_subrev_f32 {X0_}, s8, {X0_}
        v_mul_f32 {X0_}, {H(LOG2E)}, {X0_}
        v_exp_f32 {X0_}, {X0_}
        v_add_f32 {VL}, {VL}, {X0_}
        v_cvt_pk_bf16_f32 {X0_}, {X0_}, {X0_}''')
        for t in range(4): A(f'v_and_b32 v{F+t}, {X0_}, v{4+t}')
        if TKW < 3:
            A(f's_waitcnt vmcnt({TKW})')
            nexttick()
    A('s_branch L_loop')
    if BS:
        L = lab('bt'); D = lab('btd')
        A(f'''L_next:
        s_cmp_eq_u32 s65, 0
        s_cbranch_scc0 L_ind
        s_mov_b64 exec, 1
        ds_add_rtn_u32 {X2_}, v0, v1 offset:{L_LK}
        s_waitcnt lgkmcnt(0)
        v_readfirstlane_b32 s64, {X2_}
        v_lshrrev_b32 {X2_}, {LBS}, {X2_}
        v_lshlrev_b32 {X2_}, 2, {X2_}
        {L}:
        ds_read_b32 {X3_}, {X2_} offset:{L_BT}
        s_waitcnt lgkmcnt(0)
        v_readfirstlane_b32 s12, {X3_}
        s_cmp_lg_u32 s12, 0
        s_cbranch_scc1 {D}''')
        spin_tail(L, 1)
        A(f'''{D}:
        s_cmp_eq_u32 s12, -1
        s_cbranch_scc1 L_ind1
        s_and_b32 s3, s64, {BS-1}
        s_cmp_eq_u32 s3, {PFS}
        s_cbranch_scc0 L_nof
        s_cmp_gt_u32 s12, {NPOOL - YI}
        s_cbranch_scc1 L_wind
        v_readfirstlane_b32 s67, {X2_}
        s_mov_b32 s66, {BS}
        s_atomic_add s66, s[52:53], 0 glc
        s_add_u32 s67, s67, {L_BT + 4}
        L_nof:
        s_add_u32 s12, s12, s3
        s_sub_u32 s12, s12, 1
        s_mov_b64 exec, -1
        s_setpc_b64 s[60:61]
        L_wind:
        v_mov_b32 {X3_}, -1''')
        for k in range(1, 8 // BS + 1): A(f'ds_write_b32 {X2_}, {X3_} offset:{L_BT + 4*k}')
        A(f'''s_branch L_nof
        L_ind1:
        s_mov_b64 exec, -1
        s_mov_b32 s65, 1
        s_mov_b32 s11, 0
        L_ind:
        s_movk_i32 s12, {NPOOL}
        s_cmp_lt_u32 s11, s10
        s_cbranch_scc0 L_ind2
        {tick}
        L_ind2:
        s_setpc_b64 s[60:61]''')
    A('L_newmax:')
    A(f'v_mov_b32 {X1_}, {X0_}')
    red_hi([X1_], 'v_max_f32')
    A(f'v_mov_b32 {X2_}, s8\nv_readlane_b32 s8, {X1_}, 63\nv_subrev_f32 {X2_}, s8, {X2_}\nv_mul_f32 {X2_}, {H(LOG2E)}, {X2_}\nv_exp_f32 {X2_}, {X2_}')
    A(f'v_mul_f32 {VL}, {VL}, {X2_}')
    for i in range(12): A(f'v_mul_f32 v{D0_+i}, v{D0_+i}, {X2_}')
    A('s_setpc_b64 s[60:61]')
    for nm, slot in (('S', VI(SG-1)), ('A', 1), ('B', 3)):
        A(f'L_last{nm}:')
        if EP: A('s_setprio 3')
        stamp(4)
        A(f's_mov_b64 exec, 1\nds_add_u32 v0, v1 offset:{L_CSTAT}\ns_mov_b64 exec, -1')
        mf(slot, waits=True)
        if nm != 'B': A('s_branch L_epi')
    A('L_epi:')
    stamp(6)
    d = D0_
    A(f'''v_add_f32 {VL}, {VL}, {VL} row_ror:8 {DPPF}
    v_mov_b32 v133, s8
    v_add_f32 {VL}, {VL}, {VL} row_bcast:15 row_mask:0xa bank_mask:0xf
    v_permlane32_swap_b32 v{d}, v{d+2}
    v_add_f32 {VL}, {VL}, {VL} row_bcast:31 row_mask:0xc bank_mask:0xf
    v_permlane32_swap_b32 v{d+1}, v{d+3}
    v_permlane32_swap_b32 v{d+4}, v{d+6}
    v_permlane32_swap_b32 v{d+5}, v{d+7}
    v_permlane32_swap_b32 v{d+8}, v{d+10}
    v_permlane32_swap_b32 v{d+9}, v{d+11}''')
    for t in range(3):
        d = D0_ + 4*t
        A(f'v_add_f32 v{d}, v{d+2}, v{d} row_ror:8 {DPPF}\nv_add_f32 v{d+1}, v{d+3}, v{d+1} row_ror:8 {DPPF}')
    A('s_mov_b64 exec, s[62:63]')
    for t in range(3): A(f'ds_write_b64 v56, {vr(D0_+4*t,2)} offset:{L_OS - 4*768 + 256*t}')
    A(f'''s_lshl_b64 exec, 1, 48
    ds_write2_b32 v59, v133, {VL} offset0:{(L_ST2 - 32)//4} offset1:{(L_ST2 - 32)//4 + 1}
    ds_add_rtn_u32 v6, v0, v1 offset:{L_CO}
    s_mov_b64 exec, -1
    ds_read_b64 v[144:145], v60 offset:{L_ST2}''')
    for k in range(4):
        ad = 'v58' if k < 2 else 'v61'
        A(f'ds_read2_b64 {vr(68+6*k,4)}, {ad} offset0:{96*(k&1)} offset1:{96*(k&1)+1}\nds_read_b64 {vr(72+6*k,2)}, {ad} offset:{768*(k&1)+16}')
    A(f'''s_waitcnt lgkmcnt({0 if stamps == 1 else 8})
    v_readlane_b32 s3, v6, 48
    v_max_f32 v108, v144, v144 quad_perm:[1,0,3,2] {DPPF}
    s_cmp_eq_u32 s3, 7
    s_cbranch_scc0 L_fin
    v_max_f32 v108, v108, v108 quad_perm:[2,3,0,1] {DPPF}
    v_max_f32 v108, v108, v108 row_half_mirror {DPPF}
    v_sub_f32 v144, v144, v108
    v_mul_f32 v144, {H(LOG2E)}, v144
    v_exp_f32 v144, v144
    v_mul_f32 v109, v144, v145''')
    lch = [f'v_add_f32 v109, v109, v109 quad_perm:[1,0,3,2] {DPPF}', f'v_add_f32 v109, v109, v109 quad_perm:[2,3,0,1] {DPPF}', f'v_add_f32 v109, v109, v109 row_half_mirror {DPPF}']
    for w in range(4):
        A(f'v_mov_b32 v{100+w}, v144 row_newbcast:{w} {DPPF}')
        if w in (1, 3): A(lch.pop(0))
    A('s_waitcnt lgkmcnt(0)')
    def fsel(w): return f'{vr(100+(w&~1),2)}', (w & 1)
    for k in range(4):
        fr, hi = fsel(k)
        for h2 in (0, 2, 4):
            if k == 0: A(f'v_pk_mul_f32 {vr(68+h2,2)}, {vr(68+h2,2)}, {fr} op_sel:[0,{hi}] op_sel_hi:[1,{hi}]')
            else: A(f'v_pk_fma_f32 {vr(68+h2,2)}, {vr(68+6*k+h2,2)}, {fr}, {vr(68+h2,2)} op_sel:[0,{hi},0] op_sel_hi:[1,{hi},1]')
        if k == 0: A(lch.pop(0))
    A(f'''v_perm_b32 v110, v109, v108, v63
    v_permlane32_swap_b32 v68, v70
    v_permlane32_swap_b32 v69, v71
    v_permlane32_swap_b32 v72, v73
    v_or_b32 v110, v110, v64
    v_pk_add_f32 v[68:69], v[68:69], v[70:71]
    v_add_f32 v72, v72, v73
    v_cvt_pk_bf16_f32 v68, v68, v69
    v_cvt_pk_bf16_f32 v69, v72, v72
    v_bfi_b32 v69, v62, v69, v110
    global_store_dwordx2 v57, v[68:69], s[42:43] sc1
    s_mov_b64 exec, 1
    ds_add_u32 v0, v1 offset:{L_CO}''')
    if BG: A('s_mov_b32 s12, 1\ns_atomic_add s12, s[52:53], 4 glc')
    stamp(7)
    A('s_branch L_fin')
    if SG < 5:
        import re as _re
        for _k in range(_e0, len(A.L)):
            A.L[_k] = _re.sub(r'\bv(5[6-9]|6[0-3])\b', lambda m: 'v%d' % (int(m.group(1)) + 56), A.L[_k])

    A('L_ctrl:')
    A('L_rest:\ns_cmp_ge_u32 s10, 120\ns_cselect_b32 s12, 1, 0\ns_cselect_b32 s7, 40, 0\ns_sub_u32 s13, s10, 60\ns_sub_u32 s13, s13, s7\ns_lshl2_add_u32 s8, s12, s4\ns_branch L_rest2')
    def calc_t(dst):
        A(f's_and_b32 s3, s2, 7\ns_mul_i32 s3, s3, 3\ns_lshr_b32 s7, s2, 5\ns_add_u32 s3, s3, s7\ns_lshl_b32 s3, s3, 2\ns_bfe_u32 s7, s2, 0x20003\ns_add_u32 {dst}, s3, s7')
    def cstart(bar=True):
        Lk = lab('ci')
        A(f'''v_mov_b32 v0, 0
        v_lshlrev_b32 v75, 4, v2
        v_lshlrev_b32 v80, 2, v2
        v_mov_b32 v79, 1''')
        if not EB: A(f's_cmp_eq_u32 s4, 0\ns_cbranch_scc0 {Lk}\nds_write_b32 v80, v0 offset:1024\n{Lk}:')
        A('s_waitcnt lgkmcnt(0)')
        if TLB == 3:
            A(f's_cmp_eq_u32 s4, 3\ns_cbranch_scc0 {Lk}w\ns_lshl_b32 s9, s59, 9\ns_add_u32 s9, s9, {R_O}\nv_lshl_add_u32 v166, v2, 7, s9\ns_mov_b64 exec, 15\nglobal_load_dword v167, v166, s[42:43] sc1\ns_mov_b64 exec, -1\n{Lk}w:')
        if bar and not EB: A('s_barrier')
        A(f's_load_dwordx2 s[14:15], s[42:43], {R_E}')
    NE = 4*(3 - WDEF) if EQ else 0
    if EQ:
        L = lab('eq')
        A(f'''L_eqdma:
        s_lshr_b32 s8, s10, 3
        s_and_b32 s9, s2, 7
        s_lshl_b32 s9, s9, 1
        s_cmp_ge_u32 s8, 10
        s_cselect_b32 s3, 10, 0
        s_addc_u32 s9, s9, 0
        s_sub_u32 s8, s8, s3
        s_lshl2_add_u32 s9, s9, s4
        s_mul_i32 s3, s9, {96*1280}
        s_lshl_b32 s8, s8, 7
        s_add_u32 s3, s3, s8
        s_add_u32 s48, s24, s3
        s_addc_u32 s49, s25, 0
        s_mov_b32 s50, {96*1280}
        v_mul_u32_u24 v73, 1280, v3
        v_and_b32 v76, 16, v2
        v_lshlrev_b32 v76, 1, v76
        v_xor_b32 v76, v76, v1
        v_add_u32 v73, v73, v76
        s_mul_i32 s8, s4, 12288
        s_add_u32 s8, s8, {L_W}
        s_mov_b32 s9, 0
        {L}:
        s_mov_b32 m0, s8
        s_add_u32 s8, s8, 1024
        buffer_load_dwordx4 v73, s[48:51], s9 offen nt lds
        v_xor_b32 v73, 64, v73
        s_add_u32 s9, s9, 10240
        s_cmp_lt_u32 s9, {NE*10240}
        s_cbranch_scc1 {L}
        s_setpc_b64 s[62:63]''')
    A('L_cN:')
    cstart(not EQ)
    A(f'''s_getpc_b64 s[8:9]
    L_pc1:
    s_sub_u32 s8, s8, L_pc1-L_base
    s_subb_u32 s9, s9, 0
    s_lshr_b32 s3, s2, 3
    s_lshl1_add_u32 s3, s3, s4
    s_and_b32 s3, s3, 15
    s_lshl_b32 s3, s3, 10
    v_add_u32 v76, s3, v75
    v_min_u32 v76, L_end-L_base-12, v76
    global_load_dwordx4 v[160:163], v76, s[8:9] {PFF}''')
    if EQ: A('s_call_b64 s[62:63], L_eqdma\ns_barrier')
    A('s_waitcnt vmcnt(0) lgkmcnt(0)')
    tags()
    A('s_branch L_hopB')
    A('L_cA:')
    if EQ: A('s_call_b64 s[62:63], L_eqdma')
    cstart()
    masks(['v4', 'v5', 'v6', 'v7'], 'v2', 'v60', 'v61')
    A(f'''s_mul_i32 s11, s12, 5120
    s_lshl_b32 s7, s13, 8
    s_add_u32 s11, s11, s7
    s_add_u32 s11, s11, {R_MA}
    s_mov_b32 s54, 1
    s_cmp_lt_u32 s10, 80
    s_cbranch_scc1 L_cA1
    s_mul_i32 s11, s12, 15360
    s_add_u32 s11, s11, s7
    s_add_u32 s11, s11, {R_MOD}
    s_mov_b32 s54, 3''')
    if not EQ: A('s_setprio 0\ns_waitcnt vmcnt(0)\ns_call_b64 s[60:61], L_load10')
    A(f'L_cA1:\ns_waitcnt vmcnt({10+NE})')
    C = ['v88', 'v89']; E = ['v90', 'v91']; RC = ['v92', 'v93']; QQ = ['v94', 'v95']; RR = ['v96', 'v97']
    A('v_lshlrev_b32 v88, 16, v82\nv_and_b32 v89, 0xffff0000, v82')
    for i in range(2): A(f'v_mul_f32 {E[i]}, {H(-LOG2E)}, {C[i]}')
    for i in range(2): A(f'v_exp_f32 {E[i]}, {E[i]}')
    A(f's_lshl_b32 s3, s4, 9\ns_add_u32 s3, s3, {L_OS}')
    for i in range(2): A(f'v_add_f32 {E[i]}, 1.0, {E[i]}')
    for i in range(2): A(f'v_rcp_f32 {RC[i]}, {E[i]}')
    A('v_lshl_add_u32 v98, v2, 3, s3\nv_lshl_add_u32 v99, v3, 2, s3')
    for i in range(2): A(f'v_mul_f32 {QQ[i]}, {RC[i]}, {C[i]}')
    for i in range(2): A(f'v_fma_f32 {RR[i]}, -{QQ[i]}, {E[i]}, {C[i]}')
    for i in range(2): A(f'v_fmac_f32 {QQ[i]}, {RR[i]}, {RC[i]}')
    for i in range(2): A(f'v_div_fixup_f32 {QQ[i]}, {QQ[i]}, {E[i]}, {C[i]}')
    for i in range(2): A(f'v_cvt_pk_bf16_f32 {QQ[i]}, {QQ[i]}, {QQ[i]}')
    A('ds_write_b64 v98, v[94:95]')
    for k in range(5): A(f'ds_read2_b32 {vr(X0+2*k,2)}, v99 offset0:{16*k} offset1:{16*k+8}')
    for i in range(4): A(f'v_mov_b32 v{D0+i}, 0')
    A('s_waitcnt lgkmcnt(0)')
    tags()
    stamp(1)
    A(f's_waitcnt vmcnt({NE})\ns_branch L_mm10')
    W1 = 88; X1r = 128
    A('L_cB:')
    A(f'''v_mul_u32_u24 v72, 12288, v3
    s_mul_i32 s3, s4, {160*12288}
    s_mul_i32 s7, s5, 384
    s_add_u32 s3, s3, s7
    s_lshr_b32 s12, s2, 5
    s_lshl_b32 s7, s12, 7
    s_add_u32 s3, s3, s7
    v_add_u32 v72, v72, v1
    s_mov_b32 s46, {160*12288}
    s_mov_b32 s57, {8*12288}
    v_mul_u32_u24 v73, 20, v2
    v_min_u32 v74, 39, v2
    s_mul_i32 s13, s4, 320
    v_lshl_add_u32 v74, v74, 3, s13''')
    cstart(FB < 2)
    A(f'''s_add_u32 s44, s22, s3
    s_addc_u32 s45, s23, 0
    global_load_dwordx4 v[140:143], v73, s[16:17]
    global_load_dword v144, v73, s[16:17] offset:16
    global_load_dwordx2 v[146:147], v74, s[16:17]''')
    stamp(13)
    A(f'''s_call_b64 s[60:61], L_load10
    s_mov_b32 s56, {80*12288}''')
    for k in range(10):
        A(f'buffer_load_dwordx4 {vr(W1+4*k,4)}, v72, s[44:47], s56 offen nt')
        if k < 9: A('s_add_u32 s56, s56, s57')
    if FB == 2: A('s_barrier')
    A(f'''s_or_b32 s3, s12, s4
    s_cbranch_scc1 L_notk
    s_mul_i32 s3, s5, {TKS}
    s_add_u32 s3, s3, {R_TK2}
    v_mov_b32 v60, s3
    s_mov_b64 exec, 1
    v_mov_b32 v62, {8*BS if BS else 64*NS}
    v_mov_b32 v63, 0
    global_store_dwordx2 v60, v[62:63], s[42:43] sc1
    s_mov_b64 exec, -1
    L_notk:''')
    masks(['v4', 'v5', 'v6', 'v7'], 'v2', 'v64', 'v65')
    A(f'''s_mul_i32 s11, s5, 768
    s_lshl_b32 s7, s12, 8
    s_add_u32 s11, s11, s7
    s_add_u32 s11, s11, {R_Q}
    v_lshlrev_b32 v74, 1, v74
    s_mov_b32 s54, 3
    v_add_u32 v76, {R_MA}, v74
    v_add_u32 v77, {R_MA + 5120}, v74
    v_add_u32 v78, {R_MA + 10240}, v74
    v_add_u32 v81, {R_MA + 15360}, v74
    s_lshl_b32 s3, s13, 1
    s_add_u32 s3, s3, {L_HB}
    v_lshl_add_u32 v73, v3, 2, s3
    s_waitcnt vmcnt(20) lgkmcnt(0)''')
    tags()
    XA = [v(150+i) for i in range(10)]
    for i in range(5):
        A(f'v_lshlrev_b32 {XA[2*i]}, 16, v{140+i}\nv_and_b32 {XA[2*i+1]}, 0xffff0000, v{140+i}')
    XN = ['v160', 'v161', 'v162', 'v163']
    A('v_lshlrev_b32 v160, 16, v146\nv_and_b32 v161, 0xffff0000, v146\nv_lshlrev_b32 v162, 16, v147\nv_and_b32 v163, 0xffff0000, v147')
    A(f'v_add_f32 v60, {XA[0]}, {XA[1]}')
    for i in range(2, 10): A(f'v_add_f32 v60, v60, {XA[i]}')
    allred8(['v60']); red_hi(['v60'])
    A(f'v_mul_f32 v60, {H(1/640)}, v60\nv_readlane_b32 s8, v60, 63')
    for i in range(10): A(f'v_subrev_f32 {XA[i]}, s8, {XA[i]}')
    A(f'v_mul_f32 v61, {XA[0]}, {XA[0]}')
    for i in range(1, 10): A(f'v_fmac_f32 v61, {XA[i]}, {XA[i]}')
    allred8(['v61']); red_hi(['v61'])
    A(f'v_mul_f32 v61, {H(1/640)}, v61')
    round_list(['v60', 'v61'], ['v62'])
    A(f'v_add_f32 v61, {H(1e-5)}, v61')
    round_list(['v61'], ['v62'])
    A('v_sqrt_f32 v61, v61')
    round_list(['v61'], ['v62'])
    A('v_rcp_f32 v61, v61\nv_readlane_b32 s8, v60, 63\nv_readlane_b32 s9, v61, 63')
    for r in XN: A(f'v_subrev_f32 {r}, s8, {r}')
    round_list(XN, ['v62', 'v63'])
    for r in XN: A(f'v_mul_f32 {r}, s9, {r}')
    round_list(XN, ['v62', 'v63'])
    set_exec(0xffffffff, 0xff)
    stamp(1)
    A(f's_waitcnt vmcnt({HAW})')
    stamp(2)
    G = 128
    A(f's_and_b32 s3, s14, {FM}\ns_sub_u32 s36, 0, s3\ns_subb_u32 s37, 0, s3')
    L = lab('ha')
    A(f'{L}:')
    for k in range(8): A(f'global_load_dwordx4 {vr(G+4*k,4)}, {["v76","v77","v78","v81"][k%4]}, s[42:43] offset:{2560*(k//4)} sc1')
    if FB == 3: A('s_cmp_eq_u32 s56, 0\ns_cbranch_scc1 L_nb3\ns_mov_b32 s56, 0\ns_barrier\nL_nb3:')
    A('s_waitcnt vmcnt(0)')
    untag(G, 32)
    ortree([v(G+i) for i in range(32)], 'v60')
    tag_end('v60', L, SLA, FM)
    A('s_and_b32 s3, s14, 15\ns_sub_u32 s36, 0, s3\ns_subb_u32 s37, 0, s3')
    stamp(3)
    for a, b in ((0,1),(2,3),(0,2)):
        for base in (0, 4):
            for h2 in (0, 2): A(f'v_pk_add_f32 {vr(G+4*(base+a)+h2,2)}, {vr(G+4*(base+a)+h2,2)}, {vr(G+4*(base+b)+h2,2)}')
    SA = [v(G+i) for i in range(4)]; CA = [v(G+16+i) for i in range(4)]
    TT = ['v60', 'v61', 'v62', 'v63']
    round_list(CA + SA, TT)
    for r in CA: A(f'v_add_f32 {r}, 1.0, {r}')
    round_list(CA, TT)
    for a, b in zip(CA, XN): A(f'v_mul_f32 {a}, {a}, {b}')
    round_list(CA, TT)
    for a, b in zip(CA, SA): A(f'v_add_f32 {a}, {a}, {b}')
    for r in CA: A(f'v_cvt_pk_bf16_f32 {r}, {r}, {r}')
    A(f'ds_write_b128 v74, v[144:147] offset:{L_HB}\ns_mov_b64 exec, -1')
    for k in range(5): A(f'ds_read2_b32 {vr(X1r+2*k,2)}, v73 offset0:{80 + 16*k} offset1:{80 + 16*k + 8}')
    for k in range(5): A(f'ds_read2_b32 {vr(X0+2*k,2)}, v73 offset0:{16*k} offset1:{16*k + 8}')
    A('s_waitcnt lgkmcnt(0)')
    for s in range(10):
        F = F0 + 4*(s & 1)
        for t in range(4): A(f'v_and_b32 v{F+t}, v{X1r+s}, v{4+t}')
        c = '0' if s == 0 else vr(D0, 4)
        A(f'v_mfma_f32_16x16x32_bf16 {vr(D0,4)}, {vr(F,4)}, {vr(W1+4*s,4)}, {c}')
    A('L_mm10:')
    for s in range(10):
        F = F0 + 4*(s & 1)
        for t in range(4): A(f'v_and_b32 v{F+t}, v{X0+s}, v{4+t}')
        A(f'v_mfma_f32_16x16x32_bf16 {vr(D0,4)}, {vr(F,4)}, {vr(W0+4*s,4)}, {vr(D0,4)}')
    A('''v_and_b32 v65, 16, v2
    v_lshrrev_b32 v66, 5, v2
    v_lshl_add_u32 v64, v1, 1, v65
    v_lshl_add_u32 v64, v66, 3, v64
    s_lshl_b32 s3, s4, 8
    v_add_u32 v64, s3, v64
    v_add_u32 v67, s11, v80
    s_and_b32 s9, s14, 0xffff''')
    A(f'v_permlane32_swap_b32 v60, v62\nv_permlane32_swap_b32 v61, v63')
    A(f'v_add_f32 v60, v62, v60 row_ror:8 {DPPF}\nv_add_f32 v61, v63, v61 row_ror:8 {DPPF}')
    set_exec(0x00ff00ff, 0x00ff00ff)
    A(f'''ds_write_b64 v64, v[60:61] offset:{L_MS}
    s_mov_b64 exec, 1
    ds_add_rtn_u32 v66, v0, v79 offset:{L_CM}
    s_mov_b64 exec, -1
    ds_read2st64_b32 v[68:69], v80 offset0:{L_MS//256} offset1:{L_MS//256+1}
    ds_read2st64_b32 v[70:71], v80 offset0:{L_MS//256+2} offset1:{L_MS//256+3}
    s_waitcnt lgkmcnt(0)
    v_readfirstlane_b32 s3, v66
    s_cmp_eq_u32 s54, 1
    s_cselect_b32 s7, {FM}, 15
    v_mov_b32 v65, s7
    s_cbranch_scc1 L_two
    v_pk_add_f32 v[68:69], v[68:69], v[70:71]
    L_two:
    v_add_f32 v68, v68, v69
    v_cvt_pk_bf16_f32 v69, v68, v68
    v_bfi_b32 v68, v65, s14, v68
    v_lshl_or_b32 v69, v69, 16, s9
    s_cmp_lt_u32 s2, 96
    s_cselect_b64 vcc, -1, 0
    v_cndmask_b32 v68, v68, v69, vcc
    s_cmp_eq_u32 s3, s54
    s_cbranch_scc0 L_nopub
    global_store_dword v67, v68, s[42:43] sc1
    L_nopub:
    s_setprio 3''')
    stamp(4)
    if HB:
        A('L_hopB:\ns_cmp_eq_u32 s4, 0\ns_cbranch_scc1 L_tail')
        if stamps == 1:
            A('s_waitcnt lgkmcnt(0)')
            for i in range(13): A(f'v_writelane_b32 v159, s{70+2*i}, {i}')
        elif stamps: A('s_waitcnt lgkmcnt(0)\nv_writelane_b32 v159, s70, 0')
        A(f'''s_mul_i32 s3, s5, 768
        s_lshl_b32 s7, s4, 8
        s_add_u32 s3, s3, s7
        s_add_u32 s3, s3, {R_Q - 256}
        s_add_u32 s52, s42, s3
        s_addc_u32 s53, s43, 0
        v_mov_b32 v64, s14
        v_mov_b32 v65, s15
        ds_write_b64 v0, v[64:65] offset:{L_TB}
        s_lshl_b32 s7, s6, {LBS}
        s_add_u32 s7, s7, 1
        v_mov_b32 v66, s7
        ds_write_b32 v0, v66 offset:{L_BT}
        s_lshl_b32 s3, s4, 7
        v_lshl_add_u32 v74, v2, 1, s3''')
        L = lab('hb')
        for half in range(2):
            Lh = L if half == 0 else lab('hc'); D = lab('hbh')
            A(f'{Lh}:\ns_load_dwordx16 s[64:79], s[52:53], {128*half} glc\ns_load_dwordx16 s[80:95], s[52:53], {128*half+64} glc\ns_waitcnt lgkmcnt(0)')
            A(f's_xor_b32 s3, s64, s14\ns_xor_b32 s7, s95, s14\ns_or_b32 s3, s3, s7\ns_and_b32 s3, s3, 0xffff\ns_cbranch_scc0 {D}')
            spin_tail(Lh, SLB if half == 0 else 1)
            A(f'{D}:')
            for k in range(32): A(f'v_writelane_b32 v84, s{64+k}, {32*half+k}')
        D = lab('hbd')
        A(f'''v_xor_b32 v60, s14, v84
        v_lshlrev_b32 v60, 16, v60
        v_cmp_ne_u32 vcc, 0, v60
        s_cbranch_vccz {D}''')
        spin_tail(L, SLB)
        A(f'''{D}:
        ds_write_b16_d16_hi v74, v84 offset:{L_Q - 128}
        s_mov_b64 exec, 1
        ds_add_u32 v0, v79 offset:{L_CQ}
        s_mov_b64 exec, -1''')
        if stamps == 1:
            for i in range(13): A(f'v_readlane_b32 s{70+2*i}, v159, {i}')
        elif stamps: A('v_readlane_b32 s70, v159, 0')
        stamp(5)
    else:
        A('L_hopB:\ns_cmp_eq_u32 s4, 1\ns_cbranch_scc0 L_tail')
        A(f'''s_mul_i32 s3, s5, 768
        s_add_u32 s3, s3, {R_Q}
        v_add_u32 v73, s3, v75
        s_add_u32 s52, s42, s3
        s_addc_u32 s53, s43, 0
        v_mov_b32 v64, s14
        v_mov_b32 v65, s15
        ds_write_b64 v0, v[64:65] offset:{L_TB}
        s_lshl_b32 s7, s6, {LBS}
        s_add_u32 s7, s7, 1
        v_mov_b32 v66, s7
        ds_write_b32 v0, v66 offset:{L_BT}
        v_mov_b32 v76, 0x07060302
        v_lshlrev_b32 v74, 3, v2
        s_lshl_b32 s7, s6, 4
        s_add_u32 s52, s52, s7
        s_addc_u32 s53, s53, 0''')
        set_exec(0xffffffff, 0xffff)
        L = lab('hb'); D = lab('hbh')
        A(f'{L}:')
        for k in range(3): A(f's_load_dword s{62+k}, s[52:53], {256*k} glc')
        A(f's_waitcnt lgkmcnt(0)\ns_xor_b32 s62, s62, s14\ns_xor_b32 s63, s63, s14\ns_xor_b32 s64, s64, s14\ns_or_b32 s62, s62, s63\ns_or_b32 s62, s62, s64\ns_and_b32 s62, s62, 0xffff\ns_cbranch_scc0 {D}')
        spin_tail(L, SLB)
        A(f'{D}:')
        stamp(12)
        D = lab('hbd')
        A(f'''global_load_dwordx4 v[84:87], v73, s[42:43] sc1
        s_waitcnt vmcnt(0)
        v_bitop3_b32 v60, v84, v85, s14 bitop3:0x7e
        v_bitop3_b32 v61, v86, v87, s14 bitop3:0x7e
        v_or_b32 v60, v60, v61
        v_lshlrev_b32 v60, 16, v60
        v_cmp_ne_u32 vcc, 0, v60
        s_cbranch_vccz {D}''')
        spin_tail(L, SLB)
        A(f'''{D}:
        v_perm_b32 v84, v85, v84, v76
        v_perm_b32 v85, v87, v86, v76
        ds_write_b64 v74, v[84:85] offset:{L_Q}
        s_mov_b64 exec, 1
        ds_add_u32 v0, v79 offset:{L_CQ}
        s_mov_b64 exec, -1''')
        stamp(5)

    def trig_wait(val, L_TRIG=L_TRIG):
        if val <= 0: return
        L = lab('tg'); D = lab('tgd'); W = lab('tgw')
        A(f's_cmp_eq_u32 s4, 3\ns_cbranch_scc0 {W}\ns_lshl_b32 s8, s5, 7\ns_add_u32 s8, s8, {R_TK}\nds_read_b32 v90, v0 offset:{L_TB}\ns_waitcnt lgkmcnt(0)\nv_readfirstlane_b32 s9, v90')
        A(f'{L}:\ns_load_dword s3, s[42:43], s8 glc\ns_waitcnt lgkmcnt(0)\ns_sub_u32 s3, s3, s9\ns_cmp_ge_u32 s3, {val}\ns_cbranch_scc1 {D}')
        spin_tail(L, 4)
        A(f'{D}:\nv_mov_b32 v90, 1\nds_write_b32 v0, v90 offset:{L_TRIG}\n{W}:')
        lds_wait_ge(L_TRIG, 1, 'v0', 'v90', sleep=2)
    def sgate(base, offs, regs, mask):
        L = lab('sg'); D = lab('sgd')
        A(f'{L}:')
        for o, r in zip(offs, regs): A(f's_load_dword s{r}, {base}, {o} glc')
        A('s_waitcnt lgkmcnt(0)')
        A(f's_xor_b32 s3, s{regs[0]}, s14')
        for r in regs[1:len(offs)]: A(f's_xor_b32 s{r}, s{r}, s14\ns_or_b32 s3, s3, s{r}')
        if mask != -1: A(f's_and_b32 s3, s3, {mask}')
        A(f's_cbranch_scc0 {D}')
        spin_tail(L, 0)
        A(f'{D}:')
    def ffn_prefetch():
        if not PFC: return
        Lk = lab('pf')
        A(f'''s_lshr_b32 s8, s2, 3
        s_lshl2_add_u32 s8, s8, s4
        s_cmp_ge_u32 s8, 120
        s_cbranch_scc1 {Lk}
        s_cmp_lt_u32 s8, 40
        s_cselect_b32 s64, s28, s30
        s_cselect_b32 s65, s29, s31
        s_cselect_b32 s9, 0, 40
        s_cmp_lt_u32 s8, 80
        s_cselect_b32 s64, s64, s32
        s_cselect_b32 s65, s65, s33
        s_cselect_b32 s9, s9, 80
        s_movk_i32 s66, 384
        s_cselect_b32 s67, 3072, s66
        s_cselect_b32 s66, s66, 245760
        s_sub_u32 s8, s8, s9
        s_mul_i32 s8, s8, s67
        s_lshl_b32 s8, s8, 4
        s_mul_i32 s9, s6, s66
        s_add_u32 s8, s8, s9
        v_lshrrev_b32 v165, 2, v2
        v_mul_u32_u24 v165, s67, v165
        v_lshl_add_u32 v165, v7, 4, v165
        s_mov_b32 s66, 1966080
        s_mov_b32 s67, 0x20000''')
        lds_wait_ge(L_CSTAT, PFC, 'v0', 'v90', sleep=1)
        set_exec(0x77777777, 0x77777777)
        A(f'buffer_load_dword v166, v165, s[64:67], s8 offen {PFP}\ns_mov_b64 exec, -1\n{Lk}:')
    A('L_tail:')
    if AFF: A('s_and_b32 s6, s2, 7')
    A('v_lshrrev_b32 v4, 4, v2\nv_and_b32 v5, 15, v2\nv_lshrrev_b32 v6, 2, v5\nv_and_b32 v7, 3, v2\nv_lshlrev_b32 v7, 3, v7')
    A('s_cmp_ge_u32 s2, 96\ns_cbranch_scc0 L_tailB')
    A('''s_lshr_b32 s13, s10, 3
    s_and_b32 s12, s2, 7
    s_lshl_b32 s12, s12, 1
    s_cmp_ge_u32 s13, 10
    s_cselect_b32 s3, 10, 0
    s_addc_u32 s12, s12, 0
    s_sub_u32 s13, s13, s3''')
    A(f'''s_lshr_b32 s23, s10, 3
    s_lshr_b32 s3, s10, 5
    s_cmp_eq_u32 s4, 2
    s_cselect_b32 s7, 2, 0
    s_add_u32 s3, s3, s7
    s_lshl3_add_u32 s3, s3, s6
    s_bfe_u32 s7, s10, 0x20003
    s_lshl2_add_u32 s10, s3, s7
    s_cmp_lt_u32 s10, 80
    s_cselect_b32 s57, 1, 0
    s_sub_u32 s3, s4, 1
    s_cmp_lt_u32 s3, 2
    s_cselect_b32 s57, s57, 0
    s_cmp_ge_u32 s23, 8
    s_cselect_b32 s57, 2, s57
    s_mul_i32 s3, s6, 12
    s_add_u32 s23, s23, s3
    s_sub_u32 s23, s23, 8
    s_lshl2_add_u32 s3, s57, s4
    s_cmp_eq_u32 s3, 8
    s_cbranch_scc0 L_noxc
    s_getreg_b32 s3, hwreg(HW_REG_XCC_ID, 0, 4)
    s_andn2_b32 s7, s14, 15
    s_or_b32 s3, s3, s7
    v_mov_b32 v101, s3
    s_lshl_b32 s3, s23, 2
    v_mov_b32 v100, s3
    s_mov_b64 exec, 1
    global_store_dword v100, v101, s[42:43] offset:{R_XC} sc1
    s_mov_b64 exec, -1
    L_noxc:''')
    A(f'''v_and_b32 v100, 1, v2
    v_lshl_add_u32 v100, v100, 2, v4
    s_lshl_b32 s3, s10, 3
    v_add_u32 v100, s3, v100
    v_lshlrev_b32 v101, 2, v100
    v_lshlrev_b32 v100, 1, v100
    v_add_u32 v102, {R_MOD + 5*2560}, v101
    v_add_u32 v101, {R_X1}, v101
    v_lshrrev_b32 v103, 1, v2
    v_mul_u32_u24 v103, 2560, v103
    v_and_b32 v104, 1, v2
    v_lshl_add_u32 v103, v104, 4, v103
    s_lshl_b32 s3, s10, 5
    s_add_u32 s3, s3, {R_DN}
    v_add_u32 v103, s3, v103
    v_add_u32 v104, {32*2560}, v103
    v_add_u32 v105, {64*2560}, v103''')
    B0 = 8; AA = 56; DD = 68
    A(f'''v_lshl_add_u32 v84, v4, 3, v6
    s_mul_i32 s3, s4, 96
    v_add_u32 v84, s3, v84
    v_lshl_add_u32 v84, v84, 7, v7
    v_lshl_add_u32 v85, v3, 9, v1
    s_lshr_b32 s3, s4, 1
    s_lshl1_add_u32 s3, s12, s3
    s_lshl_b32 s3, s3, 12
    s_and_b32 s7, s4, 1
    s_lshl_b32 s7, s7, 8
    s_add_u32 s3, s3, s7
    s_add_u32 s3, s3, {R_O}
    v_add_u32 v85, s3, v85
    v_mov_b32 v118, 0x05040100
    s_mul_i32 s3, s4, 2048
    s_add_u32 s3, s3, {L_W + 49152}
    v_and_b32 v90, 7, v2
    v_mul_u32_u24 v119, 192, v3
    v_mul_u32_u24 v91, 12, v90
    v_add3_u32 v119, v119, v91, s3
    v_mul_u32_u24 v133, 192, v90
    v_lshl_add_u32 v133, v4, 4, v133
    v_add_u32 v133, s3, v133
    v_lshl_add_u32 v134, v3, 4, v90
    v_add_u32 v134, s3, v134
    v_add_u32 v135, s3, v1
    v_cmp_gt_u32 vcc, 6, v90
    v_cndmask_b32 v90, 16, 24, vcc
    v_lshlrev_b32 v91, v90, s14
    v_lshlrev_b32 v128, v90, -1
    s_lshl_b32 s26, s14, 16
    v_lshrrev_b32 v86, 5, v2
    v_lshl_add_u32 v86, v86, 4, v5
    v_lshlrev_b32 v86, 5, v86
    v_and_b32 v87, 1, v4
    v_lshl_add_u32 v86, v87, 2, v86
    s_lshl_b32 s3, s4, 3
    v_add_u32 v86, s3, v86
    v_lshlrev_b32 v87, 5, v2
    s_mul_i32 s3, s12, 2560
    s_lshl_b32 s7, s13, 8
    s_add_u32 s3, s3, s7
    s_add_u32 s3, s3, {R_P}
    v_lshl_add_u32 v88, v2, 2, s3
    v_mov_b32 v89, 1
    s_lshl_b32 s3, s10, 5
    s_add_u32 s3, s3, {R_DN}
    s_add_u32 s54, s42, s3
    s_addc_u32 s55, s43, 0
    v_mov_b32 v98, 0xffff0000''')
    A(f'''s_mul_i32 s3, s12, {384*1280}
    s_lshl_b32 s7, s13, 7
    s_add_u32 s3, s3, s7
    s_add_u32 s44, s24, s3
    s_addc_u32 s45, s25, 0
    s_mov_b32 s46, {384*1280}
    v_mul_u32_u24 v72, 1280, v3
    v_and_b32 v90, 16, v2
    v_lshlrev_b32 v90, 1, v90
    v_xor_b32 v90, v90, v1
    v_add_u32 v72, v72, v90
    v_and_b32 v90, 1, v4
    v_lshrrev_b32 v92, 1, v6
    v_lshl_or_b32 v90, v90, 1, v92
    v_lshlrev_b32 v90, 5, v90
    v_add_u32 v84, v84, v90
    v_xor_b32 v154, 32, v84
    v_xor_b32 v155, 64, v84
    v_xor_b32 v156, 0x60, v84''')
    SE = 3 - WDEF
    def trread(s):
        for ct in range(4):
            for hf in range(2):
                A(f'ds_read_b64_tr_b16 {vr(B0+(s*4+ct)*4+2*hf,2)}, {["v84","v154","v155","v156"][ct]} offset:{L_W + (32*s+4*hf)*128}')
    if SE and not EQ:
        A(f's_cmp_eq_u32 s4, 0\ns_cbranch_scc0 L_nodma\ns_movk_i32 s7, {L_W}\ns_setprio {DPRIO}')
        stamp(6)
        L = lab('dma'); L2 = lab('dmo')
        A(f's_mov_b32 s56, 0\n{L2}:\ns_mov_b32 s8, 0\n{L}:\ns_mov_b32 m0, s7\ns_add_u32 s7, s7, 1024\nbuffer_load_dwordx4 v72, s[44:47], s56 offen nt lds\nv_xor_b32 v72, 64, v72\ns_add_u32 s56, s56, 10240\ns_waitcnt vmcnt({TWA})')
        A(f's_add_u32 s8, s8, 1\ns_cmp_lt_u32 s8, {4*SE}\ns_cbranch_scc1 {L}')
        A(f's_add_u32 s7, s7, {4096*WDEF}\ns_add_u32 s56, s56, {40960*WDEF}\ns_cmp_lt_u32 s56, {384*1280}\ns_cbranch_scc1 {L2}')
        A(f's_waitcnt vmcnt(0)\nds_write_b32 v0, v89 offset:{L_WRDY}')
        stamp(7)
        A('L_nodma:')
    A(f's_setprio {CP}')
    if SE:
        if EQ: A('s_waitcnt vmcnt(0)')
        else: lds_wait_ge(L_WRDY, 1, 'v0', 'v90', sleep=8)
        for s in range(SE):
            trread(s)
            A('s_waitcnt lgkmcnt(0)')
    if not WDEF: stamp(8)
    A('s_cmp_eq_u32 s57, 1\ns_cbranch_scc0 L_nofin')
    if not SE or EQ: lds_wait_ge(L_CQ, 5, 'v0', 'v90', sleep=8)
    A('global_load_ushort v107, v100, s[38:39]')
    A('v_add_u32 v132, 15360, v102')
    L = lab('gb')
    A(f'{L}:\nglobal_load_dword v120, v102, s[42:43] sc1\nglobal_load_dword v121, v132, s[42:43] sc1\ns_waitcnt vmcnt(0)')
    untag(120, 2)
    ortree(['v120', 'v121'], 'v90')
    tag_end('v90', L, 16)
    A('v_add_f32 v106, v120, v121')
    round_list(['v106'], ['v90'])
    A('L_nofin:')
    tailtags()
    def act_dma():
        for n in range(5):
            A(f's_add_u32 m0, s13, {1024*n}\ns_nop 0\nbuffer_load_dwordx4 v{148+n}, s[48:51], 0 offen nt lds')
        if TCH == 0: act_touch()
    def act_touch():
        A('s_mov_b64 exec, 31')
        if NGT < 2: A('global_load_dword v167, v153, s[42:43] sc1')
        if NGT < 1: A(f'v_add_u32 v153, {R_GU - R_DN}, v153\nglobal_load_dword v167, v153, s[42:43] sc1')
        A('s_mov_b64 exec, -1')
    for n in range(5):
        A(f'v_add_u32 v90, {64*n}, v2\nv_mul_u32_u24 v92, 3277, v90\nv_lshrrev_b32 v92, 16, v92\nv_mul_u32_u24 v92, 960, v92\nv_lshl_add_u32 v{148+n}, v90, 4, v92')
    A(f'''s_min_u32 s23, s23, 95
    s_mul_i32 s3, s23, 20480
    s_mul_i32 s7, s4, 320
    s_add_u32 s3, s3, s7
    s_add_u32 s48, s32, s3
    s_addc_u32 s49, s33, 0
    s_movk_i32 s50, {15*1280 + 320}
    s_mul_i32 s13, s4, 5120
    s_add_u32 s13, s13, {L_DN}
    s_lshl2_add_u32 s3, s23, s4
    s_mul_i32 s12, s3, 640
    s_add_u32 s12, s12, {R_DN}
    v_lshl_add_u32 v153, v2, 7, s12
    v_and_b32 v132, 1, v4
    v_lshl_add_u32 v132, v132, 3, v6
    v_mul_u32_u24 v132, 320, v132
    v_lshrrev_b32 v90, 1, v4
    v_lshl_add_u32 v90, v90, 5, v7
    v_add3_u32 v132, v132, v90, s13
    v_and_b32 v165, 16, v2
    v_lshl_add_u32 v165, v165, 3, v1
    v_lshrrev_b32 v90, 5, v2
    v_mul_u32_u24 v90, 384, v90
    v_add_u32 v165, v165, v90
    v_cmp_eq_u32 vcc, 8, v2
    v_mov_b32 v90, 256
    v_cndmask_b32 v165, v165, v90, vcc
    s_mul_i32 s3, s23, 2560
    s_add_u32 s3, s3, {R_GU}
    v_add_u32 v165, s3, v165
    v_lshlrev_b32 v166, 6, v5
    v_lshl_add_u32 v166, v4, 4, v166
    v_add_u32 v166, s12, v166
    v_lshrrev_b32 v90, 1, v4
    v_and_b32 v92, 1, v2
    v_cmp_eq_u32 s[62:63], v90, v92
    v_lshrrev_b32 v90, 1, v5''')
    for m in range(5):
        A(f'v_cmp_eq_u32 vcc, {m}, v90\ns_and_b64 vcc, vcc, s[62:63]\nv_cndmask_b32 v{160+m}, 0, -1, vcc')
    if TLB in (1, 2):
        A('s_cmp_eq_u32 s4, 2\ns_cbranch_scc0 L_nowarm')
        if TLB == 1: lds_wait_ge(L_CSTAT, 1, 'v0', 'v90', sleep=2)
        A(f's_lshl_b32 s3, s59, 9\ns_add_u32 s3, s3, {R_O}\nv_lshl_add_u32 v90, v2, 7, s3\ns_mov_b64 exec, 15\nglobal_load_dword v167, v90, s[42:43] sc1')
        set_exec(1, 1)
        if PW >= 1: A('global_load_dword v167, v88, s[42:43] sc1')
        if PW >= 2: A('v_add_u32 v90, 40960, v88\nglobal_load_dword v167, v90, s[42:43] sc1')
        A('s_mov_b64 exec, -1\nL_nowarm:')
    if WDEF:
        A(f's_mul_i32 s7, s4, 12288\ns_add_u32 s7, s7, {L_W + 4096*SE}\ns_mul_i32 s56, s4, 122880\ns_add_u32 s56, s56, {40960*SE}')
    ffn_prefetch()
    if ADM:
        A('s_cmp_eq_u32 s57, 2\ns_cbranch_scc0 L_noad')
        if ADM < 9: lds_wait_ge(L_CSTAT, ADM, 'v0', 'v90', sleep=1)
        elif ADM == 9: lds_wait_ge(L_CO, 9, 'v0', 'v90', sleep=1)
        act_dma()
        A('L_noad:')
    if TCH:
        A('s_cmp_eq_u32 s57, 2\ns_cbranch_scc0 L_notch')
        if TCH < 9: lds_wait_ge(L_CSTAT, TCH, 'v0', 'v90', sleep=1)
        act_touch()
        A('L_notch:')
    for c in range(1, PREP): A(f's_mov_b32 s{15+c}, {c*40960}')
    if CS and not WDEF: lds_wait_ge(L_CSTAT, CS, 'v0', 'v90', sleep=1)
    elif WP:
        if LS: lds_wait_ge(L_CSTAT, 1, 'v0', 'v90', sleep=LS)
        lds_wait_ge(L_CSTAT, WPC, 'v0', 'v90', sleep=1)
    if WDEF:
        for k in range(4*WDEF):
            if k == WP: lds_wait_ge(L_CO, 9, 'v0', 'v90', sleep=WSL)
            A('s_mov_b32 m0, s7\ns_add_u32 s7, s7, 1024\nbuffer_load_dwordx4 v72, s[44:47], s56 offen nt lds\nv_xor_b32 v72, 64, v72\ns_add_u32 s56, s56, 10240')
        OX = 120
        for s in range(SE, 2):
            A(f's_waitcnt vmcnt({4*(2-s)}) lgkmcnt(0)')
            trread(s)
        if OEARLY < 4: A(f's_waitcnt vmcnt({OEARLY})')
        for s in range(2): A(f'global_load_dwordx4 {vr(OX+4*s,4)}, v85, s[42:43] offset:{128*s} sc1')
        A(f's_waitcnt vmcnt(2) lgkmcnt(0)')
        trread(2)
        stamp(8)
        stamp(9)
        A('s_waitcnt lgkmcnt(0)\ns_branch L_wochk')
    else: stamp(9)
    OX = 120
    if WDEF: pass
    elif G1:
        L = lab('sw'); D = lab('swd')
        A(f'{L}:\ns_load_dwordx16 s[16:31], s[52:53], 0 glc\ns_load_dwordx4 s[32:35], s[52:53], 64 glc\ns_load_dwordx4 s[44:47], s[52:53], 80 glc\ns_load_dwordx8 s[60:67], s[52:53], 96 glc\ns_waitcnt lgkmcnt(0)')
        A('s_add_u32 s3, s18, s22\ns_add_u32 s7, s26, s30\ns_add_u32 s3, s3, s34\ns_add_u32 s7, s7, s46\ns_add_u32 s3, s3, s62\ns_add_u32 s7, s7, s66\ns_add_u32 s3, s3, s7\ns_lshl_b32 s7, s14, 3')
        A(f's_cmp_eq_u32 s3, s7\ns_cbranch_scc1 {D}')
        spin_tail(L, 0)
        A(f'{D}:')
    else:
        L = lab('wg'); D = lab('wgd')
        set_exec(0x01010101, 0x01010101)
        A(f'{L}:\nglobal_load_dwordx4 v[108:111], v91, s[42:43] sc1\ns_waitcnt vmcnt(0)\nv_cmp_ne_u64 vcc, s[14:15], v[110:111]\ns_bcnt1_i32_b64 s3, vcc\ns_cmp_le_u32 s3, {GATE}\ns_cbranch_scc1 {D}')
        spin_tail(L, GSL)
        A(f'{D}:')
    stamp(3)
    if stamps == 1: A('s_mov_b32 s82, s58')
    L = lab('wo'); L2 = lab('wp'); D = lab('woq')
    if not WDEF: A(f'{L}:\ns_mov_b64 exec, -1')
    A(f'{L2}:')
    assert WDEF
    for s in range(2): A(f'global_load_dwordx4 {vr(OX+4*s,4)}, v85, s[42:43] offset:{128*s} sc1')
    A(f'''L_wochk:
    s_waitcnt vmcnt(1)
    v_perm_b32 v136, v{OX+3}, v{OX+1}, v118
    ds_write2_b32 v119, v{OX}, v{OX+2} offset0:0 offset1:1
    ds_write_b8_d16_hi v134, v{OX+3} offset:1538
    ds_write_b32 v119, v136 offset:8
    v_bitop3_b32 v92, v{OX+3}, v91, v128 bitop3:0x28
    v_xor_b32 v93, s26, v{OX+1}
    s_waitcnt vmcnt(0)
    v_perm_b32 v137, v{OX+7}, v{OX+5}, v118
    ds_write2_b32 v119, v{OX+4}, v{OX+6} offset0:24 offset1:25
    ds_write_b32 v119, v137 offset:104
    s_mov_b64 s[8:9], exec
    s_mov_b64 exec, -1
    ds_read_b64 v[142:143], v135 offset:1536''')
    for s in range(3): A(f'ds_read_b128 {vr(AA+4*s,4)}, v133 offset:{64*s}')
    A(f'''s_mov_b64 exec, s[8:9]
    v_bitop3_b32 v94, v{OX+5}, v{OX+7}, s26 bitop3:0x7e
    v_bitop3_b32 v93, v93, v94, v98 bitop3:0xa8
    v_or_b32 v90, v92, v93
    v_cmp_ne_u32 vcc, 0, v90
    s_and_b64 exec, vcc, vcc
    s_cbranch_scc0 {D}''')
    spin_tail(L2, OSL)
    A(f'{D}:\ns_mov_b64 exec, -1\ns_waitcnt lgkmcnt(0)\nv_and_b32 v142, v98, v142')
    stamp(2)
    if stamps == 1: A('s_sub_u32 s82, s82, s58')
    fac = [f'v_max_f32 v116, v142, v142 quad_perm:[1,0,3,2] {DPPF}',
           f'v_max_f32 v116, v116, v116 quad_perm:[2,3,0,1] {DPPF}',
           f'v_max_f32 v116, v116, v116 row_half_mirror {DPPF}\nv_sub_f32 v116, v142, v116',
           f'v_mul_f32 v116, {H(LOG2E)}, v116\nv_exp_f32 v116, v116',
           f'v_mul_f32 v117, v116, v143',
           f'v_add_f32 v117, v117, v117 quad_perm:[1,0,3,2] {DPPF}',
           f'v_add_f32 v117, v117, v117 quad_perm:[2,3,0,1] {DPPF}',
           f'v_add_f32 v117, v117, v117 row_half_mirror {DPPF}\nv_rcp_f32 v117, v117',
           f'v_mul_f32 v116, v116, v117',
           '\n'.join(f'v_mov_b32 v{112+r}, v116 row_newbcast:{r} row_mask:0x5 bank_mask:0xf' for r in range(2)),
           '\n'.join(f'v_mov_b32 v{112+r}, v116 row_newbcast:{r} row_mask:0x5 bank_mask:0xf' for r in range(2, 4)),
           '\n'.join(f'v_mov_b32 v{112+r}, v116 row_newbcast:{4+r} row_mask:0xa bank_mask:0xf' for r in range(4))]
    k = 0
    for s in range(3):
        for ct in range(4):
            c = '0' if s == 0 else vr(DD+4*ct, 4)
            A(f'v_mfma_f32_16x16x32_bf16 {vr(DD+4*ct,4)}, {vr(AA+4*s,4)}, {vr(B0+(s*4+ct)*4,4)}, {c}')
            A(fac[k]); k += 1
    stamp(10)
    A('s_mov_b32 exec_lo, 0')
    for ct in (0, 2):
        A(f'v_pk_mul_f32 {vr(144+ct,2)}, {vr(DD+4*ct+4,2)}, v[112:113]\nv_pk_fma_f32 {vr(144+ct,2)}, {vr(DD+4*ct+6,2)}, v[114:115], {vr(144+ct,2)}')
    A('s_not_b64 exec, exec')
    for ct in (0, 2):
        A(f'v_pk_mul_f32 {vr(144+ct,2)}, {vr(DD+4*ct,2)}, v[112:113]\nv_pk_fma_f32 {vr(144+ct,2)}, {vr(DD+4*ct+2,2)}, v[114:115], {vr(144+ct,2)}')
    A(f's_mov_b64 exec, -1\nv_add_f32 v{DD}, v144, v145\nv_add_f32 v{DD+8}, v146, v147')
    A(f'ds_write_b32 v86, v{DD} offset:{L_PACC}\nds_write_b32 v86, v{DD+8} offset:{L_PACC + 1024}')
    A(f's_mov_b64 exec, 1\nds_add_rtn_u32 v90, v0, v89 offset:{L_CWO}\ns_mov_b64 exec, -1\nds_read_b128 v[92:95], v87 offset:{L_PACC}\nds_read_b128 v[96:99], v87 offset:{L_PACC+16}')
    A('s_waitcnt lgkmcnt(0)\nv_readfirstlane_b32 s3, v90')
    A('v_pk_add_f32 v[92:93], v[92:93], v[94:95]\nv_pk_add_f32 v[96:97], v[96:97], v[98:99]\nv_pk_add_f32 v[92:93], v[92:93], v[96:97]\nv_add_f32 v92, v92, v93\nv_bfi_b32 v92, 63, s14, v92')
    A('s_cmp_eq_u32 s3, 3\ns_cbranch_scc0 L_wonost\nglobal_store_dword v88, v92, s[42:43] sc1')
    for c in range(1, PREP): A(f'buffer_store_dword v92, v88, s[40:43], s{15+c} offen sc1')
    A('L_wonost:')
    stamp(11)
    A('s_cmp_eq_u32 s57, 2\ns_cbranch_scc1 L_act\ns_cmp_eq_u32 s57, 0\ns_cbranch_scc1 L_fin')
    L = lab('fx'); D = lab('fxd')
    A(f'{L}:\nglobal_load_dword v20, v101, s[42:43] sc1\ns_waitcnt vmcnt(0)\nv_xor_b32 v21, s14, v20\nv_lshlrev_b32 v21, 16, v21\nv_cmp_ne_u32 vcc, 0, v21\ns_cbranch_vccz {D}')
    spin_tail(L, 1)
    A(f'{D}:')
    def pend_poll(loads, regs, init, tmp, pre_sleep=0):
        n = len(loads)
        M = [f's[{62+2*k}:{63+2*k}]' for k in range(n)]
        for k in range(n): A(f's_mov_b64 {M[k]}, {init}')
        if FREE:
            for k in range(n): A(f'v_not_b32 v{regs[k]}, s14')
        L = lab('pl'); D = lab('pld')
        A(f'{L}:')
        for k in range(n): A(f's_mov_b64 exec, {M[k]}\n{loads[k]}')
        A(f's_mov_b64 exec, {init}')
        for k in range(n):
            r = regs[k]
            if not FREE: A(f's_waitcnt vmcnt({n-1-k})')
            elif k == 0: A(f's_waitcnt vmcnt({CAP*n})' + (f'\ns_sleep {FS}' if FS else ''))
            A(f'v_bitop3_b32 v{tmp}, v{r}, v{r+1}, s14 bitop3:0x7e\nv_bitop3_b32 v{tmp+1}, v{r+2}, v{r+3}, s14 bitop3:0x7e\nv_bitop3_b32 v{tmp}, v{tmp}, v{tmp+1}, 15 bitop3:0xa8\nv_cmp_ne_u32 {M[k]}, 0, v{tmp}')
        A(f's_or_b64 s[8:9], {M[0]}, {M[1]}')
        for k in range(2, n): A(f's_or_b64 s[8:9], s[8:9], {M[k]}')
        A(f's_cbranch_scc0 {D}')
        spin_tail(L, 0)
        A(f'{D}:')
    if G4: sgate('s[54:55]', [2560*((k*96)//G4 + (k*5) % (96//G4)) for k in range(G4)], list(range(16, 32)), 15)
    elif FG:
        L = lab('fg'); D = lab('fgd')
        set_exec(FG & 0xffffffff, FG >> 32)
        A(f'{L}:\nglobal_load_dwordx4 v[8:11], v104, s[42:43] sc1\ns_waitcnt vmcnt(0)\nv_bitop3_b32 v90, v8, v9, s14 bitop3:0x7e\nv_bitop3_b32 v91, v10, v11, s14 bitop3:0x7e\nv_bitop3_b32 v90, v90, v91, 63 bitop3:0xa8\nv_cmp_eq_u32 vcc, 0, v90\ns_cbranch_vccnz {D}')
        A(f's_sub_u32 s58, s58, 1\ns_cbranch_scc0 {L}\ns_branch L_fin\n{D}:\ns_mov_b64 exec, -1')
    elif FSL: A(f's_sleep {FSL}')
    L = lab('fi'); D = lab('fid')
    A(f'{L}:')
    for k in range(3): A(f'global_load_dwordx4 {vr(8+4*k,4)}, v{103+k}, s[42:43] sc1')
    A('s_waitcnt vmcnt(1)')
    untag(8, 8)
    A('v_pk_add_f32 v[22:23], v[8:9], v[12:13]\nv_pk_add_f32 v[24:25], v[10:11], v[14:15]\nv_or3_b32 v90, v8, v9, v10\nv_or3_b32 v91, v11, v12, v13\ns_waitcnt vmcnt(0)')
    untag(16, 4)
    A(f'''v_pk_add_f32 v[22:23], v[22:23], v[16:17]
    v_pk_add_f32 v[24:25], v[24:25], v[18:19]
    v_or3_b32 v90, v90, v14, v15
    v_or3_b32 v91, v91, v16, v17
    v_permlane32_swap_b32 v22, v24
    v_permlane32_swap_b32 v23, v25
    v_pk_add_f32 v[22:23], v[22:23], v[24:25]
    v_or3_b32 v90, v90, v18, v19
    v_bitop3_b32 v90, v90, v91, 63 bitop3:0xa8
    v_permlane16_swap_b32 v22, v23
    v_add_f32 v26, v22, v23
    v_cmp_ne_u32 vcc, 0, v90
    s_cbranch_vccz {D}''')
    spin_tail(L, 0)
    A(f'{D}:')
    A(f'v_add_f32 v26, v26, v26 row_ror:2 {DPPF}')
    stamp(12)
    A(f'v_add_f32 v26, v26, v26 row_ror:4 {DPPF}\nv_and_b32 v20, 0xffff0000, v20\nv_add_f32 v26, v26, v26 row_ror:8 {DPPF}')
    A('v_cvt_pk_bf16_f32 v26, v26, v26\nv_and_b32 v26, 0xffff0000, v26\nv_mul_f32 v26, v26, v106\nv_cvt_pk_bf16_f32 v26, v26, v26\nv_and_b32 v26, 0xffff0000, v26')
    A('v_add_f32 v26, v26, v20\nv_cvt_pk_bf16_f32 v26, v26, v26')
    set_exec(0x00030003, 0x00030003)
    A(f'global_store_short v100, v26, s[38:39] {OF}')
    stamp(13)
    A('s_branch L_fin' if stamps else 's_endpgm')

    A('L_tailB:')
    A(f's_setprio {CP}')
    lds_wait_ge(L_CQ, 5, 'v0', 'v90', sleep=8)
    calc_t('s12')
    G0 = 8; U0 = 28; WD = 48
    P0 = 100; HA = 100
    A(f'''s_and_b32 s57, s12, 3
    s_mul_i32 s13, s57, 160
    s_mul_i32 s3, s4, 40
    v_lshl_add_u32 v80, v5, 2, s3
    v_add_u32 v81, v80, v4
    v_lshlrev_b32 v85, 1, v81
    v_add_u32 v81, s13, v81
    v_lshlrev_b32 v82, 1, v81
    v_lshlrev_b32 v86, 2, v81
    v_add_u32 v80, s13, v80
    s_add_u32 s44, s42, {R_MOD + 5120}
    s_addc_u32 s45, s43, 0
    s_mov_b32 s46, {2*15360}
    s_movk_i32 s20, 5120
    s_movk_i32 s21, 15360
    s_movk_i32 s22, {15360 + 5120}
    v_mul_u32_u24 v84, 2560, v4
    v_lshl_add_u32 v84, v80, 2, v84
    {'s_lshr_b32 s3, s6, 1' if PCM else 's_and_b32 s3, s6, %d' % (PREP-1)}
    s_mul_i32 s3, s3, 40960
    s_add_u32 s3, s3, {R_P}
    s_add_u32 s48, s42, s3
    s_addc_u32 s49, s43, 0
    s_mov_b32 s50, {16*2560}''')
    set_exec(0x03ff03ff, 0x03ff03ff)
    A('global_load_ushort v71, v82, s[16:17]')
    A('s_andn2_b32 s3, s12, 3\ns_add_u32 s3, s3, s4\ns_lshl_b32 s3, s3, 2\nv_mov_b32 v112, s3')
    L = lab('mf')
    A(f'{L}:')
    A(f'global_load_dword v108, v112, s[42:43] offset:{R_XC} sc1')
    for k, (so, off) in enumerate((('0', 0), ('s21', 0), ('0', 2560), ('s21', 2560), ('s20', 0), ('s22', 0))):
        A(f'buffer_load_dword v{100+k}, v86, s[44:47], {so} offen offset:{off} sc1')
    A('s_waitcnt vmcnt(0)')
    untag(100, 6)
    ortree([v(100+i) for i in range(6)], 'v90')
    A('''v_xor_b32 v113, s14, v108
    v_and_b32 v113, -16, v113
    v_min_u32 v113, 1, v113
    v_or_b32 v90, v90, v113''')
    tag_end('v90', L, 16)
    A('v_readfirstlane_b32 s16, v108\ns_getreg_b32 s3, hwreg(HW_REG_XCC_ID, 0, 4)\ns_xor_b32 s16, s16, s3\ns_and_b32 s16, s16, 15')
    for k in range(3): A(f'v_add_f32 v{68+k}, v{100+2*k}, v{101+2*k}')
    round_list(['v68', 'v69', 'v70'], ['v90', 'v91'])
    A('v_lshlrev_b32 v71, 16, v71\nv_add_f32 v70, 1.0, v70')
    round_list(['v70'], ['v90'])
    A(f'''v_mov_b32 v90, 1.0
    ds_write_b16_d16_hi v85, v70 offset:{L_A}
    ds_write_b16_d16_hi v85, v69 offset:{L_A + LAP}
    ds_write_b16_d16_hi v85, v90 offset:{L_A + 5*LAP}
    s_mov_b64 exec, -1
    v_add_u32 v86, {R_X1}, v86''')
    A(f'''v_mul_u32_u24 v72, 3072, v3
    v_and_b32 v73, 16, v2
    v_lshlrev_b32 v73, {1 if SWZ else 8}, v73
    v_and_b32 v73, 32, v73
    s_and_b32 s3, s4, {1 if SWZ else 0}
    s_lshl_b32 s3, s3, 6
    v_or_b32 v73, s3, v73
    v_xor_b32 v73, v73, v1
    v_add_u32 v72, v72, v73
    s_lshr_b32 s3, s12, 2
    s_lshl_b32 s3, s3, 7
    s_lshl_b32 s7, s57, 2
    s_add_u32 s7, s7, s4
    s_mul_i32 s7, s7, {40*3072}
    s_add_u32 s3, s3, s7
    s_add_u32 s44, s28, s3
    s_addc_u32 s45, s29, 0
    s_mov_b32 s46, {40*3072}
    s_add_u32 s52, s30, s3
    s_addc_u32 s53, s31, 0
    s_mov_b32 s54, {40*3072}
    s_mov_b32 s55, 0x20000
    s_mul_i32 s11, s4, 5120
    s_add_u32 s7, s11, {L_W}''')
    A(f'''v_lshl_add_u32 v87, v4, 3, v6
    v_lshl_add_u32 v87, v87, 7, v7
    v_and_b32 v88, 1, v4
    v_lshrrev_b32 v89, 1, v6
    v_lshl_or_b32 v89, v88, 1, v89
    v_and_b32 v89, {3 if SWZ else 0}, v89
    v_xor_b32 v89, s4, v89
    v_lshl_add_u32 v87, v89, 5, v87
    v_mov_b32 v79, 1''')
    if TLB in (1, 2):
        if TLB == 1: lds_wait_ge(L_CSTAT, 1, 'v0', 'v90', sleep=2)
        A(f's_cmp_eq_u32 s4, 2\ns_cbranch_scc0 L_nowarmB\ns_lshl_b32 s3, s59, 9\ns_add_u32 s3, s3, {R_O}\nv_lshl_add_u32 v90, v2, 7, s3\ns_mov_b64 exec, 15\nglobal_load_dword v167, v90, s[42:43] sc1\ns_mov_b64 exec, -1\nL_nowarmB:')
    A(f'''v_min_u32 v76, 5, v5
    v_mul_u32_u24 v76, {LAP}, v76
    v_lshl_add_u32 v76, v4, 4, v76
    s_andn2_b32 s3, s12, 3
    s_add_u32 s3, s3, s4
    s_lshl_b32 s3, s3, 2
    s_add_u32 s3, s3, s57
    s_mul_i32 s3, s3, 640
    s_add_u32 s3, s3, {R_GU}
    v_min_u32 v77, 16, v2
    v_lshl_add_u32 v77, v77, 4, s3
    s_movk_i32 s20, 10240
    s_movk_i32 s21, 20480
    s_movk_i32 s22, 30720
    v_cmp_eq_u32 s[34:35], 20, v2
    s_mov_b32 s18, 0x03ff03ff
    s_mov_b32 s19, 0x03ff03ff
    s_and_b32 s17, s14, 0xffff''')
    tailtags()
    A('s_mov_b32 s56, 0')
    if LS: lds_wait_ge(L_CSTAT, 1, 'v0', 'v90', sleep=LS)
    if BP: lds_wait_ge(L_CSTAT, BPC, 'v0', 'v90', sleep=1)
    for n in range(5):
        if n == BP:
            lds_wait_ge(L_CO, 9, 'v0', 'v90', sleep=1)
            stamp(6)
            if BDL: A(f's_sleep {BDL}')
            if BG:
                L = lab('bg'); D = lab('bgd'); W = lab('bgw')
                A(f's_cmp_eq_u32 s4, 0\ns_cbranch_scc0 {W}\ns_mul_i32 s8, s5, {TKS}\ns_add_u32 s8, s8, {R_TK2 + 4}')
                A(f'{L}:\ns_load_dword s3, s[42:43], s8 glc\ns_waitcnt lgkmcnt(0)\ns_cmp_ge_u32 s3, {BG}\ns_cbranch_scc1 {D}')
                spin_tail(L, 1)
                A(f'{D}:\nds_write_b32 v0, v79 offset:{L_TRIG}\n{W}:')
                lds_wait_ge(L_TRIG, 1, 'v0', 'v90', sleep=0)
        A(f'''s_mov_b32 m0, s7
        s_add_u32 s3, s7, 20480
        buffer_load_dwordx4 v72, s[44:47], s56 offen nt lds
        s_mov_b32 m0, s3
        s_add_u32 s7, s7, 1024
        buffer_load_dwordx4 v72, s[52:55], s56 offen nt lds''')
        if n < 4: A(f'v_xor_b32 v72, {64 if SWZ else 0}, v72\ns_add_u32 s56, s56, {8*3072}')
    def p_loads():
        for i in range(4): A(f'buffer_load_dwordx4 {vr(P0+4*i,4)}, v84, s[48:51], {["0","s20","s21","s22"][i]} offen sc1')
    A(f's_waitcnt vmcnt({PE})\ns_mov_b64 exec, s[18:19]')
    p_loads()
    A(f's_waitcnt vmcnt(4)\ns_mov_b64 exec, 1\nds_add_u32 v0, v79 offset:{L_WRDY}\ns_mov_b64 exec, -1')
    stamp(7)
    lds_wait_ge(L_WRDY, 4, 'v0', 'v90', sleep=0)
    for s in range(5):
        for hf in range(2):
            A(f'ds_read_b64_tr_b16 {vr(G0+4*s+2*hf,2)}, v87 offset:{L_W + (32*s+4*hf)*128}')
            A(f'ds_read_b64_tr_b16 {vr(U0+4*s+2*hf,2)}, v87 offset:{L_W + 20480 + (32*s+4*hf)*128}')
    stamp(8)
    stamp(9)
    A('s_mov_b64 exec, s[18:19]\ns_branch L_pchk')
    L = lab('pp'); D = lab('ppd')
    A(f'{L}:')
    p_loads()
    A('L_pchk:')
    A('s_waitcnt vmcnt(2)')
    untag(P0, 8)
    A(f'v_pk_add_f32 v[96:97], {vr(P0,2)}, {vr(P0+4,2)}\nv_pk_add_f32 v[98:99], {vr(P0+2,2)}, {vr(P0+6,2)}\nv_or3_b32 v90, v100, v101, v102\nv_or3_b32 v91, v103, v104, v105\nv_or3_b32 v90, v90, v106, v107')
    A('s_waitcnt vmcnt(1)')
    untag(P0+8, 4)
    A(f'v_pk_add_f32 v[96:97], v[96:97], {vr(P0+8,2)}\nv_pk_add_f32 v[98:99], v[98:99], {vr(P0+10,2)}\nv_or3_b32 v91, v91, v108, v109\nv_or3_b32 v90, v90, v110, v111')
    A('s_waitcnt vmcnt(0)')
    untag(P0+12, 4)
    A(f'''v_pk_add_f32 v[96:97], v[96:97], {vr(P0+12,2)}
    v_pk_add_f32 v[98:99], v[98:99], {vr(P0+14,2)}
    v_or3_b32 v91, v91, v112, v113
    v_or3_b32 v90, v90, v114, v115
    v_permlane32_swap_b32 v96, v98
    v_permlane32_swap_b32 v97, v99
    v_pk_add_f32 v[96:97], v[96:97], v[98:99]
    v_bitop3_b32 v90, v90, v91, 63 bitop3:0xa8
    v_cmp_ne_u32 vcc, 0, v90
    v_permlane16_swap_b32 v96, v97
    v_add_f32 v96, v96, v97
    v_cvt_pk_bf16_f32 v96, v96, v96
    s_cbranch_vccz {D}''')
    spin_tail(L, PSL)
    A(f'{D}:')
    stamp(10)
    A('''v_and_b32 v96, 0xffff0000, v96
    v_mul_f32 v96, v96, v68
    v_cvt_pk_bf16_f32 v96, v96, v96
    v_and_b32 v96, 0xffff0000, v96
    v_add_f32 v96, v96, v71
    v_cvt_pk_bf16_f32 v96, v96, v96
    v_and_b32 v96, 0xffff0000, v96
    v_mul_f32 v97, v96, v70''')
    A(f'ds_write_b16_d16_hi v85, v96 offset:{L_A + 4*LAP}\nv_and_b32 v98, 0xffff0000, v97\nds_write_b16_d16_hi v85, v97 offset:{L_A + 2*LAP}\nv_sub_f32 v98, v97, v98\nds_write_b16_d16_hi v85, v98 offset:{L_A + 3*LAP}')
    A(f's_mov_b64 exec, 1\nds_add_u32 v0, v79 offset:{L_CA}\ns_mov_b64 exec, -1')
    L = lab('h2'); D = lab('h2d')
    A(f'{L}:\nds_read_b32 v90, v0 offset:{L_CA}')
    for s in range(5): A(f'ds_read_b128 {vr(HA+4*s,4)}, v76 offset:{L_A + 64*s}')
    A(f'L_h2w:\ns_waitcnt lgkmcnt(0)\nv_cmp_gt_u32 vcc, 4, v90\ns_cbranch_vccz {D}')
    spin_tail(L, 0)
    A(f'{D}:')
    for s in range(5):
        A(f'v_mfma_f32_16x16x32_bf16 v[128:131], {vr(HA+4*s,4)}, {vr(HA+4*s,4)}, {"0" if s==0 else "v[128:131]"}')
        A(f'v_mfma_f32_16x16x32_bf16 v[120:123], {vr(HA+4*s,4)}, {vr(G0+4*s,4)}, {"0" if s==0 else "v[120:123]"}')
    for s in range(5):
        A(f'v_mfma_f32_16x16x32_bf16 v[124:127], {vr(HA+4*s,4)}, {vr(U0+4*s,4)}, {"0" if s==0 else "v[124:127]"}')
    A('''v_or_b32 v96, s17, v96
    s_cmp_eq_u32 s16, 0
    s_mov_b64 exec, 0x10ffff
    v_add_f32 v122, v122, v123
    v_mov_b32 v123, s14
    v_cndmask_b32 v120, v120, v128, s[34:35]
    v_cndmask_b32 v121, v121, v129, s[34:35]
    s_cbranch_scc0 L_guslow
    global_store_dwordx4 v77, v[120:123], s[42:43]
    v_add_f32 v126, v126, v127
    v_mov_b32 v127, s14
    s_mov_b64 exec, 0xffff
    global_store_dwordx4 v77, v[124:127], s[42:43] offset:384
    L_gust:''')
    stamp(11)
    A(f'''s_lshl2_add_u32 s3, s12, s4
    s_cmp_eq_u32 s3, 32
    s_cbranch_scc0 L_noep
    s_mov_b64 exec, 1
    v_mov_b32 v90, s14
    v_mov_b32 v91, s15
    global_store_dwordx2 v0, v[90:91], s[42:43] offset:{R_E} sc1
    L_noep:''')
    A('''s_cmp_lt_u32 s12, 4
    s_cbranch_scc0 L_fin
    s_mov_b64 exec, s[18:19]
    global_store_dword v86, v96, s[42:43] sc1
    s_branch L_fin
    L_guslow:
    global_store_dwordx4 v77, v[120:123], s[42:43] sc1
    v_add_f32 v126, v126, v127
    v_mov_b32 v127, s14
    s_mov_b64 exec, 0xffff
    global_store_dwordx4 v77, v[124:127], s[42:43] offset:384 sc1
    s_branch L_gust''')

    A('L_act:')
    if ADM == 0:
        lds_wait_ge(L_CWO, 4, 'v0', 'v90', sleep=0)
        act_dma()
    def gu_loads():
        for k in range(4): A(f'global_load_dwordx4 {vr(100+4*k,4)}, v165, s[42:43] offset:{640*k} sc1')
    A(f's_mov_b32 s38, 0xff01ff\ns_mov_b32 s39, 0xff00ff\ns_lshl_b32 s11, s14, 2\nv_mov_b32 v93, {H(1/640)}')
    A('s_mov_b64 exec, s[38:39]')
    gu_loads()
    A('s_mov_b64 exec, -1')
    if ADM == 0: A('s_waitcnt vmcnt(4)')
    for s in range(5):
        for hf in range(2):
            A(f'ds_read_b64_tr_b16 {vr(WD+4*s+2*hf,2)}, v132 offset:{4*hf*320 + 64*s}')
    stamp(7)
    A('s_mov_b64 exec, s[38:39]\ns_branch L_guw')
    L = lab('gu'); D = lab('gud')
    A(f'{L}:')
    gu_loads()
    A(f'''L_guw:
    s_waitcnt vmcnt(0)
    v_pk_add_f32 v[140:141], v[100:101], v[104:105]
    v_pk_add_f32 v[142:143], v[108:109], v[112:113]
    v_add3_u32 v90, v103, v107, v111
    v_pk_add_f32 v[140:141], v[140:141], v[142:143]
    v_add_u32 v90, v90, v115
    v_readlane_b32 s8, v140, 8
    v_readlane_b32 s9, v141, 8
    v_cmp_ne_u32 vcc, s11, v90
    s_cbranch_vccz {D}''')
    spin_tail(L, GUS)
    A(f'{D}:')
    stamp(13)
    K0 = -2.0 * LOG2E * 0.7978845608028654
    A(f'''v_mul_f32 v94, s9, v93
    v_mul_f32 v95, s8, v93
    v_add_f32 v148, v102, v106
    v_fma_f32 v95, -v94, v94, v95
    v_add_f32 v149, v110, v114
    v_max_f32 v95, 0, v95
    v_cvt_pk_bf16_f32 v90, v94, v95
    v_add_f32 v148, v148, v149
    v_and_b32 v95, 0xffff0000, v90
    v_lshlrev_b32 v94, 16, v90
    v_add_f32 v95, {H(1e-5)}, v95
    v_cvt_pk_bf16_f32 v95, v95, v95
    v_fma_f32 v148, -v94, v140, v148
    v_and_b32 v95, 0xffff0000, v95
    v_sqrt_f32 v95, v95
    v_cvt_pk_bf16_f32 v95, v95, v95
    v_and_b32 v95, 0xffff0000, v95
    v_rcp_f32 v95, v95
    s_mov_b64 exec, -1
    v_fma_f32 v152, v148, v95, v141
    v_cvt_pk_bf16_f32 v152, v152, v152
    v_and_b32 v154, 0xffff0000, v152
    v_and_b32 v152, 0xffff0000, v152
    v_mov_b32 v155, {H(K0)}
    v_permlane32_swap_b32 v152, v154
    v_mul_f32 v153, v152, v152
    v_fmac_f32 v155, {H(K0*0.044715)}, v153
    v_mul_f32 v155, v155, v152
    v_exp_f32 v155, v155
    v_add_f32 v155, 1.0, v155
    v_rcp_f32 v155, v155
    v_mul_f32 v152, v152, v155
    v_cvt_pk_bf16_f32 v152, v152, v152
    v_and_b32 v152, 0xffff0000, v152
    v_mul_f32 v152, v152, v154
    s_waitcnt lgkmcnt(0)''')
    A(f'v_mov_b32 v153, v152 quad_perm:[1,0,3,2] {DPPF}\nv_cvt_pk_bf16_f32 v152, v152, v153')
    for m in range(5):
        F = 8 + 4*m
        for d in range(4): A(f'v_and_b32 v{F+d}, v152, v{160+m} row_newbcast:{2*d} {DPPF}')
        if m >= 1: A(f'v_mfma_f32_16x16x32_bf16 v[156:159], {vr(WD+4*(m-1),4)}, {vr(F-4,4)}, {"0" if m==1 else "v[156:159]"}')
    A(f'v_mfma_f32_16x16x32_bf16 v[156:159], {vr(WD+16,4)}, v[24:27], v[156:159]')
    set_exec(0x03ff03ff, 0x03ff03ff)
    for i in range(4): A(f'v_bfi_b32 v{156+i}, 63, s14, v{156+i}')
    A('global_store_dwordx4 v166, v[156:159], s[42:43] sc1')
    stamp(12)
    if CLN:
        A('s_mov_b64 exec, s[38:39]')
        for k in range(4):
            Lk = lab('cl')
            A(f's_cmp_eq_u32 s4, {k}\ns_cbranch_scc0 {Lk}\nglobal_store_dwordx4 v165, {vr(100+4*k,4)}, s[42:43] offset:{640*k} sc1\n{Lk}:')

    A('L_fin:')
    if stamps == 3:
        A('s_cmp_lt_u32 s4, 4\ns_cbranch_scc0 L_end\ns_cmp_ge_u32 s2, 96\ns_cbranch_scc0 L_end\ns_cmp_eq_u32 s57, 1\ns_cbranch_scc0 L_end')
    if stamps:
        A('s_memrealtime s[98:99]\ns_waitcnt vmcnt(0) lgkmcnt(0)\ns_mov_b64 exec, 1')
        A(f's_mul_i32 s3, s2, 12\ns_add_u32 s3, s3, s4\ns_lshl_b32 s3, s3, 6\ns_add_u32 s3, s3, {R_STAMP}\nv_mov_b32 v0, s3')
        for i in range(15): A(f'v_mov_b32 v{8+i}, s{70+2*i}')
        A('v_mov_b32 v23, s58')
        for i in range(4): A(f'global_store_dwordx4 v0, {vr(8+4*i,4)}, s[42:43] offset:{16*i}')
    A('L_end:\ns_endpgm')
    inv = {'s_cbranch_vccz': 's_cbranch_vccnz', 's_cbranch_vccnz': 's_cbranch_vccz', 's_cbranch_scc0': 's_cbranch_scc1', 's_cbranch_scc1': 's_cbranch_scc0'}
    cold = []
    k = 0
    end_i = A.L.index('L_fin:')
    while k < len(A.L):
        p = A.L[k].split()
        if p[0] in inv and len(p) == 2:
            labl = p[1] + ':'
            if labl in A.L[k:k+24]:
                e = A.L.index(labl, k)
                body = A.L[k+1:e]
                if body and body[-1] == 's_branch L_fin' and 's_sub_u32 s58, s58, 1' in body and len(body) <= 5:
                    R = lab('rt')
                    cold += [R + ':'] + body
                    A.L[k:e] = [f'{inv[p[0]]} {R}']
        k += 1
    k = A.L.index('L_end:')
    assert A.L[k+1] == 's_endpgm'
    A.L[k+2:k+2] = cold
    A.L.append('L_last:')
    A.L = [l.replace('L_end-L_base-12', 'L_last-L_base-16') for l in A.L]
    import re as _re
    for k, l in enumerate(A.L):
        if l.startswith('s_load_dwordx4 s[40:43], s[0:1], 96'):
            A.L[k] = 's_load_dwordx2 s[40:41], s[0:1], 104'; continue
        m = _re.match(r'global_load_(\w+) (\S+), (v\d+), s\[(42:43|52:53)\](.*)', l)
        if m:
            A.L[k] = f'buffer_load_{m.group(1)} {m.group(2)}, {m.group(3)}, s[40:43], {"0" if m.group(4)=="42:43" else "s52"} offen{m.group(5)}'; continue
        m = _re.match(r'global_store_(\w+) (v\d+), (\S+), s\[(42:43|52:53)\](.*)', l)
        if m:
            A.L[k] = f'buffer_store_{m.group(1)} {m.group(3)}, {m.group(2)}, s[40:43], {"0" if m.group(4)=="42:43" else "s52"} offen{m.group(5)}'; continue
        A.L[k] = _re.sub(r'\bs43\b', 's41', _re.sub(r'\bs42\b', 's40', l.replace('s[42:43]', 's[40:41]')))
    k = A.L.index('s_mov_b32 s47, 0x20000')
    A.L[k:k] = ['s_mov_b32 s42, 0x200000', 's_mov_b32 s43, 0x20000']
    npad = A.pad()
    NOTES = {'L_base:': '; ---- entry: streaming waves issue their first K loads straight away', 'L_pro2:': '; ---- common set-up, role dispatch (waves 0-3 control, 4-11 stream K/V)', 'L_load10:': '; ---- 10 x (8 rows x 128 B) weight tile loads', 'L_strm:': '; ---- streaming waves: static K/V groups, q.K, online softmax, p.V by MFMA, then ticketed (K,V) units', 'L_newmax:': '; ---- running max rose: rescale accumulators', 'L_epi:': '; ---- workgroup combine of the 8 waves; last arriver publishes o, M, L as 8-byte units {3 x bf16, tag}', 'L_cN:': '; ---- idle control waves: pull the code into this L2', 'L_cA:': '; ---- class A control waves: silu(c) @ w_mod tile', 'L_cB:': '; ---- class B control waves: LayerNorm(x), h, one third of q = h @ wq', 'L_mm10:': '; ---- shared GEMV tail: MFMA with a diagonal operand, cross-wave combine, publish', 'L_hopB:': '; ---- fetch q of this head into LDS', 'L_tail:': '; ---- tail, class A: o @ wo partials (P); then activation+down or the final reduction', 'L_tailB:': '; ---- tail, class B: x1, gate/up partials with LayerNorm applied after the GEMV', 'L_act:': '; ---- LayerNorm statistics, GELU(gate)*up, down-projection partials', 'L_end:': '; ---- exit; retry tails of the polling loops follow'}
    L2_ = []
    for l in A.L:
        if l in NOTES: L2_.append(NOTES[l])
        L2_.append(l)
    A.L = L2_
    hdr = open('cdna_kernels/' + NAME + '.s.ref').read().split('; Override launch')[0]
    pre = ''
    if stamps:
        pre = ''
    txt = hdr + f'''; @launch grid=(256,1,1) block=(768,1,1) lds={LDS_BYTES}
; One persistent launch, one workgroup per CU. 8 waves stream K/V (nt loads), 4 control waves run the dependent
; GEMV chain. Workgroups hand data over through d_ws; every handed-over word carries bits of a per-launch tag that is
; derived from an epoch word found in d_ws on entry (and advanced on exit), and the tag bits are removed before use.
.amdgcn_target "amdgcn-amd-amdhsa--gfx950"
.text
.globl {NAME}_kernel
.p2align 8
.type {NAME}_kernel,@function
{NAME}_kernel:
''' + pre + A.text() + f'''.section .rodata,"a"
.p2align 6
.amdhsa_kernel {NAME}_kernel
  .amdhsa_next_free_vgpr 168
  .amdhsa_next_free_sgpr 102
  .amdhsa_accum_offset 168
  .amdhsa_group_segment_fixed_size 0
  .amdhsa_kernarg_size 112
  .amdhsa_user_sgpr_count 2
  .amdhsa_user_sgpr_kernarg_segment_ptr 1
  .amdhsa_system_sgpr_workgroup_id_x 1
.end_amdhsa_kernel
'''
    return txt, npad

if __name__ == '__main__':
    kw = {}
    outp = sys.argv[1]
    for a in sys.argv[2:]:
        k, val = a.split('=')
        kw[k] = int(val) if val.lstrip('-').isdigit() else val
    txt, npad = gen(**kw)
    open(outp, 'w').write(txt)
    print('nops inserted', npad)
```

```python
import sys, struct
from asmlib import Asm
NAME = 'adaLN_cond__sliding_block_cached__geglu_ffn__decode'
def f2u(x): return struct.unpack('<I', struct.pack('<f', x))[0]
def H(x): return '0x%08x' % f2u(x)
LOG2E = 1.4426950408889634

R_E = 0
R_XC = 512
R_TK = 1024
R_MOD = R_TK + 32*128
R_MA = R_MOD + 2*15360
R_Q = R_MA + 4*5120
R_O = R_Q + 32*768
R_P = R_O + 256*896
R_X1 = R_P + 8*16*2560
R_DN = R_X1 + 2560
R_GU = R_DN + 96*2560
GU2 = 0x180000 - R_GU
assert R_GU + 96*2560 <= 0x140000
R_STAMP = 0x140000
R_TK2 = 0x118000; TKS = 4352
L_ML = 0; L_H = 128; L_ST2 = 512
L_CSTAT = 1024; L_CO = 1028; L_TRIG = 1032; L_WRDY = 1036; L_CWO = 1040; L_CQ = 1044; L_OK = 1048; L_CA = 1052; L_TRIGB = 1056
L_Q = 1280
L_ST = 1792
L_A = 3072; LAP = 336
L_PACC = 3072
L_OS = 5120
L_TB = 1664
L_F = 1920
L_W = 11264
L_LK = 1064; L_BT = 1152; L_CM = 1060; L_MS = 2048
L_HB = L_W
L_DN = L_W + 57344
LDS_BYTES = L_DN + 20480

DPPF = 'row_mask:0xf bank_mask:0xf'

def gen(T=3, SG=5, TD=2, TKW=4, XB=40, DEARLY=0, DNW=1, IL=1, NF0=3, NOZ=0, GSL=1, SWZ=1, DPOS=0, DW=2, WT=0, FB=2, XAT=0, PSL=1, PE=0, ADM=0, FG=1, FM=3, PREP=4, PFC=0, PFP='nt', CS=4, XA=32, HAW=8, PRIO=0, TN=8, PFF='', GATE=6, FSL=14, FREE=0, CAP=2, DUAL=1, G1=0, G2=0, G4=0, DR=24, FS=0, TLB=2, WDEF=2, WP=8, WPC=4, BP=1, TCH=0, AG=0, AGS=2, OG=9, CL=1, PP=0, PD=0, PCM=0, MAP=0, CLN=0, OF='', EP=0, CP=3, BG=5, EB=0, BS=0, PFS=4, YI=64, FK=0, BARE=0, EQ=0, NS=0, AFF=0, LS=16, QS=2, BDL=0, HB=0, OSL=1, GUS=0, NGT=0, PW=1, BPC=8, WSL=1, OEARLY=0, DPRIO=1, TRIGM=60, TWA=3, ACK=1, PT=1, stamps=False, TIMEOUT=1 << 20, SLA=8, SLB=4):
    A = Asm()
    LBS = {0: 0, 2: 1, 4: 2, 8: 3}[BS]
    uid = [0]
    def lab(p):
        uid[0] += 1
        return f'L_{p}{uid[0]}'
    def stamp(i):
        if stamps == 1 or (stamps and i == 0): A(f's_memrealtime s[{70+2*i}:{71+2*i}]')
    def spin_tail(L, sleep):
        if sleep: A(f's_sleep {sleep}')
        A(f's_sub_u32 s58, s58, 1\ns_cbranch_scc0 {L}\ns_branch L_fin')
    def lds_wait_ge(off, val, vz, vt, sleep=1):
        L = lab('w'); D = lab('d')
        A(f'{L}:\nds_read_b32 {vt}, {vz} offset:{off}\ns_waitcnt lgkmcnt(0)\nv_readfirstlane_b32 s3, {vt}\ns_cmp_ge_u32 s3, {val}\ns_cbranch_scc1 {D}')
        spin_tail(L, sleep)
        A(f'{D}:')
    def maxtree(regs, dst):
        regs = list(regs)
        if len(regs) == 2:
            A(f'v_max_u32 {dst}, {regs[0]}, {regs[1]}'); return
        A(f'v_max3_u32 {dst}, {regs[0]}, {regs[1]}, {regs[2]}')
        rest = regs[3:]
        while len(rest) >= 2:
            A(f'v_max3_u32 {dst}, {dst}, {rest[0]}, {rest[1]}'); rest = rest[2:]
        if rest: A(f'v_max_u32 {dst}, {dst}, {rest[0]}')
    def poll_end(regs, tmp, L, sleep):
        D = lab('ok')
        if len(regs) > 1: maxtree(regs, tmp)
        else: tmp = regs[0]
        A(f'v_cmp_eq_u32 vcc, -1, {tmp}\ns_cbranch_vccz {D}')
        spin_tail(L, sleep)
        A(f'{D}:')
    def allred8(regs, op='v_add_f32'):
        for pat in ('quad_perm:[1,0,3,2]', 'quad_perm:[2,3,0,1]', 'row_half_mirror'):
            for r in regs: A(f'{op} {r}, {r}, {r} {pat} {DPPF}')
    def red_hi(regs, op='v_add_f32'):
        for r in regs: A(f'{op} {r}, {r}, {r} row_ror:8 {DPPF}')
        for r in regs: A(f'{op} {r}, {r}, {r} row_bcast:15 row_mask:0xa bank_mask:0xf')
        for r in regs: A(f'{op} {r}, {r}, {r} row_bcast:31 row_mask:0xc bank_mask:0xf')
    def round_list(regs, tmps):
        regs = list(regs)
        prs = [(regs[i], regs[i+1] if i+1 < len(regs) else None) for i in range(0, len(regs), 2)]
        for k0 in range(0, len(prs), len(tmps)):
            blk = prs[k0:k0+len(tmps)]
            for (a, b), t in zip(blk, tmps): A(f'v_cvt_pk_bf16_f32 {t}, {a}, {b if b else a}')
            for (a, b), t in zip(blk, tmps):
                A(f'v_lshlrev_b32 {a}, 16, {t}')
                if b: A(f'v_and_b32 {b}, 0xffff0000, {t}')
    def masks(dst4, vl, t0, t1):
        A(f'v_and_b32 {t0}, 1, {vl}\nv_lshlrev_b32 {t0}, 4, {t0}\nv_mov_b32 {t1}, 0xffff\nv_lshlrev_b32 {t0}, {t0}, {t1}\nv_bfe_u32 {t1}, {vl}, 1, 2')
        for t in range(4):
            A(f'v_cmp_eq_u32 vcc, {t}, {t1}\nv_cndmask_b32 {dst4[t]}, 0, {t0}, vcc')
    def v(i): return f'v{i}'
    def vr(i, n): return f'v[{i}:{i+n-1}]'
    def set_exec(lo, hi):
        if lo == 0xffffffff and hi == 0xffffffff: A('s_mov_b64 exec, -1')
        elif hi == 0 and lo <= 64: A(f's_mov_b64 exec, {lo}')
        else: A(f's_mov_b32 exec_lo, 0x{lo:x}\ns_mov_b32 exec_hi, 0x{hi:x}')
    def tags():
        A('s_mul_i32 s14, s14, 0x9e3779b1\ns_add_u32 s14, s14, 0x7f4a7c15\ns_mul_i32 s15, s15, 0x85ebca6b\ns_add_u32 s15, s15, 0xc2b2ae35')
        A('s_and_b32 s3, s14, 15\ns_sub_u32 s36, 0, s3\ns_subb_u32 s37, 0, s3')
        A(f's_mov_b64 exec, 1\nds_add_u32 v0, v79 offset:{L_CQ}\ns_mov_b64 exec, -1')
    def tailtags():
        A('s_and_b32 s3, s14, 63\ns_sub_u32 s36, 0, s3\ns_subb_u32 s37, 0, s3')
    def untag(base, n, dst=None):
        if dst is None: dst = base
        for i in range(0, n, 2): A(f'v_lshl_add_u64 {vr(dst+i,2)}, {vr(base+i,2)}, 0, s[36:37]')
    def ortree(regs, dst):
        regs = list(regs)
        if len(regs) == 2:
            A(f'v_or_b32 {dst}, {regs[0]}, {regs[1]}'); return
        A(f'v_or3_b32 {dst}, {regs[0]}, {regs[1]}, {regs[2]}')
        rest = regs[3:]
        while len(rest) >= 2:
            A(f'v_or3_b32 {dst}, {dst}, {rest[0]}, {rest[1]}'); rest = rest[2:]
        if rest: A(f'v_or_b32 {dst}, {dst}, {rest[0]}')
    def tag_end(tmp, L, sleep, mask=15):
        D = lab('ok')
        A(f'v_and_b32 {tmp}, {mask}, {tmp}\nv_cmp_ne_u32 vcc, 0, {tmp}\ns_cbranch_vccz {D}')
        spin_tail(L, sleep)
        A(f'{D}:')

    A('L_base:')
    stamp(0)
    A(f'''s_load_dwordx16 s[16:31], s[0:1], 0
    s_cmpk_ge_u32 s2, 256
    s_cbranch_scc1 L_end
    v_readfirstlane_b32 s4, v0
    {'s_bfe_u32 s5, s2, 0x20003' if AFF else 's_lshr_b32 s5, s2, 3'}
    s_and_b32 s6, s2, 7
    s_lshl2_add_u32 s5, s6, s5
    {'s_lshr_b32 s6, s2, 5' if AFF else 's_and_b32 s5, s5, 31'}
    v_lshrrev_b32 v3, 3, v0
    v_and_b32 v1, 7, v0
    v_lshlrev_b32 v1, 4, v1
    s_cmpk_lt_u32 s4, 256
    s_cbranch_scc1 L_pro2
    s_lshl_b32 s3, s5, 9''')
    SJ = 's6' if MAP == 0 else 's9'
    if MAP: A('s_lshr_b32 s9, s2, 5')
    if MAP == 2: A(f's_cmpk_lt_u32 s2, 96\ns_cselect_b32 s7, 0, {3*SG-3}\ns_add_u32 s9, s9, s7')
    A(f'''s_add_u32 s3, s3, {SJ}
    s_mulk_i32 s3, 24576
    v_mul_u32_u24 v4, 384, v3
    s_add_u32 s7, s3, {28672*384 - 4*3072}
    v_add3_u32 v4, v4, v1, s7
    s_waitcnt lgkmcnt(0)''')
    for t in range(NF0):
        if t == 3: A('v_add_u32 v4, 196608, v4')
        A(f'global_load_dwordx4 {vr(8+4*t,4)}, v4, s[18:19] offset:{128*(t%3)} nt')
    stamp(5)
    A('''L_pro2:
    s_load_dwordx8 s[32:39], s[0:1], 64
    s_load_dwordx4 s[40:43], s[0:1], 96
    v_and_b32 v2, 63, v0
    s_lshr_b32 s4, s4, 6
    v_and_b32 v3, 7, v3
    s_mov_b32 s47, 0x20000
    s_mov_b32 s51, 0x20000''')
    A(f's_mov_b32 s58, {TIMEOUT}')
    if stamps == 1 and not NOZ:
        for i in range(1, 15):
            if i != 5: A(f's_mov_b32 s{70+2*i}, 0')
    A('s_lshl3_add_u32 s59, s5, s6')
    W0 = 8; X0 = 48; D0 = 60; F0 = 64
    if EB:
        assert FB == 0 and not EQ
        A('v_mov_b32 v0, 0\nv_lshlrev_b32 v5, 2, v2\ns_cmp_eq_u32 s4, 3\ns_cbranch_scc0 L_eb\nds_write_b32 v5, v0 offset:1024\ns_waitcnt lgkmcnt(0)\nL_eb:\ns_barrier')
    A('s_cmp_lt_u32 s4, 4\ns_cbranch_scc0 L_strm')
    if BARE:
        A(f'''v_mov_b32 v0, 0
        v_lshlrev_b32 v80, 2, v2
        ds_write_b32 v80, v0 offset:1024
        s_waitcnt lgkmcnt(0)
        s_barrier
        v_mov_b32 v79, 9
        ds_write_b32 v0, v79 offset:{L_CQ}
        s_lshl_b32 s3, s6, {LBS}
        s_add_u32 s3, s3, 1
        v_mov_b32 v60, s3
        ds_write_b32 v0, v60 offset:{L_BT}
        s_mul_i32 s3, s5, {TKS}
        s_add_u32 s3, s3, {R_TK2}
        v_mov_b32 v60, s3
        v_mov_b32 v61, {8*BS if BS else 64*NS}
        s_mov_b64 exec, 1
        s_or_b32 s3, s4, s6
        s_cbranch_scc1 L_end
        global_store_dword v60, v61, s[42:43] sc1
        s_endpgm''')
    A('s_setprio 3\ns_sub_u32 s10, s2, 96\ns_cbranch_scc1 L_cB\ns_cmp_ge_u32 s10, 80\ns_cbranch_scc1 L_rest\ns_cmp_ge_u32 s4, 2\ns_cbranch_scc1 L_cN')
    A(f'''s_mul_i32 s12, s10, 3277
    s_lshr_b32 s12, s12, 16
    s_mul_i32 s7, s12, 20
    s_sub_u32 s13, s10, s7
    s_lshl1_add_u32 s8, s12, s4
    L_rest2:
    v_mul_u32_u24 v72, 7680, v3
    v_add_u32 v72, v72, v1
    s_mul_i32 s3, s8, {80*7680}
    s_lshl_b32 s7, s13, 7
    s_add_u32 s3, s3, s7
    s_mov_b32 s46, {80*7680}
    s_mov_b32 s57, {8*7680}
    v_min_u32 v74, 39, v2
    s_mul_i32 s7, s8, 160
    v_lshl_add_u32 v74, v74, 2, s7
    s_getpc_b64 s[60:61]
    L_pc0:
    s_add_u32 s60, s60, L_cA-L_pc0
    s_addc_u32 s61, s61, 0
    s_waitcnt lgkmcnt(0)
    s_add_u32 s44, s36, s3
    s_addc_u32 s45, s37, 0
    global_load_dword v82, v74, s[34:35]
    s_cmp_lt_u32 s10, {160 if EQ else 80}
    s_cbranch_scc0 L_cA''')
    A('L_load10:\ns_mov_b32 s56, 0')
    for s in range(10):
        A(f'buffer_load_dwordx4 {vr(W0+4*s,4)}, v72, s[44:47], s56 offen nt')
        if s < 9: A('s_add_u32 s56, s56, s57')
    A('s_setpc_b64 s[60:61]')
    A('L_strm:')

    NPOOL = 512 - 64*SG
    SL = lambda i, t: 8 + (i*3 + t)*4
    G0_ = 128; Q0 = 140; D0_ = 152; F = 164
    S = [v(G0_+g) for g in range(SG)]
    NV0 = min(SG, 5)
    KSL = lambda g, t: SL(g, t) if g < 5 else D0_ + 4*t
    VI = lambda g: (NV0 + g) if g < 5 else 3
    VL = 'v134'; X0_ = 'v135'; X1_ = 'v136'; X2_ = 'v137'; X3_ = 'v138'; X4_ = 'v139'
    if PRIO: A('s_setprio 1')
    A(f'''v_mul_u32_u24 v4, 384, v3
    s_mul_i32 s3, s5, 12582912
    s_add_u32 s3, s3, {28672*384}
    s_lshl3_add_u32 s7, {SJ}, s4
    s_cmpk_lt_u32 s2, 96
    s_cselect_b32 s55, {3 if MAP == 2 else 8}, {5 if MAP == 2 else 8}
    s_mulk_i32 s55, 24576
    s_mul_i32 s57, s7, {3072 if IL else SG*3072}
    s_sub_u32 s57, s57, {4*(3072 if IL else SG*3072)}
    s_mov_b32 s56, s57
    v_add_u32 v3, v1, v4
    s_mov_b32 s46, 1572864
    s_mov_b32 s50, 1572864''')
    A(f'''s_add_u32 s44, s18, s3
    s_addc_u32 s45, s19, 0
    s_add_u32 s48, s20, s3
    s_addc_u32 s49, s21, 0''')
    def ld(reg, srd, so, t, throttle=True):
        A(f'buffer_load_dwordx4 {vr(reg,4)}, v3, {srd}, {so} offen offset:{t*128} nt')
        if throttle: A(f's_waitcnt vmcnt({T})')
    KS = 's[44:47]'; VS = 's[48:51]'
    if FB:
        A('s_sub_u32 s13, s2, 96')
        if FB >= 2: A('s_cselect_b32 s13, 0, s13')
        if EQ == 2: A('s_mov_b32 s13, 0')
        A('s_cmp_lt_u32 s13, 80\ns_cbranch_scc0 L_nb0\ns_barrier\nL_nb0:')
    n = 0
    for g in range(SG):
        for t in range(3):
            n += 1
            if n > NF0: ld(KSL(g, t), KS, 's56', t, throttle=(n > T+1))
            if n == T+2: stamp(8)
            if n == T+1:
                for r in S: A(f'v_mov_b32 {r}, 0')
                masks(['v4', 'v5', 'v6', 'v7'], 'v2', X0_, X1_)
                A(f's_mul_i32 s3, s5, {TKS}\ns_add_u32 s3, s3, {R_TK2}\ns_mov_b32 s65, 0\ns_mov_b32 s67, 0\ns_waitcnt lgkmcnt(0)\ns_add_u32 s52, s42, s3\ns_addc_u32 s53, s43, 0')
                A(f's_cmp_lt_u32 s2, 96\ns_movk_i32 s10, {XA}\ns_cselect_b32 s10, {XB}, s10\ns_sub_u32 s10, {NPOOL}, s10')
                if FB: A(f'v_mov_b32 v0, 0\ns_cmp_lt_u32 s13, 80\ns_cbranch_scc1 L_nb1\ns_barrier\nL_nb1:\ns_waitcnt vmcnt({T})')
                elif EB: A(f's_waitcnt vmcnt({T})')
                else: A(f'v_mov_b32 v0, 0\ns_barrier\ns_waitcnt vmcnt({T})')
        if g < SG-1: A('s_add_u32 s56, s56, s55')
    for g in range(NV0):
        for t in range(3): ld(SL(VI(g), t), VS, 's57', t, throttle=not (g == NV0-1 and t == 2))
        if g < SG-1: A('s_add_u32 s57, s57, s55')
    stamp(1)
    if PRIO: A('s_setprio 0')
    lds_wait_ge(L_CQ, 7 if HB else 5, 'v0', X0_, sleep=QS)
    A(f'ds_read_b64 v[136:137], v0 offset:{L_TB}')
    tick = 's_mov_b32 s12, 1\ns_atomic_add s12, s[52:53], 0 glc'
    if XAT: tick += '\ns_mov_b32 s62, 1\ns_atomic_add s62, s[52:53], 0x80000 glc\ns_mov_b32 s63, 1\ns_atomic_add s63, s[52:53], 0x88000 glc'
    for t in range(3): A(f'ds_read_b128 {vr(Q0+4*t,4)}, v1 offset:{L_Q + 128*t}')
    stamp(2)
    A(f's_waitcnt vmcnt({3*NV0}) lgkmcnt(0)\nv_mov_b32 v1, 1\nv_readfirstlane_b32 s14, v136\nv_readfirstlane_b32 s15, v137')
    dt = 's_mov_b32 s64, 1\ns_atomic_add s64, s[52:53], 0 glc'
    if BS: A('s_call_b64 s[60:61], L_next')
    elif FK == 1: A(dt)
    if BS: pass
    elif FK == 2: A('s_lshl3_add_u32 s12, s4, s6\ns_sub_u32 s12, s12, 32')
    elif NS: A('s_lshl3_add_u32 s12, s6, s4\ns_sub_u32 s12, s12, 4')
    else: A(tick)
    for t in range(3):
        for d in range(4):
            for g in range(SG):
                A(f'v_dot2c_f32_bf16 {S[g]}, v{KSL(g,t)+d}, v{Q0+4*t+d}')
    if SG == 6:
        for t in range(3): ld(SL(3, t), VS, 's57', t, throttle=False)
    allred8(S)
    round_list(S, [X0_, X1_, X2_])
    for r in S: A(f'v_mul_f32 {r}, 0x3d93cd3a, {r}')
    round_list(S, [X0_, X1_, X2_])
    A(f'v_max3_f32 {X0_}, {S[0]}, {S[1]}, {S[2]}')
    for g in range(3, SG): A(f'v_max_f32 {X0_}, {X0_}, {S[g]}')
    red_hi([X0_], 'v_max_f32')
    A(f'v_readlane_b32 s8, {X0_}, 63')
    def take(X, last):
        A('s_waitcnt lgkmcnt(0)')
        if BS:
            Lp = lab('pb')
            A(f's_cmp_eq_u32 s67, 0\ns_cbranch_scc1 {Lp}\ns_add_u32 s66, s66, 1\nv_mov_b32 {X2_}, s67\nv_mov_b32 {X3_}, s66\nds_write_b32 {X2_}, {X3_}\ns_mov_b32 s67, 0\n{Lp}:')
        A(f's_mov_b32 s11, s12\ns_cmp_lt_u32 s11, {NPOOL}\ns_cbranch_scc0 {last}')
        A(f's_mul_i32 s54, s11, 3072\ns_add_u32 s54, s54, {64*SG*3072}')
        if EP == 2: A('s_setprio 0')
        if TD < 3: A(f's_waitcnt vmcnt({TD})')
        for t in range(3): ld(SL(X, t), KS, 's54', t, throttle=False)
        for t in range(3): ld(SL(X+1, t), VS, 's54', t, throttle=False)
        A(f's_waitcnt vmcnt(6)')
    def nexttick():
        Lk = lab('nt')
        if BS:
            A('s_call_b64 s[60:61], L_next'); return
        if FK == 1: A(f's_cmp_lt_u32 s11, 128\ns_cbranch_scc0 {Lk}x\n{dt}\n{Lk}x:')
        if NS > 1 or 64*NS >= NPOOL: A(f's_add_u32 s12, s11, 64\ns_cmp_lt_u32 s12, {64*NS if 64*NS < NPOOL else 4096}\ns_cbranch_scc1 {Lk}')
        A(f's_movk_i32 s12, {NPOOL}\ns_cmp_lt_u32 s11, s10\ns_cbranch_scc0 {Lk}\n{tick}\n{Lk}:')
    for r in S: A(f'v_subrev_f32 {r}, s8, {r}')
    for r in S: A(f'v_mul_f32 {r}, {H(LOG2E)}, {r}')
    for r in S: A(f'v_exp_f32 {r}, {r}')
    A(f'v_add_f32 {VL}, {S[0]}, {S[1]}')
    for g in range(2, SG): A(f'v_add_f32 {VL}, {VL}, {S[g]}')
    for r in S: A(f'v_cvt_pk_bf16_f32 {r}, {r}, {r}')
    stamp(3)
    _e0 = len(A.L)
    A(f'''v_and_b32 v61, 7, v2
    v_lshrrev_b32 v65, 5, v2
    v_lshlrev_b32 v60, 3, v61
    v_and_b32 v62, 32, v2
    v_xor_b32 v60, v60, v62
    v_lshlrev_b32 v62, 5, v61
    v_and_b32 v63, 16, v2
    s_mul_i32 s3, s4, 768
    v_add3_u32 v56, v62, v63, s3
    v_lshl_add_u32 v56, v65, 3, v56
    v_and_b32 v66, 31, v2
    s_lshl_b32 s3, s59, 9
    s_add_u32 s3, s3, {R_O}
    v_lshl_add_u32 v57, v66, 4, s3
    v_lshl_add_u32 v57, v65, 3, v57
    v_mul_u32_u24 v58, 24, v66
    v_mul_u32_u24 v65, 3072, v65
    s_movk_i32 s3, {L_OS}
    v_add3_u32 v58, v58, v65, s3
    v_add_u32 v61, 1536, v58
    v_mov_b32 v62, 0xffff
    v_and_b32 v66, 47, v2
    v_subrev_u32 v66, 32, v66
    v_cmp_gt_u32 vcc, 6, v66
    v_add_u32 v66, 2, v66
    v_cndmask_b32 v66, 12, v66, vcc
    s_mov_b32 s3, 0x0c000c0c
    v_lshl_or_b32 v63, v66, 16, s3
    v_cndmask_b32 v66, 16, 24, vcc
    v_lshlrev_b32 v64, v66, s14
    s_lshl_b32 s3, s4, 3
    v_mov_b32 v59, s3
    s_mov_b32 s62, 0x00ff00ff
    s_mov_b32 s63, 0x00ff00ff
    s_waitcnt vmcnt(3)''')
    def mf(slot, first=False, waits=False):
        for t in range(3):
            if waits: A(f's_waitcnt vmcnt({2-t})')
            c = '0' if first else vr(D0_+4*t, 4)
            A(f'v_mfma_f32_16x16x32_bf16 {vr(D0_+4*t,4)}, {vr(F,4)}, {vr(SL(slot,t),4)}, {c}')
    for g in range(SG):
        for t in range(4): A(f'v_and_b32 v{F+t}, {S[g]}, v{4+t}')
        if g < SG-1: mf(VI(g), first=(g == 0))
    take(0, 'L_lastS')
    mf(VI(SG-1))
    A('s_branch L_loopA')
    A('L_loop:')
    for X, Y, nm, pv in ((0, 2, 'A', 'B'), (2, 0, 'B', 'A')):
        take(X, f'L_last{pv}')
        mf(Y+1)
        A(f'L_loop{nm}:')
        A(f'v_mov_b32 {X0_}, 0\nv_mov_b32 {X1_}, 0')
        if TKW == 6: nexttick()
        for t in range(3):
            A(f's_waitcnt vmcnt({5-t})')
            if TKW == 5-t: nexttick()
            for d in range(0, 4, 2):
                A(f'v_dot2c_f32_bf16 {X0_}, v{SL(X,t)+d}, v{Q0+4*t+d}\nv_dot2c_f32_bf16 {X1_}, v{SL(X,t)+d+1}, v{Q0+4*t+d+1}')
        A(f'v_add_f32 {X0_}, {X0_}, {X1_}')
        allred8([X0_])
        A(f'''v_cvt_pk_bf16_f32 {X0_}, {X0_}, {X0_}
        v_and_b32 {X0_}, 0xffff0000, {X0_}
        v_mul_f32 {X0_}, 0x3d93cd3a, {X0_}
        v_cvt_pk_bf16_f32 {X0_}, {X0_}, {X0_}
        v_and_b32 {X0_}, 0xffff0000, {X0_}
        v_cmp_lt_f32 vcc, s8, {X0_}
        s_cbranch_vccnz L_nc{nm}
        L_nm{nm}:
        v_subrev_f32 {X0_}, s8, {X0_}
        v_mul_f32 {X0_}, {H(LOG2E)}, {X0_}
        v_exp_f32 {X0_}, {X0_}
        v_add_f32 {VL}, {VL}, {X0_}
        v_cvt_pk_bf16_f32 {X0_}, {X0_}, {X0_}''')
        for t in range(4): A(f'v_and_b32 v{F+t}, {X0_}, v{4+t}')
        if TKW < 3:
            A(f's_waitcnt vmcnt({TKW})')
            nexttick()
    A('s_branch L_loop')
    if BS:
        L = lab('bt'); D = lab('btd')
        A(f'''L_next:
        s_cmp_eq_u32 s65, 0
        s_cbranch_scc0 L_ind
        s_mov_b64 exec, 1
        ds_add_rtn_u32 {X2_}, v0, v1 offset:{L_LK}
        s_waitcnt lgkmcnt(0)
        v_readfirstlane_b32 s64, {X2_}
        v_lshrrev_b32 {X2_}, {LBS}, {X2_}
        v_lshlrev_b32 {X2_}, 2, {X2_}
        {L}:
        ds_read_b32 {X3_}, {X2_} offset:{L_BT}
        s_waitcnt lgkmcnt(0)
        v_readfirstlane_b32 s12, {X3_}
        s_cmp_lg_u32 s12, 0
        s_cbranch_scc1 {D}''')
        spin_tail(L, 1)
        A(f'''{D}:
        s_cmp_eq_u32 s12, -1
        s_cbranch_scc1 L_ind1
        s_and_b32 s3, s64, {BS-1}
        s_cmp_eq_u32 s3, {PFS}
        s_cbranch_scc0 L_nof
        s_cmp_gt_u32 s12, {NPOOL - YI}
        s_cbranch_scc1 L_wind
        v_readfirstlane_b32 s67, {X2_}
        s_mov_b32 s66, {BS}
        s_atomic_add s66, s[52:53], 0 glc
        s_add_u32 s67, s67, {L_BT + 4}
        L_nof:
        s_add_u32 s12, s12, s3
        s_sub_u32 s12, s12, 1
        s_mov_b64 exec, -1
        s_setpc_b64 s[60:61]
        L_wind:
        v_mov_b32 {X3_}, -1''')
        for k in range(1, 8 // BS + 1): A(f'ds_write_b32 {X2_}, {X3_} offset:{L_BT + 4*k}')
        A(f'''s_branch L_nof
        L_ind1:
        s_mov_b64 exec, -1
        s_mov_b32 s65, 1
        s_mov_b32 s11, 0
        L_ind:
        s_movk_i32 s12, {NPOOL}
        s_cmp_lt_u32 s11, s10
        s_cbranch_scc0 L_ind2
        {tick}
        L_ind2:
        s_setpc_b64 s[60:61]''')
    for nm in 'AB': A(f'L_nc{nm}:\ns_call_b64 s[60:61], L_newmax\ns_branch L_nm{nm}')
    A('L_newmax:')
    A(f'v_mov_b32 {X1_}, {X0_}')
    red_hi([X1_], 'v_max_f32')
    A(f'v_mov_b32 {X2_}, s8\nv_readlane_b32 s8, {X1_}, 63\nv_subrev_f32 {X2_}, s8, {X2_}\nv_mul_f32 {X2_}, {H(LOG2E)}, {X2_}\nv_exp_f32 {X2_}, {X2_}')
    A(f'v_mul_f32 {VL}, {VL}, {X2_}')
    for i in range(12): A(f'v_mul_f32 v{D0_+i}, v{D0_+i}, {X2_}')
    A('s_setpc_b64 s[60:61]')
    for nm, slot in (('S', VI(SG-1)), ('A', 1), ('B', 3)):
        A(f'L_last{nm}:')
        if EP: A('s_setprio 3')
        stamp(4)
        if not CL: A(f's_mov_b64 exec, 1\nds_add_u32 v0, v1 offset:{L_CSTAT}\ns_mov_b64 exec, -1')
        mf(slot, waits=True)
        if nm != 'B': A('s_branch L_epi')
    A('L_epi:')
    stamp(6)
    if CL: A(f's_mov_b64 exec, 1\nds_add_u32 v0, v1 offset:{L_CSTAT}\ns_mov_b64 exec, -1')
    d = D0_
    A(f'''v_add_f32 {VL}, {VL}, {VL} row_ror:8 {DPPF}
    v_mov_b32 v133, s8
    v_add_f32 {VL}, {VL}, {VL} row_bcast:15 row_mask:0xa bank_mask:0xf
    v_permlane32_swap_b32 v{d}, v{d+2}
    v_add_f32 {VL}, {VL}, {VL} row_bcast:31 row_mask:0xc bank_mask:0xf
    v_permlane32_swap_b32 v{d+1}, v{d+3}
    v_permlane32_swap_b32 v{d+4}, v{d+6}
    v_permlane32_swap_b32 v{d+5}, v{d+7}
    v_permlane32_swap_b32 v{d+8}, v{d+10}
    v_permlane32_swap_b32 v{d+9}, v{d+11}''')
    for t in range(3):
        d = D0_ + 4*t
        A(f'v_add_f32 v{d}, v{d+2}, v{d} row_ror:8 {DPPF}\nv_add_f32 v{d+1}, v{d+3}, v{d+1} row_ror:8 {DPPF}')
    A('s_mov_b64 exec, s[62:63]')
    for t in range(3): A(f'ds_write_b64 v56, {vr(D0_+4*t,2)} offset:{L_OS - 4*768 + 256*t}')
    A(f'''s_lshl_b64 exec, 1, 48
    ds_write2_b32 v59, v133, {VL} offset0:{(L_ST2 - 32)//4} offset1:{(L_ST2 - 32)//4 + 1}
    ds_add_rtn_u32 v6, v0, v1 offset:{L_CO}
    s_mov_b64 exec, -1
    ds_read_b64 v[144:145], v60 offset:{L_ST2}''')
    for k in range(4):
        ad = 'v58' if k < 2 else 'v61'
        A(f'ds_read2_b64 {vr(68+6*k,4)}, {ad} offset0:{96*(k&1)} offset1:{96*(k&1)+1}\nds_read_b64 {vr(72+6*k,2)}, {ad} offset:{768*(k&1)+16}')
    A(f'''s_waitcnt lgkmcnt({0 if stamps == 1 else 8})
    v_readlane_b32 s3, v6, 48
    v_max_f32 v108, v144, v144 quad_perm:[1,0,3,2] {DPPF}
    s_cmp_eq_u32 s3, 7
    s_cbranch_scc0 L_fin
    v_max_f32 v108, v108, v108 quad_perm:[2,3,0,1] {DPPF}
    v_max_f32 v108, v108, v108 row_half_mirror {DPPF}
    v_sub_f32 v144, v144, v108
    v_mul_f32 v144, {H(LOG2E)}, v144
    v_exp_f32 v144, v144
    v_mul_f32 v109, v144, v145''')
    lch = [f'v_add_f32 v109, v109, v109 quad_perm:[1,0,3,2] {DPPF}', f'v_add_f32 v109, v109, v109 quad_perm:[2,3,0,1] {DPPF}', f'v_add_f32 v109, v109, v109 row_half_mirror {DPPF}']
    for w in range(4):
        A(f'v_mov_b32 v{100+w}, v144 row_newbcast:{w} {DPPF}')
        if w in (1, 3): A(lch.pop(0))
    A('s_waitcnt lgkmcnt(0)')
    def fsel(w): return f'{vr(100+(w&~1),2)}', (w & 1)
    for k in range(4):
        fr, hi = fsel(k)
        for h2 in (0, 2, 4):
            if k == 0: A(f'v_pk_mul_f32 {vr(68+h2,2)}, {vr(68+h2,2)}, {fr} op_sel:[0,{hi}] op_sel_hi:[1,{hi}]')
            else: A(f'v_pk_fma_f32 {vr(68+h2,2)}, {vr(68+6*k+h2,2)}, {fr}, {vr(68+h2,2)} op_sel:[0,{hi},0] op_sel_hi:[1,{hi},1]')
        if k == 0: A(lch.pop(0))
    A(f'''v_perm_b32 v110, v109, v108, v63
    v_permlane32_swap_b32 v68, v70
    v_permlane32_swap_b32 v69, v71
    v_permlane32_swap_b32 v72, v73
    v_or_b32 v110, v110, v64
    v_pk_add_f32 v[68:69], v[68:69], v[70:71]
    v_add_f32 v72, v72, v73
    v_cvt_pk_bf16_f32 v68, v68, v69
    v_cvt_pk_bf16_f32 v69, v72, v72
    v_bfi_b32 v69, v62, v69, v110
    global_store_dwordx2 v57, v[68:69], s[42:43] sc1
    s_mov_b64 exec, 1
    ds_add_u32 v0, v1 offset:{L_CO}''')
    if BG: A('s_mov_b32 s12, 1\ns_atomic_add s12, s[52:53], 4 glc')
    stamp(7)
    A('s_branch L_fin')
    if SG < 5:
        import re as _re
        for _k in range(_e0, len(A.L)):
            A.L[_k] = _re.sub(r'\bv(5[6-9]|6[0-3])\b', lambda m: 'v%d' % (int(m.group(1)) + 56), A.L[_k])

    A('L_ctrl:')
    A('L_rest:\ns_cmp_ge_u32 s10, 120\ns_cselect_b32 s12, 1, 0\ns_cselect_b32 s7, 40, 0\ns_sub_u32 s13, s10, 60\ns_sub_u32 s13, s13, s7\ns_lshl2_add_u32 s8, s12, s4\ns_branch L_rest2')
    def calc_t(dst):
        A(f's_and_b32 s3, s2, 7\ns_mul_i32 s3, s3, 3\ns_lshr_b32 s7, s2, 5\ns_add_u32 s3, s3, s7\ns_lshl_b32 s3, s3, 2\ns_bfe_u32 s7, s2, 0x20003\ns_add_u32 {dst}, s3, s7')
    def cstart(bar=True):
        Lk = lab('ci')
        A(f'''v_mov_b32 v0, 0
        v_lshlrev_b32 v75, 4, v2
        v_lshlrev_b32 v80, 2, v2
        v_mov_b32 v79, 1''')
        if not EB: A(f's_cmp_eq_u32 s4, 0\ns_cbranch_scc0 {Lk}\nds_write_b32 v80, v0 offset:1024\n{Lk}:')
        A('s_waitcnt lgkmcnt(0)')
        if TLB == 3:
            A(f's_cmp_eq_u32 s4, 3\ns_cbranch_scc0 {Lk}w\ns_lshl_b32 s9, s59, 9\ns_add_u32 s9, s9, {R_O}\nv_lshl_add_u32 v166, v2, 7, s9\ns_mov_b64 exec, 15\nglobal_load_dword v167, v166, s[42:43] sc1\ns_mov_b64 exec, -1\n{Lk}w:')
        if bar and not EB: A('s_barrier')
        A(f's_load_dwordx2 s[14:15], s[42:43], {R_E}')
    NE = 4*(3 - WDEF) if EQ else 0
    if EQ:
        L = lab('eq')
        A(f'''L_eqdma:
        s_lshr_b32 s8, s10, 3
        s_and_b32 s9, s2, 7
        s_lshl_b32 s9, s9, 1
        s_cmp_ge_u32 s8, 10
        s_cselect_b32 s3, 10, 0
        s_addc_u32 s9, s9, 0
        s_sub_u32 s8, s8, s3
        s_lshl2_add_u32 s9, s9, s4
        s_mul_i32 s3, s9, {96*1280}
        s_lshl_b32 s8, s8, 7
        s_add_u32 s3, s3, s8
        s_add_u32 s48, s24, s3
        s_addc_u32 s49, s25, 0
        s_mov_b32 s50, {96*1280}
        v_mul_u32_u24 v73, 1280, v3
        v_and_b32 v76, 16, v2
        v_lshlrev_b32 v76, 1, v76
        v_xor_b32 v76, v76, v1
        v_add_u32 v73, v73, v76
        s_mul_i32 s8, s4, 12288
        s_add_u32 s8, s8, {L_W}
        s_mov_b32 s9, 0
        {L}:
        s_mov_b32 m0, s8
        s_add_u32 s8, s8, 1024
        buffer_load_dwordx4 v73, s[48:51], s9 offen nt lds
        v_xor_b32 v73, 64, v73
        s_add_u32 s9, s9, 10240
        s_cmp_lt_u32 s9, {NE*10240}
        s_cbranch_scc1 {L}
        s_setpc_b64 s[62:63]''')
    A('L_cN:')
    cstart(not EQ)
    A(f'''s_getpc_b64 s[8:9]
    L_pc1:
    s_sub_u32 s8, s8, L_pc1-L_base
    s_subb_u32 s9, s9, 0
    s_lshr_b32 s3, s2, 3
    s_lshl1_add_u32 s3, s3, s4
    s_and_b32 s3, s3, 15
    s_lshl_b32 s3, s3, 10
    v_add_u32 v76, s3, v75
    v_min_u32 v76, L_end-L_base-12, v76
    global_load_dwordx4 v[160:163], v76, s[8:9] {PFF}''')
    if EQ: A('s_call_b64 s[62:63], L_eqdma\ns_barrier')
    A('s_waitcnt vmcnt(0) lgkmcnt(0)')
    tags()
    A('s_branch L_hopB')
    A('L_cA:')
    if EQ: A('s_call_b64 s[62:63], L_eqdma')
    cstart()
    masks(['v4', 'v5', 'v6', 'v7'], 'v2', 'v60', 'v61')
    A(f'''s_mul_i32 s11, s12, 5120
    s_lshl_b32 s7, s13, 8
    s_add_u32 s11, s11, s7
    s_add_u32 s11, s11, {R_MA}
    s_mov_b32 s54, 1
    s_cmp_lt_u32 s10, 80
    s_cbranch_scc1 L_cA1
    s_mul_i32 s11, s12, 15360
    s_add_u32 s11, s11, s7
    s_add_u32 s11, s11, {R_MOD}
    s_mov_b32 s54, 3''')
    if not EQ: A('s_setprio 0\ns_waitcnt vmcnt(0)\ns_call_b64 s[60:61], L_load10')
    A(f'L_cA1:\ns_waitcnt vmcnt({10+NE})')
    C = ['v88', 'v89']; E = ['v90', 'v91']; RC = ['v92', 'v93']; QQ = ['v94', 'v95']; RR = ['v96', 'v97']
    A('v_lshlrev_b32 v88, 16, v82\nv_and_b32 v89, 0xffff0000, v82')
    for i in range(2): A(f'v_mul_f32 {E[i]}, {H(-LOG2E)}, {C[i]}')
    for i in range(2): A(f'v_exp_f32 {E[i]}, {E[i]}')
    A(f's_lshl_b32 s3, s4, 9\ns_add_u32 s3, s3, {L_OS}')
    for i in range(2): A(f'v_add_f32 {E[i]}, 1.0, {E[i]}')
    for i in range(2): A(f'v_rcp_f32 {RC[i]}, {E[i]}')
    A('v_lshl_add_u32 v98, v2, 3, s3\nv_lshl_add_u32 v99, v3, 2, s3')
    for i in range(2): A(f'v_mul_f32 {QQ[i]}, {RC[i]}, {C[i]}')
    for i in range(2): A(f'v_fma_f32 {RR[i]}, -{QQ[i]}, {E[i]}, {C[i]}')
    for i in range(2): A(f'v_fmac_f32 {QQ[i]}, {RR[i]}, {RC[i]}')
    for i in range(2): A(f'v_div_fixup_f32 {QQ[i]}, {QQ[i]}, {E[i]}, {C[i]}')
    for i in range(2): A(f'v_cvt_pk_bf16_f32 {QQ[i]}, {QQ[i]}, {QQ[i]}')
    A('ds_write_b64 v98, v[94:95]')
    for k in range(5): A(f'ds_read2_b32 {vr(X0+2*k,2)}, v99 offset0:{16*k} offset1:{16*k+8}')
    for i in range(4): A(f'v_mov_b32 v{D0+i}, 0')
    A('s_waitcnt lgkmcnt(0)')
    tags()
    stamp(1)
    A(f's_waitcnt vmcnt({NE})\ns_branch L_mm10')
    W1 = 88; X1r = 128
    A('L_cB:')
    A(f'''v_mul_u32_u24 v72, 12288, v3
    s_mul_i32 s3, s4, {160*12288}
    s_mul_i32 s7, s5, 384
    s_add_u32 s3, s3, s7
    s_lshr_b32 s12, s2, 5
    s_lshl_b32 s7, s12, 7
    s_add_u32 s3, s3, s7
    v_add_u32 v72, v72, v1
    s_mov_b32 s46, {160*12288}
    s_mov_b32 s57, {8*12288}
    v_mul_u32_u24 v73, 20, v2
    v_min_u32 v74, 39, v2
    s_mul_i32 s13, s4, 320
    v_lshl_add_u32 v74, v74, 3, s13''')
    cstart(FB < 2)
    A(f'''s_add_u32 s44, s22, s3
    s_addc_u32 s45, s23, 0
    global_load_dwordx4 v[140:143], v73, s[16:17]
    global_load_dword v144, v73, s[16:17] offset:16
    global_load_dwordx2 v[146:147], v74, s[16:17]''')
    stamp(13)
    A(f'''s_call_b64 s[60:61], L_load10
    s_mov_b32 s56, {80*12288}''')
    for k in range(10):
        A(f'buffer_load_dwordx4 {vr(W1+4*k,4)}, v72, s[44:47], s56 offen nt')
        if k < 9: A('s_add_u32 s56, s56, s57')
    if FB == 2: A('s_barrier')
    A(f'''s_or_b32 s3, s12, s4
    s_cbranch_scc1 L_notk
    s_mul_i32 s3, s5, {TKS}
    s_add_u32 s3, s3, {R_TK2}
    v_mov_b32 v60, s3
    s_mov_b64 exec, 1
    v_mov_b32 v62, {8*BS if BS else 64*NS}
    v_mov_b32 v63, 0
    global_store_dwordx2 v60, v[62:63], s[42:43] sc1
    s_mov_b64 exec, -1
    L_notk:''')
    masks(['v4', 'v5', 'v6', 'v7'], 'v2', 'v64', 'v65')
    A(f'''s_mul_i32 s11, s5, 768
    s_lshl_b32 s7, s12, 8
    s_add_u32 s11, s11, s7
    s_add_u32 s11, s11, {R_Q}
    v_lshlrev_b32 v74, 1, v74
    s_mov_b32 s54, 3
    v_add_u32 v76, {R_MA}, v74
    v_add_u32 v77, {R_MA + 5120}, v74
    v_add_u32 v78, {R_MA + 10240}, v74
    v_add_u32 v81, {R_MA + 15360}, v74
    s_lshl_b32 s3, s13, 1
    s_add_u32 s3, s3, {L_HB}
    v_lshl_add_u32 v73, v3, 2, s3
    s_waitcnt vmcnt(20) lgkmcnt(0)''')
    tags()
    XA = [v(150+i) for i in range(10)]
    for i in range(5):
        A(f'v_lshlrev_b32 {XA[2*i]}, 16, v{140+i}\nv_and_b32 {XA[2*i+1]}, 0xffff0000, v{140+i}')
    XN = ['v160', 'v161', 'v162', 'v163']
    A('v_lshlrev_b32 v160, 16, v146\nv_and_b32 v161, 0xffff0000, v146\nv_lshlrev_b32 v162, 16, v147\nv_and_b32 v163, 0xffff0000, v147')
    A(f'v_add_f32 v60, {XA[0]}, {XA[1]}')
    for i in range(2, 10): A(f'v_add_f32 v60, v60, {XA[i]}')
    allred8(['v60']); red_hi(['v60'])
    A(f'v_mul_f32 v60, {H(1/640)}, v60\nv_readlane_b32 s8, v60, 63')
    for i in range(10): A(f'v_subrev_f32 {XA[i]}, s8, {XA[i]}')
    A(f'v_mul_f32 v61, {XA[0]}, {XA[0]}')
    for i in range(1, 10): A(f'v_fmac_f32 v61, {XA[i]}, {XA[i]}')
    allred8(['v61']); red_hi(['v61'])
    A(f'v_mul_f32 v61, {H(1/640)}, v61')
    round_list(['v60', 'v61'], ['v62'])
    A(f'v_add_f32 v61, {H(1e-5)}, v61')
    round_list(['v61'], ['v62'])
    A('v_sqrt_f32 v61, v61')
    round_list(['v61'], ['v62'])
    A('v_rcp_f32 v61, v61\nv_readlane_b32 s8, v60, 63\nv_readlane_b32 s9, v61, 63')
    for r in XN: A(f'v_subrev_f32 {r}, s8, {r}')
    round_list(XN, ['v62', 'v63'])
    for r in XN: A(f'v_mul_f32 {r}, s9, {r}')
    round_list(XN, ['v62', 'v63'])
    set_exec(0xffffffff, 0xff)
    stamp(1)
    A(f's_waitcnt vmcnt({HAW})')
    stamp(2)
    G = 128
    A(f's_and_b32 s3, s14, {FM}\ns_sub_u32 s36, 0, s3\ns_subb_u32 s37, 0, s3')
    L = lab('ha')
    A(f'{L}:')
    for k in range(8): A(f'global_load_dwordx4 {vr(G+4*k,4)}, {["v76","v77","v78","v81"][k%4]}, s[42:43] offset:{2560*(k//4)} sc1')
    if FB == 3: A('s_cmp_eq_u32 s56, 0\ns_cbranch_scc1 L_nb3\ns_mov_b32 s56, 0\ns_barrier\nL_nb3:')
    A('s_waitcnt vmcnt(0)')
    untag(G, 32)
    ortree([v(G+i) for i in range(32)], 'v60')
    tag_end('v60', L, SLA, FM)
    A('s_and_b32 s3, s14, 15\ns_sub_u32 s36, 0, s3\ns_subb_u32 s37, 0, s3')
    stamp(3)
    for a, b in ((0,1),(2,3),(0,2)):
        for base in (0, 4):
            for h2 in (0, 2): A(f'v_pk_add_f32 {vr(G+4*(base+a)+h2,2)}, {vr(G+4*(base+a)+h2,2)}, {vr(G+4*(base+b)+h2,2)}')
    SA = [v(G+i) for i in range(4)]; CA = [v(G+16+i) for i in range(4)]
    TT = ['v60', 'v61', 'v62', 'v63']
    round_list(CA + SA, TT)
    for r in CA: A(f'v_add_f32 {r}, 1.0, {r}')
    round_list(CA, TT)
    for a, b in zip(CA, XN): A(f'v_mul_f32 {a}, {a}, {b}')
    round_list(CA, TT)
    for a, b in zip(CA, SA): A(f'v_add_f32 {a}, {a}, {b}')
    for r in CA: A(f'v_cvt_pk_bf16_f32 {r}, {r}, {r}')
    A(f'ds_write_b128 v74, v[144:147] offset:{L_HB}\ns_mov_b64 exec, -1')
    for k in range(5): A(f'ds_read2_b32 {vr(X1r+2*k,2)}, v73 offset0:{80 + 16*k} offset1:{80 + 16*k + 8}')
    for k in range(5): A(f'ds_read2_b32 {vr(X0+2*k,2)}, v73 offset0:{16*k} offset1:{16*k + 8}')
    A('s_waitcnt lgkmcnt(0)')
    for s in range(10):
        F = F0 + 4*(s & 1)
        for t in range(4): A(f'v_and_b32 v{F+t}, v{X1r+s}, v{4+t}')
        c = '0' if s == 0 else vr(D0, 4)
        A(f'v_mfma_f32_16x16x32_bf16 {vr(D0,4)}, {vr(F,4)}, {vr(W1+4*s,4)}, {c}')
    A('L_mm10:')
    for s in range(10):
        F = F0 + 4*(s & 1)
        for t in range(4): A(f'v_and_b32 v{F+t}, v{X0+s}, v{4+t}')
        A(f'v_mfma_f32_16x16x32_bf16 {vr(D0,4)}, {vr(F,4)}, {vr(W0+4*s,4)}, {vr(D0,4)}')
    A('''v_and_b32 v65, 16, v2
    v_lshrrev_b32 v66, 5, v2
    v_lshl_add_u32 v64, v1, 1, v65
    v_lshl_add_u32 v64, v66, 3, v64
    s_lshl_b32 s3, s4, 8
    v_add_u32 v64, s3, v64
    v_add_u32 v67, s11, v80
    s_and_b32 s9, s14, 0xffff''')
    A(f'v_permlane32_swap_b32 v60, v62\nv_permlane32_swap_b32 v61, v63')
    A(f'v_add_f32 v60, v62, v60 row_ror:8 {DPPF}\nv_add_f32 v61, v63, v61 row_ror:8 {DPPF}')
    set_exec(0x00ff00ff, 0x00ff00ff)
    A(f'''ds_write_b64 v64, v[60:61] offset:{L_MS}
    s_mov_b64 exec, 1
    ds_add_rtn_u32 v66, v0, v79 offset:{L_CM}
    s_mov_b64 exec, -1
    ds_read2st64_b32 v[68:69], v80 offset0:{L_MS//256} offset1:{L_MS//256+1}
    ds_read2st64_b32 v[70:71], v80 offset0:{L_MS//256+2} offset1:{L_MS//256+3}
    s_waitcnt lgkmcnt(0)
    v_readfirstlane_b32 s3, v66
    s_cmp_eq_u32 s54, 1
    s_cselect_b32 s7, {FM}, 15
    v_mov_b32 v65, s7
    s_cbranch_scc1 L_two
    v_pk_add_f32 v[68:69], v[68:69], v[70:71]
    L_two:
    v_add_f32 v68, v68, v69
    v_cvt_pk_bf16_f32 v69, v68, v68
    v_bfi_b32 v68, v65, s14, v68
    v_lshl_or_b32 v69, v69, 16, s9
    s_cmp_lt_u32 s2, 96
    s_cselect_b64 vcc, -1, 0
    v_cndmask_b32 v68, v68, v69, vcc
    s_cmp_eq_u32 s3, s54
    s_cbranch_scc0 L_nopub
    global_store_dword v67, v68, s[42:43] sc1
    L_nopub:
    s_setprio 3''')
    stamp(4)
    if HB:
        A('L_hopB:\ns_cmp_eq_u32 s4, 0\ns_cbranch_scc1 L_tail')
        if stamps == 1:
            A('s_waitcnt lgkmcnt(0)')
            for i in range(13): A(f'v_writelane_b32 v159, s{70+2*i}, {i}')
        elif stamps: A('s_waitcnt lgkmcnt(0)\nv_writelane_b32 v159, s70, 0')
        A(f'''s_mul_i32 s3, s5, 768
        s_lshl_b32 s7, s4, 8
        s_add_u32 s3, s3, s7
        s_add_u32 s3, s3, {R_Q - 256}
        s_add_u32 s52, s42, s3
        s_addc_u32 s53, s43, 0
        v_mov_b32 v64, s14
        v_mov_b32 v65, s15
        ds_write_b64 v0, v[64:65] offset:{L_TB}
        s_lshl_b32 s3, s4, 7
        v_lshl_add_u32 v74, v2, 1, s3''')
        L = lab('hb')
        for half in range(2):
            Lh = L if half == 0 else lab('hc'); D = lab('hbh')
            A(f'{Lh}:\ns_load_dwordx16 s[64:79], s[52:53], {128*half} glc\ns_load_dwordx16 s[80:95], s[52:53], {128*half+64} glc\ns_waitcnt lgkmcnt(0)')
            A(f's_xor_b32 s3, s64, s14\ns_xor_b32 s7, s95, s14\ns_or_b32 s3, s3, s7\ns_and_b32 s3, s3, 0xffff\ns_cbranch_scc0 {D}')
            spin_tail(Lh, SLB if half == 0 else 1)
            A(f'{D}:')
            for k in range(32): A(f'v_writelane_b32 v84, s{64+k}, {32*half+k}')
        D = lab('hbd')
        A(f'''v_xor_b32 v60, s14, v84
        v_lshlrev_b32 v60, 16, v60
        v_cmp_ne_u32 vcc, 0, v60
        s_cbranch_vccz {D}''')
        spin_tail(L, SLB)
        A(f'''{D}:
        ds_write_b16_d16_hi v74, v84 offset:{L_Q - 128}
        s_mov_b64 exec, 1
        ds_add_u32 v0, v79 offset:{L_CQ}
        s_mov_b64 exec, -1''')
        if stamps == 1:
            for i in range(13): A(f'v_readlane_b32 s{70+2*i}, v159, {i}')
        elif stamps: A('v_readlane_b32 s70, v159, 0')
        stamp(5)
    else:
        A('L_hopB:\ns_cmp_eq_u32 s4, 1\ns_cbranch_scc0 L_tail')
        A(f'''s_mul_i32 s3, s5, 768
        s_add_u32 s3, s3, {R_Q}
        v_add_u32 v73, s3, v75
        s_add_u32 s52, s42, s3
        s_addc_u32 s53, s43, 0
        v_mov_b32 v64, s14
        v_mov_b32 v65, s15
        ds_write_b64 v0, v[64:65] offset:{L_TB}
        v_mov_b32 v76, 0x07060302
        v_lshlrev_b32 v74, 3, v2
        s_lshl_b32 s7, s6, 4
        s_add_u32 s52, s52, s7
        s_addc_u32 s53, s53, 0''')
        set_exec(0xffffffff, 0xffff)
        L = lab('hb'); D = lab('hbh')
        A(f'{L}:')
        for k in range(3): A(f's_load_dword s{62+k}, s[52:53], {256*k} glc')
        A(f's_waitcnt lgkmcnt(0)\ns_xor_b32 s62, s62, s14\ns_xor_b32 s63, s63, s14\ns_xor_b32 s64, s64, s14\ns_or_b32 s62, s62, s63\ns_or_b32 s62, s62, s64\ns_and_b32 s62, s62, 0xffff\ns_cbranch_scc0 {D}')
        spin_tail(L, SLB)
        A(f'{D}:')
        stamp(12)
        D = lab('hbd')
        A(f'''global_load_dwordx4 v[84:87], v73, s[42:43] sc1
        s_waitcnt vmcnt(0)
        v_bitop3_b32 v60, v84, v85, s14 bitop3:0x7e
        v_bitop3_b32 v61, v86, v87, s14 bitop3:0x7e
        v_or_b32 v60, v60, v61
        v_lshlrev_b32 v60, 16, v60
        v_cmp_ne_u32 vcc, 0, v60
        s_cbranch_vccz {D}''')
        spin_tail(L, SLB)
        A(f'''{D}:
        v_perm_b32 v84, v85, v84, v76
        v_perm_b32 v85, v87, v86, v76
        ds_write_b64 v74, v[84:85] offset:{L_Q}
        s_mov_b64 exec, 1
        ds_add_u32 v0, v79 offset:{L_CQ}
        s_mov_b64 exec, -1''')
        stamp(5)

    def trig_wait(val, L_TRIG=L_TRIG):
        if val <= 0: return
        L = lab('tg'); D = lab('tgd'); W = lab('tgw')
        A(f's_cmp_eq_u32 s4, 3\ns_cbranch_scc0 {W}\ns_lshl_b32 s8, s5, 7\ns_add_u32 s8, s8, {R_TK}\nds_read_b32 v90, v0 offset:{L_TB}\ns_waitcnt lgkmcnt(0)\nv_readfirstlane_b32 s9, v90')
        A(f'{L}:\ns_load_dword s3, s[42:43], s8 glc\ns_waitcnt lgkmcnt(0)\ns_sub_u32 s3, s3, s9\ns_cmp_ge_u32 s3, {val}\ns_cbranch_scc1 {D}')
        spin_tail(L, 4)
        A(f'{D}:\nv_mov_b32 v90, 1\nds_write_b32 v0, v90 offset:{L_TRIG}\n{W}:')
        lds_wait_ge(L_TRIG, 1, 'v0', 'v90', sleep=2)
    def sgate(base, offs, regs, mask):
        L = lab('sg'); D = lab('sgd')
        A(f'{L}:')
        for o, r in zip(offs, regs): A(f's_load_dword s{r}, {base}, {o} glc')
        A('s_waitcnt lgkmcnt(0)')
        A(f's_xor_b32 s3, s{regs[0]}, s14')
        for r in regs[1:len(offs)]: A(f's_xor_b32 s{r}, s{r}, s14\ns_or_b32 s3, s3, s{r}')
        if mask != -1: A(f's_and_b32 s3, s3, {mask}')
        A(f's_cbranch_scc0 {D}')
        spin_tail(L, 0)
        A(f'{D}:')
    def ffn_prefetch():
        if not PFC: return
        Lk = lab('pf')
        A(f'''s_lshr_b32 s8, s2, 3
        s_lshl2_add_u32 s8, s8, s4
        s_cmp_ge_u32 s8, 120
        s_cbranch_scc1 {Lk}
        s_cmp_lt_u32 s8, 40
        s_cselect_b32 s64, s28, s30
        s_cselect_b32 s65, s29, s31
        s_cselect_b32 s9, 0, 40
        s_cmp_lt_u32 s8, 80
        s_cselect_b32 s64, s64, s32
        s_cselect_b32 s65, s65, s33
        s_cselect_b32 s9, s9, 80
        s_movk_i32 s66, 384
        s_cselect_b32 s67, 3072, s66
        s_cselect_b32 s66, s66, 245760
        s_sub_u32 s8, s8, s9
        s_mul_i32 s8, s8, s67
        s_lshl_b32 s8, s8, 4
        s_mul_i32 s9, s6, s66
        s_add_u32 s8, s8, s9
        v_lshrrev_b32 v165, 2, v2
        v_mul_u32_u24 v165, s67, v165
        v_lshl_add_u32 v165, v7, 4, v165
        s_mov_b32 s66, 1966080
        s_mov_b32 s67, 0x20000''')
        lds_wait_ge(L_CSTAT, PFC, 'v0', 'v90', sleep=1)
        set_exec(0x77777777, 0x77777777)
        A(f'buffer_load_dword v166, v165, s[64:67], s8 offen {PFP}\ns_mov_b64 exec, -1\n{Lk}:')
    A('L_tail:')
    if AFF: A('s_and_b32 s6, s2, 7')
    A('v_lshrrev_b32 v4, 4, v2\nv_and_b32 v5, 15, v2\nv_lshrrev_b32 v6, 2, v5\nv_and_b32 v7, 3, v2\nv_lshlrev_b32 v7, 3, v7')
    A('s_cmp_ge_u32 s2, 96\ns_cbranch_scc0 L_tailB')
    A('''s_lshr_b32 s13, s10, 3
    s_and_b32 s12, s2, 7
    s_lshl_b32 s12, s12, 1
    s_cmp_ge_u32 s13, 10
    s_cselect_b32 s3, 10, 0
    s_addc_u32 s12, s12, 0
    s_sub_u32 s13, s13, s3''')
    A(f'''s_lshr_b32 s23, s10, 3
    s_lshr_b32 s3, s10, 5
    s_cmp_eq_u32 s4, 2
    s_cselect_b32 s7, 2, 0
    s_add_u32 s3, s3, s7
    s_lshl3_add_u32 s3, s3, s6
    s_bfe_u32 s7, s10, 0x20003
    s_lshl2_add_u32 s10, s3, s7
    s_cmp_lt_u32 s10, 80
    s_cselect_b32 s57, 1, 0
    s_sub_u32 s3, s4, 1
    s_cmp_lt_u32 s3, 2
    s_cselect_b32 s57, s57, 0
    s_cmp_ge_u32 s23, 8
    s_cselect_b32 s57, 2, s57
    s_mul_i32 s3, s6, 12
    s_add_u32 s23, s23, s3
    s_sub_u32 s23, s23, 8
    s_lshl2_add_u32 s3, s57, s4
    s_cmp_eq_u32 s3, 8
    s_cbranch_scc0 L_noxc
    s_getreg_b32 s3, hwreg(HW_REG_XCC_ID, 0, 4)
    s_andn2_b32 s7, s14, 15
    s_or_b32 s3, s3, s7
    v_mov_b32 v101, s3
    s_lshl_b32 s3, s23, 2
    v_mov_b32 v100, s3
    s_mov_b64 exec, 1
    global_store_dword v100, v101, s[42:43] offset:{R_XC} sc1
    s_mov_b64 exec, -1
    L_noxc:''')
    A(f'''v_and_b32 v100, 1, v2
    v_lshl_add_u32 v100, v100, 2, v4
    s_lshl_b32 s3, s10, 3
    v_add_u32 v100, s3, v100
    v_lshlrev_b32 v101, 2, v100
    v_lshlrev_b32 v100, 1, v100
    v_add_u32 v102, {R_MOD + 5*2560}, v101
    v_add_u32 v101, {R_X1}, v101
    v_lshrrev_b32 v103, 1, v2
    v_mul_u32_u24 v103, 2560, v103
    v_and_b32 v104, 1, v2
    v_lshl_add_u32 v103, v104, 4, v103
    s_lshl_b32 s3, s10, 5
    s_add_u32 s3, s3, {R_DN}
    v_add_u32 v103, s3, v103
    v_add_u32 v104, {32*2560}, v103
    v_add_u32 v105, {64*2560}, v103''')
    B0 = 8; AA = 56; DD = 68
    A(f'''v_lshl_add_u32 v84, v4, 3, v6
    s_mul_i32 s3, s4, 96
    v_add_u32 v84, s3, v84
    v_lshl_add_u32 v84, v84, 7, v7
    v_lshl_add_u32 v85, v3, 9, v1
    s_lshr_b32 s3, s4, 1
    s_lshl1_add_u32 s3, s12, s3
    s_lshl_b32 s3, s3, 12
    s_and_b32 s7, s4, 1
    s_lshl_b32 s7, s7, 8
    s_add_u32 s3, s3, s7
    s_add_u32 s3, s3, {R_O}
    v_add_u32 v85, s3, v85
    v_mov_b32 v118, 0x05040100
    s_mul_i32 s3, s4, 2048
    s_add_u32 s3, s3, {L_W + 49152}
    v_and_b32 v90, 7, v2
    v_mul_u32_u24 v119, 192, v3
    v_mul_u32_u24 v91, 12, v90
    v_add3_u32 v119, v119, v91, s3
    v_mul_u32_u24 v133, 192, v90
    v_lshl_add_u32 v133, v4, 4, v133
    v_add_u32 v133, s3, v133
    v_lshl_add_u32 v134, v3, 4, v90
    v_add_u32 v134, s3, v134
    v_add_u32 v135, s3, v1
    v_cmp_gt_u32 vcc, 6, v90
    v_cndmask_b32 v90, 16, 24, vcc
    v_lshlrev_b32 v91, v90, s14
    v_lshlrev_b32 v128, v90, -1
    s_lshl_b32 s26, s14, 16
    v_lshrrev_b32 v86, 5, v2
    v_lshl_add_u32 v86, v86, 4, v5
    v_lshlrev_b32 v86, 5, v86
    v_and_b32 v87, 1, v4
    v_lshl_add_u32 v86, v87, 2, v86
    s_lshl_b32 s3, s4, 3
    v_add_u32 v86, s3, v86
    v_lshlrev_b32 v87, 5, v2
    s_mul_i32 s3, s12, 2560
    s_lshl_b32 s7, s13, 8
    s_add_u32 s3, s3, s7
    s_add_u32 s3, s3, {R_P}
    v_lshl_add_u32 v88, v2, 2, s3
    v_mov_b32 v89, 1
    s_lshl_b32 s3, s10, 5
    s_add_u32 s3, s3, {R_DN}
    s_add_u32 s54, s42, s3
    s_addc_u32 s55, s43, 0
    v_mov_b32 v98, 0xffff0000''')
    A(f'''s_mul_i32 s3, s12, {384*1280}
    s_lshl_b32 s7, s13, 7
    s_add_u32 s3, s3, s7
    s_add_u32 s44, s24, s3
    s_addc_u32 s45, s25, 0
    s_mov_b32 s46, {384*1280}
    v_mul_u32_u24 v72, 1280, v3
    v_and_b32 v90, 16, v2
    v_lshlrev_b32 v90, 1, v90
    v_xor_b32 v90, v90, v1
    v_add_u32 v72, v72, v90
    v_and_b32 v90, 1, v4
    v_lshrrev_b32 v92, 1, v6
    v_lshl_or_b32 v90, v90, 1, v92
    v_lshlrev_b32 v90, 5, v90
    v_add_u32 v84, v84, v90
    v_xor_b32 v154, 32, v84
    v_xor_b32 v155, 64, v84
    v_xor_b32 v156, 0x60, v84''')
    SE = 3 - WDEF
    def trread(s):
        for ct in range(4):
            for hf in range(2):
                A(f'ds_read_b64_tr_b16 {vr(B0+(s*4+ct)*4+2*hf,2)}, {["v84","v154","v155","v156"][ct]} offset:{L_W + (32*s+4*hf)*128}')
    if SE and not EQ:
        A(f's_cmp_eq_u32 s4, 0\ns_cbranch_scc0 L_nodma\ns_movk_i32 s7, {L_W}\ns_setprio {DPRIO}')
        stamp(6)
        L = lab('dma'); L2 = lab('dmo')
        A(f's_mov_b32 s56, 0\n{L2}:\ns_mov_b32 s8, 0\n{L}:\ns_mov_b32 m0, s7\ns_add_u32 s7, s7, 1024\nbuffer_load_dwordx4 v72, s[44:47], s56 offen nt lds\nv_xor_b32 v72, 64, v72\ns_add_u32 s56, s56, 10240\ns_waitcnt vmcnt({TWA})')
        A(f's_add_u32 s8, s8, 1\ns_cmp_lt_u32 s8, {4*SE}\ns_cbranch_scc1 {L}')
        A(f's_add_u32 s7, s7, {4096*WDEF}\ns_add_u32 s56, s56, {40960*WDEF}\ns_cmp_lt_u32 s56, {384*1280}\ns_cbranch_scc1 {L2}')
        A(f's_waitcnt vmcnt(0)\nds_write_b32 v0, v89 offset:{L_WRDY}')
        stamp(7)
        A('L_nodma:')
    A(f's_setprio {CP}')
    if SE:
        if EQ: A('s_waitcnt vmcnt(0)')
        else: lds_wait_ge(L_WRDY, 1, 'v0', 'v90', sleep=8)
        for s in range(SE):
            trread(s)
            A('s_waitcnt lgkmcnt(0)')
    if not WDEF: stamp(8)
    A('s_cmp_eq_u32 s57, 1\ns_cbranch_scc0 L_nofin')
    if not SE or EQ: lds_wait_ge(L_CQ, 5, 'v0', 'v90', sleep=8)
    A('global_load_ushort v107, v100, s[38:39]')
    A('v_add_u32 v132, 15360, v102')
    L = lab('gb')
    A(f'{L}:\nglobal_load_dword v120, v102, s[42:43] sc1\nglobal_load_dword v121, v132, s[42:43] sc1\ns_waitcnt vmcnt(0)')
    untag(120, 2)
    ortree(['v120', 'v121'], 'v90')
    tag_end('v90', L, 16)
    A('v_add_f32 v106, v120, v121')
    round_list(['v106'], ['v90'])
    A('L_nofin:')
    tailtags()
    def act_dma():
        for n in range(5):
            A(f's_add_u32 m0, s13, {1024*n}\ns_nop 0\nbuffer_load_dwordx4 v{148+n}, s[48:51], 0 offen nt lds')
        if TCH == 0: act_touch()
    def act_touch():
        A('s_mov_b64 exec, 31')
        if NGT < 2: A('global_load_dword v167, v153, s[42:43] sc1')
        if NGT < 1: A(f'v_add_u32 v153, {R_GU - R_DN}, v153\nglobal_load_dword v167, v153, s[42:43] sc1')
        A('s_mov_b64 exec, -1')
    for n in range(5):
        A(f'v_add_u32 v90, {64*n}, v2\nv_mul_u32_u24 v92, 3277, v90\nv_lshrrev_b32 v92, 16, v92\nv_mul_u32_u24 v92, 960, v92\nv_lshl_add_u32 v{148+n}, v90, 4, v92')
    A(f'''s_min_u32 s23, s23, 95
    s_mul_i32 s3, s23, 20480
    s_mul_i32 s7, s4, 320
    s_add_u32 s3, s3, s7
    s_add_u32 s48, s32, s3
    s_addc_u32 s49, s33, 0
    s_movk_i32 s50, {15*1280 + 320}
    s_mul_i32 s13, s4, 5120
    s_add_u32 s13, s13, {L_DN}
    s_lshl2_add_u32 s3, s23, s4
    s_mul_i32 s12, s3, 640
    s_add_u32 s12, s12, {R_DN}
    v_lshl_add_u32 v153, v2, 7, s12
    v_and_b32 v132, 1, v4
    v_lshl_add_u32 v132, v132, 3, v6
    v_mul_u32_u24 v132, 320, v132
    v_lshrrev_b32 v90, 1, v4
    v_lshl_add_u32 v90, v90, 5, v7
    v_add3_u32 v132, v132, v90, s13
    v_and_b32 v165, 16, v2
    v_lshl_add_u32 v165, v165, 3, v1
    v_lshrrev_b32 v90, 5, v2
    v_mul_u32_u24 v90, 384, v90
    v_add_u32 v165, v165, v90
    v_cmp_eq_u32 vcc, 8, v2
    v_mov_b32 v90, 256
    v_cndmask_b32 v165, v165, v90, vcc
    s_mul_i32 s3, s23, 2560
    s_add_u32 s3, s3, {R_GU}
    v_add_u32 v165, s3, v165
    v_lshlrev_b32 v166, 6, v5
    v_lshl_add_u32 v166, v4, 4, v166
    v_add_u32 v166, s12, v166
    v_lshrrev_b32 v90, 1, v4
    v_and_b32 v92, 1, v2
    v_cmp_eq_u32 s[62:63], v90, v92
    v_lshrrev_b32 v90, 1, v5''')
    for m in range(5):
        A(f'v_cmp_eq_u32 vcc, {m}, v90\ns_and_b64 vcc, vcc, s[62:63]\nv_cndmask_b32 v{160+m}, 0, -1, vcc')
    if TLB in (1, 2):
        A('s_cmp_eq_u32 s4, 2\ns_cbranch_scc0 L_nowarm')
        if TLB == 1: lds_wait_ge(L_CSTAT, 1, 'v0', 'v90', sleep=2)
        A(f's_lshl_b32 s3, s59, 9\ns_add_u32 s3, s3, {R_O}\nv_lshl_add_u32 v90, v2, 7, s3\ns_mov_b64 exec, 15\nglobal_load_dword v167, v90, s[42:43] sc1')
        set_exec(1, 1)
        if PW >= 1: A('global_load_dword v167, v88, s[42:43] sc1')
        if PW >= 2: A('v_add_u32 v90, 40960, v88\nglobal_load_dword v167, v90, s[42:43] sc1')
        A('s_mov_b64 exec, -1\nL_nowarm:')
    if WDEF:
        A(f's_mul_i32 s7, s4, 12288\ns_add_u32 s7, s7, {L_W + 4096*SE}\ns_mul_i32 s56, s4, 122880\ns_add_u32 s56, s56, {40960*SE}')
    ffn_prefetch()
    if ADM:
        A('s_cmp_eq_u32 s57, 2\ns_cbranch_scc0 L_noad')
        if ADM < 9: lds_wait_ge(L_CSTAT, ADM, 'v0', 'v90', sleep=1)
        elif ADM == 9: lds_wait_ge(L_CO, 9, 'v0', 'v90', sleep=1)
        act_dma()
        A('L_noad:')
    if TCH:
        A('s_cmp_eq_u32 s57, 2\ns_cbranch_scc0 L_notch')
        if TCH < 9: lds_wait_ge(L_CSTAT, TCH, 'v0', 'v90', sleep=1)
        act_touch()
        A('L_notch:')
    for c in range(1, PREP): A(f's_mov_b32 s{15+c}, {c*40960}')
    if CS and not WDEF: lds_wait_ge(L_CSTAT, CS, 'v0', 'v90', sleep=1)
    elif WP:
        if LS: lds_wait_ge(L_CSTAT, 1, 'v0', 'v90', sleep=LS)
        lds_wait_ge(L_CSTAT, WPC, 'v0', 'v90', sleep=1)
    if WDEF:
        for k in range(4*WDEF):
            if k == WP: lds_wait_ge(L_CO, 9, 'v0', 'v90', sleep=WSL)
            A('s_mov_b32 m0, s7\ns_add_u32 s7, s7, 1024\nbuffer_load_dwordx4 v72, s[44:47], s56 offen nt lds\nv_xor_b32 v72, 64, v72\ns_add_u32 s56, s56, 10240')
        OX = 120
        for s in range(SE, 2):
            A(f's_waitcnt vmcnt({4*(2-s)}) lgkmcnt(0)')
            trread(s)
        if OEARLY == 0:
            A('s_waitcnt vmcnt(0) lgkmcnt(0)')
            trread(2)
            stamp(8)
            if OG: lds_wait_ge(L_CO, OG, 'v0', 'v90', sleep=0)
            if AG:
                L = lab('ag'); D = lab('agd'); W = lab('agw')
                A(f's_bitcmp0_b32 s4, 0\ns_cbranch_scc0 {W}')
                A(f'{L}:\ns_load_dword s3, s[42:43], s27 glc\ns_waitcnt lgkmcnt(0)\ns_cmp_ge_u32 s3, {AG}\ns_cbranch_scc1 {D}')
                spin_tail(L, AGS)
                A(f'{D}:\nds_write_b32 v129, v89 offset:{L_BT}\n{W}:')
                lds_wait_ge(L_BT, 1, 'v129', 'v90', sleep=0)
            stamp(9)
        else:
            if OEARLY < 4: A(f's_waitcnt vmcnt({OEARLY})')
            if OG: lds_wait_ge(L_CO, OG, 'v0', 'v90', sleep=0)
            for s in range(2): A(f'global_load_dwordx4 {vr(OX+4*s,4)}, v85, s[42:43] offset:{128*s} sc1')
            A(f's_waitcnt vmcnt(2) lgkmcnt(0)')
            trread(2)
            stamp(8)
            stamp(9)
            A('s_waitcnt lgkmcnt(0)\ns_branch L_wochk')
    else: stamp(9)
    OX = 120
    if WDEF: pass
    elif G1:
        L = lab('sw'); D = lab('swd')
        A(f'{L}:\ns_load_dwordx16 s[16:31], s[52:53], 0 glc\ns_load_dwordx4 s[32:35], s[52:53], 64 glc\ns_load_dwordx4 s[44:47], s[52:53], 80 glc\ns_load_dwordx8 s[60:67], s[52:53], 96 glc\ns_waitcnt lgkmcnt(0)')
        A('s_add_u32 s3, s18, s22\ns_add_u32 s7, s26, s30\ns_add_u32 s3, s3, s34\ns_add_u32 s7, s7, s46\ns_add_u32 s3, s3, s62\ns_add_u32 s7, s7, s66\ns_add_u32 s3, s3, s7\ns_lshl_b32 s7, s14, 3')
        A(f's_cmp_eq_u32 s3, s7\ns_cbranch_scc1 {D}')
        spin_tail(L, 0)
        A(f'{D}:')
    else:
        L = lab('wg'); D = lab('wgd')
        set_exec(0x01010101, 0x01010101)
        A(f'{L}:\nglobal_load_dwordx4 v[108:111], v91, s[42:43] sc1\ns_waitcnt vmcnt(0)\nv_cmp_ne_u64 vcc, s[14:15], v[110:111]\ns_bcnt1_i32_b64 s3, vcc\ns_cmp_le_u32 s3, {GATE}\ns_cbranch_scc1 {D}')
        spin_tail(L, GSL)
        A(f'{D}:')
    stamp(3)
    if stamps == 1: A('s_mov_b32 s82, s58')
    L = lab('wo'); L2 = lab('wp'); D = lab('woq')
    if not WDEF: A(f'{L}:\ns_mov_b64 exec, -1')
    A(f'{L2}:')
    assert WDEF
    for s in range(2): A(f'global_load_dwordx4 {vr(OX+4*s,4)}, v85, s[42:43] offset:{128*s} sc1')
    A(f'''L_wochk:
    s_waitcnt vmcnt(1)
    v_perm_b32 v136, v{OX+3}, v{OX+1}, v118
    ds_write2_b32 v119, v{OX}, v{OX+2} offset0:0 offset1:1
    ds_write_b8_d16_hi v134, v{OX+3} offset:1538
    ds_write_b32 v119, v136 offset:8
    v_bitop3_b32 v92, v{OX+3}, v91, v128 bitop3:0x28
    v_xor_b32 v93, s26, v{OX+1}
    s_waitcnt vmcnt(0)
    v_perm_b32 v137, v{OX+7}, v{OX+5}, v118
    ds_write2_b32 v119, v{OX+4}, v{OX+6} offset0:24 offset1:25
    ds_write_b32 v119, v137 offset:104
    s_mov_b64 s[8:9], exec
    s_mov_b64 exec, -1
    ds_read_b64 v[142:143], v135 offset:1536''')
    for s in range(3): A(f'ds_read_b128 {vr(AA+4*s,4)}, v133 offset:{64*s}')
    A(f'''s_mov_b64 exec, s[8:9]
    v_bitop3_b32 v94, v{OX+5}, v{OX+7}, s26 bitop3:0x7e
    v_bitop3_b32 v93, v93, v94, v98 bitop3:0xa8
    v_or_b32 v90, v92, v93
    v_cmp_ne_u32 vcc, 0, v90
    s_wqm_b64 exec, vcc
    s_cbranch_scc0 {D}''')
    spin_tail(L2, OSL)
    A(f'{D}:\ns_mov_b64 exec, -1\ns_waitcnt lgkmcnt(0)\nv_and_b32 v142, v98, v142')
    stamp(2)
    if stamps == 1: A('s_sub_u32 s82, s82, s58')
    fac = [f'v_max_f32 v116, v142, v142 quad_perm:[1,0,3,2] {DPPF}',
           f'v_max_f32 v116, v116, v116 quad_perm:[2,3,0,1] {DPPF}',
           f'v_max_f32 v116, v116, v116 row_half_mirror {DPPF}\nv_sub_f32 v116, v142, v116',
           f'v_mul_f32 v116, {H(LOG2E)}, v116\nv_exp_f32 v116, v116',
           f'v_mul_f32 v117, v116, v143',
           f'v_add_f32 v117, v117, v117 quad_perm:[1,0,3,2] {DPPF}',
           f'v_add_f32 v117, v117, v117 quad_perm:[2,3,0,1] {DPPF}',
           f'v_add_f32 v117, v117, v117 row_half_mirror {DPPF}\nv_rcp_f32 v117, v117',
           f'v_mul_f32 v116, v116, v117',
           '\n'.join(f'v_mov_b32 v{112+r}, v116 row_newbcast:{r} row_mask:0x5 bank_mask:0xf' for r in range(2)),
           '\n'.join(f'v_mov_b32 v{112+r}, v116 row_newbcast:{r} row_mask:0x5 bank_mask:0xf' for r in range(2, 4)),
           '\n'.join(f'v_mov_b32 v{112+r}, v116 row_newbcast:{4+r} row_mask:0xa bank_mask:0xf' for r in range(4))]
    k = 0
    for s in range(3):
        for ct in range(4):
            c = '0' if s == 0 else vr(DD+4*ct, 4)
            A(f'v_mfma_f32_16x16x32_bf16 {vr(DD+4*ct,4)}, {vr(AA+4*s,4)}, {vr(B0+(s*4+ct)*4,4)}, {c}')
            A(fac[k]); k += 1
    stamp(10)
    A('s_mov_b32 exec_lo, 0')
    for ct in (0, 2):
        A(f'v_pk_mul_f32 {vr(144+ct,2)}, {vr(DD+4*ct+4,2)}, v[112:113]\nv_pk_fma_f32 {vr(144+ct,2)}, {vr(DD+4*ct+6,2)}, v[114:115], {vr(144+ct,2)}')
    A('s_not_b64 exec, exec')
    for ct in (0, 2):
        A(f'v_pk_mul_f32 {vr(144+ct,2)}, {vr(DD+4*ct,2)}, v[112:113]\nv_pk_fma_f32 {vr(144+ct,2)}, {vr(DD+4*ct+2,2)}, v[114:115], {vr(144+ct,2)}')
    A(f's_mov_b64 exec, -1\nv_add_f32 v{DD}, v144, v145\nv_add_f32 v{DD+8}, v146, v147')
    A(f'ds_write_b32 v86, v{DD} offset:{L_PACC}\nds_write_b32 v86, v{DD+8} offset:{L_PACC + 1024}')
    A(f's_mov_b64 exec, 1\nds_add_rtn_u32 v90, v0, v89 offset:{L_CWO}\ns_mov_b64 exec, -1\nds_read_b128 v[92:95], v87 offset:{L_PACC}\nds_read_b128 v[96:99], v87 offset:{L_PACC+16}')
    A('s_waitcnt lgkmcnt(0)\nv_readfirstlane_b32 s3, v90')
    A('v_pk_add_f32 v[92:93], v[92:93], v[94:95]\nv_pk_add_f32 v[96:97], v[96:97], v[98:99]\nv_pk_add_f32 v[92:93], v[92:93], v[96:97]\nv_add_f32 v92, v92, v93\nv_bfi_b32 v92, 63, s14, v92')
    A('s_cmp_eq_u32 s3, 3\ns_cbranch_scc0 L_wonost\nglobal_store_dword v88, v92, s[42:43] sc1')
    for c in range(1, PREP): A(f'buffer_store_dword v92, v88, s[40:43], s{15+c} offen sc1')
    A('L_wonost:')
    stamp(11)
    A('s_cmp_eq_u32 s57, 2\ns_cbranch_scc1 L_act\ns_cmp_eq_u32 s57, 0\ns_cbranch_scc1 L_fin')
    L = lab('fx'); D = lab('fxd')
    A(f'{L}:\nglobal_load_dword v20, v101, s[42:43] sc1\ns_waitcnt vmcnt(0)\nv_xor_b32 v21, s14, v20\nv_lshlrev_b32 v21, 16, v21\nv_cmp_ne_u32 vcc, 0, v21\ns_cbranch_vccz {D}')
    spin_tail(L, 1)
    A(f'{D}:')
    def pend_poll(loads, regs, init, tmp, pre_sleep=0):
        n = len(loads)
        M = [f's[{62+2*k}:{63+2*k}]' for k in range(n)]
        for k in range(n): A(f's_mov_b64 {M[k]}, {init}')
        if FREE:
            for k in range(n): A(f'v_not_b32 v{regs[k]}, s14')
        L = lab('pl'); D = lab('pld')
        A(f'{L}:')
        for k in range(n): A(f's_mov_b64 exec, {M[k]}\n{loads[k]}')
        A(f's_mov_b64 exec, {init}')
        for k in range(n):
            r = regs[k]
            if not FREE: A(f's_waitcnt vmcnt({n-1-k})')
            elif k == 0: A(f's_waitcnt vmcnt({CAP*n})' + (f'\ns_sleep {FS}' if FS else ''))
            A(f'v_bitop3_b32 v{tmp}, v{r}, v{r+1}, s14 bitop3:0x7e\nv_bitop3_b32 v{tmp+1}, v{r+2}, v{r+3}, s14 bitop3:0x7e\nv_bitop3_b32 v{tmp}, v{tmp}, v{tmp+1}, 15 bitop3:0xa8\nv_cmp_ne_u32 {M[k]}, 0, v{tmp}')
        A(f's_or_b64 s[8:9], {M[0]}, {M[1]}')
        for k in range(2, n): A(f's_or_b64 s[8:9], s[8:9], {M[k]}')
        A(f's_cbranch_scc0 {D}')
        spin_tail(L, 0)
        A(f'{D}:')
    if G4: sgate('s[54:55]', [2560*((k*96)//G4 + (k*5) % (96//G4)) for k in range(G4)], list(range(16, 32)), 15)
    elif FG:
        L = lab('fg'); D = lab('fgd')
        set_exec(FG & 0xffffffff, FG >> 32)
        A(f'{L}:\nglobal_load_dwordx4 v[8:11], v104, s[42:43] sc1\ns_waitcnt vmcnt(0)\nv_bitop3_b32 v90, v8, v9, s14 bitop3:0x7e\nv_bitop3_b32 v91, v10, v11, s14 bitop3:0x7e\nv_bitop3_b32 v90, v90, v91, 63 bitop3:0xa8\nv_cmp_eq_u32 vcc, 0, v90\ns_cbranch_vccnz {D}')
        A(f's_sub_u32 s58, s58, 1\ns_cbranch_scc0 {L}\ns_branch L_fin\n{D}:\ns_mov_b64 exec, -1')
    elif FSL: A(f's_sleep {FSL}')
    L = lab('fi'); D = lab('fid')
    A(f'{L}:')
    for k in range(3): A(f'global_load_dwordx4 {vr(8+4*k,4)}, v{103+k}, s[42:43] sc1')
    A('s_waitcnt vmcnt(1)')
    untag(8, 8)
    A('v_pk_add_f32 v[22:23], v[8:9], v[12:13]\nv_pk_add_f32 v[24:25], v[10:11], v[14:15]\nv_or3_b32 v90, v8, v9, v10\nv_or3_b32 v91, v11, v12, v13\ns_waitcnt vmcnt(0)')
    untag(16, 4)
    A(f'''v_pk_add_f32 v[22:23], v[22:23], v[16:17]
    v_pk_add_f32 v[24:25], v[24:25], v[18:19]
    v_or3_b32 v90, v90, v14, v15
    v_or3_b32 v91, v91, v16, v17''')
    if PD:
        A(f'''v_or3_b32 v90, v90, v18, v19
        v_bitop3_b32 v90, v90, v91, 63 bitop3:0xa8
        v_cmp_ne_u32 vcc, 0, v90
        s_wqm_b64 exec, vcc
        s_cbranch_scc0 {D}''')
        spin_tail(L, 0)
        A(f'''{D}:
        s_mov_b64 exec, -1
        v_permlane32_swap_b32 v22, v24
        v_permlane32_swap_b32 v23, v25
        v_pk_add_f32 v[22:23], v[22:23], v[24:25]
        v_permlane16_swap_b32 v22, v23
        v_add_f32 v26, v22, v23''')
    else:
        A(f'''v_permlane32_swap_b32 v22, v24
        v_permlane32_swap_b32 v23, v25
        v_pk_add_f32 v[22:23], v[22:23], v[24:25]
        v_or3_b32 v90, v90, v18, v19
        v_bitop3_b32 v90, v90, v91, 63 bitop3:0xa8
        v_permlane16_swap_b32 v22, v23
        v_add_f32 v26, v22, v23
        v_cmp_ne_u32 vcc, 0, v90
        s_cbranch_vccz {D}''')
        spin_tail(L, 0)
        A(f'{D}:')
    A(f'v_add_f32 v26, v26, v26 row_ror:2 {DPPF}')
    stamp(12)
    A(f'v_add_f32 v26, v26, v26 row_ror:4 {DPPF}\nv_and_b32 v20, 0xffff0000, v20\nv_add_f32 v26, v26, v26 row_ror:8 {DPPF}')
    A('v_cvt_pk_bf16_f32 v26, v26, v26\nv_and_b32 v26, 0xffff0000, v26\nv_mul_f32 v26, v26, v106\nv_cvt_pk_bf16_f32 v26, v26, v26\nv_and_b32 v26, 0xffff0000, v26')
    A('v_add_f32 v26, v26, v20\nv_cvt_pk_bf16_f32 v26, v26, v26')
    set_exec(0x00030003, 0x00030003)
    A(f'global_store_short v100, v26, s[38:39] {OF}')
    stamp(13)
    A('s_branch L_fin' if stamps else 's_endpgm')

    A('L_tailB:')
    A(f's_setprio {CP}')
    lds_wait_ge(L_CQ, 5, 'v0', 'v90', sleep=8)
    calc_t('s12')
    G0 = 8; U0 = 28; WD = 48
    P0 = 100; HA = 100
    A(f'''s_and_b32 s57, s12, 3
    s_mul_i32 s13, s57, 160
    s_mul_i32 s3, s4, 40
    v_lshl_add_u32 v80, v5, 2, s3
    v_add_u32 v81, v80, v4
    v_lshlrev_b32 v85, 1, v81
    v_add_u32 v81, s13, v81
    v_lshlrev_b32 v82, 1, v81
    v_lshlrev_b32 v86, 2, v81
    v_add_u32 v80, s13, v80
    s_add_u32 s44, s42, {R_MOD + 5120}
    s_addc_u32 s45, s43, 0
    s_mov_b32 s46, {2*15360}
    s_movk_i32 s20, 5120
    s_movk_i32 s21, 15360
    s_movk_i32 s22, {15360 + 5120}
    v_mul_u32_u24 v84, 2560, v4
    v_lshl_add_u32 v84, v80, 2, v84
    {'s_lshr_b32 s3, s6, 1' if PCM else 's_and_b32 s3, s6, %d' % (PREP-1)}
    s_mul_i32 s3, s3, 40960
    s_add_u32 s3, s3, {R_P}
    s_add_u32 s48, s42, s3
    s_addc_u32 s49, s43, 0
    s_mov_b32 s50, {16*2560}''')
    set_exec(0x03ff03ff, 0x03ff03ff)
    A('global_load_ushort v71, v82, s[16:17]')
    A('s_andn2_b32 s3, s12, 3\ns_add_u32 s3, s3, s4\ns_lshl_b32 s3, s3, 2\nv_mov_b32 v112, s3')
    L = lab('mf')
    A(f'{L}:')
    A(f'global_load_dword v108, v112, s[42:43] offset:{R_XC} sc1')
    for k, (so, off) in enumerate((('0', 0), ('s21', 0), ('0', 2560), ('s21', 2560), ('s20', 0), ('s22', 0))):
        A(f'buffer_load_dword v{100+k}, v86, s[44:47], {so} offen offset:{off} sc1')
    A('s_waitcnt vmcnt(0)')
    untag(100, 6)
    ortree([v(100+i) for i in range(6)], 'v90')
    A('''v_xor_b32 v113, s14, v108
    v_and_b32 v113, -16, v113
    v_min_u32 v113, 1, v113
    v_or_b32 v90, v90, v113''')
    tag_end('v90', L, 16)
    A('v_readfirstlane_b32 s16, v108\ns_getreg_b32 s3, hwreg(HW_REG_XCC_ID, 0, 4)\ns_xor_b32 s16, s16, s3\ns_and_b32 s16, s16, 15')
    for k in range(3): A(f'v_add_f32 v{68+k}, v{100+2*k}, v{101+2*k}')
    round_list(['v68', 'v69', 'v70'], ['v90', 'v91'])
    A('v_lshlrev_b32 v71, 16, v71\nv_add_f32 v70, 1.0, v70')
    round_list(['v70'], ['v90'])
    A(f'''v_mov_b32 v90, 1.0
    ds_write_b16_d16_hi v85, v70 offset:{L_A}
    ds_write_b16_d16_hi v85, v69 offset:{L_A + LAP}
    ds_write_b16_d16_hi v85, v90 offset:{L_A + 5*LAP}
    s_mov_b64 exec, -1
    v_add_u32 v86, {R_X1}, v86''')
    A(f'''v_mul_u32_u24 v72, 3072, v3
    v_and_b32 v73, 16, v2
    v_lshlrev_b32 v73, {1 if SWZ else 8}, v73
    v_and_b32 v73, 32, v73
    s_and_b32 s3, s4, {1 if SWZ else 0}
    s_lshl_b32 s3, s3, 6
    v_or_b32 v73, s3, v73
    v_xor_b32 v73, v73, v1
    v_add_u32 v72, v72, v73
    s_lshr_b32 s3, s12, 2
    s_lshl_b32 s3, s3, 7
    s_lshl_b32 s7, s57, 2
    s_add_u32 s7, s7, s4
    s_mul_i32 s7, s7, {40*3072}
    s_add_u32 s3, s3, s7
    s_add_u32 s44, s28, s3
    s_addc_u32 s45, s29, 0
    s_mov_b32 s46, {40*3072}
    s_add_u32 s52, s30, s3
    s_addc_u32 s53, s31, 0
    s_mov_b32 s54, {40*3072}
    s_mov_b32 s55, 0x20000
    s_mul_i32 s11, s4, 5120
    s_add_u32 s7, s11, {L_W}''')
    A(f'''v_lshl_add_u32 v87, v4, 3, v6
    v_lshl_add_u32 v87, v87, 7, v7
    v_and_b32 v88, 1, v4
    v_lshrrev_b32 v89, 1, v6
    v_lshl_or_b32 v89, v88, 1, v89
    v_and_b32 v89, {3 if SWZ else 0}, v89
    v_xor_b32 v89, s4, v89
    v_lshl_add_u32 v87, v89, 5, v87
    v_mov_b32 v79, 1''')
    if TLB in (1, 2):
        if TLB == 1: lds_wait_ge(L_CSTAT, 1, 'v0', 'v90', sleep=2)
        A(f's_cmp_eq_u32 s4, 2\ns_cbranch_scc0 L_nowarmB\ns_lshl_b32 s3, s59, 9\ns_add_u32 s3, s3, {R_O}\nv_lshl_add_u32 v90, v2, 7, s3\ns_mov_b64 exec, 15\nglobal_load_dword v167, v90, s[42:43] sc1\ns_mov_b64 exec, -1\nL_nowarmB:')
    A(f'''v_min_u32 v76, 5, v5
    v_mul_u32_u24 v76, {LAP}, v76
    v_lshl_add_u32 v76, v4, 4, v76
    s_andn2_b32 s3, s12, 3
    s_add_u32 s3, s3, s4
    s_lshl_b32 s3, s3, 2
    s_add_u32 s3, s3, s57
    s_mul_i32 s3, s3, 640
    s_add_u32 s3, s3, {R_GU}
    v_min_u32 v77, 16, v2
    v_lshl_add_u32 v77, v77, 4, s3
    s_movk_i32 s20, 10240
    s_movk_i32 s21, 20480
    s_movk_i32 s22, 30720
    v_cmp_eq_u32 s[34:35], 20, v2
    s_mov_b32 s18, 0x03ff03ff
    s_mov_b32 s19, 0x03ff03ff
    s_and_b32 s17, s14, 0xffff''')
    tailtags()
    A('s_mov_b32 s56, 0')
    if LS: lds_wait_ge(L_CSTAT, 1, 'v0', 'v90', sleep=LS)
    if BP: lds_wait_ge(L_CSTAT, BPC, 'v0', 'v90', sleep=1)
    for n in range(5):
        if n == BP:
            lds_wait_ge(L_CO, 9, 'v0', 'v90', sleep=1)
            stamp(6)
            if BDL: A(f's_sleep {BDL}')
            if BG:
                L = lab('bg'); D = lab('bgd'); W = lab('bgw')
                A(f's_cmp_eq_u32 s4, 0\ns_cbranch_scc0 {W}\ns_mul_i32 s8, s5, {TKS}\ns_add_u32 s8, s8, {R_TK2 + 4}')
                A(f'{L}:\ns_load_dword s3, s[42:43], s8 glc\ns_waitcnt lgkmcnt(0)\ns_cmp_ge_u32 s3, {BG}\ns_cbranch_scc1 {D}')
                spin_tail(L, 1)
                A(f'{D}:\nds_write_b32 v0, v79 offset:{L_TRIG}\n{W}:')
                lds_wait_ge(L_TRIG, 1, 'v0', 'v90', sleep=0)
        A(f'''s_mov_b32 m0, s7
        s_add_u32 s3, s7, 20480
        buffer_load_dwordx4 v72, s[44:47], s56 offen nt lds
        s_mov_b32 m0, s3
        s_add_u32 s7, s7, 1024
        buffer_load_dwordx4 v72, s[52:55], s56 offen nt lds''')
        if n < 4: A(f'v_xor_b32 v72, {64 if SWZ else 0}, v72\ns_add_u32 s56, s56, {8*3072}')
    def p_loads():
        for i in range(4): A(f'buffer_load_dwordx4 {vr(P0+4*i,4)}, v84, s[48:51], {["0","s20","s21","s22"][i]} offen sc1')
    A(f's_waitcnt vmcnt({PE})\ns_mov_b64 exec, s[18:19]')
    p_loads()
    A(f's_waitcnt vmcnt(4)\ns_mov_b64 exec, 1\nds_add_u32 v0, v79 offset:{L_WRDY}\ns_mov_b64 exec, -1')
    stamp(7)
    lds_wait_ge(L_WRDY, 4, 'v0', 'v90', sleep=0)
    for s in range(5):
        for hf in range(2):
            A(f'ds_read_b64_tr_b16 {vr(G0+4*s+2*hf,2)}, v87 offset:{L_W + (32*s+4*hf)*128}')
            A(f'ds_read_b64_tr_b16 {vr(U0+4*s+2*hf,2)}, v87 offset:{L_W + 20480 + (32*s+4*hf)*128}')
    stamp(8)
    stamp(9)
    A('s_mov_b64 exec, s[18:19]\ns_branch L_pchk')
    L = lab('pp'); D = lab('ppd')
    A(f'{L}:')
    p_loads()
    A('L_pchk:')
    A('s_waitcnt vmcnt(2)')
    untag(P0, 8)
    A(f'v_pk_add_f32 v[96:97], {vr(P0,2)}, {vr(P0+4,2)}\nv_pk_add_f32 v[98:99], {vr(P0+2,2)}, {vr(P0+6,2)}\nv_or3_b32 v90, v100, v101, v102\nv_or3_b32 v91, v103, v104, v105\nv_or3_b32 v90, v90, v106, v107')
    A('s_waitcnt vmcnt(1)')
    untag(P0+8, 4)
    A(f'v_pk_add_f32 v[96:97], v[96:97], {vr(P0+8,2)}\nv_pk_add_f32 v[98:99], v[98:99], {vr(P0+10,2)}\nv_or3_b32 v91, v91, v108, v109\nv_or3_b32 v90, v90, v110, v111')
    A('s_waitcnt vmcnt(0)')
    untag(P0+12, 4)
    A(f'''v_pk_add_f32 v[96:97], v[96:97], {vr(P0+12,2)}
    v_pk_add_f32 v[98:99], v[98:99], {vr(P0+14,2)}
    v_or3_b32 v91, v91, v112, v113
    v_or3_b32 v90, v90, v114, v115''')
    if PP:
        A(f'''v_bitop3_b32 v90, v90, v91, 63 bitop3:0xa8
        v_cmp_ne_u32 vcc, 0, v90
        s_wqm_b64 vcc, vcc
        s_and_b64 exec, vcc, s[18:19]
        s_cbranch_scc0 {D}''')
        spin_tail(L, PSL)
        A(f'''{D}:
        s_mov_b64 exec, s[18:19]
        v_permlane32_swap_b32 v96, v98
        v_permlane32_swap_b32 v97, v99
        v_pk_add_f32 v[96:97], v[96:97], v[98:99]
        v_permlane16_swap_b32 v96, v97
        v_add_f32 v96, v96, v97
        v_cvt_pk_bf16_f32 v96, v96, v96''')
    else:
        A(f'''v_permlane32_swap_b32 v96, v98
        v_permlane32_swap_b32 v97, v99
        v_pk_add_f32 v[96:97], v[96:97], v[98:99]
        v_bitop3_b32 v90, v90, v91, 63 bitop3:0xa8
        v_cmp_ne_u32 vcc, 0, v90
        v_permlane16_swap_b32 v96, v97
        v_add_f32 v96, v96, v97
        v_cvt_pk_bf16_f32 v96, v96, v96
        s_cbranch_vccz {D}''')
        spin_tail(L, PSL)
        A(f'{D}:')
    stamp(10)
    A('''v_and_b32 v96, 0xffff0000, v96
    v_mul_f32 v96, v96, v68
    v_cvt_pk_bf16_f32 v96, v96, v96
    v_and_b32 v96, 0xffff0000, v96
    v_add_f32 v96, v96, v71
    v_cvt_pk_bf16_f32 v96, v96, v96
    v_and_b32 v96, 0xffff0000, v96
    v_mul_f32 v97, v96, v70''')
    A(f'ds_write_b16_d16_hi v85, v96 offset:{L_A + 4*LAP}\nv_and_b32 v98, 0xffff0000, v97\nds_write_b16_d16_hi v85, v97 offset:{L_A + 2*LAP}\nv_sub_f32 v98, v97, v98\nds_write_b16_d16_hi v85, v98 offset:{L_A + 3*LAP}')
    A(f's_mov_b64 exec, 1\nds_add_u32 v0, v79 offset:{L_CA}\ns_mov_b64 exec, -1')
    L = lab('h2'); D = lab('h2d')
    A(f'{L}:\nds_read_b32 v90, v0 offset:{L_CA}')
    for s in range(5): A(f'ds_read_b128 {vr(HA+4*s,4)}, v76 offset:{L_A + 64*s}')
    A(f'L_h2w:\ns_waitcnt lgkmcnt(0)\nv_cmp_gt_u32 vcc, 4, v90\ns_cbranch_vccz {D}')
    spin_tail(L, 0)
    A(f'{D}:')
    for s in range(5):
        A(f'v_mfma_f32_16x16x32_bf16 v[128:131], {vr(HA+4*s,4)}, {vr(HA+4*s,4)}, {"0" if s==0 else "v[128:131]"}')
        A(f'v_mfma_f32_16x16x32_bf16 v[120:123], {vr(HA+4*s,4)}, {vr(G0+4*s,4)}, {"0" if s==0 else "v[120:123]"}')
    for s in range(5):
        A(f'v_mfma_f32_16x16x32_bf16 v[124:127], {vr(HA+4*s,4)}, {vr(U0+4*s,4)}, {"0" if s==0 else "v[124:127]"}')
    A('''v_or_b32 v96, s17, v96
    s_cmp_eq_u32 s16, 0
    s_mov_b64 exec, 0x10ffff
    v_add_f32 v122, v122, v123
    v_mov_b32 v123, s14
    v_cndmask_b32 v120, v120, v128, s[34:35]
    v_cndmask_b32 v121, v121, v129, s[34:35]
    s_cbranch_scc0 L_guslow
    global_store_dwordx4 v77, v[120:123], s[42:43]
    v_add_f32 v126, v126, v127
    v_mov_b32 v127, s14
    s_mov_b64 exec, 0xffff
    global_store_dwordx4 v77, v[124:127], s[42:43] offset:384
    L_gust:''')
    stamp(11)
    A(f'''s_lshl2_add_u32 s3, s12, s4
    s_cmp_eq_u32 s3, 32
    s_cbranch_scc0 L_noep
    s_mov_b64 exec, 1
    v_mov_b32 v90, s14
    v_mov_b32 v91, s15
    global_store_dwordx2 v0, v[90:91], s[42:43] offset:{R_E} sc1
    L_noep:''')
    A('''s_cmp_lt_u32 s12, 4
    s_cbranch_scc0 L_fin
    s_mov_b64 exec, s[18:19]
    global_store_dword v86, v96, s[42:43] sc1
    s_branch L_fin
    L_guslow:
    global_store_dwordx4 v77, v[120:123], s[42:43] sc1
    v_add_f32 v126, v126, v127
    v_mov_b32 v127, s14
    s_mov_b64 exec, 0xffff
    global_store_dwordx4 v77, v[124:127], s[42:43] offset:384 sc1
    s_branch L_gust''')

    A('L_act:')
    if ADM == 0:
        lds_wait_ge(L_CWO, 4, 'v0', 'v90', sleep=0)
        act_dma()
    def gu_loads():
        for k in range(4): A(f'global_load_dwordx4 {vr(100+4*k,4)}, v165, s[42:43] offset:{640*k} sc1')
    A(f's_mov_b32 s38, 0xff01ff\ns_mov_b32 s39, 0xff00ff\ns_lshl_b32 s11, s14, 2\nv_mov_b32 v93, {H(1/640)}')
    A('s_mov_b64 exec, s[38:39]')
    gu_loads()
    A('s_mov_b64 exec, -1')
    if ADM == 0: A('s_waitcnt vmcnt(4)')
    for s in range(5):
        for hf in range(2):
            A(f'ds_read_b64_tr_b16 {vr(WD+4*s+2*hf,2)}, v132 offset:{4*hf*320 + 64*s}')
    stamp(7)
    A('s_mov_b64 exec, s[38:39]\ns_branch L_guw')
    L = lab('gu'); D = lab('gud')
    A(f'{L}:')
    gu_loads()
    A(f'''L_guw:
    s_waitcnt vmcnt(0)
    v_pk_add_f32 v[140:141], v[100:101], v[104:105]
    v_pk_add_f32 v[142:143], v[108:109], v[112:113]
    v_add3_u32 v90, v103, v107, v111
    v_pk_add_f32 v[140:141], v[140:141], v[142:143]
    v_add_u32 v90, v90, v115
    v_readlane_b32 s8, v140, 8
    v_readlane_b32 s9, v141, 8
    v_cmp_ne_u32 vcc, s11, v90
    s_cbranch_vccz {D}''')
    spin_tail(L, GUS)
    A(f'{D}:')
    stamp(13)
    K0 = -2.0 * LOG2E * 0.7978845608028654
    A(f'''v_mul_f32 v94, s9, v93
    v_mul_f32 v95, s8, v93
    v_add_f32 v148, v102, v106
    v_fma_f32 v95, -v94, v94, v95
    v_add_f32 v149, v110, v114
    v_max_f32 v95, 0, v95
    v_cvt_pk_bf16_f32 v90, v94, v95
    v_add_f32 v148, v148, v149
    v_and_b32 v95, 0xffff0000, v90
    v_lshlrev_b32 v94, 16, v90
    v_add_f32 v95, {H(1e-5)}, v95
    v_cvt_pk_bf16_f32 v95, v95, v95
    v_fma_f32 v148, -v94, v140, v148
    v_and_b32 v95, 0xffff0000, v95
    v_sqrt_f32 v95, v95
    v_cvt_pk_bf16_f32 v95, v95, v95
    v_and_b32 v95, 0xffff0000, v95
    v_rcp_f32 v95, v95
    s_mov_b64 exec, -1
    v_fma_f32 v152, v148, v95, v141
    v_cvt_pk_bf16_f32 v152, v152, v152
    v_and_b32 v154, 0xffff0000, v152
    v_and_b32 v152, 0xffff0000, v152
    v_mov_b32 v155, {H(K0)}
    v_permlane32_swap_b32 v152, v154
    v_mul_f32 v153, v152, v152
    v_fmac_f32 v155, {H(K0*0.044715)}, v153
    v_mul_f32 v155, v155, v152
    v_exp_f32 v155, v155
    v_add_f32 v155, 1.0, v155
    v_rcp_f32 v155, v155
    v_mul_f32 v152, v152, v155
    v_cvt_pk_bf16_f32 v152, v152, v152
    v_and_b32 v152, 0xffff0000, v152
    v_mul_f32 v152, v152, v154
    s_waitcnt lgkmcnt(0)''')
    A(f'v_mov_b32 v153, v152 quad_perm:[1,0,3,2] {DPPF}\nv_cvt_pk_bf16_f32 v152, v152, v153')
    for m in range(5):
        F = 8 + 4*m
        for d in range(4): A(f'v_and_b32 v{F+d}, v152, v{160+m} row_newbcast:{2*d} {DPPF}')
        if m >= 1: A(f'v_mfma_f32_16x16x32_bf16 v[156:159], {vr(WD+4*(m-1),4)}, {vr(F-4,4)}, {"0" if m==1 else "v[156:159]"}')
    A(f'v_mfma_f32_16x16x32_bf16 v[156:159], {vr(WD+16,4)}, v[24:27], v[156:159]')
    set_exec(0x03ff03ff, 0x03ff03ff)
    for i in range(4): A(f'v_bfi_b32 v{156+i}, 63, s14, v{156+i}')
    A('global_store_dwordx4 v166, v[156:159], s[42:43] sc1')
    stamp(12)
    if CLN:
        A('s_mov_b64 exec, s[38:39]')
        for k in range(4):
            Lk = lab('cl')
            A(f's_cmp_eq_u32 s4, {k}\ns_cbranch_scc0 {Lk}\nglobal_store_dwordx4 v165, {vr(100+4*k,4)}, s[42:43] offset:{640*k} sc1\n{Lk}:')

    A('L_fin:')
    if stamps == 3:
        A('s_cmp_lt_u32 s4, 4\ns_cbranch_scc0 L_end\ns_cmp_ge_u32 s2, 96\ns_cbranch_scc0 L_end\ns_cmp_eq_u32 s57, 1\ns_cbranch_scc0 L_end')
    if stamps:
        A('s_memrealtime s[98:99]\ns_waitcnt vmcnt(0) lgkmcnt(0)\ns_mov_b64 exec, 1')
        A(f's_mul_i32 s3, s2, 12\ns_add_u32 s3, s3, s4\ns_lshl_b32 s3, s3, 6\ns_add_u32 s3, s3, {R_STAMP}\nv_mov_b32 v0, s3')
        for i in range(15): A(f'v_mov_b32 v{8+i}, s{70+2*i}')
        A('v_mov_b32 v23, s58')
        for i in range(4): A(f'global_store_dwordx4 v0, {vr(8+4*i,4)}, s[42:43] offset:{16*i}')
    A('L_end:\ns_endpgm')
    inv = {'s_cbranch_vccz': 's_cbranch_vccnz', 's_cbranch_vccnz': 's_cbranch_vccz', 's_cbranch_scc0': 's_cbranch_scc1', 's_cbranch_scc1': 's_cbranch_scc0'}
    cold = []
    k = 0
    end_i = A.L.index('L_fin:')
    while k < len(A.L):
        p = A.L[k].split()
        if p[0] in inv and len(p) == 2:
            labl = p[1] + ':'
            if labl in A.L[k:k+24]:
                e = A.L.index(labl, k)
                body = A.L[k+1:e]
                if body and body[-1] == 's_branch L_fin' and 's_sub_u32 s58, s58, 1' in body and len(body) <= 5:
                    R = lab('rt')
                    cold += [R + ':'] + body
                    A.L[k:e] = [f'{inv[p[0]]} {R}']
        k += 1
    k = A.L.index('L_end:')
    assert A.L[k+1] == 's_endpgm'
    A.L[k+2:k+2] = cold
    A.L.append('L_last:')
    A.L = [l.replace('L_end-L_base-12', 'L_last-L_base-16') for l in A.L]
    import re as _re
    for k, l in enumerate(A.L):
        if l.startswith('s_load_dwordx4 s[40:43], s[0:1], 96'):
            A.L[k] = 's_load_dwordx2 s[40:41], s[0:1], 104'; continue
        m = _re.match(r'global_load_(\w+) (\S+), (v\d+), s\[(42:43|52:53)\](.*)', l)
        if m:
            A.L[k] = f'buffer_load_{m.group(1)} {m.group(2)}, {m.group(3)}, s[40:43], {"0" if m.group(4)=="42:43" else "s52"} offen{m.group(5)}'; continue
        m = _re.match(r'global_store_(\w+) (v\d+), (\S+), s\[(42:43|52:53)\](.*)', l)
        if m:
            A.L[k] = f'buffer_store_{m.group(1)} {m.group(3)}, {m.group(2)}, s[40:43], {"0" if m.group(4)=="42:43" else "s52"} offen{m.group(5)}'; continue
        A.L[k] = _re.sub(r'\bs43\b', 's41', _re.sub(r'\bs42\b', 's40', l.replace('s[42:43]', 's[40:41]')))
    k = A.L.index('s_mov_b32 s47, 0x20000')
    A.L[k:k] = ['s_mov_b32 s42, 0x200000', 's_mov_b32 s43, 0x20000']
    npad = A.pad()
    NOTES = {'L_base:': '; ---- entry: streaming waves issue their first K loads straight away', 'L_pro2:': '; ---- common set-up, role dispatch (waves 0-3 control, 4-11 stream K/V)', 'L_load10:': '; ---- 10 x (8 rows x 128 B) weight tile loads', 'L_strm:': '; ---- streaming waves: static K/V groups, q.K, online softmax, p.V by MFMA, then ticketed (K,V) units', 'L_newmax:': '; ---- running max rose: rescale accumulators', 'L_epi:': '; ---- workgroup combine of the 8 waves; last arriver publishes o, M, L as 8-byte units {3 x bf16, tag}', 'L_cN:': '; ---- idle control waves: pull the code into this L2', 'L_cA:': '; ---- class A control waves: silu(c) @ w_mod tile', 'L_cB:': '; ---- class B control waves: LayerNorm(x), h, one third of q = h @ wq', 'L_mm10:': '; ---- shared GEMV tail: MFMA with a diagonal operand, cross-wave combine, publish', 'L_hopB:': '; ---- fetch q of this head into LDS', 'L_tail:': '; ---- tail, class A: o @ wo partials (P); then activation+down or the final reduction', 'L_tailB:': '; ---- tail, class B: x1, gate/up partials with LayerNorm applied after the GEMV', 'L_act:': '; ---- LayerNorm statistics, GELU(gate)*up, down-projection partials', 'L_end:': '; ---- exit; retry tails of the polling loops follow'}
    L2_ = []
    for l in A.L:
        if l in NOTES: L2_.append(NOTES[l])
        L2_.append(l)
    A.L = L2_
    hdr = open('cdna_kernels/' + NAME + '.s.ref').read().split('; Override launch')[0]
    pre = ''
    if stamps:
        pre = ''
    txt = hdr + f'''; @launch grid=(256,1,1) block=(768,1,1) lds={LDS_BYTES}
; One persistent launch, one workgroup per CU. 8 waves stream K/V (nt loads), 4 control waves run the dependent
; GEMV chain. Workgroups hand data over through d_ws; every handed-over word carries bits of a per-launch tag that is
; derived from an epoch word found in d_ws on entry (and advanced on exit), and the tag bits are removed before use.
.amdgcn_target "amdgcn-amd-amdhsa--gfx950"
.text
.globl {NAME}_kernel
.p2align 8
.type {NAME}_kernel,@function
{NAME}_kernel:
''' + pre + A.text() + f'''.section .rodata,"a"
.p2align 6
.amdhsa_kernel {NAME}_kernel
  .amdhsa_next_free_vgpr 168
  .amdhsa_next_free_sgpr 102
  .amdhsa_accum_offset 168
  .amdhsa_group_segment_fixed_size 0
  .amdhsa_kernarg_size 112
  .amdhsa_user_sgpr_count 2
  .amdhsa_user_sgpr_kernarg_segment_ptr 1
  .amdhsa_system_sgpr_workgroup_id_x 1
.end_amdhsa_kernel
'''
    return txt, npad

if __name__ == '__main__':
    kw = {}
    outp = sys.argv[1]
    for a in sys.argv[2:]:
        k, val = a.split('=')
        kw[k] = int(val) if val.lstrip('-').isdigit() else val
    txt, npad = gen(**kw)
    open(outp, 'w').write(txt)
    print('nops inserted', npad)
```

```python
import sys, struct
from asmlib import Asm
NAME = 'adaLN_cond__sliding_block_cached__geglu_ffn__decode'
def f2u(x): return struct.unpack('<I', struct.pack('<f', x))[0]
def H(x): return '0x%08x' % f2u(x)
LOG2E = 1.4426950408889634

R_E = 0
R_XC = 512
R_TK = 1024
R_MOD = R_TK + 32*128
R_MA = R_MOD + 2*15360
R_Q = R_MA + 4*5120
R_X1 = R_Q + 32*768
R_O = 0x18000
R_P = 0x3c000
R_DN = 0x80000
R_GU = 0xe4000
assert R_X1 + 2560 <= R_O and R_GU + 96*2560 <= 0x140000
R_STAMP = 0x140000
R_PB = 0x1b0000
R_TK2 = 0x180000; TKS = 4352
L_ML = 0; L_H = 128; L_ST2 = 512
L_CSTAT = 1024; L_CO = 1028; L_TRIG = 1032; L_WRDY = 1036; L_CWO = 1040; L_CQ = 1044; L_OK = 1048; L_CA = 1052; L_TRIGB = 1056
L_Q = 1280
L_ST = 1792
L_A = 3072; LAP = 336
L_PACC = 3072
L_OS = 5120
L_TB = 1664
L_F = 1920
L_W = 11264
L_LK = 1064; L_BT = 1152; L_CM = 1060; L_MS = 2048
L_HB = L_W
L_DN = L_W + 57344
LDS_BYTES = L_DN + 20480

DPPF = 'row_mask:0xf bank_mask:0xf'

def gen(T=3, SG=5, TD=2, TKW=4, XB=40, DEARLY=0, DNW=1, IL=1, NF0=3, NOZ=0, GSL=1, SWZ=1, DPOS=0, DW=2, WT=0, FB=2, XAT=0, PSL=1, PE=0, ADM=0, FG=1, FM=3, PREP=4, PFC=0, PFP='nt', CS=4, XA=32, HAW=8, PRIO=0, TN=8, PFF='', GATE=6, FSL=14, FREE=0, CAP=2, DUAL=1, G1=0, G2=0, G4=0, DR=24, FS=0, TLB=2, WDEF=2, WP=8, WPC=4, BP=1, TCH=0, VT=4, NVT=16, PO=0, PPo=0, PDn=0, FGX=0, AG=0, AGS=2, OG=9, CL=1, PP=0, PD=0, PCM=0, MAP=0, CLN=0, OF='', EP=0, CP=3, BG=5, EB=0, BS=0, PFS=4, YI=64, FK=0, BARE=0, EQ=0, NS=0, AFF=0, LS=16, QS=2, BDL=0, HB=0, OSL=1, GUS=0, NGT=0, PW=1, BPC=8, WSL=1, OEARLY=0, DPRIO=1, TRIGM=60, TWA=3, ACK=1, PT=1, stamps=False, TIMEOUT=1 << 20, SLA=8, SLB=4):
    A = Asm()
    RO = R_O + 8192*PO; RP = R_P + 8192*PPo; RD = R_DN + 8192*PDn
    def oadr(dst, h, tmp):
        return f's_bfe_u32 {dst}, {h}, 0x30001\ns_lshr_b32 {tmp}, {h}, 4\ns_lshl1_add_u32 {dst}, {dst}, {tmp}\ns_and_b32 {tmp}, {h}, 1\ns_lshl1_add_u32 {dst}, {dst}, {tmp}\ns_lshl_b32 {dst}, {dst}, 12\ns_add_u32 {dst}, {dst}, {RO}'
    own_o = oadr('s3', 's5', 's8') + '\ns_lshl_b32 s8, s6, 9\ns_add_u32 s3, s3, s8' + ('\ns_xor_b32 s3, s3, s27' if VT else '')
    def getpol():
        if VT: A(f'ds_read_b32 v90, v0 offset:{L_TB+8}\ns_waitcnt lgkmcnt(0)\nv_readfirstlane_b32 s27, v90')
    LBS = {0: 0, 2: 1, 4: 2, 8: 3}[BS]
    uid = [0]
    def lab(p):
        uid[0] += 1
        return f'L_{p}{uid[0]}'
    def stamp(i):
        if stamps == 1 or (stamps and i == 0): A(f's_memrealtime s[{70+2*i}:{71+2*i}]')
    def spin_tail(L, sleep):
        if sleep: A(f's_sleep {sleep}')
        A(f's_sub_u32 s58, s58, 1\ns_cbranch_scc0 {L}\ns_branch L_fin')
    def lds_wait_ge(off, val, vz, vt, sleep=1):
        L = lab('w'); D = lab('d')
        A(f'{L}:\nds_read_b32 {vt}, {vz} offset:{off}\ns_waitcnt lgkmcnt(0)\nv_readfirstlane_b32 s3, {vt}\ns_cmp_ge_u32 s3, {val}\ns_cbranch_scc1 {D}')
        spin_tail(L, sleep)
        A(f'{D}:')
    def maxtree(regs, dst):
        regs = list(regs)
        if len(regs) == 2:
            A(f'v_max_u32 {dst}, {regs[0]}, {regs[1]}'); return
        A(f'v_max3_u32 {dst}, {regs[0]}, {regs[1]}, {regs[2]}')
        rest = regs[3:]
        while len(rest) >= 2:
            A(f'v_max3_u32 {dst}, {dst}, {rest[0]}, {rest[1]}'); rest = rest[2:]
        if rest: A(f'v_max_u32 {dst}, {dst}, {rest[0]}')
    def poll_end(regs, tmp, L, sleep):
        D = lab('ok')
        if len(regs) > 1: maxtree(regs, tmp)
        else: tmp = regs[0]
        A(f'v_cmp_eq_u32 vcc, -1, {tmp}\ns_cbranch_vccz {D}')
        spin_tail(L, sleep)
        A(f'{D}:')
    def allred8(regs, op='v_add_f32'):
        for pat in ('quad_perm:[1,0,3,2]', 'quad_perm:[2,3,0,1]', 'row_half_mirror'):
            for r in regs: A(f'{op} {r}, {r}, {r} {pat} {DPPF}')
    def red_hi(regs, op='v_add_f32'):
        for r in regs: A(f'{op} {r}, {r}, {r} row_ror:8 {DPPF}')
        for r in regs: A(f'{op} {r}, {r}, {r} row_bcast:15 row_mask:0xa bank_mask:0xf')
        for r in regs: A(f'{op} {r}, {r}, {r} row_bcast:31 row_mask:0xc bank_mask:0xf')
    def round_list(regs, tmps):
        regs = list(regs)
        prs = [(regs[i], regs[i+1] if i+1 < len(regs) else None) for i in range(0, len(regs), 2)]
        for k0 in range(0, len(prs), len(tmps)):
            blk = prs[k0:k0+len(tmps)]
            for (a, b), t in zip(blk, tmps): A(f'v_cvt_pk_bf16_f32 {t}, {a}, {b if b else a}')
            for (a, b), t in zip(blk, tmps):
                A(f'v_lshlrev_b32 {a}, 16, {t}')
                if b: A(f'v_and_b32 {b}, 0xffff0000, {t}')
    def masks(dst4, vl, t0, t1):
        A(f'v_and_b32 {t0}, 1, {vl}\nv_lshlrev_b32 {t0}, 4, {t0}\nv_mov_b32 {t1}, 0xffff\nv_lshlrev_b32 {t0}, {t0}, {t1}\nv_bfe_u32 {t1}, {vl}, 1, 2')
        for t in range(4):
            A(f'v_cmp_eq_u32 vcc, {t}, {t1}\nv_cndmask_b32 {dst4[t]}, 0, {t0}, vcc')
    def v(i): return f'v{i}'
    def vr(i, n): return f'v[{i}:{i+n-1}]'
    def set_exec(lo, hi):
        if lo == 0xffffffff and hi == 0xffffffff: A('s_mov_b64 exec, -1')
        elif hi == 0 and lo <= 64: A(f's_mov_b64 exec, {lo}')
        else: A(f's_mov_b32 exec_lo, 0x{lo:x}\ns_mov_b32 exec_hi, 0x{hi:x}')
    def tags():
        A('s_mul_i32 s14, s14, 0x9e3779b1\ns_add_u32 s14, s14, 0x7f4a7c15\ns_mul_i32 s15, s15, 0x85ebca6b\ns_add_u32 s15, s15, 0xc2b2ae35')
        A('s_and_b32 s3, s14, 15\ns_sub_u32 s36, 0, s3\ns_subb_u32 s37, 0, s3')
        A(f's_mov_b64 exec, 1\nds_add_u32 v0, v79 offset:{L_CQ}\ns_mov_b64 exec, -1')
    def tailtags():
        A('s_and_b32 s3, s14, 63\ns_sub_u32 s36, 0, s3\ns_subb_u32 s37, 0, s3')
    def untag(base, n, dst=None):
        if dst is None: dst = base
        for i in range(0, n, 2): A(f'v_lshl_add_u64 {vr(dst+i,2)}, {vr(base+i,2)}, 0, s[36:37]')
    def ortree(regs, dst):
        regs = list(regs)
        if len(regs) == 2:
            A(f'v_or_b32 {dst}, {regs[0]}, {regs[1]}'); return
        A(f'v_or3_b32 {dst}, {regs[0]}, {regs[1]}, {regs[2]}')
        rest = regs[3:]
        while len(rest) >= 2:
            A(f'v_or3_b32 {dst}, {dst}, {rest[0]}, {rest[1]}'); rest = rest[2:]
        if rest: A(f'v_or_b32 {dst}, {dst}, {rest[0]}')
    def tag_end(tmp, L, sleep, mask=15):
        D = lab('ok')
        A(f'v_and_b32 {tmp}, {mask}, {tmp}\nv_cmp_ne_u32 vcc, 0, {tmp}\ns_cbranch_vccz {D}')
        spin_tail(L, sleep)
        A(f'{D}:')

    A('L_base:')
    stamp(0)
    A(f'''s_load_dwordx16 s[16:31], s[0:1], 0
    s_cmpk_ge_u32 s2, 256
    s_cbranch_scc1 L_end
    v_readfirstlane_b32 s4, v0
    {'s_bfe_u32 s5, s2, 0x20003' if AFF else 's_lshr_b32 s5, s2, 3'}
    s_and_b32 s6, s2, 7
    s_lshl2_add_u32 s5, s6, s5
    {'s_lshr_b32 s6, s2, 5' if AFF else 's_and_b32 s5, s5, 31'}
    v_lshrrev_b32 v3, 3, v0
    v_and_b32 v1, 7, v0
    v_lshlrev_b32 v1, 4, v1
    s_cmpk_lt_u32 s4, 256
    s_cbranch_scc1 L_pro2
    s_lshl_b32 s3, s5, 9''')
    SJ = 's6' if MAP == 0 else 's9'
    if MAP: A('s_lshr_b32 s9, s2, 5')
    if MAP == 2: A(f's_cmpk_lt_u32 s2, 96\ns_cselect_b32 s7, 0, {3*SG-3}\ns_add_u32 s9, s9, s7')
    A(f'''s_add_u32 s3, s3, {SJ}
    s_mulk_i32 s3, 24576
    v_mul_u32_u24 v4, 384, v3
    s_add_u32 s7, s3, {28672*384 - 4*3072}
    v_add3_u32 v4, v4, v1, s7
    s_waitcnt lgkmcnt(0)''')
    for t in range(NF0):
        if t == 3: A('v_add_u32 v4, 196608, v4')
        A(f'global_load_dwordx4 {vr(8+4*t,4)}, v4, s[18:19] offset:{128*(t%3)} nt')
    stamp(5)
    A('''L_pro2:
    s_load_dwordx8 s[32:39], s[0:1], 64
    s_load_dwordx4 s[40:43], s[0:1], 96
    v_and_b32 v2, 63, v0
    s_lshr_b32 s4, s4, 6
    v_and_b32 v3, 7, v3
    s_mov_b32 s47, 0x20000
    s_mov_b32 s51, 0x20000''')
    A(f's_mov_b32 s58, {TIMEOUT}')
    if stamps == 1 and not NOZ:
        for i in range(1, 15):
            if i != 5: A(f's_mov_b32 s{70+2*i}, 0')
    A('s_lshl3_add_u32 s59, s5, s6')
    W0 = 8; X0 = 48; D0 = 60; F0 = 64
    if EB:
        assert FB == 0 and not EQ
        A('v_mov_b32 v0, 0\nv_lshlrev_b32 v5, 2, v2\ns_cmp_eq_u32 s4, 3\ns_cbranch_scc0 L_eb\nds_write_b32 v5, v0 offset:1024\ns_waitcnt lgkmcnt(0)\nL_eb:\ns_barrier')
    A('s_cmp_lt_u32 s4, 4\ns_cbranch_scc0 L_strm')
    if BARE:
        A(f'''v_mov_b32 v0, 0
        v_lshlrev_b32 v80, 2, v2
        ds_write_b32 v80, v0 offset:1024
        s_waitcnt lgkmcnt(0)
        s_barrier
        v_mov_b32 v79, 9
        ds_write_b32 v0, v79 offset:{L_CQ}
        s_lshl_b32 s3, s6, {LBS}
        s_add_u32 s3, s3, 1
        v_mov_b32 v60, s3
        ds_write_b32 v0, v60 offset:{L_BT}
        s_mul_i32 s3, s5, {TKS}
        s_add_u32 s3, s3, {R_TK2}
        v_mov_b32 v60, s3
        v_mov_b32 v61, {8*BS if BS else 64*NS}
        s_mov_b64 exec, 1
        s_or_b32 s3, s4, s6
        s_cbranch_scc1 L_end
        global_store_dword v60, v61, s[42:43] sc1
        s_endpgm''')
    A('s_setprio 3\ns_sub_u32 s10, s2, 96\ns_cbranch_scc1 L_cB\ns_cmp_ge_u32 s10, 80\ns_cbranch_scc1 L_rest\ns_cmp_ge_u32 s4, 2\ns_cbranch_scc1 L_cN')
    A(f'''s_mul_i32 s12, s10, 3277
    s_lshr_b32 s12, s12, 16
    s_mul_i32 s7, s12, 20
    s_sub_u32 s13, s10, s7
    s_lshl1_add_u32 s8, s12, s4
    L_rest2:
    v_mul_u32_u24 v72, 7680, v3
    v_add_u32 v72, v72, v1
    s_mul_i32 s3, s8, {80*7680}
    s_lshl_b32 s7, s13, 7
    s_add_u32 s3, s3, s7
    s_mov_b32 s46, {80*7680}
    s_mov_b32 s57, {8*7680}
    v_min_u32 v74, 39, v2
    s_mul_i32 s7, s8, 160
    v_lshl_add_u32 v74, v74, 2, s7
    s_getpc_b64 s[60:61]
    L_pc0:
    s_add_u32 s60, s60, L_cA-L_pc0
    s_addc_u32 s61, s61, 0
    s_waitcnt lgkmcnt(0)
    s_add_u32 s44, s36, s3
    s_addc_u32 s45, s37, 0
    global_load_dword v82, v74, s[34:35]
    s_cmp_lt_u32 s10, {160 if EQ else 80}
    s_cbranch_scc0 L_cA''')
    A('L_load10:\ns_mov_b32 s56, 0')
    for s in range(10):
        A(f'buffer_load_dwordx4 {vr(W0+4*s,4)}, v72, s[44:47], s56 offen nt')
        if s < 9: A('s_add_u32 s56, s56, s57')
    A('s_setpc_b64 s[60:61]')
    A('L_strm:')

    NPOOL = 512 - 64*SG
    SL = lambda i, t: 8 + (i*3 + t)*4
    G0_ = 128; Q0 = 140; D0_ = 152; F = 164
    S = [v(G0_+g) for g in range(SG)]
    NV0 = min(SG, 5)
    KSL = lambda g, t: SL(g, t) if g < 5 else D0_ + 4*t
    VI = lambda g: (NV0 + g) if g < 5 else 3
    VL = 'v134'; X0_ = 'v135'; X1_ = 'v136'; X2_ = 'v137'; X3_ = 'v138'; X4_ = 'v139'
    if PRIO: A('s_setprio 1')
    A(f'''v_mul_u32_u24 v4, 384, v3
    s_mul_i32 s3, s5, 12582912
    s_add_u32 s3, s3, {28672*384}
    s_lshl3_add_u32 s7, {SJ}, s4
    s_cmpk_lt_u32 s2, 96
    s_cselect_b32 s55, {3 if MAP == 2 else 8}, {5 if MAP == 2 else 8}
    s_mulk_i32 s55, 24576
    s_mul_i32 s57, s7, {3072 if IL else SG*3072}
    s_sub_u32 s57, s57, {4*(3072 if IL else SG*3072)}
    s_mov_b32 s56, s57
    v_add_u32 v3, v1, v4
    s_mov_b32 s46, 1572864
    s_mov_b32 s50, 1572864''')
    A(f'''s_add_u32 s44, s18, s3
    s_addc_u32 s45, s19, 0
    s_add_u32 s48, s20, s3
    s_addc_u32 s49, s21, 0''')
    def ld(reg, srd, so, t, throttle=True):
        A(f'buffer_load_dwordx4 {vr(reg,4)}, v3, {srd}, {so} offen offset:{t*128} nt')
        if throttle: A(f's_waitcnt vmcnt({T})')
    KS = 's[44:47]'; VS = 's[48:51]'
    if FB:
        A('s_sub_u32 s13, s2, 96')
        if FB >= 2: A('s_cselect_b32 s13, 0, s13')
        if EQ == 2: A('s_mov_b32 s13, 0')
        A('s_cmp_lt_u32 s13, 80\ns_cbranch_scc0 L_nb0\ns_barrier\nL_nb0:')
    n = 0
    for g in range(SG):
        for t in range(3):
            n += 1
            if n > NF0: ld(KSL(g, t), KS, 's56', t, throttle=(n > T+1))
            if n == T+2: stamp(8)
            if n == T+1:
                for r in S: A(f'v_mov_b32 {r}, 0')
                masks(['v4', 'v5', 'v6', 'v7'], 'v2', X0_, X1_)
                A(f's_mul_i32 s3, s5, {TKS}\ns_add_u32 s3, s3, {R_TK2}\ns_mov_b32 s65, 0\ns_mov_b32 s67, 0\ns_waitcnt lgkmcnt(0)\ns_add_u32 s52, s42, s3\ns_addc_u32 s53, s43, 0')
                A(f's_cmp_lt_u32 s2, 96\ns_movk_i32 s10, {XA}\ns_cselect_b32 s10, {XB}, s10\ns_sub_u32 s10, {NPOOL}, s10')
                if FB: A(f'v_mov_b32 v0, 0\ns_cmp_lt_u32 s13, 80\ns_cbranch_scc1 L_nb1\ns_barrier\nL_nb1:\ns_waitcnt vmcnt({T})')
                elif EB: A(f's_waitcnt vmcnt({T})')
                else: A(f'v_mov_b32 v0, 0\ns_barrier\ns_waitcnt vmcnt({T})')
        if g < SG-1: A('s_add_u32 s56, s56, s55')
    for g in range(NV0):
        for t in range(3): ld(SL(VI(g), t), VS, 's57', t, throttle=not (g == NV0-1 and t == 2))
        if g < SG-1: A('s_add_u32 s57, s57, s55')
    stamp(1)
    if PRIO: A('s_setprio 0')
    lds_wait_ge(L_CQ, 7 if HB else 5, 'v0', X0_, sleep=QS)
    A(f'ds_read_b96 v[136:138], v0 offset:{L_TB}')
    tick = 's_mov_b32 s12, 1\ns_atomic_add s12, s[52:53], 0 glc'
    if XAT: tick += '\ns_mov_b32 s62, 1\ns_atomic_add s62, s[52:53], 0x80000 glc\ns_mov_b32 s63, 1\ns_atomic_add s63, s[52:53], 0x88000 glc'
    for t in range(3): A(f'ds_read_b128 {vr(Q0+4*t,4)}, v1 offset:{L_Q + 128*t}')
    stamp(2)
    A(f's_waitcnt vmcnt({3*NV0}) lgkmcnt(0)\nv_mov_b32 v1, 1\nv_readfirstlane_b32 s14, v136\nv_readfirstlane_b32 s15, v137\nv_readfirstlane_b32 s27, v138')
    dt = 's_mov_b32 s64, 1\ns_atomic_add s64, s[52:53], 0 glc'
    if BS: A('s_call_b64 s[60:61], L_next')
    elif FK == 1: A(dt)
    if BS: pass
    elif FK == 2: A('s_lshl3_add_u32 s12, s4, s6\ns_sub_u32 s12, s12, 32')
    elif NS: A('s_lshl3_add_u32 s12, s6, s4\ns_sub_u32 s12, s12, 4')
    else: A(tick)
    for t in range(3):
        for d in range(4):
            for g in range(SG):
                A(f'v_dot2c_f32_bf16 {S[g]}, v{KSL(g,t)+d}, v{Q0+4*t+d}')
    if SG == 6:
        for t in range(3): ld(SL(3, t), VS, 's57', t, throttle=False)
    allred8(S)
    round_list(S, [X0_, X1_, X2_])
    for r in S: A(f'v_mul_f32 {r}, 0x3d93cd3a, {r}')
    round_list(S, [X0_, X1_, X2_])
    A(f'v_max3_f32 {X0_}, {S[0]}, {S[1]}, {S[2]}')
    for g in range(3, SG): A(f'v_max_f32 {X0_}, {X0_}, {S[g]}')
    red_hi([X0_], 'v_max_f32')
    A(f'v_readlane_b32 s8, {X0_}, 63')
    def take(X, last):
        A('s_waitcnt lgkmcnt(0)')
        if BS:
            Lp = lab('pb')
            A(f's_cmp_eq_u32 s67, 0\ns_cbranch_scc1 {Lp}\ns_add_u32 s66, s66, 1\nv_mov_b32 {X2_}, s67\nv_mov_b32 {X3_}, s66\nds_write_b32 {X2_}, {X3_}\ns_mov_b32 s67, 0\n{Lp}:')
        A(f's_mov_b32 s11, s12\ns_cmp_lt_u32 s11, {NPOOL}\ns_cbranch_scc0 {last}')
        A(f's_mul_i32 s54, s11, 3072\ns_add_u32 s54, s54, {64*SG*3072}')
        if EP == 2: A('s_setprio 0')
        if TD < 3: A(f's_waitcnt vmcnt({TD})')
        for t in range(3): ld(SL(X, t), KS, 's54', t, throttle=False)
        for t in range(3): ld(SL(X+1, t), VS, 's54', t, throttle=False)
        A(f's_waitcnt vmcnt(6)')
    def nexttick():
        Lk = lab('nt')
        if BS:
            A('s_call_b64 s[60:61], L_next'); return
        if FK == 1: A(f's_cmp_lt_u32 s11, 128\ns_cbranch_scc0 {Lk}x\n{dt}\n{Lk}x:')
        if NS > 1 or 64*NS >= NPOOL: A(f's_add_u32 s12, s11, 64\ns_cmp_lt_u32 s12, {64*NS if 64*NS < NPOOL else 4096}\ns_cbranch_scc1 {Lk}')
        A(f's_movk_i32 s12, {NPOOL}\ns_cmp_lt_u32 s11, s10\ns_cbranch_scc0 {Lk}\n{tick}\n{Lk}:')
    for r in S: A(f'v_subrev_f32 {r}, s8, {r}')
    for r in S: A(f'v_mul_f32 {r}, {H(LOG2E)}, {r}')
    for r in S: A(f'v_exp_f32 {r}, {r}')
    A(f'v_add_f32 {VL}, {S[0]}, {S[1]}')
    for g in range(2, SG): A(f'v_add_f32 {VL}, {VL}, {S[g]}')
    for r in S: A(f'v_cvt_pk_bf16_f32 {r}, {r}, {r}')
    stamp(3)
    _e0 = len(A.L)
    A(f'''v_and_b32 v61, 7, v2
    v_lshrrev_b32 v65, 5, v2
    v_lshlrev_b32 v60, 3, v61
    v_and_b32 v62, 32, v2
    v_xor_b32 v60, v60, v62
    v_lshlrev_b32 v62, 5, v61
    v_and_b32 v63, 16, v2
    s_mul_i32 s3, s4, 768
    v_add3_u32 v56, v62, v63, s3
    v_lshl_add_u32 v56, v65, 3, v56
    v_and_b32 v66, 31, v2
    {own_o.replace('s8', 's7')}
    v_lshl_add_u32 v57, v66, 4, s3
    v_lshl_add_u32 v57, v65, 3, v57
    v_mul_u32_u24 v58, 24, v66
    v_mul_u32_u24 v65, 3072, v65
    s_movk_i32 s3, {L_OS}
    v_add3_u32 v58, v58, v65, s3
    v_add_u32 v61, 1536, v58
    v_mov_b32 v62, 0xffff
    v_and_b32 v66, 47, v2
    v_subrev_u32 v66, 32, v66
    v_cmp_gt_u32 vcc, 6, v66
    v_add_u32 v66, 2, v66
    v_cndmask_b32 v66, 12, v66, vcc
    s_mov_b32 s3, 0x0c000c0c
    v_lshl_or_b32 v63, v66, 16, s3
    v_cndmask_b32 v66, 16, 24, vcc
    v_lshlrev_b32 v64, v66, s14
    s_lshl_b32 s3, s4, 3
    v_mov_b32 v59, s3
    s_mov_b32 s62, 0x00ff00ff
    s_mov_b32 s63, 0x00ff00ff
    s_waitcnt vmcnt(3)''')
    def mf(slot, first=False, waits=False):
        for t in range(3):
            if waits: A(f's_waitcnt vmcnt({2-t})')
            c = '0' if first else vr(D0_+4*t, 4)
            A(f'v_mfma_f32_16x16x32_bf16 {vr(D0_+4*t,4)}, {vr(F,4)}, {vr(SL(slot,t),4)}, {c}')
    for g in range(SG):
        for t in range(4): A(f'v_and_b32 v{F+t}, {S[g]}, v{4+t}')
        if g < SG-1: mf(VI(g), first=(g == 0))
    take(0, 'L_lastS')
    mf(VI(SG-1))
    A('s_branch L_loopA')
    A('L_loop:')
    for X, Y, nm, pv in ((0, 2, 'A', 'B'), (2, 0, 'B', 'A')):
        take(X, f'L_last{pv}')
        mf(Y+1)
        A(f'L_loop{nm}:')
        A(f'v_mov_b32 {X0_}, 0\nv_mov_b32 {X1_}, 0')
        if TKW == 6: nexttick()
        for t in range(3):
            A(f's_waitcnt vmcnt({5-t})')
            if TKW == 5-t: nexttick()
            for d in range(0, 4, 2):
                A(f'v_dot2c_f32_bf16 {X0_}, v{SL(X,t)+d}, v{Q0+4*t+d}\nv_dot2c_f32_bf16 {X1_}, v{SL(X,t)+d+1}, v{Q0+4*t+d+1}')
        A(f'v_add_f32 {X0_}, {X0_}, {X1_}')
        allred8([X0_])
        A(f'''v_cvt_pk_bf16_f32 {X0_}, {X0_}, {X0_}
        v_and_b32 {X0_}, 0xffff0000, {X0_}
        v_mul_f32 {X0_}, 0x3d93cd3a, {X0_}
        v_cvt_pk_bf16_f32 {X0_}, {X0_}, {X0_}
        v_and_b32 {X0_}, 0xffff0000, {X0_}
        v_cmp_lt_f32 vcc, s8, {X0_}
        s_cbranch_vccnz L_nc{nm}
        L_nm{nm}:
        v_subrev_f32 {X0_}, s8, {X0_}
        v_mul_f32 {X0_}, {H(LOG2E)}, {X0_}
        v_exp_f32 {X0_}, {X0_}
        v_add_f32 {VL}, {VL}, {X0_}
        v_cvt_pk_bf16_f32 {X0_}, {X0_}, {X0_}''')
        for t in range(4): A(f'v_and_b32 v{F+t}, {X0_}, v{4+t}')
        if TKW < 3:
            A(f's_waitcnt vmcnt({TKW})')
            nexttick()
    A('s_branch L_loop')
    if BS:
        L = lab('bt'); D = lab('btd')
        A(f'''L_next:
        s_cmp_eq_u32 s65, 0
        s_cbranch_scc0 L_ind
        s_mov_b64 exec, 1
        ds_add_rtn_u32 {X2_}, v0, v1 offset:{L_LK}
        s_waitcnt lgkmcnt(0)
        v_readfirstlane_b32 s64, {X2_}
        v_lshrrev_b32 {X2_}, {LBS}, {X2_}
        v_lshlrev_b32 {X2_}, 2, {X2_}
        {L}:
        ds_read_b32 {X3_}, {X2_} offset:{L_BT}
        s_waitcnt lgkmcnt(0)
        v_readfirstlane_b32 s12, {X3_}
        s_cmp_lg_u32 s12, 0
        s_cbranch_scc1 {D}''')
        spin_tail(L, 1)
        A(f'''{D}:
        s_cmp_eq_u32 s12, -1
        s_cbranch_scc1 L_ind1
        s_and_b32 s3, s64, {BS-1}
        s_cmp_eq_u32 s3, {PFS}
        s_cbranch_scc0 L_nof
        s_cmp_gt_u32 s12, {NPOOL - YI}
        s_cbranch_scc1 L_wind
        v_readfirstlane_b32 s67, {X2_}
        s_mov_b32 s66, {BS}
        s_atomic_add s66, s[52:53], 0 glc
        s_add_u32 s67, s67, {L_BT + 4}
        L_nof:
        s_add_u32 s12, s12, s3
        s_sub_u32 s12, s12, 1
        s_mov_b64 exec, -1
        s_setpc_b64 s[60:61]
        L_wind:
        v_mov_b32 {X3_}, -1''')
        for k in range(1, 8 // BS + 1): A(f'ds_write_b32 {X2_}, {X3_} offset:{L_BT + 4*k}')
        A(f'''s_branch L_nof
        L_ind1:
        s_mov_b64 exec, -1
        s_mov_b32 s65, 1
        s_mov_b32 s11, 0
        L_ind:
        s_movk_i32 s12, {NPOOL}
        s_cmp_lt_u32 s11, s10
        s_cbranch_scc0 L_ind2
        {tick}
        L_ind2:
        s_setpc_b64 s[60:61]''')
    for nm in 'AB': A(f'L_nc{nm}:\ns_call_b64 s[60:61], L_newmax\ns_branch L_nm{nm}')
    A('L_newmax:')
    A(f'v_mov_b32 {X1_}, {X0_}')
    red_hi([X1_], 'v_max_f32')
    A(f'v_mov_b32 {X2_}, s8\nv_readlane_b32 s8, {X1_}, 63\nv_subrev_f32 {X2_}, s8, {X2_}\nv_mul_f32 {X2_}, {H(LOG2E)}, {X2_}\nv_exp_f32 {X2_}, {X2_}')
    A(f'v_mul_f32 {VL}, {VL}, {X2_}')
    for i in range(12): A(f'v_mul_f32 v{D0_+i}, v{D0_+i}, {X2_}')
    A('s_setpc_b64 s[60:61]')
    for nm, slot in (('S', VI(SG-1)), ('A', 1), ('B', 3)):
        A(f'L_last{nm}:')
        if EP: A('s_setprio 3')
        stamp(4)
        if not CL: A(f's_mov_b64 exec, 1\nds_add_u32 v0, v1 offset:{L_CSTAT}\ns_mov_b64 exec, -1')
        mf(slot, waits=True)
        if nm != 'B': A('s_branch L_epi')
    A('L_epi:')
    stamp(6)
    if CL: A(f's_mov_b64 exec, 1\nds_add_u32 v0, v1 offset:{L_CSTAT}\ns_mov_b64 exec, -1')
    d = D0_
    A(f'''v_add_f32 {VL}, {VL}, {VL} row_ror:8 {DPPF}
    v_mov_b32 v133, s8
    v_add_f32 {VL}, {VL}, {VL} row_bcast:15 row_mask:0xa bank_mask:0xf
    v_permlane32_swap_b32 v{d}, v{d+2}
    v_add_f32 {VL}, {VL}, {VL} row_bcast:31 row_mask:0xc bank_mask:0xf
    v_permlane32_swap_b32 v{d+1}, v{d+3}
    v_permlane32_swap_b32 v{d+4}, v{d+6}
    v_permlane32_swap_b32 v{d+5}, v{d+7}
    v_permlane32_swap_b32 v{d+8}, v{d+10}
    v_permlane32_swap_b32 v{d+9}, v{d+11}''')
    for t in range(3):
        d = D0_ + 4*t
        A(f'v_add_f32 v{d}, v{d+2}, v{d} row_ror:8 {DPPF}\nv_add_f32 v{d+1}, v{d+3}, v{d+1} row_ror:8 {DPPF}')
    A('s_mov_b64 exec, s[62:63]')
    for t in range(3): A(f'ds_write_b64 v56, {vr(D0_+4*t,2)} offset:{L_OS - 4*768 + 256*t}')
    A(f'''s_lshl_b64 exec, 1, 48
    ds_write2_b32 v59, v133, {VL} offset0:{(L_ST2 - 32)//4} offset1:{(L_ST2 - 32)//4 + 1}
    ds_add_rtn_u32 v6, v0, v1 offset:{L_CO}
    s_mov_b64 exec, -1
    ds_read_b64 v[144:145], v60 offset:{L_ST2}''')
    for k in range(4):
        ad = 'v58' if k < 2 else 'v61'
        A(f'ds_read2_b64 {vr(68+6*k,4)}, {ad} offset0:{96*(k&1)} offset1:{96*(k&1)+1}\nds_read_b64 {vr(72+6*k,2)}, {ad} offset:{768*(k&1)+16}')
    A(f'''s_waitcnt lgkmcnt({0 if stamps == 1 else 8})
    v_readlane_b32 s3, v6, 48
    v_max_f32 v108, v144, v144 quad_perm:[1,0,3,2] {DPPF}
    s_cmp_eq_u32 s3, 7
    s_cbranch_scc0 L_fin
    v_max_f32 v108, v108, v108 quad_perm:[2,3,0,1] {DPPF}
    v_max_f32 v108, v108, v108 row_half_mirror {DPPF}
    v_sub_f32 v144, v144, v108
    v_mul_f32 v144, {H(LOG2E)}, v144
    v_exp_f32 v144, v144
    v_mul_f32 v109, v144, v145''')
    lch = [f'v_add_f32 v109, v109, v109 quad_perm:[1,0,3,2] {DPPF}', f'v_add_f32 v109, v109, v109 quad_perm:[2,3,0,1] {DPPF}', f'v_add_f32 v109, v109, v109 row_half_mirror {DPPF}']
    for w in range(4):
        A(f'v_mov_b32 v{100+w}, v144 row_newbcast:{w} {DPPF}')
        if w in (1, 3): A(lch.pop(0))
    A('s_waitcnt lgkmcnt(0)')
    def fsel(w): return f'{vr(100+(w&~1),2)}', (w & 1)
    for k in range(4):
        fr, hi = fsel(k)
        for h2 in (0, 2, 4):
            if k == 0: A(f'v_pk_mul_f32 {vr(68+h2,2)}, {vr(68+h2,2)}, {fr} op_sel:[0,{hi}] op_sel_hi:[1,{hi}]')
            else: A(f'v_pk_fma_f32 {vr(68+h2,2)}, {vr(68+6*k+h2,2)}, {fr}, {vr(68+h2,2)} op_sel:[0,{hi},0] op_sel_hi:[1,{hi},1]')
        if k == 0: A(lch.pop(0))
    A(f'''v_perm_b32 v110, v109, v108, v63
    v_permlane32_swap_b32 v68, v70
    v_permlane32_swap_b32 v69, v71
    v_permlane32_swap_b32 v72, v73
    v_or_b32 v110, v110, v64
    v_pk_add_f32 v[68:69], v[68:69], v[70:71]
    v_add_f32 v72, v72, v73
    v_cvt_pk_bf16_f32 v68, v68, v69
    v_cvt_pk_bf16_f32 v69, v72, v72
    v_bfi_b32 v69, v62, v69, v110
    global_store_dwordx2 v57, v[68:69], s[42:43] sc1
    s_mov_b64 exec, 1
    ds_add_u32 v0, v1 offset:{L_CO}''')
    if BG: A('s_mov_b32 s12, 1\ns_atomic_add s12, s[52:53], 4 glc')
    stamp(7)
    A('s_branch L_fin')
    if SG < 5:
        import re as _re
        for _k in range(_e0, len(A.L)):
            A.L[_k] = _re.sub(r'\bv(5[6-9]|6[0-3])\b', lambda m: 'v%d' % (int(m.group(1)) + 56), A.L[_k])

    A('L_ctrl:')
    A('L_rest:\ns_cmp_ge_u32 s10, 120\ns_cselect_b32 s12, 1, 0\ns_cselect_b32 s7, 40, 0\ns_sub_u32 s13, s10, 60\ns_sub_u32 s13, s13, s7\ns_lshl2_add_u32 s8, s12, s4\ns_branch L_rest2')
    def calc_t(dst):
        A(f's_and_b32 s3, s2, 7\ns_mul_i32 s3, s3, 3\ns_lshr_b32 s7, s2, 5\ns_add_u32 s3, s3, s7\ns_lshl_b32 s3, s3, 2\ns_bfe_u32 s7, s2, 0x20003\ns_add_u32 {dst}, s3, s7')
    def cstart(bar=True):
        Lk = lab('ci')
        A(f'''v_mov_b32 v0, 0
        v_lshlrev_b32 v75, 4, v2
        v_lshlrev_b32 v80, 2, v2
        v_mov_b32 v79, 1''')
        if not EB: A(f's_cmp_eq_u32 s4, 0\ns_cbranch_scc0 {Lk}\nds_write_b32 v80, v0 offset:1024\n{Lk}:')
        A('s_waitcnt lgkmcnt(0)')
        if TLB == 3:
            A(f's_cmp_eq_u32 s4, 3\ns_cbranch_scc0 {Lk}w\ns_lshl_b32 s9, s59, 9\ns_add_u32 s9, s9, {R_O}\nv_lshl_add_u32 v166, v2, 7, s9\ns_mov_b64 exec, 15\nglobal_load_dword v167, v166, s[42:43] sc1\ns_mov_b64 exec, -1\n{Lk}w:')
        if bar and not EB: A('s_barrier')
        A(f's_load_dwordx2 s[14:15], s[42:43], {R_E}')
    NE = 4*(3 - WDEF) if EQ else 0
    if EQ:
        L = lab('eq')
        A(f'''L_eqdma:
        s_lshr_b32 s8, s10, 3
        s_and_b32 s9, s2, 7
        s_lshl_b32 s9, s9, 1
        s_cmp_ge_u32 s8, 10
        s_cselect_b32 s3, 10, 0
        s_addc_u32 s9, s9, 0
        s_sub_u32 s8, s8, s3
        s_lshl2_add_u32 s9, s9, s4
        s_mul_i32 s3, s9, {96*1280}
        s_lshl_b32 s8, s8, 7
        s_add_u32 s3, s3, s8
        s_add_u32 s48, s24, s3
        s_addc_u32 s49, s25, 0
        s_mov_b32 s50, {96*1280}
        v_mul_u32_u24 v73, 1280, v3
        v_and_b32 v76, 16, v2
        v_lshlrev_b32 v76, 1, v76
        v_xor_b32 v76, v76, v1
        v_add_u32 v73, v73, v76
        s_mul_i32 s8, s4, 12288
        s_add_u32 s8, s8, {L_W}
        s_mov_b32 s9, 0
        {L}:
        s_mov_b32 m0, s8
        s_add_u32 s8, s8, 1024
        buffer_load_dwordx4 v73, s[48:51], s9 offen nt lds
        v_xor_b32 v73, 64, v73
        s_add_u32 s9, s9, 10240
        s_cmp_lt_u32 s9, {NE*10240}
        s_cbranch_scc1 {L}
        s_setpc_b64 s[62:63]''')
    A('L_cN:')
    cstart(not EQ)
    A(f'''s_getpc_b64 s[8:9]
    L_pc1:
    s_sub_u32 s8, s8, L_pc1-L_base
    s_subb_u32 s9, s9, 0
    s_lshr_b32 s3, s2, 3
    s_lshl1_add_u32 s3, s3, s4
    s_and_b32 s3, s3, 15
    s_lshl_b32 s3, s3, 10
    v_add_u32 v76, s3, v75
    v_min_u32 v76, L_end-L_base-12, v76
    global_load_dwordx4 v[160:163], v76, s[8:9] {PFF}''')
    if EQ: A('s_call_b64 s[62:63], L_eqdma\ns_barrier')
    A('s_waitcnt lgkmcnt(0)')
    tags()
    if VT:
        A(f'''s_cmp_eq_u32 s4, 3
        s_cselect_b32 s3, s10, 64
        s_cmp_lt_u32 s3, {NVT}
        s_cbranch_scc0 L_novote
        s_lshl_b32 s3, s10, 7
        s_add_u32 s3, s3, {R_PB}
        s_add_u32 s52, s42, s3
        s_addc_u32 s53, s43, 0
        s_load_dwordx2 s[54:55], s[0:1], 96''')
        VR_ = [18, 19, 20, 21, 22, 23, 26, 27]; KO = [0, 4096, 16384, 20480]
        for k in range(4): A(f's_load_dword s{VR_[2*k]}, s[52:53], {KO[k]} glc\ns_load_dword s{VR_[2*k+1]}, s[52:53], {KO[k]+8192} glc')
        A('s_mov_b32 s8, 0\ns_waitcnt lgkmcnt(0)')
        for r in range(VT):
            k = r % 4
            la = f's_load_dword s62, s[52:53], {KO[k]} glc'; lb = f's_load_dword s63, s[52:53], {KO[k]+8192} glc'
            first = (r ^ (r >> 2)) & 1
            A(f's_not_b32 s62, s{VR_[2*k]}\ns_not_b32 s63, s{VR_[2*k+1]}\n{lb if first else la}\n{la if first else lb}\ns_waitcnt lgkmcnt(1)')
            A(f's_cmp_eq_u32 s62, s{VR_[2*k]}\ns_addc_u32 s8, s8, 0\ns_cmp_lg_u32 s63, s{VR_[2*k+1]}\ns_addc_u32 s8, s8, 0\ns_waitcnt lgkmcnt(0)')
        A(f'''s_sub_u32 s9, {2*VT}, s8
        s_bitcmp1_b32 s2, 2
        s_cselect_b32 s8, s8, s9
        s_add_u32 s8, s8, 0x10000
        s_atomic_add s8, s[54:55], 0 glc
        s_waitcnt lgkmcnt(0)
        L_novote:''')
    A('s_waitcnt vmcnt(0)\ns_branch L_hopB')
    A('L_cA:')
    if EQ: A('s_call_b64 s[62:63], L_eqdma')
    cstart()
    masks(['v4', 'v5', 'v6', 'v7'], 'v2', 'v60', 'v61')
    A(f'''s_mul_i32 s11, s12, 5120
    s_lshl_b32 s7, s13, 8
    s_add_u32 s11, s11, s7
    s_add_u32 s11, s11, {R_MA}
    s_mov_b32 s54, 1
    s_cmp_lt_u32 s10, 80
    s_cbranch_scc1 L_cA1
    s_mul_i32 s11, s12, 15360
    s_add_u32 s11, s11, s7
    s_add_u32 s11, s11, {R_MOD}
    s_mov_b32 s54, 3''')
    if not EQ: A('s_setprio 0\ns_waitcnt vmcnt(0)\ns_call_b64 s[60:61], L_load10')
    A(f'L_cA1:\ns_waitcnt vmcnt({10+NE})')
    C = ['v88', 'v89']; E = ['v90', 'v91']; RC = ['v92', 'v93']; QQ = ['v94', 'v95']; RR = ['v96', 'v97']
    A('v_lshlrev_b32 v88, 16, v82\nv_and_b32 v89, 0xffff0000, v82')
    for i in range(2): A(f'v_mul_f32 {E[i]}, {H(-LOG2E)}, {C[i]}')
    for i in range(2): A(f'v_exp_f32 {E[i]}, {E[i]}')
    A(f's_lshl_b32 s3, s4, 9\ns_add_u32 s3, s3, {L_OS}')
    for i in range(2): A(f'v_add_f32 {E[i]}, 1.0, {E[i]}')
    for i in range(2): A(f'v_rcp_f32 {RC[i]}, {E[i]}')
    A('v_lshl_add_u32 v98, v2, 3, s3\nv_lshl_add_u32 v99, v3, 2, s3')
    for i in range(2): A(f'v_mul_f32 {QQ[i]}, {RC[i]}, {C[i]}')
    for i in range(2): A(f'v_fma_f32 {RR[i]}, -{QQ[i]}, {E[i]}, {C[i]}')
    for i in range(2): A(f'v_fmac_f32 {QQ[i]}, {RR[i]}, {RC[i]}')
    for i in range(2): A(f'v_div_fixup_f32 {QQ[i]}, {QQ[i]}, {E[i]}, {C[i]}')
    for i in range(2): A(f'v_cvt_pk_bf16_f32 {QQ[i]}, {QQ[i]}, {QQ[i]}')
    A('ds_write_b64 v98, v[94:95]')
    for k in range(5): A(f'ds_read2_b32 {vr(X0+2*k,2)}, v99 offset0:{16*k} offset1:{16*k+8}')
    for i in range(4): A(f'v_mov_b32 v{D0+i}, 0')
    A('s_waitcnt lgkmcnt(0)')
    tags()
    stamp(1)
    A(f's_waitcnt vmcnt({NE})\ns_branch L_mm10')
    W1 = 88; X1r = 128
    A('L_cB:')
    A(f'''v_mul_u32_u24 v72, 12288, v3
    s_mul_i32 s3, s4, {160*12288}
    s_mul_i32 s7, s5, 384
    s_add_u32 s3, s3, s7
    s_lshr_b32 s12, s2, 5
    s_lshl_b32 s7, s12, 7
    s_add_u32 s3, s3, s7
    v_add_u32 v72, v72, v1
    s_mov_b32 s46, {160*12288}
    s_mov_b32 s57, {8*12288}
    v_mul_u32_u24 v73, 20, v2
    v_min_u32 v74, 39, v2
    s_mul_i32 s13, s4, 320
    v_lshl_add_u32 v74, v74, 3, s13''')
    cstart(FB < 2)
    A(f'''s_add_u32 s44, s22, s3
    s_addc_u32 s45, s23, 0
    global_load_dwordx4 v[140:143], v73, s[16:17]
    global_load_dword v144, v73, s[16:17] offset:16
    global_load_dwordx2 v[146:147], v74, s[16:17]''')
    stamp(13)
    A(f'''s_call_b64 s[60:61], L_load10
    s_mov_b32 s56, {80*12288}''')
    for k in range(10):
        A(f'buffer_load_dwordx4 {vr(W1+4*k,4)}, v72, s[44:47], s56 offen nt')
        if k < 9: A('s_add_u32 s56, s56, s57')
    if FB == 2: A('s_barrier')
    A(f'''s_or_b32 s3, s12, s4
    s_cbranch_scc1 L_notk
    s_mul_i32 s3, s5, {TKS}
    s_add_u32 s3, s3, {R_TK2}
    v_mov_b32 v60, s3
    s_mov_b64 exec, 1
    v_mov_b32 v62, {8*BS if BS else 64*NS}
    v_mov_b32 v63, 0
    global_store_dwordx2 v60, v[62:63], s[42:43] sc1
    s_mov_b64 exec, -1
    L_notk:''')
    masks(['v4', 'v5', 'v6', 'v7'], 'v2', 'v64', 'v65')
    A(f'''s_mul_i32 s11, s5, 768
    s_lshl_b32 s7, s12, 8
    s_add_u32 s11, s11, s7
    s_add_u32 s11, s11, {R_Q}
    v_lshlrev_b32 v74, 1, v74
    s_mov_b32 s54, 3
    v_add_u32 v76, {R_MA}, v74
    v_add_u32 v77, {R_MA + 5120}, v74
    v_add_u32 v78, {R_MA + 10240}, v74
    v_add_u32 v81, {R_MA + 15360}, v74
    s_lshl_b32 s3, s13, 1
    s_add_u32 s3, s3, {L_HB}
    v_lshl_add_u32 v73, v3, 2, s3
    s_waitcnt vmcnt(20) lgkmcnt(0)''')
    tags()
    XA = [v(150+i) for i in range(10)]
    for i in range(5):
        A(f'v_lshlrev_b32 {XA[2*i]}, 16, v{140+i}\nv_and_b32 {XA[2*i+1]}, 0xffff0000, v{140+i}')
    XN = ['v160', 'v161', 'v162', 'v163']
    A('v_lshlrev_b32 v160, 16, v146\nv_and_b32 v161, 0xffff0000, v146\nv_lshlrev_b32 v162, 16, v147\nv_and_b32 v163, 0xffff0000, v147')
    A(f'v_add_f32 v60, {XA[0]}, {XA[1]}')
    for i in range(2, 10): A(f'v_add_f32 v60, v60, {XA[i]}')
    allred8(['v60']); red_hi(['v60'])
    A(f'v_mul_f32 v60, {H(1/640)}, v60\nv_readlane_b32 s8, v60, 63')
    for i in range(10): A(f'v_subrev_f32 {XA[i]}, s8, {XA[i]}')
    A(f'v_mul_f32 v61, {XA[0]}, {XA[0]}')
    for i in range(1, 10): A(f'v_fmac_f32 v61, {XA[i]}, {XA[i]}')
    allred8(['v61']); red_hi(['v61'])
    A(f'v_mul_f32 v61, {H(1/640)}, v61')
    round_list(['v60', 'v61'], ['v62'])
    A(f'v_add_f32 v61, {H(1e-5)}, v61')
    round_list(['v61'], ['v62'])
    A('v_sqrt_f32 v61, v61')
    round_list(['v61'], ['v62'])
    A('v_rcp_f32 v61, v61\nv_readlane_b32 s8, v60, 63\nv_readlane_b32 s9, v61, 63')
    for r in XN: A(f'v_subrev_f32 {r}, s8, {r}')
    round_list(XN, ['v62', 'v63'])
    for r in XN: A(f'v_mul_f32 {r}, s9, {r}')
    round_list(XN, ['v62', 'v63'])
    set_exec(0xffffffff, 0xff)
    stamp(1)
    A(f's_waitcnt vmcnt({HAW})')
    stamp(2)
    G = 128
    A(f's_and_b32 s3, s14, {FM}\ns_sub_u32 s36, 0, s3\ns_subb_u32 s37, 0, s3')
    L = lab('ha')
    A(f'{L}:')
    for k in range(8): A(f'global_load_dwordx4 {vr(G+4*k,4)}, {["v76","v77","v78","v81"][k%4]}, s[42:43] offset:{2560*(k//4)} sc1')
    if FB == 3: A('s_cmp_eq_u32 s56, 0\ns_cbranch_scc1 L_nb3\ns_mov_b32 s56, 0\ns_barrier\nL_nb3:')
    A('s_waitcnt vmcnt(0)')
    untag(G, 32)
    ortree([v(G+i) for i in range(32)], 'v60')
    tag_end('v60', L, SLA, FM)
    A('s_and_b32 s3, s14, 15\ns_sub_u32 s36, 0, s3\ns_subb_u32 s37, 0, s3')
    stamp(3)
    for a, b in ((0,1),(2,3),(0,2)):
        for base in (0, 4):
            for h2 in (0, 2): A(f'v_pk_add_f32 {vr(G+4*(base+a)+h2,2)}, {vr(G+4*(base+a)+h2,2)}, {vr(G+4*(base+b)+h2,2)}')
    SA = [v(G+i) for i in range(4)]; CA = [v(G+16+i) for i in range(4)]
    TT = ['v60', 'v61', 'v62', 'v63']
    round_list(CA + SA, TT)
    for r in CA: A(f'v_add_f32 {r}, 1.0, {r}')
    round_list(CA, TT)
    for a, b in zip(CA, XN): A(f'v_mul_f32 {a}, {a}, {b}')
    round_list(CA, TT)
    for a, b in zip(CA, SA): A(f'v_add_f32 {a}, {a}, {b}')
    for r in CA: A(f'v_cvt_pk_bf16_f32 {r}, {r}, {r}')
    A(f'ds_write_b128 v74, v[144:147] offset:{L_HB}\ns_mov_b64 exec, -1')
    for k in range(5): A(f'ds_read2_b32 {vr(X1r+2*k,2)}, v73 offset0:{80 + 16*k} offset1:{80 + 16*k + 8}')
    for k in range(5): A(f'ds_read2_b32 {vr(X0+2*k,2)}, v73 offset0:{16*k} offset1:{16*k + 8}')
    A('s_waitcnt lgkmcnt(0)')
    for s in range(10):
        F = F0 + 4*(s & 1)
        for t in range(4): A(f'v_and_b32 v{F+t}, v{X1r+s}, v{4+t}')
        c = '0' if s == 0 else vr(D0, 4)
        A(f'v_mfma_f32_16x16x32_bf16 {vr(D0,4)}, {vr(F,4)}, {vr(W1+4*s,4)}, {c}')
    A('L_mm10:')
    for s in range(10):
        F = F0 + 4*(s & 1)
        for t in range(4): A(f'v_and_b32 v{F+t}, v{X0+s}, v{4+t}')
        A(f'v_mfma_f32_16x16x32_bf16 {vr(D0,4)}, {vr(F,4)}, {vr(W0+4*s,4)}, {vr(D0,4)}')
    A('''v_and_b32 v65, 16, v2
    v_lshrrev_b32 v66, 5, v2
    v_lshl_add_u32 v64, v1, 1, v65
    v_lshl_add_u32 v64, v66, 3, v64
    s_lshl_b32 s3, s4, 8
    v_add_u32 v64, s3, v64
    v_add_u32 v67, s11, v80
    s_and_b32 s9, s14, 0xffff''')
    A(f'v_permlane32_swap_b32 v60, v62\nv_permlane32_swap_b32 v61, v63')
    A(f'v_add_f32 v60, v62, v60 row_ror:8 {DPPF}\nv_add_f32 v61, v63, v61 row_ror:8 {DPPF}')
    set_exec(0x00ff00ff, 0x00ff00ff)
    A(f'''ds_write_b64 v64, v[60:61] offset:{L_MS}
    s_mov_b64 exec, 1
    ds_add_rtn_u32 v66, v0, v79 offset:{L_CM}
    s_mov_b64 exec, -1
    ds_read2st64_b32 v[68:69], v80 offset0:{L_MS//256} offset1:{L_MS//256+1}
    ds_read2st64_b32 v[70:71], v80 offset0:{L_MS//256+2} offset1:{L_MS//256+3}
    s_waitcnt lgkmcnt(0)
    v_readfirstlane_b32 s3, v66
    s_cmp_eq_u32 s54, 1
    s_cselect_b32 s7, {FM}, 15
    v_mov_b32 v65, s7
    s_cbranch_scc1 L_two
    v_pk_add_f32 v[68:69], v[68:69], v[70:71]
    L_two:
    v_add_f32 v68, v68, v69
    v_cvt_pk_bf16_f32 v69, v68, v68
    v_bfi_b32 v68, v65, s14, v68
    v_lshl_or_b32 v69, v69, 16, s9
    s_cmp_lt_u32 s2, 96
    s_cselect_b64 vcc, -1, 0
    v_cndmask_b32 v68, v68, v69, vcc
    s_cmp_eq_u32 s3, s54
    s_cbranch_scc0 L_nopub
    global_store_dword v67, v68, s[42:43] sc1
    L_nopub:
    s_setprio 3''')
    stamp(4)
    if HB:
        A('L_hopB:\ns_cmp_eq_u32 s4, 0\ns_cbranch_scc1 L_tail')
        if stamps == 1:
            A('s_waitcnt lgkmcnt(0)')
            for i in range(13): A(f'v_writelane_b32 v159, s{70+2*i}, {i}')
        elif stamps: A('s_waitcnt lgkmcnt(0)\nv_writelane_b32 v159, s70, 0')
        A(f'''s_mul_i32 s3, s5, 768
        s_lshl_b32 s7, s4, 8
        s_add_u32 s3, s3, s7
        s_add_u32 s3, s3, {R_Q - 256}
        s_add_u32 s52, s42, s3
        s_addc_u32 s53, s43, 0
        v_mov_b32 v64, s14
        v_mov_b32 v65, s15
        ds_write_b64 v0, v[64:65] offset:{L_TB}
        s_lshl_b32 s3, s4, 7
        v_lshl_add_u32 v74, v2, 1, s3''')
        L = lab('hb')
        for half in range(2):
            Lh = L if half == 0 else lab('hc'); D = lab('hbh')
            A(f'{Lh}:\ns_load_dwordx16 s[64:79], s[52:53], {128*half} glc\ns_load_dwordx16 s[80:95], s[52:53], {128*half+64} glc\ns_waitcnt lgkmcnt(0)')
            A(f's_xor_b32 s3, s64, s14\ns_xor_b32 s7, s95, s14\ns_or_b32 s3, s3, s7\ns_and_b32 s3, s3, 0xffff\ns_cbranch_scc0 {D}')
            spin_tail(Lh, SLB if half == 0 else 1)
            A(f'{D}:')
            for k in range(32): A(f'v_writelane_b32 v84, s{64+k}, {32*half+k}')
        D = lab('hbd')
        A(f'''v_xor_b32 v60, s14, v84
        v_lshlrev_b32 v60, 16, v60
        v_cmp_ne_u32 vcc, 0, v60
        s_cbranch_vccz {D}''')
        spin_tail(L, SLB)
        A(f'''{D}:
        ds_write_b16_d16_hi v74, v84 offset:{L_Q - 128}
        s_mov_b64 exec, 1
        ds_add_u32 v0, v79 offset:{L_CQ}
        s_mov_b64 exec, -1''')
        if stamps == 1:
            for i in range(13): A(f'v_readlane_b32 s{70+2*i}, v159, {i}')
        elif stamps: A('v_readlane_b32 s70, v159, 0')
        stamp(5)
    else:
        A('L_hopB:\ns_cmp_eq_u32 s4, 1\ns_cbranch_scc0 L_tail')
        A(f'''s_mul_i32 s3, s5, 768
        s_add_u32 s3, s3, {R_Q}
        v_add_u32 v73, s3, v75
        s_add_u32 s52, s42, s3
        s_addc_u32 s53, s43, 0
        v_mov_b32 v64, s14
        v_mov_b32 v65, s15
        ds_write_b64 v0, v[64:65] offset:{L_TB}
        v_mov_b32 v76, 0x07060302
        v_lshlrev_b32 v74, 3, v2
        s_load_dwordx2 s[54:55], s[0:1], 96
        s_lshl_b32 s7, s6, 4
        s_add_u32 s52, s52, s7
        s_addc_u32 s53, s53, 0''')
        set_exec(0xffffffff, 0xffff)
        L = lab('hb'); D = lab('hbh')
        A(f'{L}:')
        for k in range(3): A(f's_load_dword s{62+k}, s[52:53], {256*k} glc')
        A(f's_waitcnt lgkmcnt(0)\ns_xor_b32 s62, s62, s14\ns_xor_b32 s63, s63, s14\ns_xor_b32 s64, s64, s14\ns_or_b32 s62, s62, s63\ns_or_b32 s62, s62, s64\ns_and_b32 s62, s62, 0xffff\ns_cbranch_scc0 {D}')
        spin_tail(L, SLB)
        A(f'{D}:')
        stamp(12)
        D = lab('hbd')
        A('global_load_dwordx4 v[84:87], v73, s[42:43] sc1')
        if VT:
            L3 = lab('vt'); D3 = lab('vtd')
            A(f's_load_dword s8, s[54:55], 0\ns_branch {L3}c\n{L3}:\ns_load_dword s8, s[54:55], 0 glc\n{L3}c:\ns_waitcnt lgkmcnt(0)\ns_lshr_b32 s3, s8, 16\ns_cmp_eq_u32 s3, {NVT}\ns_cbranch_scc1 {D3}')
            spin_tail(L3, 16)
            A(f'{D3}:\ns_and_b32 s8, s8, 0xffff\ns_cmp_gt_u32 s8, {NVT*VT}\ns_cselect_b32 s8, 8192, 0\nv_mov_b32 v66, s8\nds_write_b32 v0, v66 offset:{L_TB+8}')
        A(f'''s_waitcnt vmcnt(0)
        v_bitop3_b32 v60, v84, v85, s14 bitop3:0x7e
        v_bitop3_b32 v61, v86, v87, s14 bitop3:0x7e
        v_or_b32 v60, v60, v61
        v_lshlrev_b32 v60, 16, v60
        v_cmp_ne_u32 vcc, 0, v60
        s_cbranch_vccz {D}''')
        spin_tail(L, SLB)
        A(f'''{D}:
        v_perm_b32 v84, v85, v84, v76
        v_perm_b32 v85, v87, v86, v76
        ds_write_b64 v74, v[84:85] offset:{L_Q}
        s_mov_b64 exec, 1
        ds_add_u32 v0, v79 offset:{L_CQ}
        s_mov_b64 exec, -1''')
        stamp(5)

    def trig_wait(val, L_TRIG=L_TRIG):
        if val <= 0: return
        L = lab('tg'); D = lab('tgd'); W = lab('tgw')
        A(f's_cmp_eq_u32 s4, 3\ns_cbranch_scc0 {W}\ns_lshl_b32 s8, s5, 7\ns_add_u32 s8, s8, {R_TK}\nds_read_b32 v90, v0 offset:{L_TB}\ns_waitcnt lgkmcnt(0)\nv_readfirstlane_b32 s9, v90')
        A(f'{L}:\ns_load_dword s3, s[42:43], s8 glc\ns_waitcnt lgkmcnt(0)\ns_sub_u32 s3, s3, s9\ns_cmp_ge_u32 s3, {val}\ns_cbranch_scc1 {D}')
        spin_tail(L, 4)
        A(f'{D}:\nv_mov_b32 v90, 1\nds_write_b32 v0, v90 offset:{L_TRIG}\n{W}:')
        lds_wait_ge(L_TRIG, 1, 'v0', 'v90', sleep=2)
    def sgate(base, offs, regs, mask):
        L = lab('sg'); D = lab('sgd')
        A(f'{L}:')
        for o, r in zip(offs, regs): A(f's_load_dword s{r}, {base}, {o} glc')
        A('s_waitcnt lgkmcnt(0)')
        A(f's_xor_b32 s3, s{regs[0]}, s14')
        for r in regs[1:len(offs)]: A(f's_xor_b32 s{r}, s{r}, s14\ns_or_b32 s3, s3, s{r}')
        if mask != -1: A(f's_and_b32 s3, s3, {mask}')
        A(f's_cbranch_scc0 {D}')
        spin_tail(L, 0)
        A(f'{D}:')
    def ffn_prefetch():
        if not PFC: return
        Lk = lab('pf')
        A(f'''s_lshr_b32 s8, s2, 3
        s_lshl2_add_u32 s8, s8, s4
        s_cmp_ge_u32 s8, 120
        s_cbranch_scc1 {Lk}
        s_cmp_lt_u32 s8, 40
        s_cselect_b32 s64, s28, s30
        s_cselect_b32 s65, s29, s31
        s_cselect_b32 s9, 0, 40
        s_cmp_lt_u32 s8, 80
        s_cselect_b32 s64, s64, s32
        s_cselect_b32 s65, s65, s33
        s_cselect_b32 s9, s9, 80
        s_movk_i32 s66, 384
        s_cselect_b32 s67, 3072, s66
        s_cselect_b32 s66, s66, 245760
        s_sub_u32 s8, s8, s9
        s_mul_i32 s8, s8, s67
        s_lshl_b32 s8, s8, 4
        s_mul_i32 s9, s6, s66
        s_add_u32 s8, s8, s9
        v_lshrrev_b32 v165, 2, v2
        v_mul_u32_u24 v165, s67, v165
        v_lshl_add_u32 v165, v7, 4, v165
        s_mov_b32 s66, 1966080
        s_mov_b32 s67, 0x20000''')
        lds_wait_ge(L_CSTAT, PFC, 'v0', 'v90', sleep=1)
        set_exec(0x77777777, 0x77777777)
        A(f'buffer_load_dword v166, v165, s[64:67], s8 offen {PFP}\ns_mov_b64 exec, -1\n{Lk}:')
    A('L_tail:')
    if AFF: A('s_and_b32 s6, s2, 7')
    A('v_lshrrev_b32 v4, 4, v2\nv_and_b32 v5, 15, v2\nv_lshrrev_b32 v6, 2, v5\nv_and_b32 v7, 3, v2\nv_lshlrev_b32 v7, 3, v7')
    A('s_cmp_ge_u32 s2, 96\ns_cbranch_scc0 L_tailB')
    A('''s_lshr_b32 s13, s10, 3
    s_and_b32 s12, s2, 7
    s_lshl_b32 s12, s12, 1
    s_cmp_ge_u32 s13, 10
    s_cselect_b32 s3, 10, 0
    s_addc_u32 s12, s12, 0
    s_sub_u32 s13, s13, s3''')
    A(f'''s_lshr_b32 s23, s10, 3
    s_lshr_b32 s3, s10, 5
    s_cmp_eq_u32 s4, 2
    s_cselect_b32 s7, 2, 0
    s_add_u32 s3, s3, s7
    s_and_b32 s7, s6, 3
    s_lshl2_add_u32 s3, s3, s7
    s_bfe_u32 s7, s10, 0x20003
    s_lshl2_add_u32 s9, s3, s7
    s_lshr_b32 s8, s6, 2
    s_mul_i32 s10, s8, 40
    s_add_u32 s10, s10, s9
    s_cmp_lt_u32 s9, 40
    s_cselect_b32 s57, 1, 0
    s_lshl_b32 s8, s8, 13
    s_lshl_b32 s9, s9, 5
    s_add_u32 s9, s9, s8
    s_sub_u32 s3, s4, 1
    s_cmp_lt_u32 s3, 2
    s_cselect_b32 s57, s57, 0
    s_cmp_ge_u32 s23, 8
    s_cselect_b32 s57, 2, s57
    s_mul_i32 s3, s6, 12
    s_add_u32 s23, s23, s3
    s_sub_u32 s23, s23, 8
    s_lshl2_add_u32 s3, s57, s4
    s_cmp_eq_u32 s3, 8
    s_cbranch_scc0 L_noxc
    s_getreg_b32 s3, hwreg(HW_REG_XCC_ID, 0, 4)
    s_andn2_b32 s7, s14, 15
    s_or_b32 s3, s3, s7
    v_mov_b32 v101, s3
    s_lshl_b32 s3, s23, 2
    v_mov_b32 v100, s3
    s_mov_b64 exec, 1
    global_store_dword v100, v101, s[42:43] offset:{R_XC} sc1
    s_mov_b64 exec, -1
    L_noxc:''')
    A(f'''v_and_b32 v100, 1, v2
    v_lshl_add_u32 v100, v100, 2, v4
    s_lshl_b32 s3, s10, 3
    v_add_u32 v100, s3, v100
    v_lshlrev_b32 v101, 2, v100
    v_lshlrev_b32 v100, 1, v100
    v_add_u32 v102, {R_MOD + 5*2560}, v101
    v_add_u32 v101, {R_X1}, v101
    v_bfe_u32 v103, v2, 1, 2
    v_lshlrev_b32 v103, 11, v103
    v_lshl_add_u32 v103, v3, 14, v103
    v_and_b32 v104, 1, v2
    v_lshl_add_u32 v103, v104, 4, v103
    s_add_u32 s3, s9, {RD}
    v_add_u32 v103, s3, v103
    v_add_u32 v104, {8*16384}, v103
    v_add_u32 v105, {16*16384}, v103''')
    B0 = 8; AA = 56; DD = 68
    A(f'''v_lshl_add_u32 v84, v4, 3, v6
    s_mul_i32 s3, s4, 96
    v_add_u32 v84, s3, v84
    v_lshl_add_u32 v84, v84, 7, v7
    v_lshl_add_u32 v85, v3, 9, v1
    s_lshr_b32 s3, s4, 1
    s_lshl1_add_u32 s8, s12, s3
    {oadr('s3', 's8', 's7')}
    s_and_b32 s7, s4, 1
    s_lshl_b32 s7, s7, 8
    s_add_u32 s3, s3, s7
    v_add_u32 v85, s3, v85
    v_mov_b32 v118, 0x05040100
    s_mul_i32 s3, s4, 2048
    s_add_u32 s3, s3, {L_W + 49152}
    v_and_b32 v90, 7, v2
    v_mul_u32_u24 v119, 192, v3
    v_mul_u32_u24 v91, 12, v90
    v_add3_u32 v119, v119, v91, s3
    v_mul_u32_u24 v133, 192, v90
    v_lshl_add_u32 v133, v4, 4, v133
    v_add_u32 v133, s3, v133
    v_lshl_add_u32 v134, v3, 4, v90
    v_add_u32 v134, s3, v134
    v_add_u32 v135, s3, v1
    v_cmp_gt_u32 vcc, 6, v90
    v_cndmask_b32 v90, 16, 24, vcc
    v_lshlrev_b32 v91, v90, s14
    v_lshlrev_b32 v128, v90, -1
    s_lshl_b32 s26, s14, 16
    v_lshrrev_b32 v86, 5, v2
    v_lshl_add_u32 v86, v86, 4, v5
    v_lshlrev_b32 v86, 5, v86
    v_and_b32 v87, 1, v4
    v_lshl_add_u32 v86, v87, 2, v86
    s_lshl_b32 s3, s4, 3
    v_add_u32 v86, s3, v86
    v_lshlrev_b32 v87, 5, v2
    s_lshr_b32 s3, s12, 1
    s_and_b32 s7, s12, 1
    s_lshl2_add_u32 s3, s3, s7
    s_lshl_b32 s3, s3, 12
    s_lshl_b32 s7, s13, 8
    s_add_u32 s3, s3, s7
    s_add_u32 s3, s3, {RP}
    v_lshl_add_u32 v88, v2, 2, s3
    v_mov_b32 v89, 1
    v_mov_b32 v98, 0xffff0000''')
    A(f'''s_mul_i32 s3, s12, {384*1280}
    s_lshl_b32 s7, s13, 7
    s_add_u32 s3, s3, s7
    s_add_u32 s44, s24, s3
    s_addc_u32 s45, s25, 0
    s_mov_b32 s46, {384*1280}
    v_mul_u32_u24 v72, 1280, v3
    v_and_b32 v90, 16, v2
    v_lshlrev_b32 v90, 1, v90
    v_xor_b32 v90, v90, v1
    v_add_u32 v72, v72, v90
    v_and_b32 v90, 1, v4
    v_lshrrev_b32 v92, 1, v6
    v_lshl_or_b32 v90, v90, 1, v92
    v_lshlrev_b32 v90, 5, v90
    v_add_u32 v84, v84, v90
    v_xor_b32 v154, 32, v84
    v_xor_b32 v155, 64, v84
    v_xor_b32 v156, 0x60, v84''')
    SE = 3 - WDEF
    def trread(s):
        for ct in range(4):
            for hf in range(2):
                A(f'ds_read_b64_tr_b16 {vr(B0+(s*4+ct)*4+2*hf,2)}, {["v84","v154","v155","v156"][ct]} offset:{L_W + (32*s+4*hf)*128}')
    if SE and not EQ:
        A(f's_cmp_eq_u32 s4, 0\ns_cbranch_scc0 L_nodma\ns_movk_i32 s7, {L_W}\ns_setprio {DPRIO}')
        stamp(6)
        L = lab('dma'); L2 = lab('dmo')
        A(f's_mov_b32 s56, 0\n{L2}:\ns_mov_b32 s8, 0\n{L}:\ns_mov_b32 m0, s7\ns_add_u32 s7, s7, 1024\nbuffer_load_dwordx4 v72, s[44:47], s56 offen nt lds\nv_xor_b32 v72, 64, v72\ns_add_u32 s56, s56, 10240\ns_waitcnt vmcnt({TWA})')
        A(f's_add_u32 s8, s8, 1\ns_cmp_lt_u32 s8, {4*SE}\ns_cbranch_scc1 {L}')
        A(f's_add_u32 s7, s7, {4096*WDEF}\ns_add_u32 s56, s56, {40960*WDEF}\ns_cmp_lt_u32 s56, {384*1280}\ns_cbranch_scc1 {L2}')
        A(f's_waitcnt vmcnt(0)\nds_write_b32 v0, v89 offset:{L_WRDY}')
        stamp(7)
        A('L_nodma:')
    A(f's_setprio {CP}')
    if SE:
        if EQ: A('s_waitcnt vmcnt(0)')
        else: lds_wait_ge(L_WRDY, 1, 'v0', 'v90', sleep=8)
        for s in range(SE):
            trread(s)
            A('s_waitcnt lgkmcnt(0)')
    if not WDEF: stamp(8)
    A('s_cmp_eq_u32 s57, 1\ns_cbranch_scc0 L_nofin')
    if not SE or EQ: lds_wait_ge(L_CQ, 5, 'v0', 'v90', sleep=8)
    A('global_load_ushort v107, v100, s[38:39]')
    A('v_add_u32 v132, 15360, v102')
    L = lab('gb')
    A(f'{L}:\nglobal_load_dword v120, v102, s[42:43] sc1\nglobal_load_dword v121, v132, s[42:43] sc1\ns_waitcnt vmcnt(0)')
    untag(120, 2)
    ortree(['v120', 'v121'], 'v90')
    tag_end('v90', L, 16)
    A('v_add_f32 v106, v120, v121')
    round_list(['v106'], ['v90'])
    A('L_nofin:')
    tailtags()
    def act_dma():
        for n in range(5):
            A(f's_add_u32 m0, s13, {1024*n}\ns_nop 0\nbuffer_load_dwordx4 v{148+n}, s[48:51], 0 offen nt lds')
        if TCH == 0: act_touch()
    def act_touch():
        A('s_mov_b64 exec, 31')
        if NGT < 2: A('global_load_dword v167, v153, s[42:43] sc1')
        if NGT < 1: A(f's_lshl2_add_u32 s3, s23, s4\ns_mul_i32 s3, s3, 640\ns_add_u32 s3, s3, {R_GU}\nv_lshl_add_u32 v153, v2, 7, s3\nglobal_load_dword v167, v153, s[42:43] sc1')
        A('s_mov_b64 exec, -1')
    for n in range(5):
        A(f'v_add_u32 v90, {64*n}, v2\nv_mul_u32_u24 v92, 3277, v90\nv_lshrrev_b32 v92, 16, v92\nv_mul_u32_u24 v92, 960, v92\nv_lshl_add_u32 v{148+n}, v90, 4, v92')
    A(f'''s_min_u32 s23, s23, 95
    s_mul_i32 s3, s23, 20480
    s_mul_i32 s7, s4, 320
    s_add_u32 s3, s3, s7
    s_add_u32 s48, s32, s3
    s_addc_u32 s49, s33, 0
    s_movk_i32 s50, {15*1280 + 320}
    s_mul_i32 s13, s4, 5120
    s_add_u32 s13, s13, {L_DN}
    s_lshr_b32 s3, s23, 2
    s_lshr_b32 s7, s4, 1
    s_lshl1_add_u32 s3, s3, s7
    s_and_b32 s7, s23, 3
    s_lshl2_add_u32 s3, s3, s7
    s_lshl_b32 s3, s3, 11
    s_and_b32 s7, s4, 1
    s_mul_i32 s7, s7, 640
    s_add_u32 s12, s3, s7
    s_add_u32 s12, s12, {RD}
    v_lshl_add_u32 v153, v2, 7, s12
    v_and_b32 v132, 1, v4
    v_lshl_add_u32 v132, v132, 3, v6
    v_mul_u32_u24 v132, 320, v132
    v_lshrrev_b32 v90, 1, v4
    v_lshl_add_u32 v90, v90, 5, v7
    v_add3_u32 v132, v132, v90, s13
    v_and_b32 v165, 16, v2
    v_lshl_add_u32 v165, v165, 3, v1
    v_lshrrev_b32 v90, 5, v2
    v_mul_u32_u24 v90, 384, v90
    v_add_u32 v165, v165, v90
    v_cmp_eq_u32 vcc, 8, v2
    v_mov_b32 v90, 256
    v_cndmask_b32 v165, v165, v90, vcc
    s_mul_i32 s3, s23, 2560
    s_add_u32 s3, s3, {R_GU}
    v_add_u32 v165, s3, v165
    v_lshlrev_b32 v166, 6, v5
    v_lshl_add_u32 v166, v4, 4, v166
    v_add_u32 v166, s12, v166
    v_lshrrev_b32 v90, 1, v4
    v_and_b32 v92, 1, v2
    v_cmp_eq_u32 s[62:63], v90, v92
    v_lshrrev_b32 v90, 1, v5''')
    for m in range(5):
        A(f'v_cmp_eq_u32 vcc, {m}, v90\ns_and_b64 vcc, vcc, s[62:63]\nv_cndmask_b32 v{160+m}, 0, -1, vcc')
    if VT:
        lds_wait_ge(L_CQ, 5, 'v0', 'v90', sleep=8)
        getpol()
        for r in (85, 103, 104, 105, 153, 166): A(f'v_xor_b32 v{r}, s27, v{r}')
    if TLB in (1, 2):
        A('s_cmp_eq_u32 s4, 2\ns_cbranch_scc0 L_nowarm')
        if TLB == 1: lds_wait_ge(L_CSTAT, 1, 'v0', 'v90', sleep=2)
        A(f'{own_o}\nv_lshl_add_u32 v90, v2, 7, s3\ns_mov_b64 exec, 15\nglobal_load_dword v167, v90, s[42:43] sc1')
        set_exec(1, 1)
        if PW >= 1: A('global_load_dword v167, v88, s[42:43] sc1')
        if PW >= 2: A('v_add_u32 v90, 40960, v88\nglobal_load_dword v167, v90, s[42:43] sc1')
        A('s_mov_b64 exec, -1\nL_nowarm:')
    if WDEF:
        A(f's_mul_i32 s7, s4, 12288\ns_add_u32 s7, s7, {L_W + 4096*SE}\ns_mul_i32 s56, s4, 122880\ns_add_u32 s56, s56, {40960*SE}')
    ffn_prefetch()
    if ADM:
        A('s_cmp_eq_u32 s57, 2\ns_cbranch_scc0 L_noad')
        if ADM < 9: lds_wait_ge(L_CSTAT, ADM, 'v0', 'v90', sleep=1)
        elif ADM == 9: lds_wait_ge(L_CO, 9, 'v0', 'v90', sleep=1)
        act_dma()
        A('L_noad:')
    if TCH:
        A('s_cmp_eq_u32 s57, 2\ns_cbranch_scc0 L_notch')
        if TCH < 9: lds_wait_ge(L_CSTAT, TCH, 'v0', 'v90', sleep=1)
        act_touch()
        A('L_notch:')
    assert PREP == 4
    for c in range(1, PREP): A(f's_mov_b32 s{15+c}, {(c&1)*131072 + (c>>1)*8192}')
    if CS and not WDEF: lds_wait_ge(L_CSTAT, CS, 'v0', 'v90', sleep=1)
    elif WP:
        if LS: lds_wait_ge(L_CSTAT, 1, 'v0', 'v90', sleep=LS)
        lds_wait_ge(L_CSTAT, WPC, 'v0', 'v90', sleep=1)
    if WDEF:
        for k in range(4*WDEF):
            if k == WP: lds_wait_ge(L_CO, 9, 'v0', 'v90', sleep=WSL)
            A('s_mov_b32 m0, s7\ns_add_u32 s7, s7, 1024\nbuffer_load_dwordx4 v72, s[44:47], s56 offen nt lds\nv_xor_b32 v72, 64, v72\ns_add_u32 s56, s56, 10240')
        OX = 120
        for s in range(SE, 2):
            A(f's_waitcnt vmcnt({4*(2-s)}) lgkmcnt(0)')
            trread(s)
        if OEARLY == 0:
            A('s_waitcnt vmcnt(0) lgkmcnt(0)')
            trread(2)
            stamp(8)
            if OG: lds_wait_ge(L_CO, OG, 'v0', 'v90', sleep=0)
            if AG:
                L = lab('ag'); D = lab('agd'); W = lab('agw')
                A(f's_bitcmp0_b32 s4, 0\ns_cbranch_scc0 {W}')
                A(f'{L}:\ns_load_dword s3, s[42:43], s27 glc\ns_waitcnt lgkmcnt(0)\ns_cmp_ge_u32 s3, {AG}\ns_cbranch_scc1 {D}')
                spin_tail(L, AGS)
                A(f'{D}:\nds_write_b32 v129, v89 offset:{L_BT}\n{W}:')
                lds_wait_ge(L_BT, 1, 'v129', 'v90', sleep=0)
            stamp(9)
        else:
            if OEARLY < 4: A(f's_waitcnt vmcnt({OEARLY})')
            if OG: lds_wait_ge(L_CO, OG, 'v0', 'v90', sleep=0)
            for s in range(2): A(f'global_load_dwordx4 {vr(OX+4*s,4)}, v85, s[42:43] offset:{128*s} sc1')
            A(f's_waitcnt vmcnt(2) lgkmcnt(0)')
            trread(2)
            stamp(8)
            stamp(9)
            A('s_waitcnt lgkmcnt(0)\ns_branch L_wochk')
    else: stamp(9)
    OX = 120
    if WDEF: pass
    elif G1:
        L = lab('sw'); D = lab('swd')
        A(f'{L}:\ns_load_dwordx16 s[16:31], s[52:53], 0 glc\ns_load_dwordx4 s[32:35], s[52:53], 64 glc\ns_load_dwordx4 s[44:47], s[52:53], 80 glc\ns_load_dwordx8 s[60:67], s[52:53], 96 glc\ns_waitcnt lgkmcnt(0)')
        A('s_add_u32 s3, s18, s22\ns_add_u32 s7, s26, s30\ns_add_u32 s3, s3, s34\ns_add_u32 s7, s7, s46\ns_add_u32 s3, s3, s62\ns_add_u32 s7, s7, s66\ns_add_u32 s3, s3, s7\ns_lshl_b32 s7, s14, 3')
        A(f's_cmp_eq_u32 s3, s7\ns_cbranch_scc1 {D}')
        spin_tail(L, 0)
        A(f'{D}:')
    else:
        L = lab('wg'); D = lab('wgd')
        set_exec(0x01010101, 0x01010101)
        A(f'{L}:\nglobal_load_dwordx4 v[108:111], v91, s[42:43] sc1\ns_waitcnt vmcnt(0)\nv_cmp_ne_u64 vcc, s[14:15], v[110:111]\ns_bcnt1_i32_b64 s3, vcc\ns_cmp_le_u32 s3, {GATE}\ns_cbranch_scc1 {D}')
        spin_tail(L, GSL)
        A(f'{D}:')
    stamp(3)
    if stamps == 1: A('s_mov_b32 s82, s58')
    L = lab('wo'); L2 = lab('wp'); D = lab('woq')
    if not WDEF: A(f'{L}:\ns_mov_b64 exec, -1')
    A(f'{L2}:')
    assert WDEF
    for s in range(2): A(f'global_load_dwordx4 {vr(OX+4*s,4)}, v85, s[42:43] offset:{128*s} sc1')
    A(f'''L_wochk:
    s_waitcnt vmcnt(1)
    v_perm_b32 v136, v{OX+3}, v{OX+1}, v118
    ds_write2_b32 v119, v{OX}, v{OX+2} offset0:0 offset1:1
    ds_write_b8_d16_hi v134, v{OX+3} offset:1538
    ds_write_b32 v119, v136 offset:8
    v_bitop3_b32 v92, v{OX+3}, v91, v128 bitop3:0x28
    v_xor_b32 v93, s26, v{OX+1}
    s_waitcnt vmcnt(0)
    v_perm_b32 v137, v{OX+7}, v{OX+5}, v118
    ds_write2_b32 v119, v{OX+4}, v{OX+6} offset0:24 offset1:25
    ds_write_b32 v119, v137 offset:104
    s_mov_b64 s[8:9], exec
    s_mov_b64 exec, -1
    ds_read_b64 v[142:143], v135 offset:1536''')
    for s in range(3): A(f'ds_read_b128 {vr(AA+4*s,4)}, v133 offset:{64*s}')
    A(f'''s_mov_b64 exec, s[8:9]
    v_bitop3_b32 v94, v{OX+5}, v{OX+7}, s26 bitop3:0x7e
    v_bitop3_b32 v93, v93, v94, v98 bitop3:0xa8
    v_or_b32 v90, v92, v93
    v_cmp_ne_u32 vcc, 0, v90
    s_wqm_b64 exec, vcc
    s_cbranch_scc0 {D}''')
    spin_tail(L2, OSL)
    A(f'{D}:\ns_mov_b64 exec, -1\ns_waitcnt lgkmcnt(0)\nv_and_b32 v142, v98, v142')
    stamp(2)
    if stamps == 1: A('s_sub_u32 s82, s82, s58')
    fac = [f'v_max_f32 v116, v142, v142 quad_perm:[1,0,3,2] {DPPF}',
           f'v_max_f32 v116, v116, v116 quad_perm:[2,3,0,1] {DPPF}',
           f'v_max_f32 v116, v116, v116 row_half_mirror {DPPF}\nv_sub_f32 v116, v142, v116',
           f'v_mul_f32 v116, {H(LOG2E)}, v116\nv_exp_f32 v116, v116',
           f'v_mul_f32 v117, v116, v143',
           f'v_add_f32 v117, v117, v117 quad_perm:[1,0,3,2] {DPPF}',
           f'v_add_f32 v117, v117, v117 quad_perm:[2,3,0,1] {DPPF}',
           f'v_add_f32 v117, v117, v117 row_half_mirror {DPPF}\nv_rcp_f32 v117, v117',
           f'v_mul_f32 v116, v116, v117',
           '\n'.join(f'v_mov_b32 v{112+r}, v116 row_newbcast:{r} row_mask:0x5 bank_mask:0xf' for r in range(2)),
           '\n'.join(f'v_mov_b32 v{112+r}, v116 row_newbcast:{r} row_mask:0x5 bank_mask:0xf' for r in range(2, 4)),
           '\n'.join(f'v_mov_b32 v{112+r}, v116 row_newbcast:{4+r} row_mask:0xa bank_mask:0xf' for r in range(4))]
    k = 0
    for s in range(3):
        for ct in range(4):
            c = '0' if s == 0 else vr(DD+4*ct, 4)
            A(f'v_mfma_f32_16x16x32_bf16 {vr(DD+4*ct,4)}, {vr(AA+4*s,4)}, {vr(B0+(s*4+ct)*4,4)}, {c}')
            A(fac[k]); k += 1
    stamp(10)
    A('s_mov_b32 exec_lo, 0')
    for ct in (0, 2):
        A(f'v_pk_mul_f32 {vr(144+ct,2)}, {vr(DD+4*ct+4,2)}, v[112:113]\nv_pk_fma_f32 {vr(144+ct,2)}, {vr(DD+4*ct+6,2)}, v[114:115], {vr(144+ct,2)}')
    A('s_not_b64 exec, exec')
    for ct in (0, 2):
        A(f'v_pk_mul_f32 {vr(144+ct,2)}, {vr(DD+4*ct,2)}, v[112:113]\nv_pk_fma_f32 {vr(144+ct,2)}, {vr(DD+4*ct+2,2)}, v[114:115], {vr(144+ct,2)}')
    A(f's_mov_b64 exec, -1\nv_add_f32 v{DD}, v144, v145\nv_add_f32 v{DD+8}, v146, v147')
    A(f'ds_write_b32 v86, v{DD} offset:{L_PACC}\nds_write_b32 v86, v{DD+8} offset:{L_PACC + 1024}')
    A(f's_mov_b64 exec, 1\nds_add_rtn_u32 v90, v0, v89 offset:{L_CWO}\ns_mov_b64 exec, -1\nds_read_b128 v[92:95], v87 offset:{L_PACC}\nds_read_b128 v[96:99], v87 offset:{L_PACC+16}')
    A('s_waitcnt lgkmcnt(0)\nv_readfirstlane_b32 s3, v90')
    A('v_pk_add_f32 v[92:93], v[92:93], v[94:95]\nv_pk_add_f32 v[96:97], v[96:97], v[98:99]\nv_pk_add_f32 v[92:93], v[92:93], v[96:97]\nv_add_f32 v92, v92, v93\nv_bfi_b32 v92, 63, s14, v92')
    A('s_cmp_eq_u32 s3, 3\ns_cbranch_scc0 L_wonost\nglobal_store_dword v88, v92, s[42:43] sc1')
    for c in range(1, PREP): A(f'buffer_store_dword v92, v88, s[40:43], s{15+c} offen sc1')
    A('L_wonost:')
    stamp(11)
    A('s_cmp_eq_u32 s57, 2\ns_cbranch_scc1 L_act\ns_cmp_eq_u32 s57, 0\ns_cbranch_scc1 L_fin')
    L = lab('fx'); D = lab('fxd')
    A(f'{L}:\nglobal_load_dword v20, v101, s[42:43] sc1\ns_waitcnt vmcnt(0)\nv_xor_b32 v21, s14, v20\nv_lshlrev_b32 v21, 16, v21\nv_cmp_ne_u32 vcc, 0, v21\ns_cbranch_vccz {D}')
    spin_tail(L, 1)
    A(f'{D}:')
    def pend_poll(loads, regs, init, tmp, pre_sleep=0):
        n = len(loads)
        M = [f's[{62+2*k}:{63+2*k}]' for k in range(n)]
        for k in range(n): A(f's_mov_b64 {M[k]}, {init}')
        if FREE:
            for k in range(n): A(f'v_not_b32 v{regs[k]}, s14')
        L = lab('pl'); D = lab('pld')
        A(f'{L}:')
        for k in range(n): A(f's_mov_b64 exec, {M[k]}\n{loads[k]}')
        A(f's_mov_b64 exec, {init}')
        for k in range(n):
            r = regs[k]
            if not FREE: A(f's_waitcnt vmcnt({n-1-k})')
            elif k == 0: A(f's_waitcnt vmcnt({CAP*n})' + (f'\ns_sleep {FS}' if FS else ''))
            A(f'v_bitop3_b32 v{tmp}, v{r}, v{r+1}, s14 bitop3:0x7e\nv_bitop3_b32 v{tmp+1}, v{r+2}, v{r+3}, s14 bitop3:0x7e\nv_bitop3_b32 v{tmp}, v{tmp}, v{tmp+1}, 15 bitop3:0xa8\nv_cmp_ne_u32 {M[k]}, 0, v{tmp}')
        A(f's_or_b64 s[8:9], {M[0]}, {M[1]}')
        for k in range(2, n): A(f's_or_b64 s[8:9], s[8:9], {M[k]}')
        A(f's_cbranch_scc0 {D}')
        spin_tail(L, 0)
        A(f'{D}:')
    if G4: sgate('s[54:55]', [2560*((k*96)//G4 + (k*5) % (96//G4)) for k in range(G4)], list(range(16, 32)), 15)
    elif FG:
        L = lab('fg'); D = lab('fgd')
        if FGX:
            A(f's_mul_i32 s3, s6, {12*2560}\ns_lshl_b32 s7, s10, 5\ns_add_u32 s3, s3, s7\ns_add_u32 s3, s3, {R_DN}\nv_mul_u32_u24 v27, 2560, v2\nv_add_u32 v27, s3, v27')
        set_exec(FG & 0xffffffff, FG >> 32)
        A(f'{L}:\nglobal_load_dwordx4 v[8:11], {"v27" if FGX else "v104"}, s[42:43] sc1\ns_waitcnt vmcnt(0)\nv_bitop3_b32 v90, v8, v9, s14 bitop3:0x7e\nv_bitop3_b32 v91, v10, v11, s14 bitop3:0x7e\nv_bitop3_b32 v90, v90, v91, 63 bitop3:0xa8\nv_cmp_eq_u32 vcc, 0, v90')
        if FGX > 1: A(f's_bcnt1_i32_b64 s3, vcc\ns_cmp_ge_u32 s3, {FGX}\ns_cbranch_scc1 {D}')
        else: A(f's_cbranch_vccnz {D}')
        A(f's_sub_u32 s58, s58, 1\ns_cbranch_scc0 {L}\ns_branch L_fin\n{D}:\ns_mov_b64 exec, -1')
    elif FSL: A(f's_sleep {FSL}')
    L = lab('fi'); D = lab('fid')
    A(f'{L}:')
    for k in range(3): A(f'global_load_dwordx4 {vr(8+4*k,4)}, v{103+k}, s[42:43] sc1')
    A('s_waitcnt vmcnt(1)')
    untag(8, 8)
    A('v_pk_add_f32 v[22:23], v[8:9], v[12:13]\nv_pk_add_f32 v[24:25], v[10:11], v[14:15]\nv_or3_b32 v90, v8, v9, v10\nv_or3_b32 v91, v11, v12, v13\ns_waitcnt vmcnt(0)')
    untag(16, 4)
    A(f'''v_pk_add_f32 v[22:23], v[22:23], v[16:17]
    v_pk_add_f32 v[24:25], v[24:25], v[18:19]
    v_or3_b32 v90, v90, v14, v15
    v_or3_b32 v91, v91, v16, v17''')
    if PD:
        A(f'''v_or3_b32 v90, v90, v18, v19
        v_bitop3_b32 v90, v90, v91, 63 bitop3:0xa8
        v_cmp_ne_u32 vcc, 0, v90
        s_wqm_b64 exec, vcc
        s_cbranch_scc0 {D}''')
        spin_tail(L, 0)
        A(f'''{D}:
        s_mov_b64 exec, -1
        v_permlane32_swap_b32 v22, v24
        v_permlane32_swap_b32 v23, v25
        v_pk_add_f32 v[22:23], v[22:23], v[24:25]
        v_permlane16_swap_b32 v22, v23
        v_add_f32 v26, v22, v23''')
    else:
        A(f'''v_permlane32_swap_b32 v22, v24
        v_permlane32_swap_b32 v23, v25
        v_pk_add_f32 v[22:23], v[22:23], v[24:25]
        v_or3_b32 v90, v90, v18, v19
        v_bitop3_b32 v90, v90, v91, 63 bitop3:0xa8
        v_permlane16_swap_b32 v22, v23
        v_add_f32 v26, v22, v23
        v_cmp_ne_u32 vcc, 0, v90
        s_cbranch_vccz {D}''')
        spin_tail(L, 0)
        A(f'{D}:')
    A(f'v_add_f32 v26, v26, v26 row_ror:2 {DPPF}')
    stamp(12)
    A(f'v_add_f32 v26, v26, v26 row_ror:4 {DPPF}\nv_and_b32 v20, 0xffff0000, v20\nv_add_f32 v26, v26, v26 row_ror:8 {DPPF}')
    A('v_cvt_pk_bf16_f32 v26, v26, v26\nv_and_b32 v26, 0xffff0000, v26\nv_mul_f32 v26, v26, v106\nv_cvt_pk_bf16_f32 v26, v26, v26\nv_and_b32 v26, 0xffff0000, v26')
    A('v_add_f32 v26, v26, v20\nv_cvt_pk_bf16_f32 v26, v26, v26')
    set_exec(0x00030003, 0x00030003)
    A(f'global_store_short v100, v26, s[38:39] {OF}')
    stamp(13)
    A('s_branch L_fin' if stamps else 's_endpgm')

    A('L_tailB:')
    A(f's_setprio {CP}')
    lds_wait_ge(L_CQ, 5, 'v0', 'v90', sleep=8)
    getpol()
    calc_t('s12')
    G0 = 8; U0 = 28; WD = 48
    P0 = 100; HA = 100
    A(f'''s_and_b32 s57, s12, 3
    s_mul_i32 s13, s57, 160
    s_mul_i32 s3, s4, 40
    v_lshl_add_u32 v80, v5, 2, s3
    v_add_u32 v81, v80, v4
    v_lshlrev_b32 v85, 1, v81
    v_add_u32 v81, s13, v81
    v_lshlrev_b32 v82, 1, v81
    v_lshlrev_b32 v86, 2, v81
    v_add_u32 v80, s13, v80
    s_add_u32 s44, s42, {R_MOD + 5120}
    s_addc_u32 s45, s43, 0
    s_mov_b32 s46, {2*15360}
    s_movk_i32 s20, 5120
    s_movk_i32 s21, 15360
    s_movk_i32 s22, {15360 + 5120}
    v_lshrrev_b32 v84, 1, v4
    v_lshlrev_b32 v84, 14, v84
    v_and_b32 v90, 1, v4
    v_lshl_add_u32 v84, v90, 12, v84
    v_lshl_add_u32 v84, v80, 2, v84
    s_bfe_u32 s3, s6, 0x10001
    s_lshl_b32 s3, s3, 4
    s_lshr_b32 s7, s6, 2
    s_add_u32 s3, s3, s7
    s_lshl_b32 s3, s3, 13
    {'s_xor_b32 s3, s3, s27' if VT else ''}
    s_add_u32 s3, s3, {RP}
    s_add_u32 s48, s42, s3
    s_addc_u32 s49, s43, 0
    s_mov_b32 s50, {131072 - 8192}''')
    set_exec(0x03ff03ff, 0x03ff03ff)
    A('global_load_ushort v71, v82, s[16:17]')
    A('s_andn2_b32 s3, s12, 3\ns_add_u32 s3, s3, s4\ns_lshl_b32 s3, s3, 2\nv_mov_b32 v112, s3')
    L = lab('mf')
    A(f'{L}:')
    A(f'global_load_dword v108, v112, s[42:43] offset:{R_XC} sc1')
    for k, (so, off) in enumerate((('0', 0), ('s21', 0), ('0', 2560), ('s21', 2560), ('s20', 0), ('s22', 0))):
        A(f'buffer_load_dword v{100+k}, v86, s[44:47], {so} offen offset:{off} sc1')
    A('s_waitcnt vmcnt(0)')
    untag(100, 6)
    ortree([v(100+i) for i in range(6)], 'v90')
    A('''v_xor_b32 v113, s14, v108
    v_and_b32 v113, -16, v113
    v_min_u32 v113, 1, v113
    v_or_b32 v90, v90, v113''')
    tag_end('v90', L, 16)
    A('v_readfirstlane_b32 s16, v108\ns_getreg_b32 s3, hwreg(HW_REG_XCC_ID, 0, 4)\ns_xor_b32 s16, s16, s3\ns_and_b32 s16, s16, 15')
    for k in range(3): A(f'v_add_f32 v{68+k}, v{100+2*k}, v{101+2*k}')
    round_list(['v68', 'v69', 'v70'], ['v90', 'v91'])
    A('v_lshlrev_b32 v71, 16, v71\nv_add_f32 v70, 1.0, v70')
    round_list(['v70'], ['v90'])
    A(f'''v_mov_b32 v90, 1.0
    ds_write_b16_d16_hi v85, v70 offset:{L_A}
    ds_write_b16_d16_hi v85, v69 offset:{L_A + LAP}
    ds_write_b16_d16_hi v85, v90 offset:{L_A + 5*LAP}
    s_mov_b64 exec, -1
    v_add_u32 v86, {R_X1}, v86''')
    A(f'''v_mul_u32_u24 v72, 3072, v3
    v_and_b32 v73, 16, v2
    v_lshlrev_b32 v73, {1 if SWZ else 8}, v73
    v_and_b32 v73, 32, v73
    s_and_b32 s3, s4, {1 if SWZ else 0}
    s_lshl_b32 s3, s3, 6
    v_or_b32 v73, s3, v73
    v_xor_b32 v73, v73, v1
    v_add_u32 v72, v72, v73
    s_lshr_b32 s3, s12, 2
    s_lshl_b32 s3, s3, 7
    s_lshl_b32 s7, s57, 2
    s_add_u32 s7, s7, s4
    s_mul_i32 s7, s7, {40*3072}
    s_add_u32 s3, s3, s7
    s_add_u32 s44, s28, s3
    s_addc_u32 s45, s29, 0
    s_mov_b32 s46, {40*3072}
    s_add_u32 s52, s30, s3
    s_addc_u32 s53, s31, 0
    s_mov_b32 s54, {40*3072}
    s_mov_b32 s55, 0x20000
    s_mul_i32 s11, s4, 5120
    s_add_u32 s7, s11, {L_W}''')
    A(f'''v_lshl_add_u32 v87, v4, 3, v6
    v_lshl_add_u32 v87, v87, 7, v7
    v_and_b32 v88, 1, v4
    v_lshrrev_b32 v89, 1, v6
    v_lshl_or_b32 v89, v88, 1, v89
    v_and_b32 v89, {3 if SWZ else 0}, v89
    v_xor_b32 v89, s4, v89
    v_lshl_add_u32 v87, v89, 5, v87
    v_mov_b32 v79, 1''')
    if TLB in (1, 2):
        if TLB == 1: lds_wait_ge(L_CSTAT, 1, 'v0', 'v90', sleep=2)
        A(f's_cmp_eq_u32 s4, 2\ns_cbranch_scc0 L_nowarmB\n{own_o}\nv_lshl_add_u32 v90, v2, 7, s3\ns_mov_b64 exec, 15\nglobal_load_dword v167, v90, s[42:43] sc1\ns_mov_b64 exec, -1\nL_nowarmB:')
    A(f'''v_min_u32 v76, 5, v5
    v_mul_u32_u24 v76, {LAP}, v76
    v_lshl_add_u32 v76, v4, 4, v76
    s_andn2_b32 s3, s12, 3
    s_add_u32 s3, s3, s4
    s_lshl_b32 s3, s3, 2
    s_add_u32 s3, s3, s57
    s_mul_i32 s3, s3, 640
    s_add_u32 s3, s3, {R_GU}
    v_min_u32 v77, 16, v2
    v_lshl_add_u32 v77, v77, 4, s3
    s_mov_b32 s20, 32768
    s_mov_b32 s21, 65536
    s_mov_b32 s22, 98304
    v_cmp_eq_u32 s[34:35], 20, v2
    s_mov_b32 s18, 0x03ff03ff
    s_mov_b32 s19, 0x03ff03ff
    s_and_b32 s17, s14, 0xffff''')
    tailtags()
    A('s_mov_b32 s56, 0')
    if LS: lds_wait_ge(L_CSTAT, 1, 'v0', 'v90', sleep=LS)
    if BP: lds_wait_ge(L_CSTAT, BPC, 'v0', 'v90', sleep=1)
    for n in range(5):
        if n == BP:
            lds_wait_ge(L_CO, 9, 'v0', 'v90', sleep=1)
            stamp(6)
            if BDL: A(f's_sleep {BDL}')
            if BG:
                L = lab('bg'); D = lab('bgd'); W = lab('bgw')
                A(f's_cmp_eq_u32 s4, 0\ns_cbranch_scc0 {W}\ns_mul_i32 s8, s5, {TKS}\ns_add_u32 s8, s8, {R_TK2 + 4}')
                A(f'{L}:\ns_load_dword s3, s[42:43], s8 glc\ns_waitcnt lgkmcnt(0)\ns_cmp_ge_u32 s3, {BG}\ns_cbranch_scc1 {D}')
                spin_tail(L, 1)
                A(f'{D}:\nds_write_b32 v0, v79 offset:{L_TRIG}\n{W}:')
                lds_wait_ge(L_TRIG, 1, 'v0', 'v90', sleep=0)
        A(f'''s_mov_b32 m0, s7
        s_add_u32 s3, s7, 20480
        buffer_load_dwordx4 v72, s[44:47], s56 offen nt lds
        s_mov_b32 m0, s3
        s_add_u32 s7, s7, 1024
        buffer_load_dwordx4 v72, s[52:55], s56 offen nt lds''')
        if n < 4: A(f'v_xor_b32 v72, {64 if SWZ else 0}, v72\ns_add_u32 s56, s56, {8*3072}')
    def p_loads():
        for i in range(4): A(f'buffer_load_dwordx4 {vr(P0+4*i,4)}, v84, s[48:51], {["0","s20","s21","s22"][i]} offen sc1')
    A(f's_waitcnt vmcnt({PE})\ns_mov_b64 exec, s[18:19]')
    p_loads()
    A(f's_waitcnt vmcnt(4)\ns_mov_b64 exec, 1\nds_add_u32 v0, v79 offset:{L_WRDY}\ns_mov_b64 exec, -1')
    stamp(7)
    lds_wait_ge(L_WRDY, 4, 'v0', 'v90', sleep=0)
    for s in range(5):
        for hf in range(2):
            A(f'ds_read_b64_tr_b16 {vr(G0+4*s+2*hf,2)}, v87 offset:{L_W + (32*s+4*hf)*128}')
            A(f'ds_read_b64_tr_b16 {vr(U0+4*s+2*hf,2)}, v87 offset:{L_W + 20480 + (32*s+4*hf)*128}')
    stamp(8)
    stamp(9)
    A('s_mov_b64 exec, s[18:19]\ns_branch L_pchk')
    L = lab('pp'); D = lab('ppd')
    A(f'{L}:')
    p_loads()
    A('L_pchk:')
    A('s_waitcnt vmcnt(2)')
    untag(P0, 8)
    A(f'v_pk_add_f32 v[96:97], {vr(P0,2)}, {vr(P0+4,2)}\nv_pk_add_f32 v[98:99], {vr(P0+2,2)}, {vr(P0+6,2)}\nv_or3_b32 v90, v100, v101, v102\nv_or3_b32 v91, v103, v104, v105\nv_or3_b32 v90, v90, v106, v107')
    A('s_waitcnt vmcnt(1)')
    untag(P0+8, 4)
    A(f'v_pk_add_f32 v[96:97], v[96:97], {vr(P0+8,2)}\nv_pk_add_f32 v[98:99], v[98:99], {vr(P0+10,2)}\nv_or3_b32 v91, v91, v108, v109\nv_or3_b32 v90, v90, v110, v111')
    A('s_waitcnt vmcnt(0)')
    untag(P0+12, 4)
    A(f'''v_pk_add_f32 v[96:97], v[96:97], {vr(P0+12,2)}
    v_pk_add_f32 v[98:99], v[98:99], {vr(P0+14,2)}
    v_or3_b32 v91, v91, v112, v113
    v_or3_b32 v90, v90, v114, v115''')
    if PP:
        A(f'''v_bitop3_b32 v90, v90, v91, 63 bitop3:0xa8
        v_cmp_ne_u32 vcc, 0, v90
        s_wqm_b64 vcc, vcc
        s_and_b64 exec, vcc, s[18:19]
        s_cbranch_scc0 {D}''')
        spin_tail(L, PSL)
        A(f'''{D}:
        s_mov_b64 exec, s[18:19]
        v_permlane32_swap_b32 v96, v98
        v_permlane32_swap_b32 v97, v99
        v_pk_add_f32 v[96:97], v[96:97], v[98:99]
        v_permlane16_swap_b32 v96, v97
        v_add_f32 v96, v96, v97
        v_cvt_pk_bf16_f32 v96, v96, v96''')
    else:
        A(f'''v_permlane32_swap_b32 v96, v98
        v_permlane32_swap_b32 v97, v99
        v_pk_add_f32 v[96:97], v[96:97], v[98:99]
        v_bitop3_b32 v90, v90, v91, 63 bitop3:0xa8
        v_cmp_ne_u32 vcc, 0, v90
        v_permlane16_swap_b32 v96, v97
        v_add_f32 v96, v96, v97
        v_cvt_pk_bf16_f32 v96, v96, v96
        s_cbranch_vccz {D}''')
        spin_tail(L, PSL)
        A(f'{D}:')
    stamp(10)
    A('''v_and_b32 v96, 0xffff0000, v96
    v_mul_f32 v96, v96, v68
    v_cvt_pk_bf16_f32 v96, v96, v96
    v_and_b32 v96, 0xffff0000, v96
    v_add_f32 v96, v96, v71
    v_cvt_pk_bf16_f32 v96, v96, v96
    v_and_b32 v96, 0xffff0000, v96
    v_mul_f32 v97, v96, v70''')
    A(f'ds_write_b16_d16_hi v85, v96 offset:{L_A + 4*LAP}\nv_and_b32 v98, 0xffff0000, v97\nds_write_b16_d16_hi v85, v97 offset:{L_A + 2*LAP}\nv_sub_f32 v98, v97, v98\nds_write_b16_d16_hi v85, v98 offset:{L_A + 3*LAP}')
    A(f's_mov_b64 exec, 1\nds_add_u32 v0, v79 offset:{L_CA}\ns_mov_b64 exec, -1')
    L = lab('h2'); D = lab('h2d')
    A(f'{L}:\nds_read_b32 v90, v0 offset:{L_CA}')
    for s in range(5): A(f'ds_read_b128 {vr(HA+4*s,4)}, v76 offset:{L_A + 64*s}')
    A(f'L_h2w:\ns_waitcnt lgkmcnt(0)\nv_cmp_gt_u32 vcc, 4, v90\ns_cbranch_vccz {D}')
    spin_tail(L, 0)
    A(f'{D}:')
    for s in range(5):
        A(f'v_mfma_f32_16x16x32_bf16 v[128:131], {vr(HA+4*s,4)}, {vr(HA+4*s,4)}, {"0" if s==0 else "v[128:131]"}')
        A(f'v_mfma_f32_16x16x32_bf16 v[120:123], {vr(HA+4*s,4)}, {vr(G0+4*s,4)}, {"0" if s==0 else "v[120:123]"}')
    for s in range(5):
        A(f'v_mfma_f32_16x16x32_bf16 v[124:127], {vr(HA+4*s,4)}, {vr(U0+4*s,4)}, {"0" if s==0 else "v[124:127]"}')
    A('''v_or_b32 v96, s17, v96
    s_cmp_eq_u32 s16, 0
    s_mov_b64 exec, 0x10ffff
    v_add_f32 v122, v122, v123
    v_mov_b32 v123, s14
    v_cndmask_b32 v120, v120, v128, s[34:35]
    v_cndmask_b32 v121, v121, v129, s[34:35]
    s_cbranch_scc0 L_guslow
    global_store_dwordx4 v77, v[120:123], s[42:43]
    v_add_f32 v126, v126, v127
    v_mov_b32 v127, s14
    s_mov_b64 exec, 0xffff
    global_store_dwordx4 v77, v[124:127], s[42:43] offset:384
    L_gust:''')
    stamp(11)
    A(f'''s_lshl2_add_u32 s3, s12, s4
    s_cmp_eq_u32 s3, 32
    s_cbranch_scc0 L_noep
    s_mov_b64 exec, 1
    v_mov_b32 v90, s14
    v_mov_b32 v91, s15
    global_store_dwordx2 v0, v[90:91], s[42:43] offset:{R_E} sc1
    L_noep:''')
    A('''s_cmp_lt_u32 s12, 4
    s_cbranch_scc0 L_fin
    s_mov_b64 exec, s[18:19]
    global_store_dword v86, v96, s[42:43] sc1
    s_branch L_fin
    L_guslow:
    global_store_dwordx4 v77, v[120:123], s[42:43] sc1
    v_add_f32 v126, v126, v127
    v_mov_b32 v127, s14
    s_mov_b64 exec, 0xffff
    global_store_dwordx4 v77, v[124:127], s[42:43] offset:384 sc1
    s_branch L_gust''')

    A('L_act:')
    if ADM == 0:
        lds_wait_ge(L_CWO, 4, 'v0', 'v90', sleep=0)
        act_dma()
    def gu_loads():
        for k in range(4): A(f'global_load_dwordx4 {vr(100+4*k,4)}, v165, s[42:43] offset:{640*k} sc1')
    A(f's_mov_b32 s38, 0xff01ff\ns_mov_b32 s39, 0xff00ff\ns_lshl_b32 s11, s14, 2\nv_mov_b32 v93, {H(1/640)}')
    A('s_mov_b64 exec, s[38:39]')
    gu_loads()
    A('s_mov_b64 exec, -1')
    if ADM == 0: A('s_waitcnt vmcnt(4)')
    for s in range(5):
        for hf in range(2):
            A(f'ds_read_b64_tr_b16 {vr(WD+4*s+2*hf,2)}, v132 offset:{4*hf*320 + 64*s}')
    stamp(7)
    A('s_mov_b64 exec, s[38:39]\ns_branch L_guw')
    L = lab('gu'); D = lab('gud')
    A(f'{L}:')
    gu_loads()
    A(f'''L_guw:
    s_waitcnt vmcnt(0)
    v_pk_add_f32 v[140:141], v[100:101], v[104:105]
    v_pk_add_f32 v[142:143], v[108:109], v[112:113]
    v_add3_u32 v90, v103, v107, v111
    v_pk_add_f32 v[140:141], v[140:141], v[142:143]
    v_add_u32 v90, v90, v115
    v_readlane_b32 s8, v140, 8
    v_readlane_b32 s9, v141, 8
    v_cmp_ne_u32 vcc, s11, v90
    s_cbranch_vccz {D}''')
    spin_tail(L, GUS)
    A(f'{D}:')
    stamp(13)
    K0 = -2.0 * LOG2E * 0.7978845608028654
    A(f'''v_mul_f32 v94, s9, v93
    v_mul_f32 v95, s8, v93
    v_add_f32 v148, v102, v106
    v_fma_f32 v95, -v94, v94, v95
    v_add_f32 v149, v110, v114
    v_max_f32 v95, 0, v95
    v_cvt_pk_bf16_f32 v90, v94, v95
    v_add_f32 v148, v148, v149
    v_and_b32 v95, 0xffff0000, v90
    v_lshlrev_b32 v94, 16, v90
    v_add_f32 v95, {H(1e-5)}, v95
    v_cvt_pk_bf16_f32 v95, v95, v95
    v_fma_f32 v148, -v94, v140, v148
    v_and_b32 v95, 0xffff0000, v95
    v_sqrt_f32 v95, v95
    v_cvt_pk_bf16_f32 v95, v95, v95
    v_and_b32 v95, 0xffff0000, v95
    v_rcp_f32 v95, v95
    s_mov_b64 exec, -1
    v_fma_f32 v152, v148, v95, v141
    v_cvt_pk_bf16_f32 v152, v152, v152
    v_and_b32 v154, 0xffff0000, v152
    v_and_b32 v152, 0xffff0000, v152
    v_mov_b32 v155, {H(K0)}
    v_permlane32_swap_b32 v152, v154
    v_mul_f32 v153, v152, v152
    v_fmac_f32 v155, {H(K0*0.044715)}, v153
    v_mul_f32 v155, v155, v152
    v_exp_f32 v155, v155
    v_add_f32 v155, 1.0, v155
    v_rcp_f32 v155, v155
    v_mul_f32 v152, v152, v155
    v_cvt_pk_bf16_f32 v152, v152, v152
    v_and_b32 v152, 0xffff0000, v152
    v_mul_f32 v152, v152, v154
    s_waitcnt lgkmcnt(0)''')
    A(f'v_mov_b32 v153, v152 quad_perm:[1,0,3,2] {DPPF}\nv_cvt_pk_bf16_f32 v152, v152, v153')
    for m in range(5):
        F = 8 + 4*m
        for d in range(4): A(f'v_and_b32 v{F+d}, v152, v{160+m} row_newbcast:{2*d} {DPPF}')
        if m >= 1: A(f'v_mfma_f32_16x16x32_bf16 v[156:159], {vr(WD+4*(m-1),4)}, {vr(F-4,4)}, {"0" if m==1 else "v[156:159]"}')
    A(f'v_mfma_f32_16x16x32_bf16 v[156:159], {vr(WD+16,4)}, v[24:27], v[156:159]')
    set_exec(0x03ff03ff, 0x03ff03ff)
    for i in range(4): A(f'v_bfi_b32 v{156+i}, 63, s14, v{156+i}')
    A('global_store_dwordx4 v166, v[156:159], s[42:43] sc1')
    stamp(12)
    if CLN:
        A('s_mov_b64 exec, s[38:39]')
        for k in range(4):
            Lk = lab('cl')
            A(f's_cmp_eq_u32 s4, {k}\ns_cbranch_scc0 {Lk}\nglobal_store_dwordx4 v165, {vr(100+4*k,4)}, s[42:43] offset:{640*k} sc1\n{Lk}:')

    A('L_fin:')
    if stamps == 3:
        A('s_cmp_lt_u32 s4, 4\ns_cbranch_scc0 L_end\ns_cmp_ge_u32 s2, 96\ns_cbranch_scc0 L_end\ns_cmp_eq_u32 s57, 1\ns_cbranch_scc0 L_end')
    if stamps:
        A('s_memrealtime s[98:99]\ns_waitcnt vmcnt(0) lgkmcnt(0)\ns_mov_b64 exec, 1')
        A(f's_mul_i32 s3, s2, 12\ns_add_u32 s3, s3, s4\ns_lshl_b32 s3, s3, 6\ns_add_u32 s3, s3, {R_STAMP}\nv_mov_b32 v0, s3')
        for i in range(15): A(f'v_mov_b32 v{8+i}, s{70+2*i}')
        A('v_mov_b32 v23, s58')
        for i in range(4): A(f'global_store_dwordx4 v0, {vr(8+4*i,4)}, s[42:43] offset:{16*i}')
    A('L_end:\ns_endpgm')
    inv = {'s_cbranch_vccz': 's_cbranch_vccnz', 's_cbranch_vccnz': 's_cbranch_vccz', 's_cbranch_scc0': 's_cbranch_scc1', 's_cbranch_scc1': 's_cbranch_scc0'}
    cold = []
    k = 0
    end_i = A.L.index('L_fin:')
    while k < len(A.L):
        p = A.L[k].split()
        if p[0] in inv and len(p) == 2:
            labl = p[1] + ':'
            if labl in A.L[k:k+24]:
                e = A.L.index(labl, k)
                body = A.L[k+1:e]
                if body and body[-1] == 's_branch L_fin' and 's_sub_u32 s58, s58, 1' in body and len(body) <= 5:
                    R = lab('rt')
                    cold += [R + ':'] + body
                    A.L[k:e] = [f'{inv[p[0]]} {R}']
        k += 1
    k = A.L.index('L_end:')
    assert A.L[k+1] == 's_endpgm'
    A.L[k+2:k+2] = cold
    A.L.append('L_last:')
    A.L = [l.replace('L_end-L_base-12', 'L_last-L_base-16') for l in A.L]
    import re as _re
    for k, l in enumerate(A.L):
        if l.startswith('s_load_dwordx4 s[40:43], s[0:1], 96'):
            A.L[k] = 's_load_dwordx2 s[40:41], s[0:1], 104'; continue
        m = _re.match(r'global_load_(\w+) (\S+), (v\d+), s\[(42:43|52:53)\](.*)', l)
        if m:
            A.L[k] = f'buffer_load_{m.group(1)} {m.group(2)}, {m.group(3)}, s[40:43], {"0" if m.group(4)=="42:43" else "s52"} offen{m.group(5)}'; continue
        m = _re.match(r'global_store_(\w+) (v\d+), (\S+), s\[(42:43|52:53)\](.*)', l)
        if m:
            A.L[k] = f'buffer_store_{m.group(1)} {m.group(3)}, {m.group(2)}, s[40:43], {"0" if m.group(4)=="42:43" else "s52"} offen{m.group(5)}'; continue
        A.L[k] = _re.sub(r'\bs43\b', 's41', _re.sub(r'\bs42\b', 's40', l.replace('s[42:43]', 's[40:41]')))
    k = A.L.index('s_mov_b32 s47, 0x20000')
    A.L[k:k] = ['s_mov_b32 s42, 0x200000', 's_mov_b32 s43, 0x20000']
    npad = A.pad()
    NOTES = {'L_base:': '; ---- entry: streaming waves issue their first K loads straight away', 'L_pro2:': '; ---- common set-up, role dispatch (waves 0-3 control, 4-11 stream K/V)', 'L_load10:': '; ---- 10 x (8 rows x 128 B) weight tile loads', 'L_strm:': '; ---- streaming waves: static K/V groups, q.K, online softmax, p.V by MFMA, then ticketed (K,V) units', 'L_newmax:': '; ---- running max rose: rescale accumulators', 'L_epi:': '; ---- workgroup combine of the 8 waves; last arriver publishes o, M, L as 8-byte units {3 x bf16, tag}', 'L_cN:': '; ---- idle control waves: pull the code into this L2', 'L_cA:': '; ---- class A control waves: silu(c) @ w_mod tile', 'L_cB:': '; ---- class B control waves: LayerNorm(x), h, one third of q = h @ wq', 'L_mm10:': '; ---- shared GEMV tail: MFMA with a diagonal operand, cross-wave combine, publish', 'L_hopB:': '; ---- fetch q of this head into LDS', 'L_tail:': '; ---- tail, class A: o @ wo partials (P); then activation+down or the final reduction', 'L_tailB:': '; ---- tail, class B: x1, gate/up partials with LayerNorm applied after the GEMV', 'L_act:': '; ---- LayerNorm statistics, GELU(gate)*up, down-projection partials', 'L_end:': '; ---- exit; retry tails of the polling loops follow'}
    L2_ = []
    for l in A.L:
        if l in NOTES: L2_.append(NOTES[l])
        L2_.append(l)
    A.L = L2_
    hdr = open('cdna_kernels/' + NAME + '.s.ref').read().split('; Override launch')[0]
    pre = ''
    if stamps:
        pre = ''
    txt = hdr + f'''; @launch grid=(256,1,1) block=(768,1,1) lds={LDS_BYTES}
; One persistent launch, one workgroup per CU. 8 waves stream K/V (nt loads), 4 control waves run the dependent
; GEMV chain. Workgroups hand data over through d_ws; every handed-over word carries bits of a per-launch tag that is
; derived from an epoch word found in d_ws on entry (and advanced on exit), and the tag bits are removed before use.
.amdgcn_target "amdgcn-amd-amdhsa--gfx950"
.text
.globl {NAME}_kernel
.p2align 8
.type {NAME}_kernel,@function
{NAME}_kernel:
''' + pre + A.text() + f'''.section .rodata,"a"
.p2align 6
.amdhsa_kernel {NAME}_kernel
  .amdhsa_next_free_vgpr 168
  .amdhsa_next_free_sgpr 102
  .amdhsa_accum_offset 168
  .amdhsa_group_segment_fixed_size 0
  .amdhsa_kernarg_size 112
  .amdhsa_user_sgpr_count 2
  .amdhsa_user_sgpr_kernarg_segment_ptr 1
  .amdhsa_system_sgpr_workgroup_id_x 1
.end_amdhsa_kernel
'''
    return txt, npad

if __name__ == '__main__':
    kw = {}
    outp = sys.argv[1]
    for a in sys.argv[2:]:
        k, val = a.split('=')
        kw[k] = int(val) if val.lstrip('-').isdigit() else val
    txt, npad = gen(**kw)
    open(outp, 'w').write(txt)
    print('nops inserted', npad)
```
